```python
import torch

def _softmax(x, axis=-1):
    return torch.softmax(x, dim=axis)
def _gelu(x):
    return torch.nn.functional.gelu(x, approximate="tanh")
def _silu(x):
    return torch.nn.functional.silu(x)
def _sigmoid(x):
    return torch.sigmoid(x)
def _layernorm(x, axis=-1, eps=1e-5):
    m = x.mean(dim=axis, keepdim=True)
    v = x.var(dim=axis, keepdim=True, unbiased=False)
    return (x - m) / torch.sqrt(v + eps)
def _scatter_add(tgt, idx, src, axis=0):
    return tgt.clone().index_add_(axis, idx, src)
def _segment_sum(src, seg, n):
    out = torch.zeros((n,) + src.shape[1:], dtype=src.dtype)
    return out.index_add_(0, seg, src)
def _pad(x, pw):
    flat = tuple(v for pair in reversed(pw) for v in pair)
    return torch.nn.functional.pad(x, flat)

kernel_name = 'standalone__mha_block_cached__near_ridge'

def setup_inputs():

    _w = (lambda a: (lambda t: t.to(torch.bfloat16) if t.is_floating_point() else t)(torch.as_tensor(a)))
    B, Sq, D = 8, 240, 512
    H, Sk, Dh = 32, 1024, 128
    return {
        "x": _w((lambda *s: torch.randn(*s, dtype=torch.bfloat16) * 0.8)(B, Sq, D)),
        "k_cache": _w((lambda *s: torch.randn(*s, dtype=torch.bfloat16) * 0.8)(B, H, Sk, Dh)),
        "v_cache": _w((lambda *s: torch.randn(*s, dtype=torch.bfloat16) * 0.05)(B, H, Sk, Dh)),
        "wq": _w((lambda *s: torch.randn(*s, dtype=torch.bfloat16) * 0.8)(D, H * Dh) * (D ** -0.5)),
        "wo": _w((lambda *s: torch.randn(*s, dtype=torch.bfloat16) * 0.05)(H * Dh, D) * ((H * Dh) ** -0.5)),
    }

def reference(x, k_cache, v_cache, wq, wo):
    B, Sq, D = x.shape
    H, Dh = 32, 128
    q = (lambda x, *d: x.permute(*d))((x @ wq).reshape(B, Sq, H, Dh), 0, 2, 1, 3)
    scores = torch.einsum("bhqd,bhkd->bhqk", q, k_cache) * (Dh ** -0.5)
    p = _softmax(scores, axis=-1)
    o = torch.einsum("bhqk,bhkd->bhqd", p, v_cache)
    return (lambda x, *d: x.permute(*d))(o, 0, 2, 1, 3).reshape(B, Sq, H * Dh) @ wo
```

```python
import re

def R(f, a, n=1):
    return [f"{f}{a+i}" for i in range(n)]
def rng(f, a, n):
    return f"{f}{a}" if n == 1 else f"{f}[{a}:{a+n-1}]"

class I:
    __slots__ = ("t", "k", "rd", "wr", "crd", "tgt", "grp", "need", "after", "uid", "stream", "meta")
    _n = 0
    def __init__(s, t, k, rd=(), wr=(), crd=(), tgt=None, grp=None, need=None, stream=None, meta=None):
        s.t, s.k, s.rd, s.wr, s.crd = t, k, set(rd), set(wr), set(crd)
        s.rd |= s.crd
        s.tgt, s.grp, s.need, s.stream, s.meta = tgt, grp, need, stream, meta
        s.after = []
        I._n += 1; s.uid = I._n
    def __repr__(s): return s.t

def mfma(df, d, af, a, bf, b, cf=None, c=None):
    if cf is None: cf, c = df, d
    if cf == "0":
        cs, crd = "0", []
    else:
        assert cf == df
        cs, crd = rng(cf, c, 4), R(cf, c, 4)
    return I(f"v_mfma_f32_16x16x32_bf16 {rng(df,d,4)}, {rng(af,a,4)}, {rng(bf,b,4)}, {cs}", "mfma",
             rd=R(af, a, 4) + R(bf, b, 4), wr=R(df, d, 4), crd=crd)
def _regs(op):
    m = re.fullmatch(r"-?([vas])(\d+)", op)
    if m: return [m.group(1) + m.group(2)]
    m = re.fullmatch(r"-?([vas])\[(\d+):(\d+)\]", op)
    if m: return [f"{m.group(1)}{i}" for i in range(int(m.group(2)), int(m.group(3)) + 1)]
    if op in ("vcc", "m0", "exec", "scc"): return [op]
    return []
def valu(op, dst, *src, rmw=False, kind=None, extra="", **kw):
    k = kind or ("trans" if op.split("_")[1] in ("exp", "rcp", "log", "rsq", "sqrt") else "valu")
    rd = [r for s in src for r in _regs(s)]
    wr = _regs(dst)
    if rmw: rd += wr
    return I(f"{op} {dst}, " + ", ".join(src) + extra, k, rd=rd, wr=wr, **kw)
def swap(op, a, b, **kw):
    return I(f"{op} {a}, {b}", "valu", rd=[a, b], wr=[a, b], meta="permlane", **kw)
def salu(op, dst, *src, scc_w=None, scc_r=False, **kw):
    rd = [r for s in src for r in _regs(s)]
    wr = _regs(dst) if dst else []
    base = op.split("_")[1]
    if scc_w is None: scc_w = base in ("add", "sub", "addc", "and", "or", "xor", "lshl", "lshr", "cmp", "min", "max", "andn2")
    if scc_w: wr.append("scc")
    if scc_r or base in ("cselect", "addc"): rd.append("scc")
    ops = ([dst] if dst else []) + list(src)
    return I(f"{op} " + ", ".join(ops), "salu", rd=rd, wr=wr, **kw)
def ds_b128(df, d, addr, off, **kw):
    assert 0 <= off < 65536 and off % 16 == 0, off
    return I(f"ds_read_b128 {rng(df,d,4)}, {addr} offset:{off}", "lds", rd=[addr], wr=R(df, d, 4), **kw)
def ds_tr(df, d, addr, off, **kw):
    assert 0 <= off < 65536 and off % 8 == 0
    return I(f"ds_read_b64_tr_b16 {rng(df,d,2)}, {addr} offset:{off}", "lds", rd=[addr], wr=R(df, d, 2), **kw)
def ds_w128(addr, sf, s, off, **kw):
    return I(f"ds_write_b128 {addr}, {rng(sf,s,4)} offset:{off}", "ldsw", rd=[addr] + R(sf, s, 4), **kw)
def dma(voff, srd, soff, off, flags="", **kw):
    assert 0 <= off < 4096
    f = (" " + flags) if flags else ""
    return I(f"buffer_load_dwordx4 {voff}, s[{srd}:{srd+3}], {soff} offen offset:{off}{f} lds", "vmem",
             rd=[voff, "m0"] + R("s", srd, 4) + _regs(soff), meta="dma", **kw)
def bload(df, d, voff, srd, soff, off, flags="", n=4, **kw):
    f = (" " + flags) if flags else ""
    op = {1: "dword", 2: "dwordx2", 4: "dwordx4"}[n]
    return I(f"buffer_load_{op} {rng(df,d,n)}, {voff}, s[{srd}:{srd+3}], {soff} offen offset:{off}{f}", "vmem",
             rd=[voff] + R("s", srd, 4) + _regs(soff), wr=R(df, d, n), meta="load", **kw)
def bstore(sf, s, voff, srd, soff, off, flags="", n=4, **kw):
    f = (" " + flags) if flags else ""
    op = {1: "dword", 2: "dwordx2", 4: "dwordx4"}[n]
    return I(f"buffer_store_{op} {rng(sf,s,n)}, {voff}, s[{srd}:{srd+3}], {soff} offen offset:{off}{f}", "vmem",
             rd=[voff] + R("s", srd, 4) + _regs(soff) + R(sf, s, n), meta="store", **kw)
def waitvm(n, **kw): return I(f"s_waitcnt vmcnt({n})", "wait", meta=("vm", n), **kw)
def waitlg(n, **kw): return I(f"s_waitcnt lgkmcnt({n})", "wait", meta=("lg", n), **kw)
def barrier(**kw): return I("s_barrier", "bar", **kw)
def nop(n): return I(f"s_nop {n}", "nop", meta=n)
def raw(t, k="other", **kw): return I(t, k, **kw)
def label(n): return I(f"{n}:", "label")

def need_states(p, c):
    n = 0
    vec_c = c.k in ("valu", "trans")
    if p.k == "mfma":
        if p.wr & c.rd or p.wr & c.wr:
            if c.k == "mfma":
                if p.wr & (c.rd - c.crd): n = max(n, 8)
                ab = set()
                m = re.findall(r"([va])\[(\d+):(\d+)\]", c.t)
                for f, lo, hi in m[1:3]: ab |= {f"{f}{i}" for i in range(int(lo), int(hi) + 1)}
                if p.wr & ab: n = max(n, 8)
                if p.wr & c.crd and p.wr != c.crd: n = max(n, 6)
                if p.wr & c.wr and not (p.wr & c.crd): n = max(n, 6)
            else:
                n = max(n, 8)
        if vec_c and p.crd & c.wr: n = max(n, 3)
    if p.k in ("valu", "trans"):
        vw = {r for r in p.wr if r[0] in "va" and r != "vcc"}
        sw = {r for r in p.wr if r[0] == "s" or r == "vcc"}
        if c.k == "mfma" and vw & c.rd: n = max(n, 2)
        if c.meta == "permlane" and vw & c.rd: n = max(n, 2)
        if p.k == "trans" and c.k == "valu" and vw & c.rd: n = max(n, 1)
        if p.k == "trans" and c.k in ("vmem", "ldsw", "lds") and vw & c.rd: n = max(n, 1)
        if c.t.startswith("v_readfirstlane") and vw & c.rd: n = max(n, 1)
        if c.k == "vmem" and sw & c.rd: n = max(n, 5)
        if vec_c and sw & c.rd: n = max(n, 2)
        if c.k == "salu" and sw & c.rd: n = max(n, 1)
    if p.k == "salu" and "m0" in p.wr and c.k == "vmem" and "m0" in c.rd: n = max(n, 1)
    if p.k == "vmem" and p.meta == "store" and (p.rd & c.wr) and c.k in ("valu", "trans", "lds", "mfma"):
        n = max(n, 2)
    return n
def states(i):
    if i.k == "label": return 0
    if i.k == "nop": return i.meta + 1
    return 1

def fix_hazards(seq, prefix=()):
    out = list(prefix)[-24:]; npre = len(out)
    for c in seq:
        need = 0; d = 0
        for p in reversed(out[-24:]):
            n = need_states(p, c)
            if n > d: need = max(need, n - d)
            d += states(p)
            if d >= 12: break
        if need:
            out.append(nop(need - 1))
        out.append(c)
    return out[npre:]
def check_hazards(trace):
    bad = []
    for j, c in enumerate(trace):
        d = 0
        for p in reversed(trace[max(0, j - 24):j]):
            n = need_states(p, c)
            if n > d: bad.append((j, p.t, c.t, n, d))
            d += states(p)
            if d >= 12: break
    return bad

def insert_lgkm(seq, pending=None):
    q = list(pending or []); out = []
    for c in seq:
        if c.k == "wait" and c.meta[0] == "lg":
            n = c.meta[1]; q = q[len(q) - n:] if n < len(q) and n > 0 else ([] if n == 0 else q)
            out.append(c); continue
        touch = c.rd | c.wr
        idx = -1
        for x, p in enumerate(q):
            if p.wr & touch: idx = x
        if idx >= 0:
            n = len(q) - 1 - idx
            pos = len(out)
            if c.k == "mfma":
                while pos > 0 and out[pos - 1].k in ("valu", "trans"): pos -= 1
                k = pos
                if k > 0 and out[k - 1].k == "lds":
                    k -= 1; n2 = n - 1
                    if n2 >= 0 and not (out[k].wr & touch): pos, n = k, n2
            n = min(n, 15)
            w = waitlg(n)
            out.insert(pos, w)
            later = sum(1 for y in out[pos + 1:] if y.k in ("lds", "ldsw"))
            keep = n + later
            q = q[len(q) - keep:] if keep > 0 else []
        out.append(c)
        if c.k in ("lds", "ldsw"): q.append(c)
    return out, q
def check_lgkm(trace):
    q = []; bad = []
    for j, c in enumerate(trace):
        if c.k == "wait" and c.meta[0] == "lg":
            n = c.meta[1]; q = q[len(q) - n:] if 0 < n < len(q) else ([] if n == 0 else q); continue
        touch = c.rd | c.wr
        for p in q:
            if p.wr & touch: bad.append((j, p.t, c.t))
        if c.k in ("lds", "ldsw"): q.append(c)
    return bad
def check_vm(trace):
    q = []; bad = []; issued = set()
    for j, c in enumerate(trace):
        if c.k == "wait" and c.meta[0] == "vm":
            n = c.meta[1]; q = q[len(q) - n:] if 0 < n < len(q) else ([] if n == 0 else q)
            if c.need:
                for gname in c.need:
                    if any(p.grp == gname for p in q): bad.append((j, "group not complete", gname, c.t))
            continue
        touch = c.rd | c.wr
        for p in q:
            if p.wr & touch: bad.append((j, p.t, c.t))
        if c.k == "vmem":
            q.append(c)
            if len(q) > 63: bad.append((j, "vmcnt overflow", len(q)))
    return bad
def vm_count(history, groups):
    last = -1
    for x, p in enumerate(history):
        if p.grp in groups: last = x
    return len(history) - 1 - last

COST = {"valu": 4, "trans": 8, "lds": 4, "ldsw": 8, "vmem": 12}
LDS_LAT = 5
def schedule(prog, lag=3, look=2, lds_lat=LDS_LAT, budget=8):
    n = len(prog)
    preds = [[] for _ in range(n)]
    lastw = {}; readers = {}; laststream = {}
    for j, c in enumerate(prog):
        ps = set()
        for r in c.rd:
            if r in lastw: ps.add(lastw[r])
        for r in c.wr:
            if r in lastw: ps.add(lastw[r])
            for x in readers.get(r, ()): ps.add(x)
        if c.stream is not None:
            for st in (c.stream if isinstance(c.stream, (list, tuple)) else [c.stream]):
                if st in laststream: ps.add(laststream[st])
                laststream[st] = j
        for a in c.after:
            ps.add(prog.index(a))
        ps.discard(j)
        preds[j] = sorted(ps)
        for r in c.rd: readers.setdefault(r, []).append(j)
        for r in c.wr: lastw[r] = j; readers[r] = []
    mf = [j for j, c in enumerate(prog) if c.k == "mfma"]
    midx = {j: k for k, j in enumerate(mf)}
    INF = 10 ** 9
    dl = [INF] * n
    succs = [[] for _ in range(n)]
    for j in range(n):
        for p in preds[j]: succs[p].append(j)
    for j in range(n - 1, -1, -1):
        c = prog[j]
        if c.k == "mfma": dl[j] = midx[j] - 1; continue
        d = INF
        for s in succs[j]:
            ds = dl[s]
            if prog[s].k == "mfma" and c.k == "lds" and (c.wr & prog[s].rd): ds -= lds_lat
            d = min(d, ds)
        dl[j] = d
    for j, c in enumerate(prog):
        if c.k != "mfma":
            if c.tgt is None: c.tgt = min(dl[j], len(mf) - 1)
    done = [False] * n; out = []; pos = {}
    def dist_ok(j):
        c = prog[j]; d = 0
        for p in reversed(out[-20:]):
            if need_states(p, c) > d: return False
            d += states(p)
            if d >= 12: break
        return True
    def ready(j): return (not done[j]) and all(done[p] for p in preds[j])
    def emit(j):
        done[j] = True; out.append(prog[j])
    def force(j):
        for p in preds[j]:
            if not done[p]:
                assert prog[p].k != "mfma", ("filler needs a later MFMA", prog[j].t, prog[p].t)
                force(p)
        emit(j)
    fill = [j for j in range(n) if prog[j].k != "mfma"]
    def key(j): return (min(prog[j].tgt, dl[j]), j)
    def gap(g):
        used = 0; nsc = 0; first = True
        while True:
            cand = sorted((j for j in fill if ready(j) and min(prog[j].tgt, dl[j]) <= g + look), key=key)
            if not cand: break
            pick = None
            urgent = [j for j in cand if min(prog[j].tgt + lag, dl[j]) <= g]
            sc = [j for j in cand if prog[j].k in ("salu", "wait", "bar") and min(prog[j].tgt, dl[j]) <= g]
            if sc and nsc == 0 and first:
                j = sc[0]
                if dist_ok(j): emit(j); nsc += 1; continue
            vec = [j for j in cand if prog[j].k in COST and dist_ok(j)]
            fit = []
            for j in vec:
                k = prog[j].k
                if k in ("lds", "vmem", "ldsw") and not first: continue
                if k == "vmem" and min(prog[j].tgt, dl[j]) > g: continue
                if used + min(COST[k], budget) <= budget: fit.append(j)
            if fit:
                pick = fit[0]
                if first and prog[pick].k == "valu":
                    l = [j for j in fit if prog[j].k == "lds"]
                    if l: pick = l[0]
                    elif sum(1 for j in fit if prog[j].k == "valu") < 2:
                        e = [j for j in fit if prog[j].k == "trans"]
                        if e and pick not in urgent: pick = e[0]
                elif first and prog[pick].k == "lds":
                    if not any(prog[j].k == "valu" for j in fit):
                        e = [j for j in fit if prog[j].k == "trans"]
                        if e and pick not in urgent: pick = e[0]
            else:
                u = [j for j in urgent if dist_ok(j) and (prog[j].k not in ("lds", "vmem") or dl[j] <= g or first)]
                if u: pick = u[0]
            if pick is None: break
            emit(pick)
            if prog[pick].k in COST:
                used += COST[prog[pick].k]; first = False
            else: nsc += 1
    gap(-1)
    for k, j in enumerate(mf):
        for p in preds[j]:
            if not done[p]: force(p)
        emit(j)
        gap(k)
    for j in fill:
        if not done[j]: force(j)
    return out

def gap_stats(seq):
    cyc = 0; cur = None; nm = 0
    gaps = []
    for c in seq:
        if c.k == "mfma":
            if cur is not None: gaps.append(cur)
            cur = []; nm += 1
        elif c.k != "label":
            if cur is None: cyc += COST.get(c.k, 4)
            else: cur.append(c)
    if cur is not None: gaps.append(cur)
    for g in gaps:
        u = 0; sc = 0
        for x, c in enumerate(g):
            if c.k in COST:
                u += COST[c.k]
                if c.k in ("lds", "vmem") and any(y.k in COST for y in g[:x]): u += 4
            elif c.k == "nop": u += 4 * (c.meta + 1)
            else:
                sc += 1
                if sc > 1: u += 4
        cyc += max(16, 8 + u)
    return nm, cyc
def text(seq): return "\n".join(("" if c.k == "label" else "  ") + c.t for c in seq) + "\n"
```

```python
import sys, math, struct
from core import *

PIECE = 1056; GRP = 4 * PIECE; UNIT = 16 * PIECE; SLOT = 2 * UNIT
X_BASE = 3 * UNIT; W_BASE = X_BASE + 2 * SLOT; LDS1 = W_BASE + 2 * UNIT
VOTE = LDS1
QSCALE = struct.unpack("<I", struct.pack("<f", math.log2(math.e) / math.sqrt(128.0)))[0]
LIMIT = 0x4b800000

class Cfg:
    stamps = False
    kvflags = "nt"
    xflags = ""
    wflags = ""
    oflags = ""
    k2_oflags = ""
    k2_wflags = ""
    fallback = True
cfg = Cfg()

sW = 3; SX, SWQ, SK, SV, SO = 8, 12, 16, 20, 24
sB, sH, sROT = 28, 29, 30
sXb, sG = 31, 32
sT0, sT1, sT2 = 33, 34, 35
sXo, sXo2, sWo = 36, 37, 38
sKo, sVo = 46, 47
sS1, sS2, sS3 = 48, 49, 50
sT = 51; sPASS = 52; sC = 53; sWS = 44
vKrd, vVrd, vKrd0, vVrd0, vXrd, vWrd = 232, 233, 234, 235, 236, 237
vOst = 238; vLane = 239
vKV, vX, vWq = 240, 244, 248
ACC = 0; QF = 128
S_ = (0, 32); P_ = (64, 80); NEGM = 192; LSUM = 208; MTRUE = 212; TMP = 216
KF, VF = 192, 224
def acc(a, tau): return ACC + a * 32 + tau * 4
def qf(a, s): return QF + (a * 4 + s) * 4
def wset(p, s, tau): return p * 96 + (s * 8 + tau) * 4
def xset(p, s, a): return p * 96 + 64 + (s * 4 + a) * 4
def oacc(a, t): return a * 32 + t * 4
v = lambda n: f"v{n}"
s = lambda n: f"s{n}"

STAMP_BASE = 60
def stamp(i):
    if not cfg.stamps: return []
    return [raw(f"s_memrealtime s[{STAMP_BASE+4*i}:{STAMP_BASE+4*i+1}]"), raw(f"s_memtime s[{STAMP_BASE+4*i+2}:{STAMP_BASE+4*i+3}]"), waitlg(0)]
def dump_stamps(n, wsreg, off, lane, lab):
    if not cfg.stamps: return []
    o = [raw("s_waitcnt vmcnt(0) lgkmcnt(0)")]
    o += [raw(f"s_lshl_b32 s4, s2, 10"), raw(f"s_lshl_b32 s5, s{sW}, 8"), raw("s_add_u32 s4, s4, s5"), raw(f"s_add_u32 s4, s4, {off}"),
          raw(f"s_add_u32 s4, s{wsreg}, s4"), raw(f"s_addc_u32 s5, s{wsreg+1}, 0"),
          raw(f"v_cmp_eq_u32 vcc, 0, {lane}"), raw("s_and_saveexec_b64 s[6:7], vcc"), raw(f"s_cbranch_execz {lab}"), raw("v_mov_b32 v3, 0")]
    for i in range(n):
        o += [raw(f"v_mov_b32 v{4+j}, s{STAMP_BASE+4*i+j}") for j in range(4)]
        o += [raw(f"global_store_dwordx4 v3, v[4:7], s[4:5] offset:{16*i}"), raw("s_nop 1")]
    return o
STAMP_OFF = 0x2000000

def srd(reg, lo, hi, add, sub, nrec):
    o = [salu("s_add_u32", s(reg), s(lo), s(add)), salu("s_addc_u32", s(reg + 1), s(hi), "0")]
    if sub: o += [salu("s_sub_u32", s(reg), s(reg), str(sub)), salu("s_subb_u32", s(reg + 1), s(reg + 1), "0", scc_r=True, scc_w=True)]
    o += [salu("s_mov_b32", s(reg + 2), nrec), salu("s_mov_b32", s(reg + 3), "0x20000")]
    return o

def k1_setup():
    o = []
    A = o.append
    A(raw("s_cmp_ge_u32 s2, 256")); A(raw("s_cbranch_scc1 L_k1_done"))
    o += stamp(0)
    A(raw("s_load_dwordx4 s[4:7], s[0:1], 0"))
    A(raw("s_load_dwordx4 s[40:43], s[0:1], 16"))
    A(raw(f"s_load_dwordx2 s[{sWS}:{sWS+1}], s[0:1], 56"))
    A(valu("v_lshrrev_b32", "v1", "6", "v0")); A(valu("v_and_b32", v(vLane), "63", "v0"))
    A(valu("v_readfirstlane_b32", s(sW), "v1"))
    A(salu("s_and_b32", s(sT0), "s2", "7")); A(salu("s_lshr_b32", s(sT1), "s2", "3"))
    A(salu("s_and_b32", s(sB), s(sT0), "1")); A(salu("s_lshl_b32", s(sB), s(sB), "2")); A(salu("s_and_b32", s(sT2), s(sT1), "3")); A(salu("s_add_u32", s(sB), s(sB), s(sT2)))
    A(salu("s_lshr_b32", s(sH), s(sT0), "1")); A(salu("s_lshl_b32", s(sH), s(sH), "3")); A(salu("s_lshr_b32", s(sT1), s(sT1), "2")); A(salu("s_add_u32", s(sH), s(sH), s(sT1)))
    A(salu("s_lshl_b32", s(sT2), s(sT2), "1")); A(salu("s_add_u32", s(sROT), s(sH), s(sT2))); A(salu("s_and_b32", s(sROT), s(sROT), "7"))
    A(salu("s_mul_i32", s(sG), s(sW), str(GRP))); A(salu("s_lshl_b32", s(sXb), s(sG), "1")); A(salu("s_add_u32", s(sXb), s(sXb), str(X_BASE)))
    A(salu("s_mov_b32", s(sC), hex(QSCALE))); A(salu("s_mov_b32", s(sPASS), "0"))
    L = v(vLane)
    A(valu("v_and_b32", "v1", "15", L)); A(valu("v_lshrrev_b32", "v2", "4", L))
    A(valu("v_bfe_u32", "v3", L, "2", "2")); A(valu("v_and_b32", "v4", "3", L))
    A(valu("v_lshrrev_b32", "v5", "5", L)); A(valu("v_lshlrev_b32", "v5", "15", "v5"))
    A(valu("v_bfe_u32", "v6", L, "3", "2")); A(valu("v_lshl_add_u32", "v5", "v6", "12", "v5"))
    A(valu("v_and_b32", "v6", "7", L)); A(valu("v_lshl_add_u32", "v5", "v6", "4", "v5"))
    A(salu("s_lshl_b32", s(sT0), s(sW), "16")); A(salu("s_add_u32", s(sT0), s(sT0), "128"))
    A(valu("v_add_u32", v(vX), s(sT0), "v5"))
    for m in range(1, 4): A(valu("v_subrev_u32", v(vX + m), str(32 * m), v(vX)))
    A(salu("s_and_b32", s(sT0), s(sW), "1")); A(salu("s_lshl_b32", s(sT0), s(sT0), "16"))
    A(salu("s_lshr_b32", s(sT1), s(sW), "1")); A(salu("s_lshl_b32", s(sT1), s(sT1), "15")); A(salu("s_add_u32", s(sT0), s(sT0), s(sT1)))
    A(valu("v_lshlrev_b32", "v5", "17", "v2")); A(valu("v_lshl_add_u32", "v5", "v1", "4", "v5"))
    A(valu("v_add_u32", v(vWq), s(sT0), "v5"))
    for m in range(1, 4): A(valu("v_add_u32", v(vWq + m), str(m * (8192 - PIECE)), v(vWq)))
    A(salu("s_lshl_b32", s(sT0), s(sW), "12")); A(salu("s_add_u32", s(sT0), s(sT0), "128"))
    A(valu("v_lshlrev_b32", v(vOst), "4", L)); A(valu("v_add_u32", v(vKV), s(sT0), v(vOst)))
    for m in range(1, 4): A(valu("v_subrev_u32", v(vKV + m), str(32 * m), v(vKV)))
    A(raw("s_waitcnt lgkmcnt(0)", "other"))
    A(salu("s_mul_i32", s(sT0), s(sB), "245760")); o += srd(SX, 4, 5, sT0, 128, str(245760 + 128))
    A(salu("s_lshl_b32", s(sT0), s(sH), "8")); A(salu("s_sub_u32", s(sT1), "0x400000", s(sT0))); o += srd(SWQ, 42, 43, sT0, 0, s(sT1))
    A(salu("s_lshl_b32", s(sT0), s(sB), "5")); A(salu("s_add_u32", s(sT0), s(sT0), s(sH))); A(salu("s_lshl_b32", s(sT0), s(sT0), "18"))
    o += srd(SK, 6, 7, sT0, 128, str(262144 + 128)); o += srd(SV, 40, 41, sT0, 128, str(262144 + 128))
    return o

def k1_setup2():
    o = []; A = o.append
    A(salu("s_lshl_b32", s(sT0), s(sB), "21")); A(salu("s_lshl_b32", s(sT1), s(sW), "19")); A(salu("s_add_u32", s(sT0), s(sT0), s(sT1)))
    A(salu("s_lshl_b32", s(sT1), s(sH), "14")); A(salu("s_add_u32", s(sT0), s(sT0), s(sT1))); o += srd(SO, sWS, sWS + 1, sT0, 0, "16384")
    A(salu("s_mov_b32", s(sT0), str(PIECE)))
    A(valu("v_and_b32", "v5", "7", "v1")); A(valu("v_mul_u32_u24", "v5", s(sT0), "v5"))
    A(valu("v_lshrrev_b32", "v6", "3", "v1")); A(valu("v_lshl_add_u32", "v5", "v6", "8", "v5")); A(valu("v_lshl_add_u32", v(vKrd0), "v2", "4", "v5"))
    A(valu("v_mov_b32", v(vKrd), v(vKrd0)))
    A(valu("v_and_b32", "v5", "1", "v2")); A(valu("v_lshl_add_u32", "v5", "v5", "2", "v3")); A(valu("v_mul_u32_u24", "v5", s(sT0), "v5"))
    A(valu("v_lshrrev_b32", "v6", "1", "v2")); A(valu("v_lshl_add_u32", "v5", "v6", "8", "v5")); A(valu("v_lshl_add_u32", "v5", "v4", "3", "v5"))
    A(valu("v_add_u32", v(vVrd0), str(UNIT), "v5")); A(valu("v_mov_b32", v(vVrd), v(vVrd0))); A(valu("v_add_u32", v(vWrd), str(W_BASE), "v5"))
    A(valu("v_mul_u32_u24", "v5", s(sT0), "v4")); A(valu("v_lshl_add_u32", "v5", "v3", "7", "v5")); A(valu("v_lshl_add_u32", "v5", "v2", "4", "v5"))
    A(valu("v_add_u32", v(vXrd), s(sXb), "v5"))
    for a in range(4): A(valu("v_mov_b32", v(MTRUE + a), "0xff800000"))
    return o

def chunk_dma(c, t0=None, dt=1):
    p = c & 1; o = []; g = f"c{c}"
    def T(k): return None if t0 is None else t0 + k * dt
    st = "dma"
    o.append(salu("s_add_u32", s(sT0), s(sROT), str(c), tgt=T(-3), stream=st)); o.append(salu("s_and_b32", s(sT0), s(sT0), "7", tgt=T(-3), stream=st))
    o.append(salu("s_lshl_b32", s(sXo), s(sT0), "7", tgt=T(-2), stream=st)); o.append(salu("s_lshl_b32", s(sWo), s(sT0), "19", tgt=T(-2), stream=st))
    o.append(salu("s_add_u32", s(sXo2), s(sXo), "16384", tgt=T(-1), stream=st))
    k = 0
    o.append(salu("s_add_u32", "m0", s(sG), str(W_BASE + p * UNIT), tgt=T(k - 1), stream=st))
    for m in range(4): o.append(dma(v(vWq + m), SWQ, s(sWo), m * PIECE, cfg.wflags, grp=g, tgt=T(k), stream=st)); k += 1
    for half in range(2):
        o.append(salu("s_add_u32", "m0", s(sXb), str(p * SLOT + half * GRP), tgt=T(k - 1), stream=st))
        for m in range(4): o.append(dma(v(vX + m), SX, s(sXo2 if half else sXo), m * PIECE, cfg.xflags, grp=g, tgt=T(k), stream=st)); k += 1
    return o
def kv_dma_static(which, tile, t0=None, dt=1):
    st = "dma"
    def T(k): return None if t0 is None else t0 + k * dt
    o = [salu("s_mov_b32", s(sT1), str(tile * 16384), tgt=T(-1), stream=st),
         salu("s_add_u32", "m0", s(sG), str((tile & 3) * SLOT + (UNIT if which == "V" else 0)), tgt=T(-1), stream=st)]
    for m in range(4): o.append(dma(v(vKV + m), SK if which == "K" else SV, s(sT1), m * PIECE, cfg.kvflags, grp=f"{which}{tile}", tgt=T(m), stream=st))
    return o
def chunk_reads(c, nq, t0=None, dt=1):
    p = c & 1; o = []; k = 0
    def T(k): return None if t0 is None else t0 + k * dt
    items = []
    for s_ in range(2):
        for a in range(nq): items.append(("x", s_, a))
    for tau in range(8):
        for s_ in range(2):
            for z in range(2): items.append(("w", s_, tau, z))
    for it in items:
        if it[0] == "x":
            _, s_, a = it
            o.append(ds_b128("a", xset(p, s_, a), v(vXrd), p * SLOT + (a & 1) * GRP + (a >> 1) * 512 + s_ * 64, tgt=T(k), stream="rd"))
        else:
            _, s_, tau, z = it
            o.append(ds_tr("a", wset(p, s_, tau) + 2 * z, v(vWrd), p * UNIT + z * 8 * PIECE + s_ * 512 + 32 * tau, tgt=T(k), stream="rd"))
        k += 1
    return o
def chunk_mfma(c, nq, amajor=False):
    p = c & 1; o = []
    order = [(a, tau) for a in range(nq) for tau in range(8)] if amajor else [(a, tau) for tau in range(8) for a in range(nq)]
    for a, tau in order:
        for s_ in range(2):
            z = (c == 0 and s_ == 0)
            o.append(mfma("v", acc(a, tau), "a", wset(p, s_, tau), "a", xset(p, s_, a), "0" if z else None))
    return o
def q_convert(a, t0, dt):
    o = []; k = 0
    for s_ in range(4):
        d = qf(a, s_)
        for half in range(2):
            b = acc(a, 2 * s_ + half)
            for r in range(4): o.append(valu("v_mul_f32", v(b + r), s(sC), v(b + r), tgt=t0 + k * dt)); k += 1
            for r in range(2): o.append(valu("v_cvt_pk_bf16_f32", v(d + 2 * half + r), v(b + 2 * r), v(b + 2 * r + 1), tgt=t0 + k * dt)); k += 1
        for r in range(2): o.append(swap("v_permlane32_swap_b32", v(d + r), v(d + 2 + r), tgt=t0 + k * dt)); k += 1
        for r in range(2): o.append(swap("v_permlane16_swap_b32", v(d + r), v(d + 2 + r), tgt=t0 + k * dt)); k += 1
    return o
def k_reads(j, t0=None, dt=4, after=None):
    o = []
    for r in range(8):
        kap, s_ = r >> 2, r & 3
        i = ds_b128("a", KF + 4 * r, v(vKrd), j * 8 * PIECE + kap * 512 + s_ * 64, tgt=None if t0 is None else t0 + r * dt, stream="rd")
        if after: i.after = list(after)
        o.append(i)
    return o
def v_reads(j, t0, dt):
    o = []
    for r in range(16):
        t, z = r >> 1, r & 1
        o.append(ds_tr("a", VF + 4 * t + 2 * z, v(vVrd), j * 8 * PIECE + z * 512 + 32 * t, tgt=t0 + r * dt, stream="rd"))
    return o
def qk(j, nq, first=False):
    o = []
    for a in range(nq):
        for kap in range(2):
            d = S_[j] + a * 8 + kap * 4
            for s_ in range(4):
                if s_ == 0: o.append(mfma("v", d, "a", KF + 4 * (kap * 4), "v", qf(a, 0), "0" if first else "v", None if first else NEGM + 4 * a))
                else: o.append(mfma("v", d, "a", KF + 4 * (kap * 4 + s_), "v", qf(a, s_)))
    return o
def pv(j, nq):
    return [mfma("a", oacc(a, t), "a", VF + 4 * t, "v", P_[j] + 4 * a) for t in range(8) for a in range(nq)]
def sm(j, nq, t0, dt=2.0):
    o = []
    for i in range(8 * nq):
        r = S_[j] + i; a = i >> 3
        o.append(valu("v_exp_f32", v(r), v(r), tgt=int(t0 + i * dt)))
        o.append(valu("v_add_f32", v(LSUM + a), v(LSUM + a), v(r), tgt=int(t0 + i * dt + 1)))
        if i & 1: o.append(valu("v_cvt_pk_bf16_f32", v(P_[j] + (i >> 1)), v(r - 1), v(r), tgt=int(t0 + i * dt + 1)))
    return o
def xreduce(op, reg, tmp, t0=None, dt=1):
    def T(k): return None if t0 is None else t0 + k * dt
    return [valu("v_mov_b32", v(tmp), v(reg), tgt=T(0)), swap("v_permlane16_swap_b32", v(reg), v(tmp), tgt=T(1)), valu(op, v(reg), v(reg), v(tmp), tgt=T(2)),
            valu("v_mov_b32", v(tmp), v(reg), tgt=T(3)), swap("v_permlane32_swap_b32", v(reg), v(tmp), tgt=T(4)), valu(op, v(reg), v(reg), v(tmp), tgt=T(5))]
def first_max(a, t0, dt):
    o = []; b = S_[0] + a * 8; m = TMP + 2 * a; k = 0
    o.append(valu("v_max3_f32", v(m), v(b), v(b + 1), v(MTRUE + a), tgt=t0))
    for r in range(1, 4): o.append(valu("v_max3_f32", v(m), v(b + 2 * r), v(b + 2 * r + 1), v(m), tgt=t0 + r * dt))
    o += xreduce("v_max_f32", m, m + 1, t0 + 4 * dt, dt)
    for r in range(4): o.append(valu("v_sub_f32", v(NEGM + 4 * a + r), "0", v(m), tgt=t0 + (10 + r) * dt))
    for r in range(8): o.append(valu("v_sub_f32", v(b + r), v(b + r), v(m), tgt=t0 + (14 + r) * dt))
    o.append(valu("v_mov_b32", v(LSUM + a), "0", tgt=t0))
    return o

class Variant:
    def __init__(s_, nq, name):
        s_.nq, s_.name = nq, name
        s_.static = []
        s_.trace = []
        s_.vm = []
        s_.pend = []
    def finish(s_, seq, sched=True, **kw):
        seq = schedule(seq, **kw) if sched else seq
        seq = s_.resolve_vm(seq)
        seq, s_.pend = insert_lgkm(seq, s_.pend)
        seq = fix_hazards(seq, s_.trace)
        s_.static += seq; s_.trace += seq
        return seq
    def resolve_vm(s_, seq):
        out = []
        for c in seq:
            if c.k == "wait" and c.meta == ("vm", None):
                n = min(vm_count(s_.vm, c.need), 63)
                w = waitvm(n, need=c.need); out.append(w)
            else:
                out.append(c)
                if c.k == "vmem": s_.vm.append(c)
        return out
def wvm(groups, **kw): return I("s_waitcnt vmcnt(?)", "wait", meta=("vm", None), need=set(groups), **kw)

def iteration(T, nq):
    n = 8 * nq
    st = "dma"
    o = []
    o += qk(0, nq)
    o += v_reads(0, 1, 2 * n / 32 if nq == 4 else 1.5)
    o += sm(1, nq, 0)
    o += k_reads(1, n + 1, n / 8)
    o += pv(0, nq)
    B = 2 * n
    o += qk(1, nq)
    vr = v_reads(1, B + 1, 2 * n / 32 if nq == 4 else 1.5); o += vr
    o.append(valu("v_add_u32", v(vVrd), s(sS1), v(vVrd0), tgt=B + n))
    o += sm(0, nq, B)
    w = wvm({f"K{T+2}", f"V{T+1}"}, tgt=B + n - 3, stream=["rd2", st]); b = barrier(tgt=B + n - 2, stream=["rd2", st])
    w.after = [x for x in o if x.k == "mfma"][B + n - 4:B + n - 3]
    o += [w, b]
    o.append(valu("v_add_u32", v(vKrd), s(sS2), v(vKrd0), tgt=B + n - 2))
    o += k_reads(0, B + n + 1, n / 8, after=[b])
    t = B + n + 2; dt = (n - 4) / 8
    o.append(salu("s_add_u32", s(sT0), s(sS3), s(sG), tgt=t - 3, stream=st)); o.append(salu("s_add_u32", "m0", s(sT0), str(UNIT), tgt=t - 1, stream=st))
    for m in range(4): o.append(dma(v(vKV + m), SV, s(sVo), m * PIECE, cfg.kvflags, grp=f"V{T+3}", tgt=int(t + m * dt), stream=st))
    o.append(salu("s_add_u32", "m0", s(sS1), s(sG), tgt=int(t + 3 * dt + 1), stream=st))
    for m in range(4): o.append(dma(v(vKV + m), SK, s(sKo), m * PIECE, cfg.kvflags, grp=f"K{T+5}", tgt=int(t + (4 + m) * dt), stream=st))
    o += pv(1, nq)
    e = 4 * n - 1
    o.append(salu("s_add_u32", s(sVo), s(sVo), "16384", tgt=int(t + 4 * dt) + 1, stream=st)); o.append(salu("s_add_u32", s(sKo), s(sKo), "16384", tgt=e, stream=st))
    o.append(salu("s_mov_b32", s(sS1), s(sS2), tgt=e, stream=st)); o.append(salu("s_mov_b32", s(sS2), s(sS3), tgt=e, stream=st))
    o.append(salu("s_add_u32", s(sS3), s(sS3), str(SLOT), tgt=e, stream=st)); o.append(salu("s_cmp_eq_u32", None, s(sS3), str(4 * SLOT), tgt=e, stream=st))
    o.append(salu("s_cselect_b32", s(sS3), "0", s(sS3), tgt=e, stream=st))
    o.append(salu("s_add_u32", s(sT), s(sT), "1", tgt=e, stream=st)); o.append(salu("s_cmp_lt_u32", None, s(sT), "15", tgt=e, stream=st))
    return o

def k1_variant(nq, name):
    V = Variant(nq, name)
    V.finish([label(f"L_{name}")], sched=False)
    o = chunk_dma(0) + chunk_dma(1) + k1_setup2()
    o += [wvm({"c0"}), barrier()] + stamp(1) + chunk_reads(0, nq) + [waitlg(0)]
    V.finish(o, sched=False)
    n = 16 * nq
    for c in range(7):
        o = []
        m = chunk_mfma(c, nq)
        w = wvm({f"c{c+1}"}, tgt=0, stream=["rd", "dma"]); b = barrier(tgt=1, stream=["rd", "dma"])
        o += [w, b] + m + chunk_reads(c + 1, nq, 2, 1)
        tdma = 2 + 32 + 2 * nq
        rest = n - tdma
        if c + 2 <= 7: o += chunk_dma(c + 2, 3, 4 if nq == 4 else 3)
        if c == 5: o += kv_dma_static("K", 0, n - 8, 2)
        if c == 6: o += kv_dma_static("V", 0, 3, 4) + kv_dma_static("K", 1, 20, 4)
        V.finish(o, lds_lat=0)
        V.finish([waitlg(0)], sched=False)
    o = []
    g1 = barrier(tgt=1, stream=["dma"])
    o += [g1] + chunk_mfma(7, nq, amajor=True)
    o += kv_dma_static("K", 2, 3, 2) + kv_dma_static("V", 1, 11, 2) + kv_dma_static("K", 3, 19, 2)
    for a in range(nq): o += q_convert(a, 16 * (a + 1) + 3, 0.5)
    V.finish(o + stamp(2))
    V.finish([label(f"L_{name}_attn")], sched=False)
    h = 8 * nq
    o = [wvm({"K0"}), barrier()] + k_reads(0) + [valu("v_accvgpr_write_b32", f"a{r}", "0") for r in range(16)]
    V.finish(o, sched=False)
    o = qk(0, nq, first=True)
    o += [valu("v_accvgpr_write_b32", f"a{r}", "0", tgt=(r - 16) // 2) for r in range(16, 32 * nq)]
    for a in range(nq): o += first_max(a, 8 * (a + 1) + 2, 0.5)
    o += k_reads(1, h - 6, 1)
    o += qk(1, nq)
    o += sm(0, nq, h + 12, 1.0)
    w = wvm({"K1", "V0"}, tgt=2 * h - 3, stream=["dma"]); b = barrier(tgt=2 * h - 2, stream=["dma"])
    w.after = [x for x in o if x.k == "mfma"][2 * h - 4:2 * h - 3]
    o += [w, b, valu("v_add_u32", v(vKrd), str(SLOT), v(vKrd0), tgt=2 * h - 2)]
    o += k_reads(0, 2 * h - 1, 0, after=[b])
    o += kv_dma_static("V", 2, 2 * h - 1, 0) + kv_dma_static("K", 4, 2 * h - 1, 0)
    o += [salu("s_mov_b32", s(sVo), str(3 * 16384), tgt=2), salu("s_mov_b32", s(sKo), str(5 * 16384), tgt=3), salu("s_mov_b32", s(sS1), str(SLOT), tgt=4),
          salu("s_mov_b32", s(sS2), str(2 * SLOT), tgt=5), salu("s_mov_b32", s(sS3), str(3 * SLOT), tgt=6), salu("s_mov_b32", s(sT), "0", tgt=7),
          valu("v_mov_b32", v(vVrd), v(vVrd0), tgt=8)]
    V.finish(o + stamp(3))
    body = None
    lab = label(f"L_{name}_loop")
    V.static.append(lab)
    sched0 = None
    for T in range(15):
        seq = schedule(iteration(T, nq))
        seq = V.resolve_vm(seq)
        if T == 0:
            _, p1 = insert_lgkm(seq, V.pend)
            seq2, p2 = insert_lgkm(seq, p1)
            seq2 = fix_hazards(seq2 + [raw(f"s_cbranch_scc1 L_{name}_loop", "branch", rd=["scc"])], seq2)
            body = seq2; V.static += body; V.trace += body; V.pend = p2
            V.loop_stats = gap_stats(body)
        else:
            it = iter([c for c in seq])
            new = []
            cur = [c for c in seq]
            k = 0
            for c in body:
                if k < len(cur) and cur[k].t == c.t: new.append(cur[k]); k += 1
                else: new.append(c)
            assert k == len(cur), ("loop body differs", T, cur[k].t)
            V.trace += new
    o = stamp(4)
    V.finish(o, sched=False)
    o = v_reads(0, -1, 0.5) + sm(1, nq, 0, 1.0) + pv(0, nq) + v_reads(1, h // 2, 1) + pv(1, nq)
    inv = TMP
    for a in range(nq):
        o += xreduce("v_add_f32", LSUM + a, TMP + 8 + a, h + 4 * a, 0.5)
        o.append(valu("v_rcp_f32", v(inv + a), v(LSUM + a), tgt=h + 4 * a + 3))
    k = 0
    for sg in range(4):
        o.append(salu("s_mov_b32", s(sT1), str(4096 * sg), tgt=h + 8 * sg, stream="st"))
        for a in range(nq):
            tb = 32 * (k % 4)
            tb = (0, 16, 32, 48)[k % 4]
            t0 = h + 2 * nq * (sg + 1) + 2
            for r in range(8): o.append(valu("v_accvgpr_read_b32", v(tb + r), f"a{oacc(a, 2*sg) + r}", tgt=t0))
            for r in range(8): o.append(valu("v_mul_f32", v(tb + r), v(inv + a), v(tb + r), tgt=t0))
            for r in range(4): o.append(valu("v_cvt_pk_bf16_f32", v(tb + 8 + r), v(tb + 2 * r), v(tb + 2 * r + 1), tgt=t0))
            o.append(bstore("v", tb + 8, v(vOst), SO, s(sT1), 1024 * a, cfg.oflags, tgt=t0, stream="st", grp="O"))
            k += 1
    V.finish(o + stamp(5))
    if cfg.fallback:
        o = []; A = o.append
        A(salu("s_cmp_lg_u32", None, s(sPASS), "0")); A(raw(f"s_cbranch_scc1 L_{name}_end", "branch", rd=["scc"]))
        A(salu("s_mov_b32", s(sT0), hex(LIMIT))); A(raw("s_mov_b64 s[54:55], 0", "salu", wr=["s54", "s55"]))
        for a in range(nq):
            A(valu("v_cmp_nge_f32", "vcc", s(sT0), v(LSUM + a)))
            A(raw("s_or_b64 s[54:55], s[54:55], vcc", "salu", rd=["vcc", "s54", "s55"], wr=["s54", "s55", "scc"]))
        A(salu("s_cselect_b32", s(sT0), "1", "0"))
        A(salu("s_lshl_b32", s(sT1), s(sW), "2")); A(salu("s_add_u32", s(sT1), s(sT1), str(VOTE)))
        A(valu("v_mov_b32", v(TMP), s(sT0))); A(valu("v_mov_b32", v(TMP + 1), s(sT1))); A(valu("v_mov_b32", v(TMP + 2), str(VOTE)))
        A(I(f"ds_write_b32 v{TMP+1}, v{TMP}", "ldsw", rd=[v(TMP), v(TMP + 1)]))
        A(waitlg(0)); A(barrier())
        A(ds_b128("v", TMP + 4, v(TMP + 2), 0)); A(waitlg(0))
        A(valu("v_or3_b32", v(TMP), v(TMP + 4), v(TMP + 5), v(TMP + 6))); A(valu("v_or_b32", v(TMP), v(TMP), v(TMP + 7)))
        A(valu("v_readfirstlane_b32", s(sT0), v(TMP)))
        A(salu("s_cmp_eq_u32", None, s(sT0), "0")); A(raw(f"s_cbranch_scc1 L_{name}_end", "branch", rd=["scc"]))
        A(waitvm(0)); A(barrier())
        A(valu("v_mov_b32", v(vKrd), v(vKrd0))); A(salu("s_mov_b32", s(sKo), "0")); A(salu("s_mov_b32", "m0", s(sG)))
        A(label(f"L_{name}_mx"))
        for m in range(4): A(dma(v(vKV + m), SK, s(sKo), m * PIECE, cfg.kvflags))
        A(waitvm(0)); A(barrier())
        for j in range(2):
            o += k_reads(j) + [waitlg(0)] + qk(0, nq, first=True) + [nop(7)]
            for a in range(nq):
                for r in range(4): A(valu("v_max3_f32", v(MTRUE + a), v(S_[0] + 8 * a + 2 * r), v(S_[0] + 8 * a + 2 * r + 1), v(MTRUE + a)))
        A(barrier())
        A(salu("s_add_u32", s(sKo), s(sKo), "16384")); A(salu("s_cmp_lt_u32", None, s(sKo), "262144")); A(raw(f"s_cbranch_scc1 L_{name}_mx", "branch", rd=["scc"]))
        A(salu("s_mov_b32", s(sPASS), "1"))
        for wh, tl in (("K", 0), ("V", 0), ("K", 1), ("K", 2), ("V", 1), ("K", 3)): o += kv_dma_static(wh, tl)
        A(raw(f"s_branch L_{name}_attn", "branch"))
        V.finish(o, sched=False)
    V.finish([label(f"L_{name}_end")] + stamp(6) + dump_stamps(7, sWS, STAMP_OFF, v(vLane), "L_k1_done") + [raw("s_endpgm")], sched=False)
    return V

S2O, S2W, S2Out = 8, 12, 16
s2RG, s2CG, s2ROT, s2M = 28, 29, 30, 31
s2Oo, s2Wo = 36, 37
v2Wd, v2Ol, v2Wr, v2Rw, v2Rr, v2St = 100, 104, 105, 106, 107, 108
W2F = 64
DEPTH = 7
def k2_setup():
    o = []; A = o.append
    A(raw("s_cmp_ge_u32 s2, 256")); A(raw("s_cbranch_scc1 L_k2_done"))
    o += stamp(0)
    A(raw("s_load_dwordx4 s[4:7], s[0:1], 32"))
    A(raw(f"s_load_dwordx2 s[{sWS}:{sWS+1}], s[0:1], 56"))
    A(valu("v_lshrrev_b32", "v1", "6", "v0")); A(valu("v_and_b32", "v109", "63", "v0"))
    A(valu("v_readfirstlane_b32", s(sW), "v1"))
    L = "v109"
    A(salu("s_and_b32", s(sT0), "s2", "7")); A(salu("s_lshr_b32", s(sT1), "s2", "3"))
    A(salu("s_lshr_b32", s(32), s(sT0), "1")); A(salu("s_lshl_b32", s(32), s(32), "1")); A(salu("s_lshr_b32", s(sT2), s(sT1), "4")); A(salu("s_add_u32", s(32), s(32), s(sT2)))
    A(salu("s_lshr_b32", s(s2ROT), s(sT1), "2")); A(salu("s_and_b32", s(s2RG), s(s2ROT), "3"))
    A(salu("s_and_b32", s(sT2), s(sT1), "3")); A(salu("s_and_b32", s(s2CG), s(sT0), "1")); A(salu("s_lshl_b32", s(s2CG), s(s2CG), "2")); A(salu("s_add_u32", s(s2CG), s(s2CG), s(sT2)))
    A(salu("s_lshl_b32", s(sT2), s(sT2), "3")); A(salu("s_add_u32", s(s2ROT), s(s2ROT), s(sT2)))
    A(salu("s_mul_i32", s(s2M), s(sW), str(8 * GRP)))
    A(valu("v_lshrrev_b32", "v5", "3", L)); A(valu("v_lshlrev_b32", "v5", "12", "v5")); A(valu("v_and_b32", "v6", "7", L)); A(valu("v_lshl_add_u32", "v5", "v6", "4", "v5"))
    for m in range(4): A(valu("v_add_u32", v(v2Wd + m), str(128 - 32 * m), "v5"))
    A(valu("v_lshlrev_b32", v(v2Ol), "4", L))
    A(raw("s_waitcnt lgkmcnt(0)", "other"))
    A(salu("s_lshl_b32", s(sT0), s(32), "2")); A(salu("s_add_u32", s(sT0), s(sT0), s(s2RG))); A(salu("s_lshl_b32", s(sT0), s(sT0), "19"))
    A(salu("s_lshl_b32", s(sT1), s(sW), "17")); A(salu("s_add_u32", s(sT0), s(sT0), s(sT1))); o += srd(S2O, sWS, sWS + 1, sT0, 0, "131072")
    A(salu("s_lshl_b32", s(sT0), s(sW), "20")); A(salu("s_lshl_b32", s(sT1), s(s2CG), "7")); A(salu("s_add_u32", s(sT0), s(sT0), s(sT1)))
    A(salu("s_sub_u32", s(sT2), str(1048576 + 128), s(sT1))); o += srd(S2W, 4, 5, sT0, 128, s(sT2))
    return o
def k2_setup2():
    o = []; A = o.append; L = "v109"
    A(salu("s_mul_i32", s(sT0), s(32), "245760")); A(salu("s_lshl_b32", s(sT1), s(s2RG), "16")); A(salu("s_lshl_b32", s(sT2), s(s2CG), "7")); A(salu("s_add_u32", s(sT1), s(sT1), s(sT2)))
    A(salu("s_add_u32", s(sT0), s(sT0), s(sT1))); A(salu("s_sub_u32", s(sT1), "245760", s(sT1))); o += srd(S2Out, 6, 7, sT0, 0, s(sT1))
    A(valu("v_and_b32", "v1", "15", L)); A(valu("v_lshrrev_b32", "v2", "4", L)); A(valu("v_bfe_u32", "v3", L, "2", "2")); A(valu("v_and_b32", "v4", "3", L))
    A(salu("s_mov_b32", s(sT0), str(PIECE)))
    A(valu("v_mul_u32_u24", "v5", s(sT0), "v3")); A(valu("v_lshl_add_u32", "v5", "v2", "7", "v5")); A(valu("v_lshl_add_u32", "v5", "v4", "3", "v5")); A(valu("v_add_u32", v(v2Wr), s(s2M), "v5"))
    A(salu("s_lshl_b32", s(sT0), s(sW), "14")); A(valu("v_add_u32", v(v2Rw), s(sT0), v(v2Ol)))
    A(salu("s_lshl_b32", s(sT0), s(sW), "12")); A(valu("v_lshlrev_b32", "v5", "9", "v2")); A(valu("v_lshl_add_u32", "v5", "v1", "4", "v5")); A(valu("v_add_u32", v(v2Rr), s(sT0), "v5"))
    A(salu("s_lshl_b32", s(sT0), s(sW), "14")); A(valu("v_lshlrev_b32", "v5", "10", "v1")); A(valu("v_lshl_add_u32", "v5", "v2", "4", "v5")); A(valu("v_add_u32", v(v2St), s(sT0), "v5"))
    return o
def k2_loads(u, nq, t0=None, dt=2):
    st = "dma"; sl = u & 7
    def T(k): return None if t0 is None else t0 + k * dt
    o = [salu("s_add_u32", s(sT0), s(s2ROT), str(u), tgt=T(-2), stream=st), salu("s_and_b32", s(sT0), s(sT0), "31", tgt=T(-2), stream=st),
         salu("s_lshl_b32", s(s2Wo), s(sT0), "15", tgt=T(-1), stream=st), salu("s_add_u32", "m0", s(s2M), str(sl * GRP), tgt=T(-1), stream=st)]
    for m in range(4): o.append(dma(v(v2Wd + m), S2W, s(s2Wo), m * PIECE, cfg.k2_wflags, grp=f"w{u}", tgt=T(m), stream=st))
    o.append(salu("s_lshl_b32", s(s2Oo), s(sT0), "12", tgt=T(2), stream=st))
    for a in range(nq): o.append(bload("a", sl * 16 + 4 * a, v(v2Ol), S2O, s(s2Oo), 1024 * a, cfg.k2_oflags, grp=f"o{u}", tgt=T(4 + a), stream=st))
    return o
def k2_reads(u, t0=None, dt=2):
    return [ds_tr("v", W2F + (u & 1) * 16 + 4 * (r >> 1) + 2 * (r & 1), v(v2Wr), (u & 7) * GRP + (r & 1) * 512 + 32 * (r >> 1),
                  tgt=None if t0 is None else t0 + r * dt, stream="rd") for r in range(8)]
def k2_variant(nq, name):
    V = Variant(nq, name)
    o = [label(f"L_{name}")]
    for u in range(DEPTH): o += k2_loads(u, nq)
    o += k2_setup2() + [wvm({"w0"})] + stamp(1) + k2_reads(0)
    V.finish(o, sched=False)
    for u in range(32):
        n = 4 * nq
        o = [wvm({f"o{u}", f"w{u+1}"}, tgt=-1, stream=["rd", "dma"])]
        o += [mfma("v", a * 16 + 4 * tau, "v", W2F + (u & 1) * 16 + 4 * tau, "a", (u & 7) * 16 + 4 * a, "0" if u == 0 else None) for tau in range(4) for a in range(nq)]
        if u + 1 < 32: o += k2_reads(u + 1, 0, 2 if nq == 4 else 1.5)
        if u + DEPTH < 32: o += k2_loads(u + DEPTH, nq, 1, 2 if nq == 4 else 1.5)
        V.finish(o, lds_lat=0)
    o = stamp(2) + [barrier()]
    for a in range(nq):
        for tau in range(4): o.append(ds_w128(v(v2Rw), "v", a * 16 + 4 * tau, (a * 4 + tau) * 1024))
    o += [waitlg(0), barrier()]
    for ws_ in range(4):
        for q in range(4): o.append(ds_b128("v", ws_ * 16 + 4 * q, v(v2Rr), ws_ * 16384 + (q >> 1) * 2048 + (q & 1) * 256))
    for r in range(16): o.append(valu("v_add_f32", v(r), v(r), v(16 + r)))
    for r in range(16): o.append(valu("v_add_f32", v(32 + r), v(32 + r), v(48 + r)))
    for r in range(16): o.append(valu("v_add_f32", v(r), v(r), v(32 + r)))
    for r in range(8): o.append(valu("v_cvt_pk_bf16_f32", v(16 + r), v(2 * r), v(2 * r + 1)))
    for sg in range(2): o.append(bstore("v", 16 + 4 * sg, v(v2St), S2Out, "0", 64 * sg))
    o += stamp(3) + dump_stamps(4, sWS, STAMP_OFF + 0x100000, "v109", "L_k2_done") + [raw("s_endpgm")]
    V.finish(o, sched=False)
    return V

HEAD = """; standalone__mha_block_cached__near_ridge: out = softmax((x wq) K^T / sqrt(128)) V wo
"""
def kd(name, vg, acc_off):
    return f""".amdhsa_kernel {name}
  .amdhsa_next_free_vgpr {vg}
  .amdhsa_next_free_sgpr 102
  .amdhsa_accum_offset {acc_off}
  .amdhsa_group_segment_fixed_size 0
  .amdhsa_kernarg_size 64
  .amdhsa_user_sgpr_count 2
  .amdhsa_user_sgpr_kernarg_segment_ptr 1
  .amdhsa_system_sgpr_workgroup_id_x 1
.end_amdhsa_kernel
"""
def check(pre, V):
    tr = pre + V.trace
    for nm, f in (("hazard", check_hazards), ("lgkm", check_lgkm), ("vm", check_vm)):
        bad = f(tr)
        if bad:
            print(V.name, nm, len(bad), bad[:6], file=sys.stderr); raise SystemExit(1)
def build():
    out = HEAD
    out += f"; @launch kernel=mha_attn_kernel grid=(256,1,1) block=(256,1,1) lds={LDS1 + 64}\n"
    out += f"; @launch kernel=mha_oproj_kernel grid=(256,1,1) block=(256,1,1) lds={32 * GRP}\n"
    out += '.amdgcn_target "amdgcn-amd-amdhsa--gfx950"\n.text\n'
    out += ".globl mha_attn_kernel\n.p2align 8\n.type mha_attn_kernel,@function\nmha_attn_kernel:\n"
    pre = fix_hazards(k1_setup() + [salu("s_cmp_eq_u32", None, s(sW), "3"), raw("s_cbranch_scc1 L_w3", "branch")])
    out += text(pre)
    for nq, name in ((4, "w012"), (3, "w3")):
        V = k1_variant(nq, name); V.static = V.static; check(pre, V)
        print(name, "loop (mfma, est cycles):", V.loop_stats, "total est", gap_stats(V.trace), file=sys.stderr)
        out += text(V.static)
    out += "L_k1_done:\n  s_endpgm\n"
    out += ".globl mha_oproj_kernel\n.p2align 8\n.type mha_oproj_kernel,@function\nmha_oproj_kernel:\n"
    pre = fix_hazards(k2_setup() + [salu("s_cmp_eq_u32", None, s(s2RG), "3"), raw("s_cbranch_scc1 L_r3", "branch")])
    out += text(pre)
    for nq, name in ((4, "r012"), (3, "r3")):
        V = k2_variant(nq, name); check(pre, V)
        print(name, "total est", gap_stats(V.trace), file=sys.stderr)
        out += text(V.static)
    out += "L_k2_done:\n  s_endpgm\n"
    out += '.section .rodata,"a"\n.p2align 6\n' + kd("mha_attn_kernel", 512, 256) + ".p2align 6\n" + kd("mha_oproj_kernel", 384, 256)
    return out
if __name__ == "__main__":
    path = sys.argv[1]
    for kv in sys.argv[2:]:
        k, val = kv.split("=")
        cur = getattr(cfg, k)
        setattr(cfg, k, (val == "1") if isinstance(cur, bool) else type(cur)(val.replace("+", " ")))
    open(path, "w").write(build())
```

```python
import sys, math, struct
from core import *

PIECE = 1056; GRP = 4 * PIECE; UNIT = 16 * PIECE; SLOT = 2 * UNIT
X_BASE = 3 * UNIT; W_BASE = X_BASE + 2 * SLOT; LDS1 = W_BASE + 2 * UNIT
VOTE = LDS1
QSCALE = struct.unpack("<I", struct.pack("<f", math.log2(math.e) / math.sqrt(128.0)))[0]
LIMIT = 0x4b800000

class Cfg:
    stamps = False
    kvflags = "nt"
    xflags = ""
    wflags = ""
    oflags = ""
    k2_oflags = ""
    k2_wflags = ""
    fallback = True
    rot = 2
    fused = True
    park = 0
    pre = 2
    osc = 'sc1'
    depth = 7
    kvpace = True
    sset = 'main'
    nomfma1 = False
    nord1 = False
    nodma1 = False
    w3dma = True
    k2map = 1
cfg = Cfg()

sW = 3; SX, SWQ, SK, SV, SO = 8, 12, 16, 20, 24
sB, sH, sROT = 28, 29, 30
sXb, sG = 31, 32
sT0, sT1, sT2 = 33, 34, 35
sXo, sXo2, sWo = 36, 37, 38
sKo, sVo = 46, 47
sS1, sS2, sS3 = 48, 49, 50
sT = 51; sPASS = 52; sC = 53; sWS = 44
vKrd, vVrd, vKrd0, vVrd0, vXrd, vWrd = 232, 233, 234, 235, 236, 237
vOst = 238; vLane = 239
vKV, vX, vWq = 240, 244, 248
ACC = 0; QF = 128
S_ = (0, 32); P_ = (64, 80); NEGM = 192; LSUM = 208; MTRUE = 212; TMP = 216
KF, VF = 192, 224
def acc(a, tau): return ACC + a * 32 + tau * 4
def qf(a, s): return QF + (a * 4 + s) * 4
def wset(p, s, tau): return p * 96 + (s * 8 + tau) * 4
def xset(p, s, a): return p * 96 + 64 + (s * 4 + a) * 4
def oacc(a, t): return a * 32 + t * 4
v = lambda n: f"v{n}"
s = lambda n: f"s{n}"

STAMP_BASE = 60
def stamp(i, sset="main"):
    if not cfg.stamps or (i > 0 and sset != cfg.sset and sset != "k2"): return []
    return [raw(f"s_memrealtime s[{STAMP_BASE+4*i}:{STAMP_BASE+4*i+1}]"), raw(f"s_memtime s[{STAMP_BASE+4*i+2}:{STAMP_BASE+4*i+3}]"), waitlg(0)]
def dump_stamps(n, wsreg, off, lane, lab):
    if not cfg.stamps: return []
    o = [raw("s_waitcnt vmcnt(0) lgkmcnt(0)")]
    o += [raw(f"s_lshl_b32 s4, s2, 10"), raw(f"s_lshl_b32 s5, s{sW}, 8"), raw("s_add_u32 s4, s4, s5"), raw(f"s_add_u32 s4, s4, {off}"),
          raw(f"s_add_u32 s4, s{wsreg}, s4"), raw(f"s_addc_u32 s5, s{wsreg+1}, 0"),
          raw(f"v_cmp_eq_u32 vcc, 0, {lane}"), raw("s_and_saveexec_b64 s[6:7], vcc"), raw(f"s_cbranch_execz {lab}"), raw("v_mov_b32 v3, 0")]
    for i in range(n):
        o += [raw(f"v_mov_b32 v{4+j}, s{STAMP_BASE+4*i+j}") for j in range(4)]
        o += [raw(f"global_store_dwordx4 v3, v[4:7], s[4:5] offset:{16*i}"), raw("s_nop 1")]
    return o
STAMP_OFF = 0x2000000

def srd(reg, lo, hi, add, sub, nrec):
    o = [salu("s_add_u32", s(reg), s(lo), s(add)), salu("s_addc_u32", s(reg + 1), s(hi), "0")]
    if sub: o += [salu("s_sub_u32", s(reg), s(reg), str(sub)), salu("s_subb_u32", s(reg + 1), s(reg + 1), "0", scc_r=True, scc_w=True)]
    o += [salu("s_mov_b32", s(reg + 2), nrec), salu("s_mov_b32", s(reg + 3), "0x20000")]
    return o

def k1_setup():
    o = []
    A = o.append
    A(raw("s_cmp_ge_u32 s2, 256")); A(raw("s_cbranch_scc1 L_k1_done"))
    o += stamp(0)
    A(raw("s_load_dwordx4 s[4:7], s[0:1], 0"))
    A(raw("s_load_dwordx4 s[40:43], s[0:1], 16"))
    A(raw(f"s_load_dwordx2 s[{sWS}:{sWS+1}], s[0:1], 56"))
    if cfg.fused:
        A(raw("s_load_dwordx4 s[56:59], s[0:1], 32"))
        A(raw("s_load_dwordx2 s[100:101], s[0:1], 48"))
    A(valu("v_lshrrev_b32", "v1", "6", "v0")); A(valu("v_and_b32", v(vLane), "63", "v0"))
    A(valu("v_readfirstlane_b32", s(sW), "v1"))
    A(salu("s_and_b32", s(sT0), "s2", "7")); A(salu("s_lshr_b32", s(sT1), "s2", "3"))
    A(salu("s_and_b32", s(sB), s(sT0), "1")); A(salu("s_lshl_b32", s(sB), s(sB), "2")); A(salu("s_and_b32", s(sT2), s(sT1), "3")); A(salu("s_add_u32", s(sB), s(sB), s(sT2)))
    A(salu("s_lshr_b32", s(sH), s(sT0), "1")); A(salu("s_lshl_b32", s(sH), s(sH), "3")); A(salu("s_lshr_b32", s(sT1), s(sT1), "2")); A(salu("s_add_u32", s(sH), s(sH), s(sT1)))
    A(salu("s_lshl_b32", s(sT2), s(sT2), "1")); A(salu("s_add_u32", s(sROT), s(sH), s(sT2)))
    if cfg.rot == 8: A(salu("s_and_b32", s(sROT), s(sROT), "7"))
    elif cfg.rot == 1: A(salu("s_mov_b32", s(sROT), "0"))
    else:
        A(salu("s_lshr_b32", s(sT2), s(sT2), "1")); A(salu("s_add_u32", s(sROT), s(sH), s(sT2)))
        A(salu("s_and_b32", s(sROT), s(sROT), str(cfg.rot - 1))); A(salu("s_mul_i32", s(sROT), s(sROT), str(8 // cfg.rot)))
    A(salu("s_mul_i32", s(sG), s(sW), str(GRP))); A(salu("s_lshl_b32", s(sXb), s(sG), "1")); A(salu("s_add_u32", s(sXb), s(sXb), str(X_BASE)))
    A(salu("s_mov_b32", s(sC), hex(QSCALE))); A(salu("s_mov_b32", s(sPASS), "0"))
    L = v(vLane)
    A(valu("v_and_b32", "v1", "15", L)); A(valu("v_lshrrev_b32", "v2", "4", L))
    A(valu("v_bfe_u32", "v3", L, "2", "2")); A(valu("v_and_b32", "v4", "3", L))
    A(valu("v_lshrrev_b32", "v5", "5", L)); A(valu("v_lshlrev_b32", "v5", "15", "v5"))
    A(valu("v_bfe_u32", "v6", L, "3", "2")); A(valu("v_lshl_add_u32", "v5", "v6", "12", "v5"))
    A(valu("v_and_b32", "v6", "7", L)); A(valu("v_lshl_add_u32", "v5", "v6", "4", "v5"))
    A(salu("s_lshl_b32", s(sT0), s(sW), "16")); A(salu("s_add_u32", s(sT0), s(sT0), "128"))
    A(valu("v_add_u32", v(vX), s(sT0), "v5"))
    for m in range(1, 4): A(valu("v_subrev_u32", v(vX + m), str(32 * m), v(vX)))
    A(salu("s_and_b32", s(sT0), s(sW), "1")); A(salu("s_lshl_b32", s(sT0), s(sT0), "16"))
    A(salu("s_lshr_b32", s(sT1), s(sW), "1")); A(salu("s_lshl_b32", s(sT1), s(sT1), "15")); A(salu("s_add_u32", s(sT0), s(sT0), s(sT1)))
    A(valu("v_lshlrev_b32", "v5", "17", "v2")); A(valu("v_lshl_add_u32", "v5", "v1", "4", "v5"))
    A(valu("v_add_u32", v(vWq), s(sT0), "v5"))
    for m in range(1, 4): A(valu("v_add_u32", v(vWq + m), str(m * (8192 - PIECE)), v(vWq)))
    A(salu("s_lshl_b32", s(sT0), s(sW), "12")); A(salu("s_add_u32", s(sT0), s(sT0), "128"))
    A(valu("v_lshlrev_b32", v(vOst), "4", L)); A(valu("v_add_u32", v(vKV), s(sT0), v(vOst)))
    for m in range(1, 4): A(valu("v_subrev_u32", v(vKV + m), str(32 * m), v(vKV)))
    A(raw("s_waitcnt lgkmcnt(0)", "other"))
    A(salu("s_mul_i32", s(sT0), s(sB), "245760")); o += srd(SX, 4, 5, sT0, 128, str(245760 + 128))
    A(salu("s_lshl_b32", s(sT0), s(sH), "8")); A(salu("s_sub_u32", s(sT1), "0x400000", s(sT0))); o += srd(SWQ, 42, 43, sT0, 0, s(sT1))
    A(salu("s_lshl_b32", s(sT0), s(sB), "5")); A(salu("s_add_u32", s(sT0), s(sT0), s(sH))); A(salu("s_lshl_b32", s(sT0), s(sT0), "18"))
    o += srd(SK, 6, 7, sT0, 128, str(262144 + 128)); o += srd(SV, 40, 41, sT0, 128, str(262144 + 128))
    return o

def k1_setup2():
    o = []; A = o.append
    A(salu("s_lshl_b32", s(sT0), s(sB), "21")); A(salu("s_lshl_b32", s(sT1), s(sW), "19")); A(salu("s_add_u32", s(sT0), s(sT0), s(sT1)))
    A(salu("s_lshl_b32", s(sT1), s(sH), "14")); A(salu("s_add_u32", s(sT0), s(sT0), s(sT1))); o += srd(SO, sWS, sWS + 1, sT0, 0, "16384")
    A(salu("s_mov_b32", s(sT0), str(PIECE)))
    A(valu("v_and_b32", "v5", "7", "v1")); A(valu("v_mul_u32_u24", "v5", s(sT0), "v5"))
    A(valu("v_lshrrev_b32", "v6", "3", "v1")); A(valu("v_lshl_add_u32", "v5", "v6", "8", "v5")); A(valu("v_lshl_add_u32", v(vKrd0), "v2", "4", "v5"))
    A(valu("v_mov_b32", v(vKrd), v(vKrd0)))
    A(valu("v_and_b32", "v5", "1", "v2")); A(valu("v_lshl_add_u32", "v5", "v5", "2", "v3")); A(valu("v_mul_u32_u24", "v5", s(sT0), "v5"))
    A(valu("v_lshrrev_b32", "v6", "1", "v2")); A(valu("v_lshl_add_u32", "v5", "v6", "8", "v5")); A(valu("v_lshl_add_u32", "v5", "v4", "3", "v5"))
    A(valu("v_add_u32", v(vVrd0), str(UNIT), "v5")); A(valu("v_mov_b32", v(vVrd), v(vVrd0))); A(valu("v_add_u32", v(vWrd), str(W_BASE), "v5"))
    A(valu("v_mul_u32_u24", "v5", s(sT0), "v4")); A(valu("v_lshl_add_u32", "v5", "v3", "7", "v5")); A(valu("v_lshl_add_u32", "v5", "v2", "4", "v5"))
    A(valu("v_add_u32", v(vXrd), s(sXb), "v5"))
    for a in range(4): A(valu("v_mov_b32", v(MTRUE + a), "0xff800000"))
    if cfg.fused:
        L = v(vLane)
        A(valu("v_lshrrev_b32", "v5", "3", L)); A(valu("v_lshlrev_b32", "v5", "12", "v5")); A(valu("v_and_b32", "v6", "7", L)); A(valu("v_lshl_add_u32", "v5", "v6", "4", "v5"))
        for m in range(4): A(valu("v_add_u32", v(v2Wd + m), str(128 - 32 * m), "v5"))
    return o

def x_dma(c, t0=None, dt=1, after=None):
    p = c & 1; o = []; g = f"c{c}"; st = "dma"
    def T(k): return None if t0 is None else int(t0 + k * dt)
    def U(k): return None if t0 is None else int(t0 - 7 + k)
    o.append(salu("s_add_u32", s(sT0), s(sROT), str(c), tgt=U(0), stream="xa")); o.append(salu("s_and_b32", s(sT0), s(sT0), "7", tgt=U(1), stream="xa"))
    o.append(salu("s_lshl_b32", s(sXo), s(sT0), "7", tgt=U(2), stream="xa")); o.append(salu("s_lshl_b32", s(sWo), s(sT0), "19", tgt=U(3), stream="xa"))
    o.append(salu("s_add_u32", s(sXo2), s(sXo), "16384", tgt=U(4), stream="xa"))
    k = 0
    for half in range(2):
        o.append(salu("s_add_u32", "m0", s(sXb), str(p * SLOT + half * GRP), tgt=T(k - 1), stream=st))
        for m in range(4):
            d = dma(v(vX + m), SX, s(sXo2 if half else sXo), m * PIECE, cfg.xflags, grp=g, tgt=T(k), stream=st); k += 1
            if after: d.after = list(after)
            o.append(d)
    return o
def w_dma(c, t0=None, dt=1):
    p = c & 1; o = []; g = f"c{c}"; st = "dma"
    def T(k): return None if t0 is None else int(t0 + k * dt)
    o.append(salu("s_add_u32", "m0", s(sG), str(W_BASE + p * UNIT), tgt=T(-1), stream=st))
    for m in range(4): o.append(dma(v(vWq + m), SWQ, s(sWo), m * PIECE, cfg.wflags, grp=g, tgt=T(m), stream=st))
    return o
def kv_dma_static(which, tile, t0=None, dt=1, grp=0, ms=(0, 1, 2, 3)):
    st = "dma"
    def T(k): return None if t0 is None else t0 + k * dt
    o = [salu("s_mov_b32", s(sT1), str(tile * 16384 + grp * 4096), tgt=T(-1), stream=st),
         salu("s_add_u32", "m0", s(sG), str((tile & 3) * SLOT + (UNIT if which == "V" else 0) + grp * GRP), tgt=T(-1), stream=st)]
    for k, m in enumerate(ms): o.append(dma(v(vKV + m), SK if which == "K" else SV, s(sT1), m * PIECE, cfg.kvflags, grp=f"{which}{tile}", tgt=T(k), stream=st))
    return o
def chunk_reads(c, nq, t0=None, dt=1):
    p = c & 1; o = []; k = 0
    def T(k): return None if t0 is None else t0 + k * dt
    items = []
    for s_ in range(2):
        for a in range(nq): items.append(("x", s_, a))
    for tau in range(8):
        for s_ in range(2):
            for z in range(2): items.append(("w", s_, tau, z))
    for it in items:
        if it[0] == "x":
            _, s_, a = it
            o.append(ds_b128("a", xset(p, s_, a), v(vXrd), p * SLOT + (a & 1) * GRP + (a >> 1) * 512 + s_ * 64, tgt=T(k), stream="rd"))
        else:
            _, s_, tau, z = it
            o.append(ds_tr("a", wset(p, s_, tau) + 2 * z, v(vWrd), p * UNIT + z * 8 * PIECE + s_ * 512 + 32 * tau, tgt=T(k), stream="rd"))
        k += 1
    return o
def chunk_mfma(c, nq, amajor=False):
    p = c & 1; o = []
    order = [(a, tau) for a in range(nq) for tau in range(8)] if amajor else [(a, tau) for tau in range(8) for a in range(nq)]
    for a, tau in order:
        for s_ in range(2):
            z = (c == 0 and s_ == 0)
            o.append(mfma("v", acc(a, tau), "a", wset(p, s_, tau), "a", xset(p, s_, a), "0" if z else None))
    return o
def q_convert(a, t0, dt):
    o = []; k = 0
    for s_ in range(4):
        d = qf(a, s_)
        for half in range(2):
            b = acc(a, 2 * s_ + half)
            for r in range(4): o.append(valu("v_mul_f32", v(b + r), s(sC), v(b + r), tgt=t0 + k * dt)); k += 1
            for r in range(2): o.append(valu("v_cvt_pk_bf16_f32", v(d + 2 * half + r), v(b + 2 * r), v(b + 2 * r + 1), tgt=t0 + k * dt)); k += 1
        for r in range(2): o.append(swap("v_permlane32_swap_b32", v(d + r), v(d + 2 + r), tgt=t0 + k * dt)); k += 1
        for r in range(2): o.append(swap("v_permlane16_swap_b32", v(d + r), v(d + 2 + r), tgt=t0 + k * dt)); k += 1
    return o
def k_reads(j, t0=None, dt=4, after=None):
    o = []
    for r in range(8):
        kap, s_ = r >> 2, r & 3
        i = ds_b128("a", KF + 4 * r, v(vKrd), j * 8 * PIECE + kap * 512 + s_ * 64, tgt=None if t0 is None else t0 + r * dt, stream="rd")
        if after: i.after = list(after)
        o.append(i)
    return o
def v_reads(j, t0, dt):
    o = []
    for r in range(16):
        t, z = r >> 1, r & 1
        o.append(ds_tr("a", VF + 4 * t + 2 * z, v(vVrd), j * 8 * PIECE + z * 512 + 32 * t, tgt=t0 + r * dt, stream="rd"))
    return o
def qk(j, nq, first=False):
    o = []
    for a in range(nq):
        for kap in range(2):
            d = S_[j] + a * 8 + kap * 4
            for s_ in range(4):
                if s_ == 0: o.append(mfma("v", d, "a", KF + 4 * (kap * 4), "v", qf(a, 0), "0" if first else "v", None if first else NEGM + 4 * a))
                else: o.append(mfma("v", d, "a", KF + 4 * (kap * 4 + s_), "v", qf(a, s_)))
    return o
def pv(j, nq, first=False):
    return [mfma("a", oacc(a, t), "a", VF + 4 * t, "v", P_[j] + 4 * a, "0" if first else None) for t in range(8) for a in range(nq)]
def sm(j, nq, t0, dt=2.0):
    o = []
    for i in range(8 * nq):
        r = S_[j] + i; a = i >> 3
        o.append(valu("v_exp_f32", v(r), v(r), tgt=int(t0 + i * dt)))
        o.append(valu("v_add_f32", v(LSUM + a), v(LSUM + a), v(r), tgt=int(t0 + i * dt + 1)))
        if i & 1: o.append(valu("v_cvt_pk_bf16_f32", v(P_[j] + (i >> 1)), v(r - 1), v(r), tgt=int(t0 + i * dt + 1)))
    return o
def xreduce(op, reg, tmp, t0=None, dt=1):
    def T(k): return None if t0 is None else t0 + k * dt
    return [valu("v_mov_b32", v(tmp), v(reg), tgt=T(0)), swap("v_permlane16_swap_b32", v(reg), v(tmp), tgt=T(1)), valu(op, v(reg), v(reg), v(tmp), tgt=T(2)),
            valu("v_mov_b32", v(tmp), v(reg), tgt=T(3)), swap("v_permlane32_swap_b32", v(reg), v(tmp), tgt=T(4)), valu(op, v(reg), v(reg), v(tmp), tgt=T(5))]
def first_max(a, t0, dt):
    o = []; b = S_[0] + a * 8; m = TMP + 2 * a; k = 0
    o.append(valu("v_max3_f32", v(m), v(b), v(b + 1), v(MTRUE + a), tgt=t0))
    for r in range(1, 4): o.append(valu("v_max3_f32", v(m), v(b + 2 * r), v(b + 2 * r + 1), v(m), tgt=t0 + r * dt))
    o += xreduce("v_max_f32", m, m + 1, t0 + 4 * dt, dt)
    for r in range(4): o.append(valu("v_sub_f32", v(NEGM + 4 * a + r), "0", v(m), tgt=t0 + (10 + r) * dt))
    for r in range(8): o.append(valu("v_sub_f32", v(b + r), v(b + r), v(m), tgt=t0 + (14 + r) * dt))
    o.append(valu("v_mov_b32", v(LSUM + a), "0", tgt=t0))
    return o

class Variant:
    def __init__(s_, nq, name):
        s_.nq, s_.name = nq, name
        s_.static = []
        s_.trace = []
        s_.vm = []
        s_.pend = []
    def finish(s_, seq, sched=True, **kw):
        seq = schedule(seq, **kw) if sched else seq
        seq = s_.resolve_vm(seq)
        seq, s_.pend = insert_lgkm(seq, s_.pend)
        seq = fix_hazards(seq, s_.trace)
        s_.static += seq; s_.trace += seq
        return seq
    def resolve_vm(s_, seq):
        out = []
        for c in seq:
            if c.k == "wait" and c.meta == ("vm", None):
                n = min(vm_count(s_.vm, c.need), 63)
                w = waitvm(n, need=c.need); out.append(w)
            else:
                out.append(c)
                if c.k == "vmem": s_.vm.append(c)
        return out
def wvm(groups, **kw): return I("s_waitcnt vmcnt(?)", "wait", meta=("vm", None), need=set(groups), **kw)

def iteration(T, nq, first=False):
    n = 8 * nq
    st = "dma"
    o = []
    vdt = 2 if nq == 4 else 1.5
    o += qk(0, nq)
    o += v_reads(0, 1, vdt)
    o += sm(1, nq, 0)
    o += k_reads(1, n + 1, (n - 4) / 8)
    o += pv(0, nq, first)
    B = 2 * n
    o += qk(1, nq)
    vr = v_reads(1, B + 1, vdt); o += vr
    o.append(valu("v_add_u32", v(vVrd), s(sS1), v(vVrd0), tgt=B + n + 2))
    o += sm(0, nq, B - 2, 2.0)
    w = wvm({f"K{T+2}", f"V{T+1}"}, tgt=B + n - 3, stream=["rd2", st]); b = barrier(tgt=B + n - 2, stream=["rd2", st])
    w.after = [x for x in o if x.k == "mfma"][B + n - 4:B + n - 3]
    o += [w, b]
    o.append(valu("v_add_u32", v(vKrd), s(sS2), v(vKrd0), tgt=B + n - 4))
    o += k_reads(0, B + n + 1, (n - 4) / 8, after=[b])
    e = 4 * n - 1
    t = B + n
    if not cfg.w3dma:
        dt = (n - 10) / 8
        o.append(salu("s_add_u32", s(sT0), s(sS3), s(sG), tgt=t - 1, stream=st)); o.append(salu("s_add_u32", "m0", s(sT0), str(UNIT), tgt=t, stream=st))
        for m in range(4): o.append(dma(v(vKV + m), SV, s(sVo), m * PIECE, cfg.kvflags, grp=f"V{T+3}", tgt=int(t + 1 + m * dt), stream=st))
        o.append(salu("s_add_u32", "m0", s(sS1), s(sG), tgt=int(t + 3 * dt + 2), stream=st))
        for m in range(4): o.append(dma(v(vKV + m), SK, s(sKo), m * PIECE, cfg.kvflags, grp=f"K{T+5}", tgt=int(t + 1 + (4 + m) * dt), stream=st))
        r = e - 9
        o.append(salu("s_add_u32", s(sVo), s(sVo), "16384", tgt=r, stream=st))
    elif nq == 4:
        dt = (n - 12) / 4
        o.append(salu("s_add_u32", "m0", s(sS1), s(sG), tgt=t, stream=st))
        for m in range(4): o.append(dma(v(vKV + m), SK, s(sKo), m * PIECE, cfg.kvflags, grp=f"K{T+5}", tgt=int(t + 2 + m * dt), stream=st))
        r = e - 9
    else:
        for gi in range(4):
            t0 = 2 + gi * 11
            o.append(salu("s_add_u32", "m0", s(sS2), str(UNIT + gi * GRP), tgt=t0 - 1, stream="dmaA"))
            for m in range(4): o.append(dma(v(vKV + m), SV, s(sVo), m * PIECE, cfg.kvflags, grp=f"V{T+2}", tgt=int(t0 + m * 2.5), stream="dmaA"))
            o.append(salu("s_add_u32", s(sVo), s(sVo), "4096", tgt=t0 + 9, stream="dmaA"))
        blk = o[-24:]; del o[-24:]
        k = o.index(w); o[k:k] = blk
        w.stream = ["rd2", st, "dmaA"]
        o.append(salu("s_add_u32", "m0", s(sS1), s(sG), tgt=t, stream=st))
        for m in range(4): o.append(dma(v(vKV + m), SK, s(sKo), m * PIECE, cfg.kvflags, grp=f"K{T+5}", tgt=int(t + 2 + m * 3), stream=st))
        r = e - 9
    o += pv(1, nq)
    o.append(salu("s_add_u32", s(sKo), s(sKo), "16384", tgt=r + 1, stream=st))
    o.append(salu("s_mov_b32", s(sS1), s(sS2), tgt=r + 2, stream=st)); o.append(salu("s_mov_b32", s(sS2), s(sS3), tgt=r + 3, stream=st))
    o.append(salu("s_add_u32", s(sS3), s(sS3), str(SLOT), tgt=r + 4, stream=st)); o.append(salu("s_cmp_eq_u32", None, s(sS3), str(4 * SLOT), tgt=r + 5, stream=st))
    o.append(salu("s_cselect_b32", s(sS3), "0", s(sS3), tgt=r + 6, stream=st))
    o.append(salu("s_add_u32", s(sT), s(sT), "1", tgt=r + 7, stream=st)); o.append(salu("s_cmp_lt_u32", None, s(sT), "15", tgt=r + 8, stream=st))
    return o

def k1_variant(nq, name):
    V = Variant(nq, name)
    V.finish([label(f"L_{name}")], sched=False)
    o = x_dma(0) + w_dma(0) + x_dma(1) + w_dma(1) + k1_setup2()
    o += [wvm({"c0"}), barrier()] + stamp(1, cfg.sset) + chunk_reads(0, nq) + [waitlg(0)] + x_dma(2) + [barrier()] + w_dma(2)
    V.finish(o, sched=False)
    n = 16 * nq
    w3 = cfg.w3dma and nq == 3
    for c in range(7):
        m = chunk_mfma(c, nq)
        w = wvm({f"c{c+1}"}, tgt=0, stream=["rd", "dma"]); b = barrier(tgt=1, stream=["rd", "dma"])
        nx = 2 * nq
        rd = chunk_reads(c + 1, nq, 2, 1)
        o = [w, b] + m
        if c + 3 <= 7:
            gx = (n - 8 - (nx + 4)) / 40.0
            for k, r in enumerate(rd[nx:]): r.tgt = int(nx + 2 + k * (1 + 8 / 32.0) * min(1.0, gx))
            if cfg.kvpace and c >= 1:
                o += kv_dma_static("K" if c <= 2 else "V", 0, 4, 3, ms=(0, 1) if c & 1 else (2, 3))
            wl = waitlg(4, tgt=nx + 6, stream=["rd", "dma"])
            o += rd[:nx + 4] + [wl] + rd[nx + 4:]
            wl0 = waitlg(0, tgt=n - 10, stream=["rd"]); b2 = barrier(tgt=n - 9, stream=["rd", "dma"])
            xd = x_dma(c + 3, nx + 7, 5 * min(1.0, gx))
            k = o.index(wl) + 1
            o += xd + [wl0, b2] + w_dma(c + 3, n - 8, 2)
        else:
            o += rd
            if cfg.kvpace:
                if c == 5: o += kv_dma_static("K", 1, 3, n // 5)
                if c == 6: o += kv_dma_static("K", 2, 3, n // 5)
            else:
                if c == 5: o += kv_dma_static("K", 0, 3, 5) + kv_dma_static("V", 0, 3 + n // 3, 5) + kv_dma_static("K", 1, 3 + 2 * n // 3, 4)
                if c == 6: o += kv_dma_static("K", 2, 3, 5) + kv_dma_static("V", 1, 3 + n // 3, 5)
            o += [waitlg(0, tgt=n - 1, stream=["rd"])]
        if cfg.nomfma1: o = [x for x in o if x.k != "mfma"]
        if cfg.nord1: o = [x for x in o if x.k != "lds"]
        if cfg.nodma1: o = [x for x in o if x.k != "vmem"]
        V.finish(o, lds_lat=0)
        V.finish(stamp(c + 2, "p1"), sched=False)
    h = 8 * nq
    c7 = chunk_mfma(7, nq, amajor=True)
    g0 = wvm({"K0"}, tgt=0, stream=["dma", "rd"]); g1 = barrier(tgt=1, stream=["dma", "rd"])
    o = [g0, g1] + c7 + (kv_dma_static("V", 1, 3, 3) if cfg.kvpace else kv_dma_static("K", 3, 3, 2)) + k_reads(0, 4, 1)
    for a in range(nq): o += q_convert(a, 16 * (a + 1) + 3, 0.5)
    V.finish(o + stamp(2) + stamp(9, "p1"))
    V.finish([raw(f"s_branch L_{name}_go", "branch"), label(f"L_{name}_attn"), waitvm(0), barrier()] + k_reads(0) + [label(f"L_{name}_go"), waitlg(0)], sched=False)
    o = qk(0, nq, first=True)
    if cfg.kvpace: o += kv_dma_static("K", 3, 1, 2)
    for a in range(nq): o += first_max(a, 8 * (a + 1) + 2, 0.5)
    o += k_reads(1, h - 6, 1)
    o += qk(1, nq)
    o += sm(0, nq, h + 4, 1.0)
    w = wvm({"K1", "V0"}, tgt=2 * h - 3, stream=["dma"]); b = barrier(tgt=2 * h - 2, stream=["dma"])
    w.after = [x for x in o if x.k == "mfma"][2 * h - 4:2 * h - 3]
    o += [w, b, valu("v_add_u32", v(vKrd), str(SLOT), v(vKrd0), tgt=2 * h - 2)]
    o += k_reads(0, 2 * h - 1, 0, after=[b])
    o += ([] if cfg.w3dma else kv_dma_static("V", 2, 2 * h - 1, 0)) + kv_dma_static("K", 4, 2 * h - 1, 0)
    vo0 = (2 * 16384 - 3 * 4096) if cfg.w3dma else 3 * 16384
    o += [salu("s_mov_b32", s(sVo), str(vo0), tgt=2), salu("s_mov_b32", s(sKo), str(5 * 16384), tgt=3), salu("s_mov_b32", s(sS1), str(SLOT), tgt=4),
          salu("s_mov_b32", s(sS2), str(2 * SLOT), tgt=5), salu("s_mov_b32", s(sS3), str(3 * SLOT), tgt=6), salu("s_mov_b32", s(sT), "0", tgt=7),
          valu("v_mov_b32", v(vVrd), v(vVrd0), tgt=8)]
    V.finish(o + stamp(3))
    V.finish(iteration(0, nq, first=True))
    body = None
    V.static.append(label(f"L_{name}_loop"))
    for T in range(1, 15):
        seq = schedule(iteration(T, nq))
        seq = V.resolve_vm(seq)
        if T == 1:
            _, p1 = insert_lgkm(seq, V.pend)
            seq2, p2 = insert_lgkm(seq, p1)
            seq2 = fix_hazards(seq2 + [raw(f"s_cbranch_scc1 L_{name}_loop", "branch", rd=["scc"])], seq2)
            body = seq2; V.static += body; V.trace += body; V.pend = p2
            V.loop_stats = gap_stats(body)
        else:
            new = []; cur = list(seq); k = 0
            for c in body:
                if k < len(cur) and cur[k].t == c.t: new.append(cur[k]); k += 1
                else: new.append(c)
            assert k == len(cur), ("loop body differs", T, cur[k].t)
            V.trace += new
    V.finish(stamp(4) + [waitvm(0)], sched=False)
    vr1 = v_reads(1, h // 2, 1)
    o = v_reads(0, -1, 0.5) + sm(1, nq, 0, 1.0) + pv(0, nq) + vr1
    inv = TMP
    for a in range(nq):
        o += xreduce("v_add_f32", LSUM + a, TMP + 8 + a, h + 4 * a, 0.5)
        o.append(valu("v_rcp_f32", v(inv + a), v(LSUM + a), tgt=h + 4 * a + 3))
    A = o.append
    tv = h + 4 * nq
    if cfg.fallback:
        A(salu("s_mov_b32", s(sT0), hex(LIMIT), tgt=h - 2)); A(raw("s_mov_b64 s[54:55], 0", "salu", wr=["s54", "s55"], tgt=h - 1))
        for a in range(nq):
            A(valu("v_cmp_nge_f32", "vcc", s(sT0), v(LSUM + a), tgt=h + 4 * a + 4))
            A(raw("s_or_b64 s[54:55], s[54:55], vcc", "salu", rd=["vcc", "s54", "s55"], wr=["s54", "s55", "scc"], tgt=h + 4 * a + 5))
        A(salu("s_cselect_b32", s(sT0), "1", "0", tgt=tv))
        A(salu("s_lshl_b32", s(sT2), s(sW), "2", tgt=tv)); A(salu("s_add_u32", s(sT2), s(sT2), str(VOTE), tgt=tv))
        A(valu("v_mov_b32", v(TMP + 12), s(sT0), tgt=tv)); A(valu("v_mov_b32", v(TMP + 13), s(sT2), tgt=tv)); A(valu("v_mov_b32", v(TMP + 14), str(VOTE), tgt=tv))
        A(I(f"ds_write_b32 v{TMP+13}, v{TMP+12}", "ldsw", rd=[v(TMP + 12), v(TMP + 13)], tgt=tv, stream="rd"))
    A(waitlg(0, tgt=tv + 1, stream="rd")); A(barrier(tgt=tv + 2, stream=["rd", "dma"]))
    if cfg.fallback: A(ds_b128("v", TMP + 4, v(TMP + 14), 0, tgt=tv + 3, stream="rd"))
    if cfg.fused:
        o += p3_srd_w(h - 12)
        for u in range(cfg.pre): o += k2_wdma(u, tv + 3 + 4 * u, 1)
    o += pv(1, nq)
    k = 0
    for sg in range(4):
        o.append(salu("s_mov_b32", s(sT1), str(4096 * sg), tgt=h + 8 * sg, stream="st"))
        for a in range(nq):
            tb = (0, 16, 32, 48)[k % 4]
            t0 = h + 2 * nq * (sg + 1) + 2
            for r in range(8): o.append(valu("v_accvgpr_read_b32", v(tb + r), f"a{oacc(a, 2*sg) + r}", tgt=t0))
            for r in range(8): o.append(valu("v_mul_f32", v(tb + r), v(inv + a), v(tb + r), tgt=t0))
            for r in range(4): o.append(valu("v_cvt_pk_bf16_f32", v(tb + 8 + r), v(tb + 2 * r), v(tb + 2 * r + 1), tgt=t0))
            o.append(bstore("v", tb + 8, v(vOst), SO, s(sT1), 1024 * a, cfg.osc if cfg.fused else cfg.oflags, tgt=t0, stream="st", grp="O"))
            k += 1
    V.finish(o + stamp(5))
    V.npre = len(V.vm)
    if cfg.fallback:
        o = []; A = o.append
        A(valu("v_or3_b32", v(TMP + 12), v(TMP + 4), v(TMP + 5), v(TMP + 6))); A(valu("v_or_b32", v(TMP + 12), v(TMP + 12), v(TMP + 7)))
        A(valu("v_readfirstlane_b32", s(sT0), v(TMP + 12)))
        A(salu("s_andn2_b32", s(sT0), s(sT0), s(sPASS))); A(raw(f"s_cbranch_scc0 L_{name}_end", "branch", rd=["scc"]))
        A(waitvm(0)); A(barrier())
        A(valu("v_mov_b32", v(vKrd), v(vKrd0))); A(salu("s_mov_b32", s(sKo), "0")); A(salu("s_mov_b32", "m0", s(sG)))
        A(label(f"L_{name}_mx"))
        for m in range(4): A(dma(v(vKV + m), SK, s(sKo), m * PIECE, cfg.kvflags))
        A(waitvm(0)); A(barrier())
        for j in range(2):
            o += k_reads(j) + [waitlg(0)] + qk(0, nq, first=True) + [nop(7)]
            for a in range(nq):
                for r in range(4): A(valu("v_max3_f32", v(MTRUE + a), v(S_[0] + 8 * a + 2 * r), v(S_[0] + 8 * a + 2 * r + 1), v(MTRUE + a)))
        A(barrier())
        A(salu("s_add_u32", s(sKo), s(sKo), "16384")); A(salu("s_cmp_lt_u32", None, s(sKo), "262144")); A(raw(f"s_cbranch_scc1 L_{name}_mx", "branch", rd=["scc"]))
        A(salu("s_mov_b32", s(sPASS), "1"))
        for wh, tl in (("K", 0), ("V", 0), ("K", 1), ("K", 2), ("V", 1)) + (() if cfg.kvpace else (("K", 3),)): o += kv_dma_static(wh, tl)
        A(raw(f"s_branch L_{name}_attn", "branch"))
        V.finish(o, sched=False)
    if cfg.fused:
        V.finish([label(f"L_{name}_end"), raw("s_branch L_p3", "branch")], sched=False)
    else:
        V.finish([label(f"L_{name}_end")] + stamp(6) + dump_stamps(10, sWS, STAMP_OFF, v(vLane), "L_k1_done") + [raw("s_endpgm")], sched=False)
    return V

S2O, S2W, S2Out = 8, 12, 40
s2B, s2RG, s2CG, s2ROT, s2M = 36, 37, 38, 39, 31
s2Oo, s2Wo, s2T = 46, 47, 48
v2Wd, v2Ol, v2Wr, v2Rw, v2Rr, v2St = 252, 104, 105, 106, 107, 108
W2F = 64
def park(u): return ("v", 128 + 16 * u) if u < 6 else ("a", 128 + 16 * (u - 6))
def p3_srd_w(t0=None):
    o = []; k = [0]
    def A(x):
        if t0 is not None: x.tgt = t0 + k[0] // 2; x.stream = "p3s"
        k[0] += 1; o.append(x)
    A(salu("s_and_b32", s(s2B), "s2", "7")); A(salu("s_lshr_b32", s(s2T), "s2", "3")); A(salu("s_and_b32", s(s2CG), s(s2T), "7")); A(salu("s_lshr_b32", s(s2RG), s(s2T), "3"))
    A(salu("s_lshl_b32", s(s2ROT), s(s2CG), "2")); A(salu("s_add_u32", s(s2ROT), s(s2ROT), s(s2RG)))
    A(salu("s_mul_i32", s(s2M), s(sW), str(8 * GRP)))
    A(salu("s_lshl_b32", s(s2T), s(sW), "20")); A(salu("s_lshl_b32", s(s2Wo), s(s2CG), "7")); A(salu("s_add_u32", s(s2T), s(s2T), s(s2Wo)))
    A(salu("s_sub_u32", s(s2Wo), str(1048576 + 128), s(s2Wo)))
    for x in srd(S2W, 56, 57, s2T, 128, s(s2Wo)): A(x)
    return o
def p3_setup2(L):
    o = []; A = o.append
    A(salu("s_lshl_b32", s(sT0), s(s2B), "2")); A(salu("s_add_u32", s(sT0), s(sT0), s(s2RG))); A(salu("s_lshl_b32", s(sT0), s(sT0), "19"))
    A(salu("s_lshl_b32", s(sT1), s(sW), "17")); A(salu("s_add_u32", s(sT0), s(sT0), s(sT1))); o += srd(S2O, sWS, sWS + 1, sT0, 0, "131072")
    A(salu("s_mul_i32", s(sT0), s(s2B), "245760")); A(salu("s_lshl_b32", s(sT1), s(s2RG), "16")); A(salu("s_lshl_b32", s(sT2), s(s2CG), "7")); A(salu("s_add_u32", s(sT1), s(sT1), s(sT2)))
    A(salu("s_add_u32", s(sT0), s(sT0), s(sT1))); A(salu("s_sub_u32", s(sT1), "245760", s(sT1))); o += srd(S2Out, 58, 59, sT0, 0, s(sT1))
    A(valu("v_lshlrev_b32", v(v2Ol), "4", L))
    A(valu("v_and_b32", "v97", "15", L)); A(valu("v_lshrrev_b32", "v98", "4", L)); A(valu("v_bfe_u32", "v99", L, "2", "2")); A(valu("v_and_b32", "v100", "3", L))
    A(salu("s_mov_b32", s(sT0), str(PIECE)))
    A(valu("v_mul_u32_u24", "v101", s(sT0), "v99")); A(valu("v_lshl_add_u32", "v101", "v98", "7", "v101")); A(valu("v_lshl_add_u32", "v101", "v100", "3", "v101")); A(valu("v_add_u32", v(v2Wr), s(s2M), "v101"))
    A(salu("s_lshl_b32", s(sT0), s(sW), "14")); A(valu("v_add_u32", v(v2Rw), s(sT0), v(v2Ol)))
    A(salu("s_lshl_b32", s(sT1), s(sW), "12")); A(valu("v_lshlrev_b32", "v101", "9", "v98")); A(valu("v_lshl_add_u32", "v101", "v97", "4", "v101")); A(valu("v_add_u32", v(v2Rr), s(sT1), "v101"))
    A(valu("v_lshlrev_b32", "v101", "10", "v97")); A(valu("v_lshl_add_u32", "v101", "v98", "4", "v101")); A(valu("v_add_u32", v(v2St), s(sT0), "v101"))
    return o
def k2_wdma(u, t0=None, dt=2):
    st = "dma"; sl = u & 7
    def T(k): return None if t0 is None else int(t0 + k * dt)
    o = [salu("s_add_u32", s(s2T), s(s2ROT), str(u), tgt=T(-2), stream=st), salu("s_and_b32", s(s2T), s(s2T), "31", tgt=T(-2), stream=st),
         salu("s_lshl_b32", s(s2Wo), s(s2T), "15", tgt=T(-1), stream=st), salu("s_add_u32", "m0", s(s2M), str(sl * GRP), tgt=T(-1), stream=st)]
    for m in range(4): o.append(dma(v(v2Wd + m), S2W, s(s2Wo), m * PIECE, cfg.k2_wflags, grp=f"w{u}", tgt=T(m), stream=st))
    return o
def k2_oload(u, nq, t0=None, dt=2):
    st = "dma"; sl = u & 7
    def T(k): return None if t0 is None else int(t0 + k * dt)
    o = [salu("s_add_u32", s(s2T), s(s2ROT), str(u), tgt=T(-2), stream=st), salu("s_and_b32", s(s2T), s(s2T), "31", tgt=T(-2), stream=st),
         salu("s_lshl_b32", s(s2Oo), s(s2T), "12", tgt=T(-1), stream=st)]
    for a in range(nq): o.append(bload("a", sl * 16 + 4 * a, v(v2Ol), S2O, s(s2Oo), 1024 * a, cfg.osc if cfg.fused else cfg.k2_oflags, grp=f"o{u}", tgt=T(a), stream=st))
    return o
def wfrag(u): return park(u) if u < cfg.park else ("v", W2F + (u & 1) * 16)
def k2_reads(u, t0=None, dt=2):
    f, b = wfrag(u)
    return [ds_tr(f, b + 4 * (r >> 1) + 2 * (r & 1), v(v2Wr), (u & 7) * GRP + (r & 1) * 512 + 32 * (r >> 1),
                  tgt=None if t0 is None else int(t0 + r * dt), stream="rd") for r in range(8)]
def p3_front(V):
    L = v(vLane); o = []; A = o.append
    A(label("L_p3")); o += p3_setup2(L)
    A(waitvm(0)); A(barrier()); o += stamp(6)
    A(salu("s_cmp_lg_u32", None, s(sW), "0")); A(raw("s_cbranch_scc1 L_p3_a", "branch", rd=["scc"]))
    A(salu("s_lshl_b32", s(sT0), s(sB), "5")); A(valu("v_mov_b32", "v96", s(sT0))); A(valu("v_mov_b32", "v97", "1"))
    A(raw("s_mov_b64 exec, 1", "salu")); A(I("global_atomic_add v96, v97, s[100:101] sc1", "vmem", rd=["v96", "v97"], meta="store")); A(raw("s_mov_b64 exec, -1", "salu"))
    A(label("L_p3_a"))
    V.finish(o, sched=False)
    o = []; A = o.append
    for u in range(cfg.pre, 8): o += k2_wdma(u)
    u = 0
    while u < cfg.park:
        blk = list(range(u, min(u + 4, cfg.park)))
        A(wvm({f"w{x}" for x in blk}))
        for x in blk: o += k2_reads(x)
        A(waitlg(0))
        for x in blk: o += k2_wdma(x + 8)
        u += 4
    A(salu("s_cmp_lg_u32", None, s(sW), "0")); A(raw("s_cbranch_scc1 L_p3_b", "branch", rd=["scc"]))
    A(salu("s_lshl_b32", s(sT0), s(s2B), "5")); A(valu("v_mov_b32", "v96", s(sT0))); A(salu("s_mov_b32", s(sT1), "0"))
    A(label("L_p3_poll"))
    A(raw("global_load_dword v97, v96, s[100:101] sc1")); A(raw("s_waitcnt vmcnt(0)")); A(raw("v_readfirstlane_b32 s33, v97"))
    A(raw("s_add_u32 s34, s34, 1")); A(raw("s_cmp_ge_u32 s33, 32")); A(raw("s_cbranch_scc1 L_p3_b"))
    A(raw("s_sleep 2")); A(raw("s_cmp_lt_u32 s34, 0x100000")); A(raw("s_cbranch_scc1 L_p3_poll"))
    A(label("L_p3_b")); A(barrier()); o += stamp(7)
    A(salu("s_cmp_eq_u32", None, s(s2RG), "3")); A(raw("s_cbranch_scc1 L_r3", "branch", rd=["scc"]))
    V.finish(o, sched=False)
def k2_variant(nq, name, V0):
    V = Variant(nq, name); V.vm = list(V0.vm); V.trace = list(V0.trace); V.pend = list(V0.pend)
    D = cfg.depth
    nw = 8 + cfg.park
    o = [label(f"L_{name}")]
    for u in range(D): o += k2_oload(u, nq)
    if cfg.park == 0: o += [wvm({"w0"})] + k2_reads(0)
    V.finish(o, sched=False)
    for u in range(32):
        f, b = wfrag(u)
        o = [wvm({f"o{u}", f"w{u+1}"}, tgt=-1, stream=["rd", "dma"])]
        o += [mfma("v", a * 16 + 4 * tau, f, b + 4 * tau, "a", (u & 7) * 16 + 4 * a, "0" if u == 0 else None) for tau in range(4) for a in range(nq)]
        sp = 2 if nq == 4 else 1.5
        if cfg.park <= u + 1 < 32: o += k2_reads(u + 1, 0, sp)
        if u + D < 32: o += k2_oload(u + D, nq, 1, sp)
        if u - 1 >= cfg.park and u + 7 < 32 and u + 7 >= nw: o += k2_wdma(u + 7, 1 + nq * sp, sp)
        V.finish(o, lds_lat=0)
    o = stamp(8) + [barrier()]
    for a in range(nq):
        for tau in range(4): o.append(ds_w128(v(v2Rw), "v", a * 16 + 4 * tau, (a * 4 + tau) * 1024))
    o += [waitlg(0), barrier()]
    for ws_ in range(4):
        for q in range(4): o.append(ds_b128("v", ws_ * 16 + 4 * q, v(v2Rr), ws_ * 16384 + (q >> 1) * 2048 + (q & 1) * 256))
    for r in range(16): o.append(valu("v_add_f32", v(r), v(r), v(16 + r)))
    for r in range(16): o.append(valu("v_add_f32", v(32 + r), v(32 + r), v(48 + r)))
    for r in range(16): o.append(valu("v_add_f32", v(r), v(r), v(32 + r)))
    for r in range(8): o.append(valu("v_cvt_pk_bf16_f32", v(16 + r), v(2 * r), v(2 * r + 1)))
    for sg in range(2): o.append(bstore("v", 16 + 4 * sg, v(v2St), S2Out, "0", 64 * sg))
    o += stamp(9) + dump_stamps(10, sWS, STAMP_OFF, v(vLane), "L_k1_done") + [raw("s_endpgm")]
    V.finish(o, sched=False)
    return V

HEAD = """; standalone__mha_block_cached__near_ridge: out = softmax((x wq) K^T / sqrt(128)) V wo
"""
def kd(name, vg, acc_off):
    return f""".amdhsa_kernel {name}
  .amdhsa_next_free_vgpr {vg}
  .amdhsa_next_free_sgpr 102
  .amdhsa_accum_offset {acc_off}
  .amdhsa_group_segment_fixed_size 0
  .amdhsa_kernarg_size 64
  .amdhsa_user_sgpr_count 2
  .amdhsa_user_sgpr_kernarg_segment_ptr 1
  .amdhsa_system_sgpr_workgroup_id_x 1
.end_amdhsa_kernel
"""
def check(pre, V):
    tr = pre + V.trace
    for nm, f in (("hazard", check_hazards), ("lgkm", check_lgkm), ("vm", check_vm)):
        bad = f(tr)
        if bad:
            print(V.name, nm, len(bad), bad[:6], file=sys.stderr); raise SystemExit(1)
def build():
    KN = "standalone__mha_block_cached__near_ridge_kernel"
    out = HEAD
    out += f"; @launch grid=(256,1,1) block=(256,1,1) lds={LDS1 + 64}\n"
    out += '.amdgcn_target "amdgcn-amd-amdhsa--gfx950"\n.text\n'
    out += f".globl {KN}\n.p2align 8\n.type {KN},@function\n{KN}:\n"
    pre = fix_hazards(k1_setup() + [salu("s_cmp_eq_u32", None, s(sW), "3"), raw("s_cbranch_scc1 L_w3", "branch")])
    out += text(pre)
    for nq, name in ((4, "w012"), (3, "w3")):
        V = k1_variant(nq, name); check(pre, V)
        print(name, "loop (mfma, est cycles):", V.loop_stats, "total est", gap_stats(V.trace), file=sys.stderr)
        out += text(V.static)
    F = Variant(4, "p3"); F.vm = [x for x in V.vm[:V.npre] if x.grp and x.grp[0] == "w"]
    p3_front(F); check([], F)
    out += text(F.static)
    for nq, name in ((4, "r012"), (3, "r3")):
        W = k2_variant(nq, name, F); check([], W)
        print(name, "total est", gap_stats(W.static), file=sys.stderr)
        out += text(W.static)
    out += "L_k1_done:\n  s_endpgm\n"
    out += '.section .rodata,"a"\n.p2align 6\n' + kd(KN, 512, 256)
    return out
if __name__ == "__main__":
    path = sys.argv[1]
    for kv in sys.argv[2:]:
        k, val = kv.split("=")
        cur = getattr(cfg, k)
        setattr(cfg, k, (val == "1") if isinstance(cur, bool) else type(cur)(val.replace("+", " ")))
    open(path, "w").write(build())
```

```python
import sys, math, struct
from core import *

PIECE = 1056; GRP = 4 * PIECE; UNIT = 16 * PIECE; SLOT = 2 * UNIT
X_BASE = 3 * UNIT; W_BASE = X_BASE + 2 * SLOT; LDS1 = W_BASE + 2 * UNIT
VOTE = LDS1
QSCALE = struct.unpack("<I", struct.pack("<f", math.log2(math.e) / math.sqrt(128.0)))[0]
LIMIT = 0x4b800000

class Cfg:
    stamps = False
    kvflags = "nt"
    xflags = ""
    wflags = ""
    oflags = ""
    k2_oflags = ""
    k2_wflags = ""
    fallback = True
    rot = 2
    fused = True
    pre = 2
    xsc = 'sc1'
    touch = True
    forcemix = False
    kvpace = True
    sset = 'main'
    nomfma1 = False
    nord1 = False
    nodma1 = False
    w3dma = True
    k2map = 1
cfg = Cfg()

sW = 3; SX, SWQ, SK, SV, SO = 8, 12, 16, 20, 24
sB, sH, sROT = 28, 29, 30
sXb, sG = 31, 32
sT0, sT1, sT2 = 33, 34, 35
sXo, sXo2, sWo = 36, 37, 38
sKo, sVo = 46, 47
sS1, sS2, sS3 = 48, 49, 50
sT = 51; sPASS = 52; sC = 53; sWS = 44
vKrd, vVrd, vKrd0, vVrd0, vXrd, vWrd = 232, 233, 234, 235, 236, 237
vOst = 238; vLane = 239
vKV, vX, vWq = 240, 244, 248
ACC = 0; QF = 128
S_ = (0, 32); P_ = (64, 80); NEGM = 192; LSUM = 208; MTRUE = 212; TMP = 216
KF, VF = 192, 224
def acc(a, tau): return ACC + a * 32 + tau * 4
def qf(a, s): return QF + (a * 4 + s) * 4
def wset(p, s, tau): return p * 96 + (s * 8 + tau) * 4
def xset(p, s, a): return p * 96 + 64 + (s * 4 + a) * 4
def oacc(a, t): return a * 32 + t * 4
v = lambda n: f"v{n}"
s = lambda n: f"s{n}"

STAMP_BASE = 60
def stamp(i, sset="main"):
    if not cfg.stamps or (i > 0 and sset != cfg.sset and sset != "k2"): return []
    return [raw(f"s_memrealtime s[{STAMP_BASE+4*i}:{STAMP_BASE+4*i+1}]"), raw(f"s_memtime s[{STAMP_BASE+4*i+2}:{STAMP_BASE+4*i+3}]"), waitlg(0)]
def dump_stamps(n, wsreg, off, lane, lab):
    if not cfg.stamps: return []
    o = [raw("s_waitcnt vmcnt(0) lgkmcnt(0)")]
    o += [raw(f"s_lshl_b32 s4, s2, 10"), raw(f"s_lshl_b32 s5, s{sW}, 8"), raw("s_add_u32 s4, s4, s5"), raw(f"s_add_u32 s4, s4, {off}"),
          raw(f"s_add_u32 s4, s{wsreg}, s4"), raw(f"s_addc_u32 s5, s{wsreg+1}, 0"),
          raw(f"v_cmp_eq_u32 vcc, 0, {lane}"), raw("s_and_saveexec_b64 s[6:7], vcc"), raw(f"s_cbranch_execz {lab}"), raw("v_mov_b32 v3, 0")]
    for i in range(n):
        o += [raw(f"v_mov_b32 v{4+j}, s{STAMP_BASE+4*i+j}") for j in range(4)]
        o += [raw(f"global_store_dwordx4 v3, v[4:7], s[4:5] offset:{16*i}"), raw("s_nop 1")]
    return o
STAMP_OFF = 0x2000000

def srd(reg, lo, hi, add, sub, nrec):
    o = [salu("s_add_u32", s(reg), s(lo), s(add)), salu("s_addc_u32", s(reg + 1), s(hi), "0")]
    if sub: o += [salu("s_sub_u32", s(reg), s(reg), str(sub)), salu("s_subb_u32", s(reg + 1), s(reg + 1), "0", scc_r=True, scc_w=True)]
    o += [salu("s_mov_b32", s(reg + 2), nrec), salu("s_mov_b32", s(reg + 3), "0x20000")]
    return o

def k1_setup():
    o = []
    A = o.append
    A(raw("s_cmp_ge_u32 s2, 256")); A(raw("s_cbranch_scc1 L_k1_done"))
    o += stamp(0)
    A(raw("s_load_dwordx4 s[4:7], s[0:1], 0"))
    A(raw("s_load_dwordx4 s[40:43], s[0:1], 16"))
    A(raw(f"s_load_dwordx2 s[{sWS}:{sWS+1}], s[0:1], 56"))
    if cfg.fused:
        A(raw("s_load_dwordx4 s[56:59], s[0:1], 32"))
        A(raw("s_load_dwordx2 s[100:101], s[0:1], 48"))
    A(valu("v_lshrrev_b32", "v1", "6", "v0")); A(valu("v_and_b32", v(vLane), "63", "v0"))
    A(valu("v_readfirstlane_b32", s(sW), "v1"))
    A(salu("s_and_b32", s(sT0), "s2", "7")); A(salu("s_lshr_b32", s(sT1), "s2", "3"))
    A(salu("s_and_b32", s(sB), s(sT0), "1")); A(salu("s_lshl_b32", s(sB), s(sB), "2")); A(salu("s_and_b32", s(sT2), s(sT1), "3")); A(salu("s_add_u32", s(sB), s(sB), s(sT2)))
    A(salu("s_lshr_b32", s(sH), s(sT0), "1")); A(salu("s_lshl_b32", s(sH), s(sH), "3")); A(salu("s_lshr_b32", s(sT1), s(sT1), "2")); A(salu("s_add_u32", s(sH), s(sH), s(sT1)))
    A(salu("s_lshl_b32", s(sT2), s(sT2), "1")); A(salu("s_add_u32", s(sROT), s(sH), s(sT2)))
    if cfg.rot == 8: A(salu("s_and_b32", s(sROT), s(sROT), "7"))
    elif cfg.rot == 1: A(salu("s_mov_b32", s(sROT), "0"))
    else:
        A(salu("s_lshr_b32", s(sT2), s(sT2), "1")); A(salu("s_add_u32", s(sROT), s(sH), s(sT2)))
        A(salu("s_and_b32", s(sROT), s(sROT), str(cfg.rot - 1))); A(salu("s_mul_i32", s(sROT), s(sROT), str(8 // cfg.rot)))
    A(salu("s_mul_i32", s(sG), s(sW), str(GRP))); A(salu("s_lshl_b32", s(sXb), s(sG), "1")); A(salu("s_add_u32", s(sXb), s(sXb), str(X_BASE)))
    A(salu("s_mov_b32", s(sC), hex(QSCALE))); A(salu("s_mov_b32", s(sPASS), "0"))
    L = v(vLane)
    A(valu("v_and_b32", "v1", "15", L)); A(valu("v_lshrrev_b32", "v2", "4", L))
    A(valu("v_bfe_u32", "v3", L, "2", "2")); A(valu("v_and_b32", "v4", "3", L))
    A(valu("v_lshrrev_b32", "v5", "5", L)); A(valu("v_lshlrev_b32", "v5", "15", "v5"))
    A(valu("v_bfe_u32", "v6", L, "3", "2")); A(valu("v_lshl_add_u32", "v5", "v6", "12", "v5"))
    A(valu("v_and_b32", "v6", "7", L)); A(valu("v_lshl_add_u32", "v5", "v6", "4", "v5"))
    A(salu("s_lshl_b32", s(sT0), s(sW), "16")); A(salu("s_add_u32", s(sT0), s(sT0), "128"))
    A(valu("v_add_u32", v(vX), s(sT0), "v5"))
    for m in range(1, 4): A(valu("v_subrev_u32", v(vX + m), str(32 * m), v(vX)))
    A(salu("s_and_b32", s(sT0), s(sW), "1")); A(salu("s_lshl_b32", s(sT0), s(sT0), "16"))
    A(salu("s_lshr_b32", s(sT1), s(sW), "1")); A(salu("s_lshl_b32", s(sT1), s(sT1), "15")); A(salu("s_add_u32", s(sT0), s(sT0), s(sT1)))
    A(valu("v_lshlrev_b32", "v5", "17", "v2")); A(valu("v_lshl_add_u32", "v5", "v1", "4", "v5"))
    A(valu("v_add_u32", v(vWq), s(sT0), "v5"))
    for m in range(1, 4): A(valu("v_add_u32", v(vWq + m), str(m * (8192 - PIECE)), v(vWq)))
    A(salu("s_lshl_b32", s(sT0), s(sW), "12")); A(salu("s_add_u32", s(sT0), s(sT0), "128"))
    A(valu("v_lshlrev_b32", v(vOst), "4", L)); A(valu("v_add_u32", v(vKV), s(sT0), v(vOst)))
    for m in range(1, 4): A(valu("v_subrev_u32", v(vKV + m), str(32 * m), v(vKV)))
    A(raw("s_waitcnt lgkmcnt(0)", "other"))
    A(salu("s_mul_i32", s(sT0), s(sB), "245760")); o += srd(SX, 4, 5, sT0, 128, str(245760 + 128))
    A(salu("s_lshl_b32", s(sT0), s(sH), "8")); A(salu("s_sub_u32", s(sT1), "0x400000", s(sT0))); o += srd(SWQ, 42, 43, sT0, 0, s(sT1))
    A(salu("s_lshl_b32", s(sT0), s(sB), "5")); A(salu("s_add_u32", s(sT0), s(sT0), s(sH))); A(salu("s_lshl_b32", s(sT0), s(sT0), "18"))
    o += srd(SK, 6, 7, sT0, 128, str(262144 + 128)); o += srd(SV, 40, 41, sT0, 128, str(262144 + 128))
    return o

def k1_setup2():
    o = []; A = o.append
    A(salu("s_lshl_b32", s(sT0), s(sB), "21")); A(salu("s_lshr_b32", s(sT1), s(sW), "1")); A(salu("s_lshl_b32", s(sT1), s(sT1), "20")); A(salu("s_add_u32", s(sT0), s(sT0), s(sT1)))
    A(salu("s_lshl_b32", s(sT1), s(sH), "15")); A(salu("s_add_u32", s(sT0), s(sT0), s(sT1)))
    A(salu("s_and_b32", s(sT1), s(sW), "1")); A(salu("s_lshl_b32", s(sT1), s(sT1), "12")); A(salu("s_add_u32", s(sT0), s(sT0), s(sT1)))
    o += srd(SO, sWS, sWS + 1, sT0, 0, "28672")
    A(salu("s_mov_b32", s(sT0), str(PIECE)))
    A(valu("v_and_b32", "v5", "7", "v1")); A(valu("v_mul_u32_u24", "v5", s(sT0), "v5"))
    A(valu("v_lshrrev_b32", "v6", "3", "v1")); A(valu("v_lshl_add_u32", "v5", "v6", "8", "v5")); A(valu("v_lshl_add_u32", v(vKrd0), "v2", "4", "v5"))
    A(valu("v_mov_b32", v(vKrd), v(vKrd0)))
    A(valu("v_and_b32", "v5", "1", "v2")); A(valu("v_lshl_add_u32", "v5", "v5", "2", "v3")); A(valu("v_mul_u32_u24", "v5", s(sT0), "v5"))
    A(valu("v_lshrrev_b32", "v6", "1", "v2")); A(valu("v_lshl_add_u32", "v5", "v6", "8", "v5")); A(valu("v_lshl_add_u32", "v5", "v4", "3", "v5"))
    A(valu("v_add_u32", v(vVrd0), str(UNIT), "v5")); A(valu("v_mov_b32", v(vVrd), v(vVrd0))); A(valu("v_add_u32", v(vWrd), str(W_BASE), "v5"))
    A(valu("v_mul_u32_u24", "v5", s(sT0), "v4")); A(valu("v_lshl_add_u32", "v5", "v3", "7", "v5")); A(valu("v_lshl_add_u32", "v5", "v2", "4", "v5"))
    A(valu("v_add_u32", v(vXrd), s(sXb), "v5"))
    for a in range(4): A(valu("v_mov_b32", v(MTRUE + a), "0xff800000"))
    A(valu("v_lshrrev_b32", "v5", "1", "v2")); A(valu("v_lshlrev_b32", "v5", "15", "v5")); A(valu("v_and_b32", "v6", "1", "v2")); A(valu("v_lshl_add_u32", "v5", "v6", "13", "v5"))
    A(valu("v_lshl_add_u32", "v5", "v1", "4", "v5"))
    A(salu("s_lshr_b32", s(sT0), s(sW), "1")); A(salu("s_lshl_b32", s(sT0), s(sT0), "14")); A(salu("s_and_b32", s(sT1), s(sW), "1")); A(salu("s_lshl_b32", s(sT1), s(sT1), "12"))
    A(salu("s_add_u32", s(sT0), s(sT0), s(sT1))); A(valu("v_add_u32", "v5", s(sT0), "v5"))
    for m in range(4): A(valu("v_add_u32", v(v3Wd + m), str(128 - 32 * m), "v5"))
    return o

def x_dma(c, t0=None, dt=1, after=None):
    p = c & 1; o = []; g = f"c{c}"; st = "dma"
    def T(k): return None if t0 is None else int(t0 + k * dt)
    def U(k): return None if t0 is None else int(t0 - 7 + k)
    o.append(salu("s_add_u32", s(sT0), s(sROT), str(c), tgt=U(0), stream="xa")); o.append(salu("s_and_b32", s(sT0), s(sT0), "7", tgt=U(1), stream="xa"))
    o.append(salu("s_lshl_b32", s(sXo), s(sT0), "7", tgt=U(2), stream="xa")); o.append(salu("s_lshl_b32", s(sWo), s(sT0), "19", tgt=U(3), stream="xa"))
    o.append(salu("s_add_u32", s(sXo2), s(sXo), "16384", tgt=U(4), stream="xa"))
    k = 0
    for half in range(2):
        o.append(salu("s_add_u32", "m0", s(sXb), str(p * SLOT + half * GRP), tgt=T(k - 1), stream=st))
        for m in range(4):
            d = dma(v(vX + m), SX, s(sXo2 if half else sXo), m * PIECE, cfg.xflags, grp=g, tgt=T(k), stream=st); k += 1
            if after: d.after = list(after)
            o.append(d)
    return o
def w_dma(c, t0=None, dt=1):
    p = c & 1; o = []; g = f"c{c}"; st = "dma"
    def T(k): return None if t0 is None else int(t0 + k * dt)
    o.append(salu("s_add_u32", "m0", s(sG), str(W_BASE + p * UNIT), tgt=T(-1), stream=st))
    for m in range(4): o.append(dma(v(vWq + m), SWQ, s(sWo), m * PIECE, cfg.wflags, grp=g, tgt=T(m), stream=st))
    return o
def kv_dma_static(which, tile, t0=None, dt=1, grp=0, ms=(0, 1, 2, 3)):
    st = "dma"
    def T(k): return None if t0 is None else t0 + k * dt
    o = [salu("s_mov_b32", s(sT1), str(tile * 16384 + grp * 4096), tgt=T(-1), stream=st),
         salu("s_add_u32", "m0", s(sG), str((tile & 3) * SLOT + (UNIT if which == "V" else 0) + grp * GRP), tgt=T(-1), stream=st)]
    for k, m in enumerate(ms): o.append(dma(v(vKV + m), SK if which == "K" else SV, s(sT1), m * PIECE, cfg.kvflags, grp=f"{which}{tile}", tgt=T(k), stream=st))
    return o
def chunk_reads(c, nq, t0=None, dt=1):
    p = c & 1; o = []; k = 0
    def T(k): return None if t0 is None else t0 + k * dt
    items = []
    for s_ in range(2):
        for a in range(nq): items.append(("x", s_, a))
    for tau in range(8):
        for s_ in range(2):
            for z in range(2): items.append(("w", s_, tau, z))
    for it in items:
        if it[0] == "x":
            _, s_, a = it
            o.append(ds_b128("a", xset(p, s_, a), v(vXrd), p * SLOT + (a & 1) * GRP + (a >> 1) * 512 + s_ * 64, tgt=T(k), stream="rd"))
        else:
            _, s_, tau, z = it
            o.append(ds_tr("a", wset(p, s_, tau) + 2 * z, v(vWrd), p * UNIT + z * 8 * PIECE + s_ * 512 + 32 * tau, tgt=T(k), stream="rd"))
        k += 1
    return o
def chunk_mfma(c, nq, amajor=False):
    p = c & 1; o = []
    order = [(a, tau) for a in range(nq) for tau in range(8)] if amajor else [(a, tau) for tau in range(8) for a in range(nq)]
    for a, tau in order:
        for s_ in range(2):
            z = (c == 0 and s_ == 0)
            o.append(mfma("v", acc(a, tau), "a", wset(p, s_, tau), "a", xset(p, s_, a), "0" if z else None))
    return o
def q_convert(a, t0, dt):
    o = []; k = 0
    for s_ in range(4):
        d = qf(a, s_)
        for half in range(2):
            b = acc(a, 2 * s_ + half)
            for r in range(4): o.append(valu("v_mul_f32", v(b + r), s(sC), v(b + r), tgt=t0 + k * dt)); k += 1
            for r in range(2): o.append(valu("v_cvt_pk_bf16_f32", v(d + 2 * half + r), v(b + 2 * r), v(b + 2 * r + 1), tgt=t0 + k * dt)); k += 1
        for r in range(2): o.append(swap("v_permlane32_swap_b32", v(d + r), v(d + 2 + r), tgt=t0 + k * dt)); k += 1
        for r in range(2): o.append(swap("v_permlane16_swap_b32", v(d + r), v(d + 2 + r), tgt=t0 + k * dt)); k += 1
    return o
def k_reads(j, t0=None, dt=4, after=None):
    o = []
    for r in range(8):
        kap, s_ = r >> 2, r & 3
        i = ds_b128("a", KF + 4 * r, v(vKrd), j * 8 * PIECE + kap * 512 + s_ * 64, tgt=None if t0 is None else t0 + r * dt, stream="rd")
        if after: i.after = list(after)
        o.append(i)
    return o
def v_reads(j, t0, dt):
    o = []
    for r in range(16):
        t, z = r >> 1, r & 1
        o.append(ds_tr("a", VF + 4 * t + 2 * z, v(vVrd), j * 8 * PIECE + z * 512 + 32 * t, tgt=t0 + r * dt, stream="rd"))
    return o
def qk(j, nq, first=False):
    o = []
    for a in range(nq):
        for kap in range(2):
            d = S_[j] + a * 8 + kap * 4
            for s_ in range(4):
                if s_ == 0: o.append(mfma("v", d, "a", KF + 4 * (kap * 4), "v", qf(a, 0), "0" if first else "v", None if first else NEGM + 4 * a))
                else: o.append(mfma("v", d, "a", KF + 4 * (kap * 4 + s_), "v", qf(a, s_)))
    return o
def pv(j, nq, first=False):
    return [mfma("a", oacc(a, t), "a", VF + 4 * t, "v", P_[j] + 4 * a, "0" if first else None) for t in range(8) for a in range(nq)]
def sm(j, nq, t0, dt=2.0):
    o = []
    for i in range(8 * nq):
        r = S_[j] + i; a = i >> 3
        o.append(valu("v_exp_f32", v(r), v(r), tgt=int(t0 + i * dt)))
        o.append(valu("v_add_f32", v(LSUM + a), v(LSUM + a), v(r), tgt=int(t0 + i * dt + 1)))
        if i & 1: o.append(valu("v_cvt_pk_bf16_f32", v(P_[j] + (i >> 1)), v(r - 1), v(r), tgt=int(t0 + i * dt + 1)))
    return o
def xreduce(op, reg, tmp, t0=None, dt=1):
    def T(k): return None if t0 is None else t0 + k * dt
    return [valu("v_mov_b32", v(tmp), v(reg), tgt=T(0)), swap("v_permlane16_swap_b32", v(reg), v(tmp), tgt=T(1)), valu(op, v(reg), v(reg), v(tmp), tgt=T(2)),
            valu("v_mov_b32", v(tmp), v(reg), tgt=T(3)), swap("v_permlane32_swap_b32", v(reg), v(tmp), tgt=T(4)), valu(op, v(reg), v(reg), v(tmp), tgt=T(5))]
def first_max(a, t0, dt):
    o = []; b = S_[0] + a * 8; m = TMP + 2 * a; k = 0
    o.append(valu("v_max3_f32", v(m), v(b), v(b + 1), v(MTRUE + a), tgt=t0))
    for r in range(1, 4): o.append(valu("v_max3_f32", v(m), v(b + 2 * r), v(b + 2 * r + 1), v(m), tgt=t0 + r * dt))
    o += xreduce("v_max_f32", m, m + 1, t0 + 4 * dt, dt)
    for r in range(4): o.append(valu("v_sub_f32", v(NEGM + 4 * a + r), "0", v(m), tgt=t0 + (10 + r) * dt))
    for r in range(8): o.append(valu("v_sub_f32", v(b + r), v(b + r), v(m), tgt=t0 + (14 + r) * dt))
    o.append(valu("v_mov_b32", v(LSUM + a), "0", tgt=t0))
    return o

class Variant:
    def __init__(s_, nq, name):
        s_.nq, s_.name = nq, name
        s_.static = []
        s_.trace = []
        s_.vm = []
        s_.pend = []
    def finish(s_, seq, sched=True, **kw):
        seq = schedule(seq, **kw) if sched else seq
        seq = s_.resolve_vm(seq)
        seq, s_.pend = insert_lgkm(seq, s_.pend)
        seq = fix_hazards(seq, s_.trace)
        s_.static += seq; s_.trace += seq
        return seq
    def resolve_vm(s_, seq):
        out = []
        for c in seq:
            if c.k == "wait" and c.meta == ("vm", None):
                n = min(vm_count(s_.vm, c.need), 63)
                w = waitvm(n, need=c.need); out.append(w)
            else:
                out.append(c)
                if c.k == "vmem": s_.vm.append(c)
        return out
def wvm(groups, **kw): return I("s_waitcnt vmcnt(?)", "wait", meta=("vm", None), need=set(groups), **kw)

def iteration(T, nq, first=False):
    n = 8 * nq
    st = "dma"
    o = []
    vdt = 2 if nq == 4 else 1.5
    o += qk(0, nq)
    o += v_reads(0, 1, vdt)
    o += sm(1, nq, 0)
    o += k_reads(1, n + 1, (n - 4) / 8)
    o += pv(0, nq, first)
    B = 2 * n
    o += qk(1, nq)
    vr = v_reads(1, B + 1, vdt); o += vr
    o.append(valu("v_add_u32", v(vVrd), s(sS1), v(vVrd0), tgt=B + n + 2))
    o += sm(0, nq, B - 2, 2.0)
    w = wvm({f"K{T+2}", f"V{T+1}"}, tgt=B + n - 3, stream=["rd2", st]); b = barrier(tgt=B + n - 2, stream=["rd2", st])
    w.after = [x for x in o if x.k == "mfma"][B + n - 4:B + n - 3]
    o += [w, b]
    o.append(valu("v_add_u32", v(vKrd), s(sS2), v(vKrd0), tgt=B + n - 4))
    o += k_reads(0, B + n + 1, (n - 4) / 8, after=[b])
    e = 4 * n - 1
    t = B + n
    if not cfg.w3dma:
        dt = (n - 10) / 8
        o.append(salu("s_add_u32", s(sT0), s(sS3), s(sG), tgt=t - 1, stream=st)); o.append(salu("s_add_u32", "m0", s(sT0), str(UNIT), tgt=t, stream=st))
        for m in range(4): o.append(dma(v(vKV + m), SV, s(sVo), m * PIECE, cfg.kvflags, grp=f"V{T+3}", tgt=int(t + 1 + m * dt), stream=st))
        o.append(salu("s_add_u32", "m0", s(sS1), s(sG), tgt=int(t + 3 * dt + 2), stream=st))
        for m in range(4): o.append(dma(v(vKV + m), SK, s(sKo), m * PIECE, cfg.kvflags, grp=f"K{T+5}", tgt=int(t + 1 + (4 + m) * dt), stream=st))
        r = e - 9
        o.append(salu("s_add_u32", s(sVo), s(sVo), "16384", tgt=r, stream=st))
    elif nq == 4:
        dt = (n - 12) / 4
        o.append(salu("s_add_u32", "m0", s(sS1), s(sG), tgt=t, stream=st))
        for m in range(4): o.append(dma(v(vKV + m), SK, s(sKo), m * PIECE, cfg.kvflags, grp=f"K{T+5}", tgt=int(t + 2 + m * dt), stream=st))
        r = e - 9
    else:
        for gi in range(4):
            t0 = 2 + gi * 11
            o.append(salu("s_add_u32", "m0", s(sS2), str(UNIT + gi * GRP), tgt=t0 - 1, stream="dmaA"))
            for m in range(4): o.append(dma(v(vKV + m), SV, s(sVo), m * PIECE, cfg.kvflags, grp=f"V{T+2}", tgt=int(t0 + m * 2.5), stream="dmaA"))
            o.append(salu("s_add_u32", s(sVo), s(sVo), "4096", tgt=t0 + 9, stream="dmaA"))
        blk = o[-24:]; del o[-24:]
        k = o.index(w); o[k:k] = blk
        w.stream = ["rd2", st, "dmaA"]
        o.append(salu("s_add_u32", "m0", s(sS1), s(sG), tgt=t, stream=st))
        for m in range(4): o.append(dma(v(vKV + m), SK, s(sKo), m * PIECE, cfg.kvflags, grp=f"K{T+5}", tgt=int(t + 2 + m * 3), stream=st))
        r = e - 9
    o += pv(1, nq)
    o.append(salu("s_add_u32", s(sKo), s(sKo), "16384", tgt=r + 1, stream=st))
    o.append(salu("s_mov_b32", s(sS1), s(sS2), tgt=r + 2, stream=st)); o.append(salu("s_mov_b32", s(sS2), s(sS3), tgt=r + 3, stream=st))
    o.append(salu("s_add_u32", s(sS3), s(sS3), str(SLOT), tgt=r + 4, stream=st)); o.append(salu("s_cmp_eq_u32", None, s(sS3), str(4 * SLOT), tgt=r + 5, stream=st))
    o.append(salu("s_cselect_b32", s(sS3), "0", s(sS3), tgt=r + 6, stream=st))
    o.append(salu("s_add_u32", s(sT), s(sT), "1", tgt=r + 7, stream=st)); o.append(salu("s_cmp_lt_u32", None, s(sT), "15", tgt=r + 8, stream=st))
    return o

def k1_variant(nq, name):
    V = Variant(nq, name)
    V.finish([label(f"L_{name}")], sched=False)
    o = (clear_flags() if nq == 3 else []) + x_dma(0) + w_dma(0) + x_dma(1) + w_dma(1) + k1_setup2()
    o += [wvm({"c0", "clr"})] + (register() if nq == 3 else []) + [barrier()] + stamp(1, cfg.sset) + chunk_reads(0, nq) + [waitlg(0)] + x_dma(2) + [barrier()] + w_dma(2)
    V.finish(o, sched=False)
    n = 16 * nq
    w3 = cfg.w3dma and nq == 3
    for c in range(7):
        m = chunk_mfma(c, nq)
        w = wvm({f"c{c+1}"}, tgt=0, stream=["rd", "dma"]); b = barrier(tgt=1, stream=["rd", "dma"])
        nx = 2 * nq
        rd = chunk_reads(c + 1, nq, 2, 1)
        o = [w, b] + m
        if c + 3 <= 7:
            gx = (n - 8 - (nx + 4)) / 40.0
            for k, r in enumerate(rd[nx:]): r.tgt = int(nx + 2 + k * (1 + 8 / 32.0) * min(1.0, gx))
            if cfg.kvpace and c >= 1:
                o += kv_dma_static("K" if c <= 2 else "V", 0, 4, 3, ms=(0, 1) if c & 1 else (2, 3))
            wl = waitlg(4, tgt=nx + 6, stream=["rd", "dma"])
            o += rd[:nx + 4] + [wl] + rd[nx + 4:]
            wl0 = waitlg(0, tgt=n - 10, stream=["rd"]); b2 = barrier(tgt=n - 9, stream=["rd", "dma"])
            xd = x_dma(c + 3, nx + 7, 5 * min(1.0, gx))
            k = o.index(wl) + 1
            o += xd + [wl0, b2] + w_dma(c + 3, n - 8, 2)
        else:
            o += rd
            if cfg.kvpace:
                if c == 5: o += kv_dma_static("K", 1, 3, n // 5)
                if c == 6: o += kv_dma_static("K", 2, 3, n // 5)
            else:
                if c == 5: o += kv_dma_static("K", 0, 3, 5) + kv_dma_static("V", 0, 3 + n // 3, 5) + kv_dma_static("K", 1, 3 + 2 * n // 3, 4)
                if c == 6: o += kv_dma_static("K", 2, 3, 5) + kv_dma_static("V", 1, 3 + n // 3, 5)
            o += [waitlg(0, tgt=n - 1, stream=["rd"])]
        if cfg.nomfma1: o = [x for x in o if x.k != "mfma"]
        if cfg.nord1: o = [x for x in o if x.k != "lds"]
        if cfg.nodma1: o = [x for x in o if x.k != "vmem"]
        V.finish(o, lds_lat=0)
        V.finish(stamp(c + 2, "p1"), sched=False)
    h = 8 * nq
    c7 = chunk_mfma(7, nq, amajor=True)
    g0 = wvm({"K0"}, tgt=0, stream=["dma", "rd"]); g1 = barrier(tgt=1, stream=["dma", "rd"])
    o = [g0, g1] + c7 + (kv_dma_static("V", 1, 3, 3) if cfg.kvpace else kv_dma_static("K", 3, 3, 2)) + k_reads(0, 4, 1)
    o += [salu("s_lshl_b32", s(sT2), s(sB), "4", tgt=14), valu("v_mov_b32", v(vG + 4), s(sT2), tgt=15),
          I(f"global_load_dwordx4 v[{vG}:{vG+3}], v{vG+4}, s[100:101] sc1", "vmem", rd=[v(vG + 4)], wr=R("v", vG, 4), meta="load", grp="G", tgt=16, stream="dma")]
    for a in range(nq): o += q_convert(a, 16 * (a + 1) + 3, 0.5)
    V.finish(o)
    V.finish(stamp(2) + stamp(9, "p1"), sched=False)
    V.finish([raw(f"s_branch L_{name}_go", "branch"), label(f"L_{name}_attn"), waitvm(0), barrier()] + k_reads(0) + [label(f"L_{name}_go"), waitlg(0)], sched=False)
    o = qk(0, nq, first=True)
    if cfg.kvpace: o += kv_dma_static("K", 3, 1, 2)
    for a in range(nq): o += first_max(a, 8 * (a + 1) + 2, 0.5)
    o += k_reads(1, h - 6, 1)
    o += qk(1, nq)
    o += sm(0, nq, h + 4, 1.0)
    w = wvm({"K1", "V0", "G"}, tgt=2 * h - 3, stream=["dma"]); b = barrier(tgt=2 * h - 2, stream=["dma"])
    w.after = [x for x in o if x.k == "mfma"][2 * h - 4:2 * h - 3]
    o += [w, b, valu("v_add_u32", v(vKrd), str(SLOT), v(vKrd0), tgt=2 * h - 2)]
    o += k_reads(0, 2 * h - 1, 0, after=[b])
    o += ([] if cfg.w3dma else kv_dma_static("V", 2, 2 * h - 1, 0)) + kv_dma_static("K", 4, 2 * h - 1, 0)
    vo0 = (2 * 16384 - 3 * 4096) if cfg.w3dma else 3 * 16384
    o += [salu("s_mov_b32", s(sVo), str(vo0), tgt=2), salu("s_mov_b32", s(sKo), str(5 * 16384), tgt=3), salu("s_mov_b32", s(sS1), str(SLOT), tgt=4),
          salu("s_mov_b32", s(sS2), str(2 * SLOT), tgt=5), salu("s_mov_b32", s(sS3), str(3 * SLOT), tgt=6), salu("s_mov_b32", s(sT), "0", tgt=7),
          valu("v_mov_b32", v(vVrd), v(vVrd0), tgt=8)]
    V.finish(o)
    V.finish(group_check(name) + stamp(3), sched=False)
    V.finish(iteration(0, nq, first=True))
    body = None
    V.static.append(label(f"L_{name}_loop"))
    for T in range(1, 15):
        seq = schedule(iteration(T, nq))
        seq = V.resolve_vm(seq)
        if T == 1:
            _, p1 = insert_lgkm(seq, V.pend)
            seq2, p2 = insert_lgkm(seq, p1)
            seq2 = fix_hazards(seq2 + [raw(f"s_cbranch_scc1 L_{name}_loop", "branch", rd=["scc"])], seq2)
            body = seq2; V.static += body; V.trace += body; V.pend = p2
            V.loop_stats = gap_stats(body)
        else:
            new = []; cur = list(seq); k = 0
            for c in body:
                if k < len(cur) and cur[k].t == c.t: new.append(cur[k]); k += 1
                else: new.append(c)
            assert k == len(cur), ("loop body differs", T, cur[k].t)
            V.trace += new
    V.finish(stamp(4) + [waitvm(0)], sched=False)
    vr1 = v_reads(1, h // 2, 1)
    o = p3_srd_w(0) + (wo_touch(8) if cfg.touch and nq == 3 else [])
    o += v_reads(0, -1, 0.5) + sm(1, nq, 0, 1.0) + pv(0, nq) + vr1
    inv = TMP
    for a in range(nq):
        o += xreduce("v_add_f32", LSUM + a, TMP + 8 + a, h + 4 * a, 0.5)
        o.append(valu("v_rcp_f32", v(inv + a), v(LSUM + a), tgt=h + 4 * a + 3))
    A = o.append
    tv = h + 4 * nq
    if cfg.fallback:
        A(salu("s_mov_b32", s(sT0), hex(LIMIT), tgt=h - 2)); A(raw("s_mov_b64 s[54:55], 0", "salu", wr=["s54", "s55"], tgt=h - 1))
        for a in range(nq):
            A(valu("v_cmp_nge_f32", "vcc", s(sT0), v(LSUM + a), tgt=h + 4 * a + 4))
            A(raw("s_or_b64 s[54:55], s[54:55], vcc", "salu", rd=["vcc", "s54", "s55"], wr=["s54", "s55", "scc"], tgt=h + 4 * a + 5))
        A(salu("s_cselect_b32", s(sT0), "1", "0", tgt=tv))
        A(salu("s_lshl_b32", s(sT2), s(sW), "2", tgt=tv)); A(salu("s_add_u32", s(sT2), s(sT2), str(VOTE), tgt=tv))
        A(valu("v_mov_b32", v(TMP + 12), s(sT0), tgt=tv)); A(valu("v_mov_b32", v(TMP + 13), s(sT2), tgt=tv)); A(valu("v_mov_b32", v(TMP + 14), str(VOTE), tgt=tv))
        A(I(f"ds_write_b32 v{TMP+13}, v{TMP+12}", "ldsw", rd=[v(TMP + 12), v(TMP + 13)], tgt=tv, stream="rd"))
    A(waitlg(0, tgt=tv + 1, stream="rd")); A(barrier(tgt=tv + 2, stream=["rd", "dma"]))
    if cfg.fallback: A(ds_b128("v", TMP + 4, v(TMP + 14), 0, tgt=tv + 3, stream="rd"))
    for u in range(cfg.pre): o += p3_wdma(u, tv + 3 + 4 * u, 1)
    o += pv(1, nq)
    k = 0
    for sg in range(4):
        o.append(salu("s_mov_b32", s(sT1), str(8192 * sg), tgt=h + 8 * sg, stream="st"))
        for a in range(nq):
            tb = (0, 16, 32, 48)[k % 4]
            t0 = h + 2 * nq * (sg + 1) + 2
            for r in range(8): o.append(valu("v_accvgpr_read_b32", v(tb + r), f"a{oacc(a, 2*sg) + r}", tgt=t0))
            for r in range(8): o.append(valu("v_mul_f32", v(tb + r), v(inv + a), v(tb + r), tgt=t0))
            for r in range(4): o.append(valu("v_cvt_pk_bf16_f32", v(tb + 8 + r), v(tb + 2 * r), v(tb + 2 * r + 1), tgt=t0))
            o.append(bstore("v", tb + 8, v(vOst), SO, s(sT1), 1024 * a, cfg.oflags, tgt=t0, stream="st", grp="O"))
            k += 1
    V.finish(o)
    V.finish(stamp(5), sched=False)
    V.npre = len(V.vm)
    if cfg.fallback:
        o = []; A = o.append
        A(valu("v_or3_b32", v(TMP + 12), v(TMP + 4), v(TMP + 5), v(TMP + 6))); A(valu("v_or_b32", v(TMP + 12), v(TMP + 12), v(TMP + 7)))
        A(valu("v_readfirstlane_b32", s(sT0), v(TMP + 12)))
        A(salu("s_andn2_b32", s(sT0), s(sT0), s(sPASS))); A(raw(f"s_cbranch_scc0 L_{name}_end", "branch", rd=["scc"]))
        A(waitvm(0)); A(barrier())
        A(valu("v_mov_b32", v(vKrd), v(vKrd0))); A(salu("s_mov_b32", s(sKo), "0")); A(salu("s_mov_b32", "m0", s(sG)))
        A(label(f"L_{name}_mx"))
        for m in range(4): A(dma(v(vKV + m), SK, s(sKo), m * PIECE, cfg.kvflags))
        A(waitvm(0)); A(barrier())
        for j in range(2):
            o += k_reads(j) + [waitlg(0)] + qk(0, nq, first=True) + [nop(7)]
            for a in range(nq):
                for r in range(4): A(valu("v_max3_f32", v(MTRUE + a), v(S_[0] + 8 * a + 2 * r), v(S_[0] + 8 * a + 2 * r + 1), v(MTRUE + a)))
        A(barrier())
        A(salu("s_add_u32", s(sKo), s(sKo), "16384")); A(salu("s_cmp_lt_u32", None, s(sKo), "262144")); A(raw(f"s_cbranch_scc1 L_{name}_mx", "branch", rd=["scc"]))
        A(salu("s_mov_b32", s(sPASS), "1"))
        for wh, tl in (("K", 0), ("V", 0), ("K", 1), ("K", 2), ("V", 1)) + (() if cfg.kvpace else (("K", 3),)): o += kv_dma_static(wh, tl)
        A(salu("s_lshl_b32", s(sT2), s(sB), "4")); A(valu("v_mov_b32", v(vG + 4), s(sT2)))
        A(raw(f"global_load_dwordx4 v[{vG}:{vG+3}], v{vG+4}, s[100:101] sc1"))
        A(raw(f"s_branch L_{name}_attn", "branch"))
        V.finish(o, sched=False)
    if cfg.fused:
        V.finish([label(f"L_{name}_end"), raw("s_branch L_p3", "branch")], sched=False)
    else:
        V.finish([label(f"L_{name}_end")] + stamp(6) + dump_stamps(10, sWS, STAMP_OFF, v(vLane), "L_k1_done") + [raw("s_endpgm")], sched=False)
    return V

XOFF = 0x1000000; FOFF = 0x3000000
S3O, S3W, S3X, S3Out = 8, 12, 16, 40
s3HG, s3RP, s3CQ, s3T, s3U, sUNI, sF1, sF2 = 36, 37, 38, 46, 47, 39, 31, 30
v3Wd = 252; vG = 224
v3Or, v3Wr, v3Rr, v3St, v3L16 = 104, 105, 106, 107, 108
ORING, NO_ = 0, 4; WRING, NW_ = 65536, 5
def oset(p, sg, a): return p * 64 + (sg * 4 + a) * 4
def wset3(p, sg, tau): return p * 64 + 32 + (sg * 4 + tau) * 4
def one_lane(ins): return [raw("s_mov_b64 exec, 1", "salu"), ins, raw("s_mov_b64 exec, -1", "salu")]
def flag_addrs(t0=None):
    o = []; A = o.append
    A(salu("s_lshr_b32", s(s3HG), s(sH), "3")); A(salu("s_bfe_u32", s(s3RP), s(sH), "0x10002", scc_w=True)); A(salu("s_and_b32", s(s3CQ), s(sH), "3"))
    A(salu("s_lshl_b32", s(sF1), s(sB), "2")); A(salu("s_add_u32", s(sF1), s(sF1), s(s3HG))); A(salu("s_lshl_b32", s(sF1), s(sF1), "7")); A(salu("s_add_u32", s(sF1), s(sF1), hex(FOFF)))
    A(salu("s_lshl_b32", s(sF2), s(sB), "3")); A(salu("s_and_b32", s(s3T), s(sH), "7")); A(salu("s_add_u32", s(sF2), s(sF2), s(s3T))); A(salu("s_lshl_b32", s(sF2), s(sF2), "7")); A(salu("s_add_u32", s(sF2), s(sF2), hex(FOFF + 4096)))
    if t0 is not None:
        for k, x in enumerate(o): x.tgt = t0 + k; x.stream = "p3s"
    return o
def clear_flags():
    o = []; A = o.append
    A(salu("s_lshr_b32", s(54), s(sH), "3")); A(salu("s_and_b32", s(55), s(sH), "7"))
    A(salu("s_lshl_b32", s(sT0), s(sB), "2")); A(salu("s_add_u32", s(sT0), s(sT0), s(54))); A(salu("s_lshl_b32", s(sT0), s(sT0), "5")); A(salu("s_add_u32", s(sT0), s(sT0), s(55)))
    A(salu("s_lshl_b32", s(sT0), s(sT0), "2")); A(salu("s_add_u32", s(sT0), s(sT0), hex(FOFF)))
    A(salu("s_lshl_b32", s(sT1), s(sB), "3")); A(salu("s_add_u32", s(sT1), s(sT1), s(55))); A(salu("s_lshl_b32", s(sT1), s(sT1), "5")); A(salu("s_add_u32", s(sT1), s(sT1), s(54)))
    A(salu("s_lshl_b32", s(sT1), s(sT1), "2")); A(salu("s_add_u32", s(sT1), s(sT1), hex(FOFF + 4096)))
    A(valu("v_mov_b32", "v8", s(sT0))); A(valu("v_mov_b32", "v9", s(sT1))); A(valu("v_mov_b32", "v10", "0"))
    A(raw("s_mov_b64 exec, 1", "salu"))
    A(I(f"global_store_dword v8, v10, s[{sWS}:{sWS+1}] sc1", "vmem", rd=["v8", "v10"], meta="store", grp="clr"))
    A(I(f"global_store_dword v9, v10, s[{sWS}:{sWS+1}] sc1", "vmem", rd=["v9", "v10"], meta="store", grp="clr"))
    A(raw("s_mov_b64 exec, -1", "salu"))
    return o
def xcc_word(dst, tmp):
    o = [raw(f"s_getreg_b32 s{tmp}, hwreg(HW_REG_XCC_ID, 0, 4)", "salu", wr=[s(tmp)])]
    if cfg.forcemix: o.append(salu("s_and_b32", s(tmp), s(sH), "1"))
    o += [salu("s_mul_i32", s(dst), s(tmp), s(tmp)), salu("s_lshl_b32", s(dst), s(dst), "8"), salu("s_add_u32", s(dst), s(dst), s(tmp)),
          salu("s_lshl_b32", s(dst), s(dst), "8"), salu("s_add_u32", s(dst), s(dst), "1")]
    return o
def register():
    o = xcc_word(sT0, sT1); A = o.append
    A(salu("s_lshr_b32", s(sT1), s(sH), "3")); A(salu("s_lshl_b32", s(sT2), s(sB), "2")); A(salu("s_add_u32", s(sT1), s(sT1), s(sT2))); A(salu("s_lshl_b32", s(sT1), s(sT1), "2"))
    A(valu("v_mov_b32", "v8", s(sT1))); A(valu("v_mov_b32", "v9", s(sT0)))
    o += one_lane(I("global_atomic_add v8, v9, s[100:101] sc1", "vmem", rd=["v8", "v9"], meta="store"))
    return o
def group_check(name):
    o = []; A = o.append
    A(label(f"L_{name}_gc"))
    A(valu("v_and_b32", v(vG + 5), v(vG), v(vG + 1))); A(valu("v_and_b32", v(vG + 6), v(vG + 2), v(vG + 3))); A(valu("v_and_b32", v(vG + 5), v(vG + 5), v(vG + 6)))
    A(valu("v_readfirstlane_b32", s(sT0), v(vG + 5)))
    A(salu("s_bitcmp1_b32", None, s(sT0), "3", scc_w=True)); A(raw(f"s_cbranch_scc1 L_{name}_gok", "branch", rd=["scc"]))
    A(raw(f"s_sleep 8")); A(raw(f"global_load_dwordx4 v[{vG}:{vG+3}], v{vG+4}, s[100:101] sc1")); A(raw("s_waitcnt vmcnt(0)")); A(raw(f"s_branch L_{name}_gc", "branch"))
    A(label(f"L_{name}_gok"))
    A(salu("s_lshr_b32", s(sT0), s(sH), "3"))
    A(salu("s_cmp_eq_u32", None, s(sT0), "1")); A(raw(f"s_cselect_b64 vcc, -1, 0", "salu", rd=["scc"], wr=["vcc"])); A(valu("v_cndmask_b32", v(vG), v(vG), v(vG + 1), "vcc"))
    A(salu("s_cmp_eq_u32", None, s(sT0), "2")); A(raw(f"s_cselect_b64 vcc, -1, 0", "salu", rd=["scc"], wr=["vcc"])); A(valu("v_cndmask_b32", v(vG + 5), v(vG), v(vG + 2), "vcc"))
    A(salu("s_cmp_eq_u32", None, s(sT0), "3")); A(raw(f"s_cselect_b64 vcc, -1, 0", "salu", rd=["scc"], wr=["vcc"])); A(valu("v_cndmask_b32", v(vG + 5), v(vG + 5), v(vG + 3), "vcc"))
    A(valu("v_readfirstlane_b32", s(sT0), v(vG + 5)))
    o += xcc_word(sT1, sT2)
    A(salu("s_lshl_b32", s(sT1), s(sT1), "3")); A(salu("s_cmp_eq_u32", None, s(sT0), s(sT1))); A(salu("s_cselect_b32", s(sUNI), "1", "0"))
    return o
def p3_srd_w(t0):
    o = flag_addrs(); A = o.append
    A(salu("s_lshl_b32", s(s3T), s(s3HG), "20")); A(salu("s_lshl_b32", s(s3U), s(s3CQ), "8")); A(salu("s_add_u32", s(s3T), s(s3T), s(s3U)))
    A(salu("s_sub_u32", s(s3U), str(1048576 + 128), s(s3U)))
    o += srd(S3W, 56, 57, s3T, 128, s(s3U))
    for k, x in enumerate(o): x.tgt = t0 + k // 2; x.stream = "p3s"
    return o
def wo_touch(t0):
    o = [salu("s_lshr_b32", s(s3T), "s2", "3"), salu("s_lshl_b32", s(s3T), s(s3T), "15"), salu("s_lshl_b32", s(s3U), s(s3HG), "20"), salu("s_add_u32", s(s3T), s(s3T), s(s3U)),
         valu("v_lshlrev_b32", v(114), "7", v(vLane)), valu("v_add_u32", v(114), s(s3T), v(114))]
    for k in range(4):
        o.append(I(f"global_load_dword v{110+k}, v{114}, s[56:57]", "vmem", rd=[v(114)], wr=[v(110 + k)], meta="load", grp="touch"))
        if k < 3: o.append(valu("v_add_u32", v(114), "0x2000", v(114)))
    for k, x in enumerate(o): x.tgt = t0 + k; x.stream = ["p3s", "dma"] if x.k == "vmem" else "p3s"
    return o
def p3_wdma(u, t0=None, dt=1):
    st = "dma"
    def T(k): return None if t0 is None else int(t0 + k * dt)
    o = [salu("s_mov_b32", s(s3U), str(u * 65536), tgt=T(-1), stream=[st, "p3s"]), salu("s_add_u32", "m0", s(sG), str(WRING + (u % NW_) * UNIT), tgt=T(-1), stream=st)]
    for m in range(4): o.append(dma(v(v3Wd + m), S3W, s(s3U), m * PIECE, cfg.k2_wflags, grp=f"w{u}", tgt=T(m), stream=st))
    return o
def p3_odma(u, skip3, t0=None, dt=1):
    st = "dma"
    def T(k): return None if t0 is None else int(t0 + k * dt)
    o = [salu("s_add_u32", s(s3T), s(sXo3), str(u * 16384), tgt=T(-1), stream=st), salu("s_add_u32", "m0", s(sXo3), str(ORING + (u % NO_) * 16384), tgt=T(-1), stream=st)]
    for m in range(3 if skip3 else 4): o.append(dma(v(v3L16), S3O, s(s3T), m * 1024, "", grp=f"o{u}", tgt=T(m), stream=st))
    return o
sXo3 = 48
def p3_reads(u, nq, t0=None, dt=1):
    p = u & 1; o = []
    for sg in range(2):
        for a in range(nq): o.append(ds_b128("a", oset(p, sg, a), v(v3Or), (u % NO_) * 16384 + sg * 8192 + a * 1024, stream="rd"))
    for tau in range(4):
        for sg in range(2):
            for z in range(2):
                off = (u % NW_) * UNIT + z * 8 * PIECE + sg * 512 + 32 * tau
                hi = off >= 3 * UNIT
                o.append(ds_tr("a", wset3(p, sg, tau) + 2 * z, v(v3Wr + (4 if hi else 0)), off - (3 * UNIT if hi else 0), stream="rd"))
    if t0 is not None:
        for k, x in enumerate(o): x.tgt = int(t0 + k * dt)
    return o
def p3_setup2(L):
    o = []; A = o.append
    A(salu("s_lshl_b32", s(sT0), s(sB), "1")); A(salu("s_add_u32", s(sT0), s(sT0), s(s3RP)))
    A(salu("s_lshl_b32", s(sT1), s(sT0), "20")); A(salu("s_lshl_b32", s(sT2), s(s3HG), "18")); A(salu("s_add_u32", s(sT1), s(sT1), s(sT2))); o += srd(S3O, sWS, sWS + 1, sT1, 0, "262144")
    A(salu("s_lshl_b32", s(sT1), s(sT0), "2")); A(salu("s_add_u32", s(sT1), s(sT1), s(s3CQ))); A(salu("s_lshl_b32", s(sT1), s(sT1), "18")); A(salu("s_add_u32", s(sT1), s(sT1), hex(XOFF)))
    o += srd(S3X, sWS, sWS + 1, sT1, 0, "262144")
    A(salu("s_lshl_b32", s(sT1), s(s3RP), "1")); A(salu("s_lshr_b32", s(sT2), s(s3HG), "1")); A(salu("s_add_u32", s(sT1), s(sT1), s(sT2))); A(salu("s_lshl_b32", s(sT1), s(sT1), "16"))
    A(salu("s_lshl_b32", s(sT2), s(s3CQ), "1")); A(salu("s_and_b32", s(sT0), s(s3HG), "1")); A(salu("s_add_u32", s(sT2), s(sT2), s(sT0))); A(salu("s_lshl_b32", s(sT2), s(sT2), "7"))
    A(salu("s_add_u32", s(sT1), s(sT1), s(sT2))); A(salu("s_mul_i32", s(sT0), s(sB), "245760")); A(salu("s_add_u32", s(sT0), s(sT0), s(sT1))); A(salu("s_sub_u32", s(sT1), "245760", s(sT1)))
    o += srd(S3Out, 58, 59, sT0, 0, s(sT1))
    A(salu("s_lshl_b32", s(sXo3), s(sW), "12"))
    A(valu("v_lshlrev_b32", v(v3L16), "4", L))
    A(salu("s_lshr_b32", s(sT0), s(sW), "1")); A(salu("s_lshl_b32", s(sT0), s(sT0), "12")); A(valu("v_add_u32", v(v3Or), s(sT0), v(v3L16)))
    A(salu("s_and_b32", s(sT0), s(sW), "1")); A(salu("s_lshl_b32", s(sT0), s(sT0), "7")); A(salu("s_add_u32", s(sT0), s(sT0), str(WRING - UNIT)))
    A(valu("v_add_u32", v(v3Wr), s(sT0), v(vVrd0))); A(valu("v_add_u32", v(v3Wr + 4), str(3 * UNIT), v(v3Wr)))
    A(valu("v_and_b32", "v97", "15", L)); A(valu("v_lshrrev_b32", "v98", "4", L))
    A(valu("v_lshlrev_b32", "v101", "9", "v98")); A(valu("v_lshl_add_u32", "v101", "v97", "4", "v101")); A(valu("v_add_u32", v(v3Rr), s(sXo3), "v101"))
    A(salu("s_lshl_b32", s(sT0), s(sW), "14")); A(valu("v_lshlrev_b32", "v101", "10", "v97")); A(valu("v_lshl_add_u32", "v101", "v98", "4", "v101")); A(valu("v_add_u32", v(v3St), s(sT0), "v101"))
    return o
def poll(lab, base, n):
    o = []; A = o.append
    A(valu("v_lshlrev_b32", "v96", "2", v(vLane))); A(valu("v_add_u32", "v96", s(base), "v96")); A(salu("s_mov_b32", s(sT1), "0"))
    A(raw(f"s_mov_b64 exec, {(1 << n) - 1}", "salu"))
    A(label(lab))
    A(raw(f"global_load_dword v97, v96, s[{sWS}:{sWS+1}] sc1")); A(raw("s_waitcnt vmcnt(0)")); A(raw("v_cmp_ne_u32 vcc, 1, v97"))
    A(raw(f"s_add_u32 s{sT1}, s{sT1}, 1")); A(raw(f"s_cbranch_vccz {lab}_ok"))
    A(raw("s_sleep 1")); A(raw(f"s_cmp_lt_u32 s{sT1}, 0x200000")); A(raw(f"s_cbranch_scc1 {lab}"))
    A(label(f"{lab}_ok")); A(raw("s_mov_b64 exec, -1", "salu"))
    return o
def p3_front(V):
    L = v(vLane); o = []; A = o.append
    A(label("L_p3")); o += p3_setup2(L)
    A(salu("s_and_b32", s(sT0), s(sH), "7")); A(salu("s_lshl_b32", s(sT0), s(sT0), "2")); A(salu("s_add_u32", s(sT0), s(sT0), s(sF1)))
    A(valu("v_mov_b32", "v96", s(sT0))); A(valu("v_mov_b32", "v97", "1"))
    A(waitvm(0)); A(barrier()); o += stamp(6)
    A(salu("s_cmp_lg_u32", None, s(sW), "0")); A(raw("s_cbranch_scc1 L_p3_a", "branch", rd=["scc"]))
    A(salu("s_cmp_eq_u32", None, s(sUNI), "1")); A(raw("s_cbranch_scc1 L_p3_u", "branch", rd=["scc"]))
    A(raw("buffer_wbl2 sc1")); A(raw("s_waitcnt vmcnt(0)"))
    o += one_lane(raw(f"global_store_dword v96, v97, s[{sWS}:{sWS+1}] sc1"))
    o += poll("L_p3_pm", sF1, 8)
    A(raw("buffer_inv sc1")); A(raw("s_waitcnt vmcnt(0)")); A(raw("s_branch L_p3_b", "branch"))
    A(label("L_p3_u"))
    o += one_lane(raw(f"global_store_dword v96, v97, s[{sWS}:{sWS+1}]"))
    o += poll("L_p3_pu", sF1, 8)
    A(label("L_p3_b"))
    A(label("L_p3_a"))
    for u in range(cfg.pre, NW_): o += p3_wdma(u)
    A(barrier()); o += stamp(7)
    A(salu("s_lshl_b32", s(sT0), s(s3RP), "2")); A(salu("s_add_u32", s(sT0), s(sT0), s(sW)))
    A(salu("s_cmp_eq_u32", None, s(sT0), "5")); A(raw("s_cbranch_scc1 L_g41", "branch", rd=["scc"]))
    A(salu("s_cmp_eq_u32", None, s(sT0), "6")); A(raw("s_cbranch_scc1 L_g30", "branch", rd=["scc"]))
    A(salu("s_cmp_eq_u32", None, s(sT0), "7")); A(raw("s_cbranch_scc1 L_g31", "branch", rd=["scc"]))
    V.finish(o, sched=False)
def p3_gemm(nq, skip3, name, V0):
    V = Variant(nq, name); V.vm = list(V0.vm); V.trace = list(V0.trace); V.pend = list(V0.pend)
    o = [label(f"L_{name}")] + p3_odma(0, skip3) + p3_odma(1, skip3)
    o += [wvm({"o0", "w0"}), barrier()] + p3_reads(0, nq) + p3_odma(2, skip3) + [waitlg(0)]
    V.finish(o, sched=False)
    n = 8 * nq
    no = 3; nw = NW_
    for c in range(16):
        p = c & 1
        m = [mfma("v", a * 16 + 4 * tau, "a", wset3(p, sg, tau), "a", oset(p, sg, a), "0" if (c == 0 and sg == 0) else None) for tau in range(4) for a in range(nq) for sg in range(2)]
        o = []
        if c < 15:
            o += [wvm({f"o{c+1}", f"w{c+1}"}, tgt=0, stream=["rd", "dma"]), barrier(tgt=1, stream=["rd", "dma"])]
        o += m
        if c < 15:
            nd = 0; d = []
            if no < 16 and no <= c + NO_: d += p3_odma(no, skip3); no += 1
            if nw < 16 and nw <= c + NW_: d += p3_wdma(nw); nw += 1
            elif no < 16 and no <= c + NO_: d += p3_odma(no, skip3); no += 1
            rd = p3_reads(c + 1, nq)
            vm = [x for x in d if x.k == "vmem"]
            tot = len(rd) + len(vm); step = (n - 5) / tot
            slots = sorted([(k * tot / len(rd), 0, x) for k, x in enumerate(rd)] + [((k + 0.5) * tot / max(1, len(vm)), 1, x) for k, x in enumerate(vm)], key=lambda z: z[:2])
            for k, (_, _, x) in enumerate(slots): x.tgt = int(2 + k * step)
            for k, x in enumerate(d):
                if x.k == "salu": x.tgt = next(y.tgt for y in d[k:] if y.k == "vmem") - 1
            o += rd + d + [waitlg(0, tgt=n - 1, stream="rd")]
        V.finish(o, lds_lat=0)
    V.finish(stamp(8) + [salu("s_cmp_eq_u32", None, s(sW), s(s3HG)), raw(f"s_cbranch_scc1 L_{name}_own", "branch", rd=["scc"])], sched=False)
    o = [salu("s_lshl_b32", s(sT0), s(sW), "2"), salu("s_add_u32", s(sT0), s(sT0), s(s3HG)), salu("s_lshl_b32", s(sT0), s(sT0), "14")]
    for a in range(nq):
        for tau in range(4): o.append(bstore("v", a * 16 + 4 * tau, v(v3L16), S3X, s(sT0), 1024 * tau, cfg.xsc))
        o.append(salu("s_add_u32", s(sT0), s(sT0), "4096"))
    o += [raw("s_branch L_fin", "branch"), label(f"L_{name}_own")]
    for a in range(nq):
        for tau in range(4): o.append(ds_w128(v(v3L16), "v", a * 16 + 4 * tau, (a * 4 + tau) * 1024))
    o += [raw("s_branch L_fin", "branch")]
    V.finish(o, sched=False)
    return V
def p3_final():
    V = Variant(4, "fin"); o = []; A = o.append
    A(label("L_fin"))
    A(salu("s_lshl_b32", s(sT0), s(s3HG), "2")); A(salu("s_add_u32", s(sT0), s(sT0), s(sF2))); A(valu("v_mov_b32", "v96", s(sT0))); A(valu("v_mov_b32", "v97", "1"))
    A(raw("s_waitcnt vmcnt(0) lgkmcnt(0)")); A(barrier())
    A(salu("s_cmp_lg_u32", None, s(sW), "0")); A(raw("s_cbranch_scc1 L_fin_a", "branch", rd=["scc"]))
    o += one_lane(raw(f"global_store_dword v96, v97, s[{sWS}:{sWS+1}] sc1"))
    o += poll("L_fin_p", sF2, 4)
    A(label("L_fin_a"))
    for q in range(4): A(ds_b128("v", 4 * q, v(v3Rr), (q >> 1) * 2048 + (q & 1) * 256))
    A(barrier())
    for k in range(1, 4):
        A(salu("s_add_u32", s(sT0), s(s3HG), str(k))); A(salu("s_and_b32", s(sT0), s(sT0), "3")); A(salu("s_lshl_b32", s(sT1), s(s3HG), "2")); A(salu("s_add_u32", s(sT0), s(sT0), s(sT1)))
        A(salu("s_lshl_b32", s(sT0), s(sT0), "14"))
        for q in range(4): A(bload("v", 16 * k + 4 * q, v(v3Rr), S3X, s(sT0), (q >> 1) * 2048 + (q & 1) * 256, "sc1", grp=f"x{k}"))
    for k in range(1, 4):
        A(wvm({f"x{k}"}))
        for r in range(16): A(valu("v_add_f32", v(r), v(r), v(16 * k + r)))
    for r in range(8): A(valu("v_cvt_pk_bf16_f32", v(16 + r), v(2 * r), v(2 * r + 1)))
    for sg in range(2): A(bstore("v", 16 + 4 * sg, v(v3St), S3Out, "0", 64 * sg))
    o += stamp(9) + dump_stamps(10, sWS, STAMP_OFF, v(vLane), "L_k1_done") + [raw("s_endpgm")]
    V.finish(o, sched=False)
    return V

HEAD = """; standalone__mha_block_cached__near_ridge: out = softmax((x wq) K^T / sqrt(128)) V wo
"""
def kd(name, vg, acc_off):
    return f""".amdhsa_kernel {name}
  .amdhsa_next_free_vgpr {vg}
  .amdhsa_next_free_sgpr 102
  .amdhsa_accum_offset {acc_off}
  .amdhsa_group_segment_fixed_size 0
  .amdhsa_kernarg_size 64
  .amdhsa_user_sgpr_count 2
  .amdhsa_user_sgpr_kernarg_segment_ptr 1
  .amdhsa_system_sgpr_workgroup_id_x 1
.end_amdhsa_kernel
"""
def check(pre, V):
    tr = pre + V.trace
    for nm, f in (("hazard", check_hazards), ("lgkm", check_lgkm), ("vm", check_vm)):
        bad = f(tr)
        if bad:
            print(V.name, nm, len(bad), bad[:6], file=sys.stderr); raise SystemExit(1)
def build():
    KN = "standalone__mha_block_cached__near_ridge_kernel"
    out = HEAD
    out += f"; @launch grid=(256,1,1) block=(256,1,1) lds={LDS1 + 64}\n"
    out += '.amdgcn_target "amdgcn-amd-amdhsa--gfx950"\n.text\n'
    out += f".globl {KN}\n.p2align 8\n.type {KN},@function\n{KN}:\n"
    pre = fix_hazards(k1_setup() + [salu("s_cmp_eq_u32", None, s(sW), "3"), raw("s_cbranch_scc1 L_w3", "branch")])
    out += text(pre)
    for nq, name in ((4, "w012"), (3, "w3")):
        V = k1_variant(nq, name); check(pre, V)
        print(name, "loop (mfma, est cycles):", V.loop_stats, "total est", gap_stats(V.trace), file=sys.stderr)
        out += text(V.static)
    F = Variant(4, "p3"); F.vm = [x for x in V.vm[:V.npre] if x.grp and x.grp[0] == "w"]
    p3_front(F); check([], F)
    out += text(F.static)
    for nq, sk, name in ((4, False, "g40"), (4, True, "g41"), (3, False, "g30"), (3, True, "g31")):
        W = p3_gemm(nq, sk, name, F); check([], W)
        print(name, "total est", gap_stats(W.static), file=sys.stderr)
        out += text(W.static)
    W = p3_final(); check([], W); out += text(W.static)
    out += "L_k1_done:\n  s_endpgm\n"
    out += '.section .rodata,"a"\n.p2align 6\n' + kd(KN, 512, 256)
    return out
if __name__ == "__main__":
    path = sys.argv[1]
    for kv in sys.argv[2:]:
        k, val = kv.split("=")
        cur = getattr(cfg, k)
        setattr(cfg, k, (val == "1") if isinstance(cur, bool) else type(cur)(val.replace("+", " ")))
    open(path, "w").write(build())
```

```python
import re

def R(f, a, n=1):
    return [f"{f}{a+i}" for i in range(n)]
def rng(f, a, n):
    return f"{f}{a}" if n == 1 else f"{f}[{a}:{a+n-1}]"

class I:
    __slots__ = ("t", "k", "rd", "wr", "crd", "tgt", "grp", "need", "after", "uid", "stream", "meta")
    _n = 0
    def __init__(s, t, k, rd=(), wr=(), crd=(), tgt=None, grp=None, need=None, stream=None, meta=None):
        s.t, s.k, s.rd, s.wr, s.crd = t, k, set(rd), set(wr), set(crd)
        s.rd |= s.crd
        s.tgt, s.grp, s.need, s.stream, s.meta = tgt, grp, need, stream, meta
        s.after = []
        I._n += 1; s.uid = I._n
    def __repr__(s): return s.t

def mfma(df, d, af, a, bf, b, cf=None, c=None):
    if cf is None: cf, c = df, d
    if cf == "0":
        cs, crd = "0", []
    else:
        assert cf == df
        cs, crd = rng(cf, c, 4), R(cf, c, 4)
    return I(f"v_mfma_f32_16x16x32_bf16 {rng(df,d,4)}, {rng(af,a,4)}, {rng(bf,b,4)}, {cs}", "mfma",
             rd=R(af, a, 4) + R(bf, b, 4), wr=R(df, d, 4), crd=crd)
def _regs(op):
    m = re.fullmatch(r"-?([vas])(\d+)", op)
    if m: return [m.group(1) + m.group(2)]
    m = re.fullmatch(r"-?([vas])\[(\d+):(\d+)\]", op)
    if m: return [f"{m.group(1)}{i}" for i in range(int(m.group(2)), int(m.group(3)) + 1)]
    if op in ("vcc", "m0", "exec", "scc"): return [op]
    return []
def valu(op, dst, *src, rmw=False, kind=None, extra="", **kw):
    k = kind or ("trans" if op.split("_")[1] in ("exp", "rcp", "log", "rsq", "sqrt") else "valu")
    rd = [r for s in src for r in _regs(s)]
    wr = _regs(dst)
    if rmw: rd += wr
    return I(f"{op} {dst}, " + ", ".join(src) + extra, k, rd=rd, wr=wr, **kw)
def swap(op, a, b, **kw):
    return I(f"{op} {a}, {b}", "valu", rd=[a, b], wr=[a, b], meta="permlane", **kw)
def salu(op, dst, *src, scc_w=None, scc_r=False, **kw):
    rd = [r for s in src for r in _regs(s)]
    wr = _regs(dst) if dst else []
    base = op.split("_")[1]
    if scc_w is None: scc_w = base in ("add", "sub", "addc", "and", "or", "xor", "lshl", "lshr", "cmp", "min", "max", "andn2")
    if scc_w: wr.append("scc")
    if scc_r or base in ("cselect", "addc"): rd.append("scc")
    ops = ([dst] if dst else []) + list(src)
    return I(f"{op} " + ", ".join(ops), "salu", rd=rd, wr=wr, **kw)
def ds_b128(df, d, addr, off, **kw):
    assert 0 <= off < 65536 and off % 16 == 0, off
    return I(f"ds_read_b128 {rng(df,d,4)}, {addr} offset:{off}", "lds", rd=[addr], wr=R(df, d, 4), **kw)
def ds_tr(df, d, addr, off, **kw):
    assert 0 <= off < 65536 and off % 8 == 0
    return I(f"ds_read_b64_tr_b16 {rng(df,d,2)}, {addr} offset:{off}", "lds", rd=[addr], wr=R(df, d, 2), **kw)
def ds_w128(addr, sf, s, off, **kw):
    return I(f"ds_write_b128 {addr}, {rng(sf,s,4)} offset:{off}", "ldsw", rd=[addr] + R(sf, s, 4), **kw)
def dma(voff, srd, soff, off, flags="", **kw):
    assert 0 <= off < 4096
    f = (" " + flags) if flags else ""
    return I(f"buffer_load_dwordx4 {voff}, s[{srd}:{srd+3}], {soff} offen offset:{off}{f} lds", "vmem",
             rd=[voff, "m0"] + R("s", srd, 4) + _regs(soff), meta="dma", **kw)
def bload(df, d, voff, srd, soff, off, flags="", n=4, **kw):
    f = (" " + flags) if flags else ""
    op = {1: "dword", 2: "dwordx2", 4: "dwordx4"}[n]
    return I(f"buffer_load_{op} {rng(df,d,n)}, {voff}, s[{srd}:{srd+3}], {soff} offen offset:{off}{f}", "vmem",
             rd=[voff] + R("s", srd, 4) + _regs(soff), wr=R(df, d, n), meta="load", **kw)
def bstore(sf, s, voff, srd, soff, off, flags="", n=4, **kw):
    f = (" " + flags) if flags else ""
    op = {1: "dword", 2: "dwordx2", 4: "dwordx4"}[n]
    return I(f"buffer_store_{op} {rng(sf,s,n)}, {voff}, s[{srd}:{srd+3}], {soff} offen offset:{off}{f}", "vmem",
             rd=[voff] + R("s", srd, 4) + _regs(soff) + R(sf, s, n), meta="store", **kw)
def waitvm(n, **kw): return I(f"s_waitcnt vmcnt({n})", "wait", meta=("vm", n), **kw)
def waitlg(n, **kw): return I(f"s_waitcnt lgkmcnt({n})", "wait", meta=("lg", n), **kw)
def barrier(**kw): return I("s_barrier", "bar", **kw)
def nop(n): return I(f"s_nop {n}", "nop", meta=n)
def raw(t, k="other", **kw): return I(t, k, **kw)
def label(n): return I(f"{n}:", "label")

def need_states(p, c):
    n = 0
    vec_c = c.k in ("valu", "trans")
    if p.k == "mfma":
        if p.wr & c.rd or p.wr & c.wr:
            if c.k == "mfma":
                if p.wr & (c.rd - c.crd): n = max(n, 8)
                ab = set()
                m = re.findall(r"([va])\[(\d+):(\d+)\]", c.t)
                for f, lo, hi in m[1:3]: ab |= {f"{f}{i}" for i in range(int(lo), int(hi) + 1)}
                if p.wr & ab: n = max(n, 8)
                if p.wr & c.crd and p.wr != c.crd: n = max(n, 6)
                if p.wr & c.wr and not (p.wr & c.crd): n = max(n, 6)
            else:
                n = max(n, 8)
        if vec_c and p.crd & c.wr: n = max(n, 3)
    if p.k in ("valu", "trans"):
        vw = {r for r in p.wr if r[0] in "va" and r != "vcc"}
        sw = {r for r in p.wr if r[0] == "s" or r == "vcc"}
        if c.k == "mfma" and vw & c.rd: n = max(n, 2)
        if c.meta == "permlane" and vw & c.rd: n = max(n, 2)
        if p.k == "trans" and c.k == "valu" and vw & c.rd: n = max(n, 1)
        if p.k == "trans" and c.k in ("vmem", "ldsw", "lds") and vw & c.rd: n = max(n, 1)
        if c.t.startswith("v_readfirstlane") and vw & c.rd: n = max(n, 1)
        if c.k == "vmem" and sw & c.rd: n = max(n, 5)
        if vec_c and sw & c.rd: n = max(n, 2)
        if c.k == "salu" and sw & c.rd: n = max(n, 1)
    if p.k == "salu" and "m0" in p.wr and c.k == "vmem" and "m0" in c.rd: n = max(n, 1)
    if p.k == "vmem" and p.meta == "store" and (p.rd & c.wr) and c.k in ("valu", "trans", "lds", "mfma"):
        n = max(n, 2)
    return n
def states(i):
    if i.k == "label": return 0
    if i.k == "nop": return i.meta + 1
    return 1

def fix_hazards(seq, prefix=()):
    out = list(prefix)[-24:]; npre = len(out)
    for c in seq:
        need = 0; d = 0
        for p in reversed(out[-24:]):
            n = need_states(p, c)
            if n > d: need = max(need, n - d)
            d += states(p)
            if d >= 12: break
        if need:
            out.append(nop(need - 1))
        out.append(c)
    return out[npre:]
def check_hazards(trace):
    bad = []
    for j, c in enumerate(trace):
        d = 0
        for p in reversed(trace[max(0, j - 24):j]):
            n = need_states(p, c)
            if n > d: bad.append((j, p.t, c.t, n, d))
            d += states(p)
            if d >= 12: break
    return bad

def insert_lgkm(seq, pending=None):
    q = list(pending or []); out = []
    for c in seq:
        if c.k == "wait" and c.meta[0] == "lg":
            n = c.meta[1]; q = q[len(q) - n:] if n < len(q) and n > 0 else ([] if n == 0 else q)
            out.append(c); continue
        touch = c.rd | c.wr
        idx = -1
        for x, p in enumerate(q):
            if p.wr & touch: idx = x
        if idx >= 0:
            n = len(q) - 1 - idx
            pos = len(out)
            if c.k == "mfma":
                while pos > 0 and out[pos - 1].k in ("valu", "trans"): pos -= 1
                k = pos
                if k > 0 and out[k - 1].k == "lds":
                    k -= 1; n2 = n - 1
                    if n2 >= 0 and not (out[k].wr & touch): pos, n = k, n2
            n = min(n, 15)
            w = waitlg(n)
            out.insert(pos, w)
            later = sum(1 for y in out[pos + 1:] if y.k in ("lds", "ldsw"))
            keep = n + later
            q = q[len(q) - keep:] if keep > 0 else []
        out.append(c)
        if c.k in ("lds", "ldsw"): q.append(c)
    return out, q
def check_lgkm(trace):
    q = []; bad = []
    for j, c in enumerate(trace):
        if c.k == "wait" and c.meta[0] == "lg":
            n = c.meta[1]; q = q[len(q) - n:] if 0 < n < len(q) else ([] if n == 0 else q); continue
        touch = c.rd | c.wr
        for p in q:
            if p.wr & touch: bad.append((j, p.t, c.t))
        if c.k in ("lds", "ldsw"): q.append(c)
    return bad
def check_vm(trace):
    q = []; bad = []; issued = set()
    for j, c in enumerate(trace):
        if c.k == "wait" and c.meta[0] == "vm":
            n = c.meta[1]; q = q[len(q) - n:] if 0 < n < len(q) else ([] if n == 0 else q)
            if c.need:
                for gname in c.need:
                    if any(p.grp == gname for p in q): bad.append((j, "group not complete", gname, c.t))
            continue
        touch = c.rd | c.wr
        for p in q:
            if p.wr & touch: bad.append((j, p.t, c.t))
        if c.k == "vmem":
            q.append(c)
            if len(q) > 63: bad.append((j, "vmcnt overflow", len(q)))
    return bad
def vm_count(history, groups):
    last = -1
    for x, p in enumerate(history):
        if p.grp in groups: last = x
    return len(history) - 1 - last

COST = {"valu": 4, "trans": 8, "lds": 4, "ldsw": 8, "vmem": 12}
LDS_LAT = 5
def schedule(prog, lag=3, look=2, lds_lat=LDS_LAT, budget=8, strict=False):
    n = len(prog)
    preds = [[] for _ in range(n)]
    lastw = {}; readers = {}; laststream = {}
    for j, c in enumerate(prog):
        ps = set()
        for r in c.rd:
            if r in lastw: ps.add(lastw[r])
        for r in c.wr:
            if r in lastw: ps.add(lastw[r])
            for x in readers.get(r, ()): ps.add(x)
        if c.stream is not None:
            for st in (c.stream if isinstance(c.stream, (list, tuple)) else [c.stream]):
                if st in laststream: ps.add(laststream[st])
                laststream[st] = j
        for a in c.after:
            ps.add(prog.index(a))
        ps.discard(j)
        preds[j] = sorted(ps)
        for r in c.rd: readers.setdefault(r, []).append(j)
        for r in c.wr: lastw[r] = j; readers[r] = []
    mf = [j for j, c in enumerate(prog) if c.k == "mfma"]
    midx = {j: k for k, j in enumerate(mf)}
    INF = 10 ** 9
    dl = [INF] * n
    succs = [[] for _ in range(n)]
    for j in range(n):
        for p in preds[j]: succs[p].append(j)
    for j in range(n - 1, -1, -1):
        c = prog[j]
        if c.k == "mfma": dl[j] = midx[j] - 1; continue
        d = INF
        for s in succs[j]:
            ds = dl[s]
            if prog[s].k == "mfma" and c.k == "lds" and (c.wr & prog[s].rd): ds -= lds_lat
            d = min(d, ds)
        dl[j] = d
    for j, c in enumerate(prog):
        if c.k != "mfma":
            if c.tgt is None: c.tgt = min(dl[j], len(mf) - 1)
    done = [False] * n; out = []; pos = {}
    def dist_ok(j):
        c = prog[j]; d = 0
        for p in reversed(out[-20:]):
            if need_states(p, c) > d: return False
            d += states(p)
            if d >= 12: break
        return True
    def ready(j): return (not done[j]) and all(done[p] for p in preds[j])
    def emit(j):
        done[j] = True; out.append(prog[j])
    def force(j):
        for p in preds[j]:
            if not done[p]:
                assert prog[p].k != "mfma", ("filler needs a later MFMA", prog[j].t, prog[p].t)
                force(p)
        emit(j)
    fill = [j for j in range(n) if prog[j].k != "mfma"]
    def key(j): return (min(prog[j].tgt, dl[j]), j)
    def gap_strict(g):
        rank = {"salu": 0, "wait": 0, "bar": 0, "vmem": 1, "lds": 2, "ldsw": 2, "trans": 3, "valu": 3}
        while True:
            cand = [j for j in fill if ready(j) and min(prog[j].tgt, dl[j]) <= g and dist_ok(j)]
            if not cand: break
            emit(min(cand, key=lambda j: (rank.get(prog[j].k, 4), key(j))))
    def gap(g):
        if strict: return gap_strict(g)
        used = 0; nsc = 0; first = True
        while True:
            cand = sorted((j for j in fill if ready(j) and min(prog[j].tgt, dl[j]) <= g + look), key=key)
            if not cand: break
            pick = None
            urgent = [j for j in cand if min(prog[j].tgt + lag, dl[j]) <= g]
            sc = [j for j in cand if prog[j].k in ("salu", "wait", "bar") and min(prog[j].tgt, dl[j]) <= g]
            if sc and nsc == 0 and first:
                j = sc[0]
                if dist_ok(j): emit(j); nsc += 1; continue
            vec = [j for j in cand if prog[j].k in COST and dist_ok(j)]
            fit = []
            for j in vec:
                k = prog[j].k
                if k in ("lds", "vmem", "ldsw") and not first: continue
                if k == "vmem" and min(prog[j].tgt, dl[j]) > g: continue
                if used + min(COST[k], budget) <= budget: fit.append(j)
            if fit:
                pick = fit[0]
                if first and prog[pick].k == "valu":
                    l = [j for j in fit if prog[j].k == "lds"]
                    if l: pick = l[0]
                    elif sum(1 for j in fit if prog[j].k == "valu") < 2:
                        e = [j for j in fit if prog[j].k == "trans"]
                        if e and pick not in urgent: pick = e[0]
                elif first and prog[pick].k == "lds":
                    if not any(prog[j].k == "valu" for j in fit):
                        e = [j for j in fit if prog[j].k == "trans"]
                        if e and pick not in urgent: pick = e[0]
            else:
                u = [j for j in urgent if dist_ok(j) and (prog[j].k not in ("lds", "vmem") or dl[j] <= g or first)]
                if u: pick = u[0]
            if pick is None: break
            emit(pick)
            if prog[pick].k in COST:
                used += COST[prog[pick].k]; first = False
            else: nsc += 1
    gap(-1)
    for k, j in enumerate(mf):
        for p in preds[j]:
            if not done[p]: force(p)
        emit(j)
        gap(k)
    for j in fill:
        if not done[j]: force(j)
    return out

def gap_stats(seq):
    cyc = 0; cur = None; nm = 0
    gaps = []
    for c in seq:
        if c.k == "mfma":
            if cur is not None: gaps.append(cur)
            cur = []; nm += 1
        elif c.k != "label":
            if cur is None: cyc += COST.get(c.k, 4)
            else: cur.append(c)
    if cur is not None: gaps.append(cur)
    for g in gaps:
        u = 0; sc = 0
        for x, c in enumerate(g):
            if c.k in COST:
                u += COST[c.k]
                if c.k in ("lds", "vmem") and any(y.k in COST for y in g[:x]): u += 4
            elif c.k == "nop": u += 4 * (c.meta + 1)
            else:
                sc += 1
                if sc > 1: u += 4
        cyc += max(16, 8 + u)
    return nm, cyc
def text(seq): return "\n".join(("" if c.k == "label" else "  ") + c.t for c in seq) + "\n"
```

```python
import sys, math, struct
from core import *

PIECE = 1056; GRP = 4 * PIECE; UNIT = 16 * PIECE; SLOT = 2 * UNIT
X_BASE = 3 * UNIT; W_BASE = X_BASE + 2 * SLOT; LDS1 = W_BASE + 2 * UNIT
VOTE = LDS1
QSCALE = struct.unpack("<I", struct.pack("<f", math.log2(math.e) / math.sqrt(128.0)))[0]
LIMIT = 0x4b800000

class Cfg:
    stamps = False
    kvflags = "nt"
    xflags = ""
    wflags = ""
    oflags = ""
    k2_oflags = ""
    k2_wflags = ""
    fallback = True
    rot = 2
    fused = True
    pre = 2
    xsc = 'sc1'
    touch = True
    pre2 = 3
    gshift = 1
    odepth = 4
    tbudget = 24
    noo = False
    now = False
    o3flags = ''
    nomf3 = False
    forcemix = False
    kvpace = True
    sset = 'main'
    nomfma1 = False
    nord1 = False
    nodma1 = False
    w3dma = True
    kswap = True
    dbgst = False
    its = False
    tsel = '012'
    pwarm = True
    tflags = ''
    tfrom = 11
    k2map = 1
cfg = Cfg()

sW = 3; SX, SWQ, SK, SV, SO = 8, 12, 16, 20, 24
sB, sH, sROT = 28, 29, 30
sXb, sG = 31, 32
sT0, sT1, sT2 = 33, 34, 35
sXo, sXo2, sWo = 36, 37, 38
sKo, sVo = 46, 47
sS1, sS2, sS3 = 48, 49, 50
sT = 51; sPASS = 52; sC = 53; sWS = 44; sS0 = 98
vKrd, vVrd, vKrd0, vVrd0, vXrd, vWrd = 232, 233, 234, 235, 236, 237
vOst = 238; vLane = 239; vT = 112
vKV, vX, vWq = 240, 244, 248
ACC = 0; QF = 128
S_ = (0, 32); P_ = (64, 80); NEGM = 192; LSUM = 208; MTRUE = 212; TMP = 216
KF, VF = 192, 224
def acc(a, tau): return ACC + a * 32 + tau * 4
def qf(a, s): return QF + (a * 4 + s) * 4
def wset(p, s, tau): return p * 96 + (s * 8 + tau) * 4
def xset(p, s, a): return p * 96 + 64 + (s * 4 + a) * 4
def oacc(a, t): return a * 32 + t * 4
v = lambda n: f"v{n}"
s = lambda n: f"s{n}"

STAMP_BASE = 60
def stamp(i, sset="main"):
    if not cfg.stamps or (i > 0 and sset != cfg.sset and sset != "k2"): return []
    return [raw(f"s_memrealtime s[{STAMP_BASE+4*i}:{STAMP_BASE+4*i+1}]"), raw(f"s_memtime s[{STAMP_BASE+4*i+2}:{STAMP_BASE+4*i+3}]"), waitlg(0)]
def GOFF(): return " offset:128" if cfg.dbgst else ""
def stampf(i, sset, after, tgt):
    if not cfg.stamps or sset != cfg.sset: return []
    o = [I(f"s_memrealtime s[{STAMP_BASE+4*i}:{STAMP_BASE+4*i+1}]", "salu", tgt=tgt), I(f"s_memtime s[{STAMP_BASE+4*i+2}:{STAMP_BASE+4*i+3}]", "salu", tgt=tgt)]
    for x in o: x.after = [after]
    return o
def dump_stamps(n, wsreg, off, lane, lab):
    if not cfg.stamps: return []
    o = [raw("s_waitcnt vmcnt(0) lgkmcnt(0)")]
    if cfg.dbgst:
        o += [raw("s_cmp_lg_u32 s2, 100"), raw(f"s_cbranch_scc1 {lab}"), raw(f"s_cmp_lg_u32 s{sW}, 0"), raw(f"s_cbranch_scc1 {lab}"), raw("v_mov_b32 v3, 0"), raw("s_mov_b64 exec, 1")]
        for i in range(1, n):
            o += [raw(f"s_sub_u32 s4, s{STAMP_BASE+4*i}, s{STAMP_BASE}"), raw("v_mov_b32 v4, s4"), raw(f"global_store_dword v3, v4, s[100:101] offset:{4*i}"), raw("s_nop 1")]
        o += [raw(f"s_sub_u32 s4, s{STAMP_BASE+4*n-2}, s{STAMP_BASE+2}"), raw("v_mov_b32 v4, s4"), raw(f"global_store_dword v3, v4, s[100:101] offset:0")]
        return o
    o += [raw(f"s_lshl_b32 s4, s2, 10"), raw(f"s_lshl_b32 s5, s{sW}, 8"), raw("s_add_u32 s4, s4, s5"), raw(f"s_add_u32 s4, s4, {off}"),
          raw(f"s_add_u32 s4, s{wsreg}, s4"), raw(f"s_addc_u32 s5, s{wsreg+1}, 0"),
          raw(f"v_cmp_eq_u32 vcc, 0, {lane}"), raw("s_and_saveexec_b64 s[6:7], vcc"), raw(f"s_cbranch_execz {lab}"), raw("v_mov_b32 v3, 0")]
    for i in range(n):
        o += [raw(f"v_mov_b32 v{4+j}, s{STAMP_BASE+4*i+j}") for j in range(4)]
        o += [raw(f"global_store_dwordx4 v3, v[4:7], s[4:5] offset:{16*i}"), raw("s_nop 1")]
    return o
STAMP_OFF = 0x2000000

def srd(reg, lo, hi, add, sub, nrec):
    o = [salu("s_add_u32", s(reg), s(lo), s(add)), salu("s_addc_u32", s(reg + 1), s(hi), "0")]
    if sub: o += [salu("s_sub_u32", s(reg), s(reg), str(sub)), salu("s_subb_u32", s(reg + 1), s(reg + 1), "0", scc_r=True, scc_w=True)]
    o += [salu("s_mov_b32", s(reg + 2), nrec), salu("s_mov_b32", s(reg + 3), "0x20000")]
    return o

def k1_setup():
    o = []
    A = o.append
    A(raw("s_cmp_ge_u32 s2, 256")); A(raw("s_cbranch_scc1 L_k1_done"))
    o += stamp(0)
    A(raw("s_load_dwordx4 s[4:7], s[0:1], 0"))
    A(raw("s_load_dwordx4 s[40:43], s[0:1], 16"))
    A(raw(f"s_load_dwordx2 s[{sWS}:{sWS+1}], s[0:1], 56"))
    if cfg.fused:
        A(raw("s_load_dwordx4 s[56:59], s[0:1], 32"))
        A(raw("s_load_dwordx2 s[100:101], s[0:1], 48"))
    A(valu("v_lshrrev_b32", "v1", "6", "v0")); A(valu("v_and_b32", v(vLane), "63", "v0"))
    A(valu("v_readfirstlane_b32", s(sW), "v1"))
    A(salu("s_and_b32", s(sT0), "s2", "7")); A(salu("s_lshr_b32", s(sT1), "s2", "3"))
    A(salu("s_and_b32", s(sB), s(sT0), "1")); A(salu("s_lshl_b32", s(sB), s(sB), "2")); A(salu("s_and_b32", s(sT2), s(sT1), "3")); A(salu("s_add_u32", s(sB), s(sB), s(sT2)))
    A(salu("s_lshr_b32", s(sH), s(sT0), "1")); A(salu("s_lshl_b32", s(sH), s(sH), "3")); A(salu("s_lshr_b32", s(sT1), s(sT1), "2")); A(salu("s_add_u32", s(sH), s(sH), s(sT1)))
    A(salu("s_lshl_b32", s(sT2), s(sT2), "1")); A(salu("s_add_u32", s(sROT), s(sH), s(sT2)))
    if cfg.rot == 8: A(salu("s_and_b32", s(sROT), s(sROT), "7"))
    elif cfg.rot == 1: A(salu("s_mov_b32", s(sROT), "0"))
    else:
        A(salu("s_lshr_b32", s(sT2), s(sT2), "1")); A(salu("s_add_u32", s(sROT), s(sH), s(sT2)))
        A(salu("s_and_b32", s(sROT), s(sROT), str(cfg.rot - 1))); A(salu("s_mul_i32", s(sROT), s(sROT), str(8 // cfg.rot)))
    A(salu("s_mul_i32", s(sG), s(sW), str(GRP))); A(salu("s_lshl_b32", s(sXb), s(sG), "1")); A(salu("s_add_u32", s(sXb), s(sXb), str(X_BASE)))
    A(salu("s_mov_b32", s(sC), hex(QSCALE))); A(salu("s_mov_b32", s(sPASS), "0"))
    L = v(vLane)
    A(valu("v_and_b32", "v1", "15", L)); A(valu("v_lshrrev_b32", "v2", "4", L))
    A(valu("v_bfe_u32", "v3", L, "2", "2")); A(valu("v_and_b32", "v4", "3", L))
    A(valu("v_lshrrev_b32", "v5", "5", L)); A(valu("v_lshlrev_b32", "v5", "15", "v5"))
    A(valu("v_bfe_u32", "v6", L, "3", "2")); A(valu("v_lshl_add_u32", "v5", "v6", "12", "v5"))
    A(valu("v_and_b32", "v6", "7", L)); A(valu("v_lshl_add_u32", "v5", "v6", "4", "v5"))
    A(salu("s_lshl_b32", s(sT0), s(sW), "16")); A(salu("s_add_u32", s(sT0), s(sT0), "128"))
    A(valu("v_add_u32", v(vX), s(sT0), "v5"))
    for m in range(1, 4): A(valu("v_subrev_u32", v(vX + m), str(32 * m), v(vX)))
    A(salu("s_and_b32", s(sT0), s(sW), "1")); A(salu("s_lshl_b32", s(sT0), s(sT0), "16"))
    A(salu("s_lshr_b32", s(sT1), s(sW), "1")); A(salu("s_lshl_b32", s(sT1), s(sT1), "15")); A(salu("s_add_u32", s(sT0), s(sT0), s(sT1)))
    A(valu("v_lshlrev_b32", "v5", "17", "v2")); A(valu("v_lshl_add_u32", "v5", "v1", "4", "v5"))
    A(valu("v_add_u32", v(vWq), s(sT0), "v5"))
    for m in range(1, 4): A(valu("v_add_u32", v(vWq + m), str(m * (8192 - PIECE)), v(vWq)))
    A(salu("s_lshl_b32", s(sT0), s(sW), "12")); A(salu("s_add_u32", s(sT0), s(sT0), "128"))
    A(valu("v_lshlrev_b32", v(vOst), "4", L)); A(valu("v_add_u32", v(vKV), s(sT0), v(vOst)))
    for m in range(1, 4): A(valu("v_subrev_u32", v(vKV + m), str(32 * m), v(vKV)))
    A(raw("s_waitcnt lgkmcnt(0)", "other"))
    A(salu("s_mul_i32", s(sT0), s(sB), "245760")); o += srd(SX, 4, 5, sT0, 128, str(245760 + 128))
    A(salu("s_lshl_b32", s(sT0), s(sH), "8")); A(salu("s_sub_u32", s(sT1), "0x400000", s(sT0))); o += srd(SWQ, 42, 43, sT0, 0, s(sT1))
    A(salu("s_lshl_b32", s(sT0), s(sB), "5")); A(salu("s_add_u32", s(sT0), s(sT0), s(sH))); A(salu("s_lshl_b32", s(sT0), s(sT0), "18"))
    o += srd(SK, 6, 7, sT0, 128, str(262144 + 128)); o += srd(SV, 40, 41, sT0, 128, str(262144 + 128))
    return o

def k1_setup2():
    o = []; A = o.append
    A(salu("s_lshl_b32", s(sT0), s(sB), "21")); A(salu("s_lshr_b32", s(sT1), s(sW), "1")); A(salu("s_lshl_b32", s(sT1), s(sT1), "20")); A(salu("s_add_u32", s(sT0), s(sT0), s(sT1)))
    A(salu("s_lshl_b32", s(sT1), s(sH), "15")); A(salu("s_add_u32", s(sT0), s(sT0), s(sT1)))
    A(salu("s_and_b32", s(sT1), s(sW), "1")); A(salu("s_lshl_b32", s(sT1), s(sT1), "12")); A(salu("s_add_u32", s(sT0), s(sT0), s(sT1)))
    o += srd(SO, sWS, sWS + 1, sT0, 0, "28672")
    A(salu("s_mov_b32", s(sT0), str(PIECE)))
    A(valu("v_and_b32", "v5", "7", "v1")); A(valu("v_mul_u32_u24", "v5", s(sT0), "v5"))
    A(valu("v_lshrrev_b32", "v6", "3", "v1")); A(valu("v_lshl_add_u32", "v5", "v6", "8", "v5")); A(valu("v_lshl_add_u32", v(vKrd0), "v2", "4", "v5"))
    A(valu("v_mov_b32", v(vKrd), v(vKrd0)))
    A(valu("v_and_b32", "v5", "1", "v2")); A(valu("v_lshl_add_u32", "v5", "v5", "2", "v3")); A(valu("v_mul_u32_u24", "v5", s(sT0), "v5"))
    A(valu("v_lshrrev_b32", "v6", "1", "v2")); A(valu("v_lshl_add_u32", "v5", "v6", "8", "v5")); A(valu("v_lshl_add_u32", "v5", "v4", "3", "v5"))
    A(valu("v_add_u32", v(vVrd0), str(UNIT), "v5")); A(valu("v_mov_b32", v(vVrd), v(vVrd0))); A(valu("v_add_u32", v(vWrd), str(W_BASE), "v5"))
    A(valu("v_mul_u32_u24", "v5", s(sT0), "v4")); A(valu("v_lshl_add_u32", "v5", "v3", "7", "v5")); A(valu("v_lshl_add_u32", "v5", "v2", "4", "v5"))
    A(valu("v_add_u32", v(vXrd), s(sXb), "v5"))
    for a in range(4): A(valu("v_mov_b32", v(MTRUE + a), "0xff800000"))
    A(valu("v_lshrrev_b32", "v5", "1", "v2")); A(valu("v_lshlrev_b32", "v5", "15", "v5")); A(valu("v_and_b32", "v6", "1", "v2")); A(valu("v_lshl_add_u32", "v5", "v6", "13", "v5"))
    A(valu("v_lshl_add_u32", "v5", "v1", "4", "v5"))
    A(salu("s_lshr_b32", s(sT0), s(sW), "1")); A(salu("s_lshl_b32", s(sT0), s(sT0), "14")); A(salu("s_and_b32", s(sT1), s(sW), "1")); A(salu("s_lshl_b32", s(sT1), s(sT1), "12"))
    A(salu("s_add_u32", s(sT0), s(sT0), s(sT1))); A(valu("v_add_u32", "v5", s(sT0), "v5"))
    for m in range(4): A(valu("v_add_u32", v(v3Wd + m), str(128 - 32 * m), "v5"))
    return o

def x_dma(c, t0=None, dt=1, after=None):
    p = c & 1; o = []; g = f"c{c}"; st = "dma"
    def T(k): return None if t0 is None else int(t0 + k * dt)
    def U(k): return None if t0 is None else int(t0 - 7 + k)
    o.append(salu("s_add_u32", s(sT0), s(sROT), str(c), tgt=U(0), stream="xa")); o.append(salu("s_and_b32", s(sT0), s(sT0), "7", tgt=U(1), stream="xa"))
    o.append(salu("s_lshl_b32", s(sXo), s(sT0), "7", tgt=U(2), stream="xa")); o.append(salu("s_lshl_b32", s(sWo), s(sT0), "19", tgt=U(3), stream="xa"))
    o.append(salu("s_add_u32", s(sXo2), s(sXo), "16384", tgt=U(4), stream="xa"))
    k = 0
    for half in range(2):
        o.append(salu("s_add_u32", "m0", s(sXb), str(p * SLOT + half * GRP), tgt=T(k - 1), stream=st))
        for m in range(4):
            d = dma(v(vX + m), SX, s(sXo2 if half else sXo), m * PIECE, cfg.xflags, grp=g, tgt=T(k), stream=st); k += 1
            if after: d.after = list(after)
            o.append(d)
    return o
def w_dma(c, t0=None, dt=1):
    p = c & 1; o = []; g = f"c{c}"; st = "dma"
    def T(k): return None if t0 is None else int(t0 + k * dt)
    o.append(salu("s_add_u32", "m0", s(sG), str(W_BASE + p * UNIT), tgt=T(-1), stream=st))
    for m in range(4): o.append(dma(v(vWq + m), SWQ, s(sWo), m * PIECE, cfg.wflags, grp=g, tgt=T(m), stream=st))
    return o
def kv_dma_static(which, tile, t0=None, dt=1, grp=0, ms=(0, 1, 2, 3)):
    st = "dma"
    def T(k): return None if t0 is None else t0 + k * dt
    o = [salu("s_mov_b32", s(sT1), str(tile * 16384 + grp * 4096), tgt=T(-1), stream=st),
         salu("s_add_u32", "m0", s(sG), str((tile & 3) * SLOT + (UNIT if which == "V" else 0) + grp * GRP), tgt=T(-1), stream=st)]
    for k, m in enumerate(ms): o.append(dma(v(vKV + m), SK if which == "K" else SV, s(sT1), m * PIECE, cfg.kvflags, grp=f"{which}{tile}", tgt=T(k), stream=st))
    return o
def chunk_reads(c, nq, t0=None, dt=1):
    p = c & 1; o = []; k = 0
    def T(k): return None if t0 is None else t0 + k * dt
    items = []
    for s_ in range(2):
        for a in range(nq): items.append(("x", s_, a))
    for tau in range(8):
        for s_ in range(2):
            for z in range(2): items.append(("w", s_, tau, z))
    for it in items:
        if it[0] == "x":
            _, s_, a = it
            o.append(ds_b128("a", xset(p, s_, a), v(vXrd), p * SLOT + (a & 1) * GRP + (a >> 1) * 512 + s_ * 64, tgt=T(k), stream="rd"))
        else:
            _, s_, tau, z = it
            o.append(ds_tr("a", wset(p, s_, tau) + 2 * z, v(vWrd), p * UNIT + z * 8 * PIECE + s_ * 512 + 32 * tau, tgt=T(k), stream="rd"))
        k += 1
    return o
def chunk_mfma(c, nq, amajor=False):
    p = c & 1; o = []
    order = [(a, tau) for a in range(nq) for tau in range(8)] if amajor else [(a, tau) for tau in range(8) for a in range(nq)]
    for a, tau in order:
        for s_ in range(2):
            z = (c == 0 and s_ == 0)
            o.append(mfma("v", acc(a, tau), "a", wset(p, s_, tau), "a", xset(p, s_, a), "0" if z else None))
    return o
def q_convert(a, t0, dt):
    o = []; k = 0
    for s_ in range(4):
        d = qf(a, s_)
        for half in range(2):
            b = acc(a, 2 * s_ + half)
            for r in range(4): o.append(valu("v_mul_f32", v(b + r), s(sC), v(b + r), tgt=t0 + k * dt)); k += 1
            for r in range(2): o.append(valu("v_cvt_pk_bf16_f32", v(d + 2 * half + r), v(b + 2 * r), v(b + 2 * r + 1), tgt=t0 + k * dt)); k += 1
        for r in range(2): o.append(swap("v_permlane32_swap_b32", v(d + r), v(d + 2 + r), tgt=t0 + k * dt)); k += 1
        for r in range(2): o.append(swap("v_permlane16_swap_b32", v(d + r), v(d + 2 + r), tgt=t0 + k * dt)); k += 1
    return o
def k_reads(j, t0=None, dt=4, after=None):
    o = []
    for r in range(8):
        kap, s_ = r >> 2, r & 3
        i = ds_b128("a", KF + 4 * r, v(vKrd), j * 8 * PIECE + kap * 512 + s_ * 64, tgt=None if t0 is None else t0 + r * dt, stream="rd")
        if after: i.after = list(after)
        o.append(i)
    return o
def v_reads(j, t0, dt):
    o = []
    for r in range(16):
        t, z = r >> 1, r & 1
        o.append(ds_tr("a", VF + 4 * t + 2 * z, v(vVrd), j * 8 * PIECE + z * 512 + 32 * t, tgt=t0 + r * dt, stream="rd"))
    return o
def qk(j, nq, first=False):
    o = []
    for a in range(nq):
        for kap in range(2):
            d = S_[j] + a * 8 + kap * 4
            for s_ in range(4):
                if s_ == 0: o.append(mfma("v", d, "a", KF + 4 * (kap * 4), "v", qf(a, 0), "0" if first else "v", None if first else NEGM + 4 * a))
                else: o.append(mfma("v", d, "a", KF + 4 * (kap * 4 + s_), "v", qf(a, s_)))
    return o
def pv(j, nq, first=False):
    return [mfma("a", oacc(a, t), "a", VF + 4 * t, "v", P_[j] + 4 * a, "0" if first else None) for t in range(8) for a in range(nq)]
def sm(j, nq, t0, dt=2.0):
    o = []
    for i in range(8 * nq):
        r = S_[j] + i; a = i >> 3
        o.append(valu("v_exp_f32", v(r), v(r), tgt=int(t0 + i * dt)))
        o.append(valu("v_add_f32", v(LSUM + a), v(LSUM + a), v(r), tgt=int(t0 + i * dt + 1)))
        if i & 1: o.append(valu("v_cvt_pk_bf16_f32", v(P_[j] + (i >> 1)), v(r - 1), v(r), tgt=int(t0 + i * dt + 1)))
    return o
def xreduce(op, reg, tmp, t0=None, dt=1):
    def T(k): return None if t0 is None else t0 + k * dt
    return [valu("v_mov_b32", v(tmp), v(reg), tgt=T(0)), swap("v_permlane16_swap_b32", v(reg), v(tmp), tgt=T(1)), valu(op, v(reg), v(reg), v(tmp), tgt=T(2)),
            valu("v_mov_b32", v(tmp), v(reg), tgt=T(3)), swap("v_permlane32_swap_b32", v(reg), v(tmp), tgt=T(4)), valu(op, v(reg), v(reg), v(tmp), tgt=T(5))]
def first_max(a, t0, dt):
    o = []; b = S_[0] + a * 8; m = TMP + 2 * a; k = 0
    o.append(valu("v_max3_f32", v(m), v(b), v(b + 1), v(MTRUE + a), tgt=t0))
    for r in range(1, 4): o.append(valu("v_max3_f32", v(m), v(b + 2 * r), v(b + 2 * r + 1), v(m), tgt=t0 + r * dt))
    o += xreduce("v_max_f32", m, m + 1, t0 + 4 * dt, dt)
    for r in range(4): o.append(valu("v_sub_f32", v(NEGM + 4 * a + r), "0", v(m), tgt=t0 + (10 + r) * dt))
    for r in range(8): o.append(valu("v_sub_f32", v(b + r), v(b + r), v(m), tgt=t0 + (14 + r) * dt))
    o.append(valu("v_mov_b32", v(LSUM + a), "0", tgt=t0))
    return o

class Variant:
    def __init__(s_, nq, name):
        s_.nq, s_.name = nq, name
        s_.static = []
        s_.trace = []
        s_.vm = []
        s_.pend = []
    def finish(s_, seq, sched=True, **kw):
        seq = schedule(seq, **kw) if sched else seq
        seq = s_.resolve_vm(seq)
        seq, s_.pend = insert_lgkm(seq, s_.pend)
        seq = fix_hazards(seq, s_.trace)
        s_.static += seq; s_.trace += seq
        return seq
    def resolve_vm(s_, seq):
        out = []
        for c in seq:
            if c.k == "wait" and c.meta == ("vm", None):
                n = min(vm_count(s_.vm, c.need), 63)
                w = waitvm(n, need=c.need); out.append(w)
            else:
                out.append(c)
                if c.k == "vmem": s_.vm.append(c)
        return out
def wvm(groups, **kw): return I("s_waitcnt vmcnt(?)", "wait", meta=("vm", None), need=set(groups), **kw)

sTo = 49 + 50
def iteration(T, nq, first=False, last=False):
    n = 8 * nq
    st = "dma"
    o = []
    vdt = 2 if nq == 4 else 1.5
    o += qk(0, nq)
    o += v_reads(0, 1, vdt)
    o += sm(1, nq, 0)
    o += k_reads(1, n + 1, (n - 4) / 8)
    o += pv(0, nq, first)
    B = 2 * n
    o += qk(1, nq)
    vr = v_reads(1, B + 1, vdt); o += vr
    o.append(valu("v_add_u32", v(vVrd), s(sS1), v(vVrd0), tgt=B + n + 2))
    o += sm(0, nq, B - 2, 2.0)
    w = wvm({f"K{T+2}", f"V{T+1}"}, tgt=B + n - 3, stream=["rd2", st]); b = barrier(tgt=B + n - 2, stream=["rd2", st])
    w.after = [x for x in o if x.k == "mfma"][B + n - 4:B + n - 3]
    o += [w, b]
    if cfg.its:
        x1 = valu("v_mov_b32", "v126", "s90", tgt=B + n - 1); x1.after = [b]
        x2 = I("s_memrealtime s[90:91]", "salu", tgt=B + n - 1); x2.after = [x1]
        o += [x1, x2, valu("v_cmp_eq_u32", "vcc", "s51", v(vLane), tgt=B + n), valu("v_cndmask_b32", "v127", "v127", "v126", "vcc", tgt=B + n + 2)]
    e = 4 * n - 1
    t = B + n
    tl = []
    if nq == 3 and cfg.touch:
        tch = [salu("s_sub_u32", s(sT2), s(sT), str(cfg.tfrom), tgt=B + 2, stream="tch"), salu("s_lshl_b32", s(sTo), s(sT2), "13", tgt=B + 3, stream="tch"),
               salu("s_cmp_lt_u32", None, s(sT), str(cfg.tfrom), tgt=B + 4, stream="tch"), salu("s_cselect_b32", s(sTo), "0x7ff00000", s(sTo), tgt=B + 5, stream="tch")]
        k = o.index(w); o[k:k] = tch
        for k, (sr, vo) in enumerate(((SX, vT), (SX, vT + 1), (SWQ, vT))[int(c_)] for c_ in cfg.tsel):
            tl.append(bload("v", 231, v(vo), sr, s(sTo), 0, cfg.tflags, n=1, grp="touch", tgt=(4 + 8 * k) if last else (t + 14 + 2 * k), stream=st))
            tl[-1].wr = set()
    if last:
        if tl:
            for k, x in enumerate(tch): x.tgt = k - 1
            k = o.index(w); o[k:k] = tl
        o += [ds_tr("a", KF + 4 * (r >> 1) + 2 * (r & 1), v(vVrd), (r & 1) * 512 + 32 * (r >> 1), tgt=int(B + n + 4 + r * (n - 6) / 16), stream="rd") for r in range(16)]
        for x in o[-16:]: x.after = [b]
        o += pv(1, nq)
        return o
    o.append(valu("v_add_u32", v(vKrd), s(sS2), v(vKrd0), tgt=B + n - 4))
    o += k_reads(0, B + n + 1, (n - 4) / 8, after=[b])
    if not cfg.w3dma:
        dt = (n - 10) / 8
        o.append(salu("s_add_u32", s(sT0), s(sS3), s(sG), tgt=t - 1, stream=st)); o.append(salu("s_add_u32", "m0", s(sT0), str(UNIT), tgt=t, stream=st))
        for m in range(4): o.append(dma(v(vKV + m), SV, s(sVo), m * PIECE, cfg.kvflags, grp=f"V{T+3}", tgt=int(t + 1 + m * dt), stream=st))
        o.append(salu("s_add_u32", "m0", s(sS1), s(sG), tgt=int(t + 3 * dt + 2), stream=st))
        for m in range(4): o.append(dma(v(vKV + m), SK, s(sKo), m * PIECE, cfg.kvflags, grp=f"K{T+5}", tgt=int(t + 1 + (4 + m) * dt), stream=st))
        r = e - 9
        o.append(salu("s_add_u32", s(sVo), s(sVo), "16384", tgt=r, stream=st))
        qoff = sKo
    else:
        if cfg.kswap: q = (SV, sVo, sS3, UNIT, f"V{T+3}"); f = (SK, sKo, sS0, 0, f"K{T+4}")
        else: q = (SK, sKo, sS1, 0, f"K{T+5}"); f = (SV, sVo, sS2, UNIT, f"V{T+2}")
        if nq == 3:
            blk = []
            for gi in range(4):
                t0 = 2 + gi * 11
                blk.append(salu("s_add_u32", "m0", s(f[2]), str(f[3] + gi * GRP), tgt=t0 - 1, stream="dmaA"))
                for m in range(4): blk.append(dma(v(vKV + m), f[0], s(f[1]), m * PIECE, cfg.kvflags, grp=f[4], tgt=int(t0 + m * 2.5), stream="dmaA"))
                blk.append(salu("s_add_u32", s(f[1]), s(f[1]), "4096", tgt=t0 + 9, stream="dmaA"))
            k = o.index(tch[0]) if tl else o.index(w); o[k:k] = blk
            w.stream = ["rd2", st, "dmaA"]
        dt = (n - 12) / 4 if nq == 4 else 3
        if q[3]:
            o.append(salu("s_add_u32", s(sT0), s(q[2]), s(sG), tgt=t - 1, stream=st)); o.append(salu("s_add_u32", "m0", s(sT0), str(q[3]), tgt=t, stream=st))
        else: o.append(salu("s_add_u32", "m0", s(q[2]), s(sG), tgt=t, stream=st))
        for m in range(4): o.append(dma(v(vKV + m), q[0], s(q[1]), m * PIECE, cfg.kvflags, grp=q[4], tgt=int(t + 2 + m * dt), stream=st))
        r = e - 10
        qoff = q[1]
    o += tl + pv(1, nq)
    o.append(salu("s_add_u32", s(qoff), s(qoff), "16384", tgt=r + 1, stream=st))
    if nq == 3 and cfg.w3dma and cfg.kswap: o.append(salu("s_mov_b32", s(sS0), s(sS1), tgt=r + 1, stream=st))
    o.append(salu("s_mov_b32", s(sS1), s(sS2), tgt=r + 2, stream=st)); o.append(salu("s_mov_b32", s(sS2), s(sS3), tgt=r + 3, stream=st))
    o.append(salu("s_add_u32", s(sS3), s(sS3), str(SLOT), tgt=r + 4, stream=st)); o.append(salu("s_cmp_eq_u32", None, s(sS3), str(4 * SLOT), tgt=r + 5, stream=st))
    o.append(salu("s_cselect_b32", s(sS3), "0", s(sS3), tgt=r + 6, stream=st))
    o.append(salu("s_add_u32", s(sT), s(sT), "1", tgt=r + 7, stream=st)); o.append(salu("s_cmp_lt_u32", None, s(sT), "14", tgt=r + 8, stream=st))
    return o

def k1_variant(nq, name):
    V = Variant(nq, name)
    V.finish([label(f"L_{name}")], sched=False)
    o = (clear_flags() if nq == 3 else []) + x_dma(0) + w_dma(0) + x_dma(1) + w_dma(1) + (page_warm() if nq == 3 and cfg.pwarm else []) + k1_setup2()
    o += [wvm({"c0", "clr"})] + (register() if nq == 3 else []) + [barrier()] + stamp(1) + stamp(1, "p1") + chunk_reads(0, nq) + [waitlg(0)] + x_dma(2) + [barrier()] + w_dma(2)
    V.finish(o, sched=False)
    n = 16 * nq
    w3 = cfg.w3dma and nq == 3
    for c in range(7):
        m = chunk_mfma(c, nq)
        w = wvm({f"c{c+1}"}, tgt=0, stream=["rd", "dma"]); b = barrier(tgt=1, stream=["rd", "dma"])
        nx = 2 * nq
        rd = chunk_reads(c + 1, nq, 2, 1)
        o = [w, b] + m
        if c + 3 <= 7:
            gx = (n - 8 - (nx + 4)) / 40.0
            for k, r in enumerate(rd[nx:]): r.tgt = int(nx + 2 + k * (1 + 8 / 32.0) * min(1.0, gx))
            if cfg.kvpace and c >= 1:
                o += kv_dma_static("K" if c <= 2 else "V", 0, 4, 3, ms=(0, 1) if c & 1 else (2, 3))
            wl = waitlg(4, tgt=nx + 6, stream=["rd", "dma"])
            o += rd[:nx + 4] + [wl] + rd[nx + 4:]
            wl0 = waitlg(0, tgt=n - 10, stream=["rd"]); b2 = barrier(tgt=n - 9, stream=["rd", "dma"])
            xd = x_dma(c + 3, nx + 7, 5 * min(1.0, gx))
            k = o.index(wl) + 1
            o += xd + [wl0, b2] + w_dma(c + 3, n - 8, 2)
        else:
            o += rd
            if cfg.kvpace:
                if c == 5: o += kv_dma_static("K", 1, 3, n // 5)
                if c == 6: o += kv_dma_static("K", 2, 3, n // 5)
            else:
                if c == 5: o += kv_dma_static("K", 0, 3, 5) + kv_dma_static("V", 0, 3 + n // 3, 5) + kv_dma_static("K", 1, 3 + 2 * n // 3, 4)
                if c == 6: o += kv_dma_static("K", 2, 3, 5) + kv_dma_static("V", 1, 3 + n // 3, 5)
            o += [waitlg(0, tgt=n - 1, stream=["rd"])]
        if cfg.nomfma1: o = [x for x in o if x.k != "mfma"]
        if cfg.nord1: o = [x for x in o if x.k != "lds"]
        if cfg.nodma1: o = [x for x in o if x.k != "vmem"]
        V.finish(o, lds_lat=0)
        V.finish(stamp(c + 2, "p1"), sched=False)
    h = 8 * nq
    c7 = chunk_mfma(7, nq, amajor=True)
    g0 = wvm({"K0"}, tgt=0, stream=["dma", "rd"]); g1 = barrier(tgt=1, stream=["dma", "rd"])
    o = [g0, g1] + c7 + (kv_dma_static("V", 1, 3, 3) if cfg.kvpace else kv_dma_static("K", 3, 3, 2)) + k_reads(0, 4, 1)
    o += [salu("s_lshl_b32", s(sT2), s(sB), "4", tgt=14), valu("v_mov_b32", v(vG + 4), s(sT2), tgt=15),
          I(f"global_load_dwordx4 v[{vG}:{vG+3}], v{vG+4}, s[100:101]{GOFF()} sc1", "vmem", rd=[v(vG + 4)], wr=R("v", vG, 4), meta="load", grp="G", tgt=16, stream="dma")]
    for a in range(nq): o += q_convert(a, 16 * (a + 1) + 3, 0.5)
    V.finish(o)
    V.finish(stamp(2) + stamp(9, "p1"), sched=False)
    V.finish([raw(f"s_branch L_{name}_go", "branch"), label(f"L_{name}_attn"), waitvm(0), barrier()] + k_reads(0) + [label(f"L_{name}_go"), waitlg(0)], sched=False)
    o = qk(0, nq, first=True)
    if cfg.kvpace: o += kv_dma_static("K", 3, 1, 2)
    for a in range(nq): o += first_max(a, 8 * (a + 1) + 2, 0.5)
    o += k_reads(1, h - 6, 1)
    o += qk(1, nq)
    o += sm(0, nq, h + 4, 1.0)
    w = wvm({"K1", "V0", "G"}, tgt=2 * h - 3, stream=["dma"]); b = barrier(tgt=2 * h - 2, stream=["dma"])
    w.after = [x for x in o if x.k == "mfma"][2 * h - 4:2 * h - 3]
    o += [w, b, valu("v_add_u32", v(vKrd), str(SLOT), v(vKrd0), tgt=2 * h - 2)]
    o += k_reads(0, 2 * h - 1, 0, after=[b])
    ks = cfg.w3dma and cfg.kswap
    o += ([] if cfg.w3dma and not ks else kv_dma_static("V", 2, 2 * h - 1, 0)) + ([] if ks else kv_dma_static("K", 4, 2 * h - 1, 0))
    vo0 = (2 * 16384 - 3 * 4096) if cfg.w3dma and not ks else 3 * 16384
    ko0 = (4 * 16384 - 3 * 4096) if ks else 5 * 16384
    o += [salu("s_mov_b32", s(sS0), "0", tgt=9)]
    o += [salu("s_mov_b32", s(sVo), str(vo0), tgt=2), salu("s_mov_b32", s(sKo), str(ko0), tgt=3), salu("s_mov_b32", s(sS1), str(SLOT), tgt=4),
          salu("s_mov_b32", s(sS2), str(2 * SLOT), tgt=5), salu("s_mov_b32", s(sS3), str(3 * SLOT), tgt=6), salu("s_mov_b32", s(sT), "0", tgt=7),
          valu("v_mov_b32", v(vVrd), v(vVrd0), tgt=8)]
    V.finish(o)
    V.finish(group_check(name) + (touch_setup() if nq == 3 and cfg.touch else []) + stamp(3), sched=False)
    V.finish(iteration(0, nq, first=True))
    V.static.append(label(f"L_{name}_loop"))
    seqs = [V.resolve_vm(schedule(iteration(T, nq))) for T in range(1, 14)]
    for k, c in enumerate(seqs[0]):
        if c.k == "wait" and c.meta[0] == "vm":
            n_ = min(q[k].meta[1] for q in seqs)
            for q in seqs: q[k] = waitvm(n_, need=q[k].need)
    _, p1 = insert_lgkm(seqs[0], V.pend)
    body, p2 = insert_lgkm(seqs[0], p1)
    body = fix_hazards(body + [raw(f"s_cbranch_scc1 L_{name}_loop", "branch", rd=["scc"])], body)
    V.static += body; V.pend = p2; V.loop_stats = gap_stats(body)
    for cur in seqs:
        new = []; k = 0
        for c in body:
            if k < len(cur) and cur[k].t == c.t: new.append(cur[k]); k += 1
            else: new.append(c)
        assert k == len(cur), ("loop body differs", cur[k].t)
        V.trace += new
    V.finish(iteration(14, nq, last=True))
    V.finish(stamp(4), sched=False)
    if cfg.its:
        V.finish([raw("s_lshl_b32 s4, s2, 10"), raw(f"s_lshl_b32 s5, s{sW}, 8"), raw("s_add_u32 s4, s4, s5"), raw(f"s_add_u32 s4, s4, {STAMP_OFF + 0x100000}"),
                  raw(f"s_add_u32 s4, s{sWS}, s4"), raw(f"s_addc_u32 s5, s{sWS+1}, 0"), raw(f"v_lshlrev_b32 v126, 2, v{vLane}"), raw("global_store_dword v126, v127, s[4:5]"), raw("s_nop 1")], sched=False)
    h2 = 16
    o = p3_srd_w(0) + v_reads(1, -1, 0.5)
    inv = TMP
    A = o.append
    if cfg.fallback:
        A(salu("s_lshl_b32", s(sT2), s(sW), "2", tgt=12)); A(salu("s_add_u32", s(sT2), s(sT2), str(VOTE), tgt=13))
        A(valu("v_mov_b32", v(TMP + 13), s(sT2), tgt=14)); A(valu("v_mov_b32", v(TMP + 14), str(VOTE), tgt=14))
        A(salu("s_mov_b32", s(sT0), hex(LIMIT), tgt=14)); A(raw("s_mov_b64 s[54:55], 0", "salu", wr=["s54", "s55"], tgt=15))
    smx = sm(1, nq, 0, 1.0)
    def smt(a, t0, t1):
        x = smx[20 * a:20 * a + 20]
        for k, y in enumerate(x): y.tgt = int(t0 + (t1 - t0) * k / 20)
        return x
    k = 0
    for a in range(nq):
        t = h2 * a
        o += smt(a, max(-1, t - 14), t + 2 if a else 6)
        p0 = [mfma("a", oacc(a, tt), "a", KF + 4 * tt, "v", P_[0] + 4 * a) for tt in range(8)]
        p1 = [mfma("a", oacc(a, tt), "a", VF + 4 * tt, "v", P_[1] + 4 * a) for tt in range(8)]
        o += (p0 + p1) if a == 0 else [y for pr in zip(p0, p1) for y in pr]
        o += xreduce("v_add_f32", LSUM + a, TMP + 8 + a, t + 8, 1)
        A(valu("v_rcp_f32", v(inv + a), v(LSUM + a), tgt=t + 14))
        if cfg.fallback:
            A(valu("v_cmp_nge_f32", "vcc", s(sT0), v(LSUM + a), tgt=t + 14))
            A(raw("s_or_b64 s[54:55], s[54:55], vcc", "salu", rd=["vcc", "s54", "s55"], wr=["s54", "s55", "scc"], tgt=t + 15))
        if a == nq - 1:
            tv = t + 15
            if cfg.fallback:
                A(salu("s_cselect_b32", s(sT0), "1", "0", tgt=tv)); A(valu("v_mov_b32", v(TMP + 12), s(sT0), tgt=tv))
                A(I(f"ds_write_b32 v{TMP+13}, v{TMP+12}", "ldsw", rd=[v(TMP + 12), v(TMP + 13)], tgt=tv, stream="rd"))
    epi = []
    for a in range(nq):
        for sg in range(4):
            tb = 16 * (k % 4) if a else 96 + 16 * (k % 2)
            if a == 1: tb = 16 * (k % 2)
            t0 = h2 * (a + 1) + 3 + 3 * sg
            blk = [salu("s_mov_b32", s(sT1), str(8192 * sg), stream="st")]
            blk += [valu("v_accvgpr_read_b32", v(tb + r), f"a{oacc(a, 2*sg) + r}") for r in range(8)]
            blk += [valu("v_mul_f32", v(tb + r), v(inv + a), v(tb + r)) for r in range(8)]
            blk += [valu("v_cvt_pk_bf16_f32", v(tb + 8 + r), v(tb + 2 * r), v(tb + 2 * r + 1)) for r in range(4)]
            blk += [bstore("v", tb + 8, v(vOst), SO, s(sT1), 1024 * a, cfg.oflags, stream="st", grp="O")]
            for y in blk: y.tgt = t0
            k += 1
            if a < nq - 1: o += blk
            else: epi += blk
    V.finish(o, budget=cfg.tbudget)
    o = epi[:22] + [waitlg(0), barrier()]
    if cfg.fallback: o.append(ds_b128("v", TMP + 4, v(TMP + 14), 0))
    o += epi[22:]
    for u in range(cfg.pre): o += p3_wdma(u)
    V.finish(o, sched=False)
    V.finish(stamp(5), sched=False)
    V.npre = len(V.vm)
    if cfg.fallback:
        o = []; A = o.append
        A(valu("v_or3_b32", v(TMP + 12), v(TMP + 4), v(TMP + 5), v(TMP + 6))); A(valu("v_or_b32", v(TMP + 12), v(TMP + 12), v(TMP + 7)))
        A(valu("v_readfirstlane_b32", s(sT0), v(TMP + 12)))
        A(salu("s_andn2_b32", s(sT0), s(sT0), s(sPASS))); A(raw(f"s_cbranch_scc0 L_{name}_end", "branch", rd=["scc"]))
        A(waitvm(0)); A(barrier())
        A(valu("v_mov_b32", v(vKrd), v(vKrd0))); A(salu("s_mov_b32", s(sKo), "0")); A(salu("s_mov_b32", "m0", s(sG)))
        A(label(f"L_{name}_mx"))
        for m in range(4): A(dma(v(vKV + m), SK, s(sKo), m * PIECE, cfg.kvflags))
        A(waitvm(0)); A(barrier())
        for j in range(2):
            o += k_reads(j) + [waitlg(0)] + qk(0, nq, first=True) + [nop(7)]
            for a in range(nq):
                for r in range(4): A(valu("v_max3_f32", v(MTRUE + a), v(S_[0] + 8 * a + 2 * r), v(S_[0] + 8 * a + 2 * r + 1), v(MTRUE + a)))
        A(barrier())
        A(salu("s_add_u32", s(sKo), s(sKo), "16384")); A(salu("s_cmp_lt_u32", None, s(sKo), "262144")); A(raw(f"s_cbranch_scc1 L_{name}_mx", "branch", rd=["scc"]))
        A(salu("s_mov_b32", s(sPASS), "1"))
        for wh, tl in (("K", 0), ("V", 0), ("K", 1), ("K", 2), ("V", 1)) + (() if cfg.kvpace else (("K", 3),)): o += kv_dma_static(wh, tl)
        A(salu("s_lshl_b32", s(sT2), s(sB), "4")); A(valu("v_mov_b32", v(vG + 4), s(sT2)))
        A(raw(f"global_load_dwordx4 v[{vG}:{vG+3}], v{vG+4}, s[100:101]{GOFF()} sc1"))
        A(raw(f"s_branch L_{name}_attn", "branch"))
        V.finish(o, sched=False)
    if cfg.fused:
        V.finish([label(f"L_{name}_end"), raw("s_branch L_p3", "branch")], sched=False)
    else:
        V.finish([label(f"L_{name}_end")] + stamp(6) + dump_stamps(10, sWS, STAMP_OFF, v(vLane), "L_k1_done") + [raw("s_endpgm")], sched=False)
    return V

XOFF = 0x1000000; FOFF = 0x3000000
S3O, S3W, S3X, S3Out = 8, 12, 16, 40
s3HG, s3RP, s3CQ, s3T, s3U, sUNI, sF1, sF2 = 36, 37, 38, 46, 47, 39, 31, 30
v3Wd = 252; vG = 224
v3Or, v3Rr, v3St, v3L16, v3Wr = 104, 106, 107, 108, 109
WRING, NW_ = 0, 9
def oset(u, sg, a): return 128 + (u % 8) * 16 + (sg * 2 + a) * 4
def wset3(p, sg, tau): return p * 64 + (sg * 8 + tau) * 4
def one_lane(ins): return [raw("s_mov_b64 exec, 1", "salu"), ins, raw("s_mov_b64 exec, -1", "salu")]
def flag_addrs(t0=None):
    o = []; A = o.append
    A(salu("s_lshr_b32", s(s3HG), s(sH), "3")); A(salu("s_bfe_u32", s(s3RP), s(sH), "0x10002", scc_w=True)); A(salu("s_and_b32", s(s3CQ), s(sH), "3"))
    A(salu("s_lshl_b32", s(sF1), s(sB), "2")); A(salu("s_add_u32", s(sF1), s(sF1), s(s3HG))); A(salu("s_lshl_b32", s(sF1), s(sF1), "7")); A(salu("s_add_u32", s(sF1), s(sF1), hex(FOFF)))
    A(salu("s_lshl_b32", s(sF2), s(sB), "3")); A(salu("s_and_b32", s(s3T), s(sH), "7")); A(salu("s_add_u32", s(sF2), s(sF2), s(s3T))); A(salu("s_lshl_b32", s(sF2), s(sF2), "7")); A(salu("s_add_u32", s(sF2), s(sF2), hex(FOFF + 4096)))
    if t0 is not None:
        for k, x in enumerate(o): x.tgt = t0 + k; x.stream = "p3s"
    return o
def clear_flags():
    o = []; A = o.append
    A(salu("s_lshr_b32", s(54), s(sH), "3")); A(salu("s_and_b32", s(55), s(sH), "7"))
    A(salu("s_lshl_b32", s(sT0), s(sB), "2")); A(salu("s_add_u32", s(sT0), s(sT0), s(54))); A(salu("s_lshl_b32", s(sT0), s(sT0), "5")); A(salu("s_add_u32", s(sT0), s(sT0), s(55)))
    A(salu("s_lshl_b32", s(sT0), s(sT0), "2")); A(salu("s_add_u32", s(sT0), s(sT0), hex(FOFF)))
    A(salu("s_lshl_b32", s(sT1), s(sB), "3")); A(salu("s_add_u32", s(sT1), s(sT1), s(55))); A(salu("s_lshl_b32", s(sT1), s(sT1), "5")); A(salu("s_add_u32", s(sT1), s(sT1), s(54)))
    A(salu("s_lshl_b32", s(sT1), s(sT1), "2")); A(salu("s_add_u32", s(sT1), s(sT1), hex(FOFF + 4096)))
    A(valu("v_mov_b32", "v8", s(sT0))); A(valu("v_mov_b32", "v9", s(sT1))); A(valu("v_mov_b32", "v10", "0"))
    A(raw("s_mov_b64 exec, 1", "salu"))
    A(I(f"global_store_dword v8, v10, s[{sWS}:{sWS+1}] sc1", "vmem", rd=["v8", "v10"], meta="store", grp="clr"))
    A(I(f"global_store_dword v9, v10, s[{sWS}:{sWS+1}] sc1", "vmem", rd=["v9", "v10"], meta="store", grp="clr"))
    A(raw("s_mov_b64 exec, -1", "salu"))
    return o
def page_warm():
    o = []; A = o.append; L = v(vLane)
    A(valu("v_and_b32", "v8", "31", L)); A(valu("v_lshlrev_b32", "v8", "20", "v8"))
    A(valu("v_and_b32", "v9", "3", L)); A(valu("v_lshlrev_b32", "v10", "20", "v9")); A(valu("v_mul_u32_u24", "v9", "0x78000", "v9"))
    for a, b in (("v8", f"s[{sWS}:{sWS+1}]"), ("v10", "s[56:57]"), ("v9", "s[58:59]")):
        A(I(f"global_load_dword v231, {a}, {b}", "vmem", rd=[a], meta="load", grp="pw"))
    return o
def xcc_word(dst, tmp):
    o = [raw(f"s_getreg_b32 s{tmp}, hwreg(HW_REG_XCC_ID, 0, 4)", "salu", wr=[s(tmp)])]
    if cfg.forcemix: o.append(salu("s_and_b32", s(tmp), s(sH), "1"))
    o += [salu("s_mul_i32", s(dst), s(tmp), s(tmp)), salu("s_lshl_b32", s(dst), s(dst), "8"), salu("s_add_u32", s(dst), s(dst), s(tmp)),
          salu("s_lshl_b32", s(dst), s(dst), "8"), salu("s_add_u32", s(dst), s(dst), "1")]
    return o
def register():
    o = xcc_word(sT0, sT1); A = o.append
    A(salu("s_lshr_b32", s(sT1), s(sH), "3")); A(salu("s_lshl_b32", s(sT2), s(sB), "2")); A(salu("s_add_u32", s(sT1), s(sT1), s(sT2))); A(salu("s_lshl_b32", s(sT1), s(sT1), "2"))
    A(valu("v_mov_b32", "v8", s(sT1))); A(valu("v_mov_b32", "v9", s(sT0)))
    o += one_lane(I(f"global_atomic_add v8, v9, s[100:101]{GOFF()} sc1", "vmem", rd=["v8", "v9"], meta="store"))
    return o
def group_check(name):
    o = []; A = o.append
    A(label(f"L_{name}_gc"))
    A(valu("v_and_b32", v(vG + 5), v(vG), v(vG + 1))); A(valu("v_and_b32", v(vG + 6), v(vG + 2), v(vG + 3))); A(valu("v_and_b32", v(vG + 5), v(vG + 5), v(vG + 6)))
    A(valu("v_readfirstlane_b32", s(sT0), v(vG + 5)))
    A(salu("s_bitcmp1_b32", None, s(sT0), "3", scc_w=True)); A(raw(f"s_cbranch_scc1 L_{name}_gok", "branch", rd=["scc"]))
    A(raw(f"s_sleep 8")); A(raw(f"global_load_dwordx4 v[{vG}:{vG+3}], v{vG+4}, s[100:101]{GOFF()} sc1")); A(raw("s_waitcnt vmcnt(0)")); A(raw(f"s_branch L_{name}_gc", "branch"))
    A(label(f"L_{name}_gok"))
    A(salu("s_lshr_b32", s(sT0), s(sH), "3"))
    A(salu("s_cmp_eq_u32", None, s(sT0), "1")); A(raw(f"s_cselect_b64 vcc, -1, 0", "salu", rd=["scc"], wr=["vcc"])); A(valu("v_cndmask_b32", v(vG), v(vG), v(vG + 1), "vcc"))
    A(salu("s_cmp_eq_u32", None, s(sT0), "2")); A(raw(f"s_cselect_b64 vcc, -1, 0", "salu", rd=["scc"], wr=["vcc"])); A(valu("v_cndmask_b32", v(vG + 5), v(vG), v(vG + 2), "vcc"))
    A(salu("s_cmp_eq_u32", None, s(sT0), "3")); A(raw(f"s_cselect_b64 vcc, -1, 0", "salu", rd=["scc"], wr=["vcc"])); A(valu("v_cndmask_b32", v(vG + 5), v(vG + 5), v(vG + 3), "vcc"))
    A(valu("v_readfirstlane_b32", s(sT0), v(vG + 5)))
    o += xcc_word(sT1, sT2)
    A(salu("s_lshl_b32", s(sT1), s(sT1), "3")); A(salu("s_cmp_eq_u32", None, s(sT0), s(sT1))); A(salu("s_cselect_b32", s(sUNI), "1", "0"))
    return o
def p3_srd_w(t0):
    o = flag_addrs(); A = o.append
    A(salu("s_lshl_b32", s(s3T), s(s3HG), "20")); A(salu("s_lshl_b32", s(s3U), s(s3CQ), "8")); A(salu("s_add_u32", s(s3T), s(s3T), s(s3U)))
    A(salu("s_sub_u32", s(s3U), str(1048576 + 128), s(s3U)))
    o += srd(S3W, 56, 57, s3T, 128, s(s3U))
    for k, x in enumerate(o): x.tgt = t0 + k // 2; x.stream = "p3s"
    return o
def touch_setup():
    o = []; A = o.append
    A(salu("s_lshl_b32", s(sT0), s(sB), "21")); A(salu("s_lshl_b32", s(sT1), s(sH), "15")); A(salu("s_add_u32", s(sT0), s(sT0), s(sT1)))
    o += srd(SX, sWS, sWS + 1, sT0, 0, str(1048576 + 32768))
    A(salu("s_lshr_b32", s(sT0), "s2", "3")); A(salu("s_lshl_b32", s(sT0), s(sT0), "15")); A(salu("s_lshr_b32", s(sT1), s(sH), "3")); A(salu("s_lshl_b32", s(sT1), s(sT1), "20"))
    A(salu("s_add_u32", s(sT0), s(sT0), s(sT1))); o += srd(SWQ, 56, 57, sT0, 0, "32768")
    A(valu("v_lshlrev_b32", v(vT), "7", v(vLane))); A(valu("v_add_u32", v(vT + 1), "0x100000", v(vT)))
    return o
def p3_wdma(u, t0=None, dt=1):
    st = "dma"
    def T(k): return None if t0 is None else int(t0 + k * dt)
    o = [salu("s_mov_b32", s(s3U), str(u * 65536), tgt=T(-1), stream=[st, "p3s"]), salu("s_add_u32", "m0", s(sG), str(WRING + (u % NW_) * UNIT), tgt=T(-1), stream=st)]
    for m in range(4): o.append(dma(v(v3Wd + m), S3W, "0" if cfg.now else s(s3U), m * PIECE, cfg.k2_wflags, grp=f"w{u}", tgt=T(m), stream=st))
    return o
sXo3 = 48
def p3_oload(u, nq, t0=None, dt=1):
    st = "dma"
    def T(k): return None if t0 is None else int(t0 + k * dt)
    o = []
    for sg in range(2):
        o.append(salu("s_mov_b32", s(s3T), str(u * 16384 + sg * 8192), tgt=T(-1), stream=st))
        for a in range(nq): o.append(bload("a", oset(u, sg, a), v(v3Or), S3O, "0" if cfg.noo else s(s3T), a * 1024, cfg.o3flags, grp=f"o{u}", tgt=T(0), stream=st))
    return o
def p3_reads(u):
    p = u & 1; o = []
    for tau in range(8):
        for sg in range(2):
            for z in range(2):
                sl = u % NW_
                o.append(ds_tr("a", wset3(p, sg, tau) + 2 * z, v(v3Wr + sl // 3), (sl % 3) * UNIT + z * 8 * PIECE + sg * 512 + 32 * tau, stream="rd"))
    return o
def p3_setup2(L):
    o = []; A = o.append
    A(salu("s_lshl_b32", s(sT0), s(sB), "1")); A(salu("s_add_u32", s(sT0), s(sT0), s(s3RP)))
    A(salu("s_lshl_b32", s(sT1), s(sT0), "20")); A(salu("s_lshl_b32", s(sT2), s(s3HG), "18")); A(salu("s_add_u32", s(sT1), s(sT1), s(sT2))); o += srd(S3O, sWS, sWS + 1, sT1, 0, "262144")
    A(salu("s_lshl_b32", s(sT1), s(sT0), "2")); A(salu("s_add_u32", s(sT1), s(sT1), s(s3CQ))); A(salu("s_lshl_b32", s(sT1), s(sT1), "18")); A(salu("s_add_u32", s(sT1), s(sT1), hex(XOFF)))
    o += srd(S3X, sWS, sWS + 1, sT1, 0, "262144")
    A(salu("s_lshl_b32", s(sT1), s(s3RP), "2")); A(salu("s_add_u32", s(sT1), s(sT1), s(s3HG))); A(salu("s_lshl_b32", s(sT1), s(sT1), "15"))
    A(salu("s_lshl_b32", s(sT2), s(s3CQ), "8")); A(salu("s_add_u32", s(sT1), s(sT1), s(sT2)))
    A(salu("s_mul_i32", s(sT0), s(sB), "245760")); A(salu("s_add_u32", s(sT0), s(sT0), s(sT1))); A(salu("s_sub_u32", s(sT1), "245760", s(sT1)))
    o += srd(S3Out, 58, 59, sT0, 0, s(sT1))
    A(salu("s_lshl_b32", s(sXo3), s(sW), "12"))
    A(valu("v_lshlrev_b32", v(v3L16), "4", L))
    A(salu("s_lshl_b32", s(sT0), s(sW), "11")); A(valu("v_add_u32", v(v3Or), s(sT0), v(v3L16)))
    A(valu("v_subrev_u32", v(v3Wr), str(UNIT - WRING), v(vVrd0))); A(valu("v_add_u32", v(v3Wr + 1), str(3 * UNIT), v(v3Wr))); A(valu("v_add_u32", v(v3Wr + 2), str(6 * UNIT), v(v3Wr)))
    A(valu("v_and_b32", "v97", "15", L)); A(valu("v_lshrrev_b32", "v98", "4", L))
    A(valu("v_lshlrev_b32", "v101", "9", "v98")); A(valu("v_lshl_add_u32", "v101", "v97", "4", "v101")); A(valu("v_add_u32", v(v3Rr), s(sXo3), "v101"))
    A(salu("s_lshr_b32", s(sT0), s(sW), "1")); A(salu("s_lshl_b32", s(sT0), s(sT0), "14")); A(salu("s_and_b32", s(sT1), s(sW), "1")); A(salu("s_lshl_b32", s(sT1), s(sT1), "7")); A(salu("s_add_u32", s(sT0), s(sT0), s(sT1)))
    A(valu("v_lshlrev_b32", "v101", "10", "v97")); A(valu("v_lshl_add_u32", "v101", "v98", "4", "v101")); A(valu("v_add_u32", v(v3St), s(sT0), "v101"))
    return o
def poll(lab, base, n):
    o = []; A = o.append
    A(valu("v_lshlrev_b32", "v96", "2", v(vLane))); A(valu("v_add_u32", "v96", s(base), "v96")); A(salu("s_mov_b32", s(sT1), "0"))
    A(raw(f"s_mov_b64 exec, {(1 << n) - 1}", "salu"))
    A(label(lab))
    A(raw(f"global_load_dword v97, v96, s[{sWS}:{sWS+1}] sc1")); A(raw("s_waitcnt vmcnt(0)")); A(raw("v_cmp_ne_u32 vcc, 1, v97"))
    A(raw(f"s_add_u32 s{sT1}, s{sT1}, 1")); A(raw(f"s_cbranch_vccz {lab}_ok"))
    A(raw("s_sleep 1")); A(raw(f"s_cmp_lt_u32 s{sT1}, 0x200000")); A(raw(f"s_cbranch_scc1 {lab}"))
    A(label(f"{lab}_ok")); A(raw("s_mov_b64 exec, -1", "salu"))
    return o
def p3_front(V):
    L = v(vLane); o = []; A = o.append
    A(label("L_p3")); o += p3_setup2(L)
    A(salu("s_and_b32", s(sT0), s(sH), "7")); A(salu("s_lshl_b32", s(sT0), s(sT0), "2")); A(salu("s_add_u32", s(sT0), s(sT0), s(sF1)))
    A(valu("v_mov_b32", "v96", s(sT0))); A(valu("v_mov_b32", "v97", "1"))
    A(waitvm(4 * cfg.pre)); A(barrier()); o += stamp(6)
    A(salu("s_cmp_lg_u32", None, s(sW), "0")); A(raw("s_cbranch_scc1 L_p3_a", "branch", rd=["scc"]))
    A(salu("s_cmp_eq_u32", None, s(sUNI), "1")); A(raw("s_cbranch_scc1 L_p3_u", "branch", rd=["scc"]))
    A(raw("buffer_wbl2 sc1")); A(raw("s_waitcnt vmcnt(0)"))
    o += one_lane(raw(f"global_store_dword v96, v97, s[{sWS}:{sWS+1}] sc1"))
    A(raw("s_branch L_p3_a", "branch"))
    A(label("L_p3_u"))
    o += one_lane(raw(f"global_store_dword v96, v97, s[{sWS}:{sWS+1}]"))
    A(label("L_p3_a"))
    for u in range(cfg.pre, cfg.pre + cfg.pre2): o += p3_wdma(u)
    A(salu("s_cmp_lg_u32", None, s(sW), "0")); A(raw("s_cbranch_scc1 L_p3_b", "branch", rd=["scc"]))
    o += poll("L_p3_p", sF1, 8)
    A(salu("s_cmp_eq_u32", None, s(sUNI), "1")); A(raw("s_cbranch_scc1 L_p3_b", "branch", rd=["scc"]))
    A(raw("buffer_inv sc1")); A(raw("s_waitcnt vmcnt(0)"))
    A(label("L_p3_b"))
    A(wvm({"w0"})); A(barrier()); o += stamp(7) + stamp(1, "g")
    A(salu("s_lshl_b32", s(sT0), s(s3RP), "2")); A(salu("s_add_u32", s(sT0), s(sT0), s(sW)))
    A(salu("s_cmp_eq_u32", None, s(sT0), "7")); A(raw("s_cbranch_scc1 L_g1", "branch", rd=["scc"]))
    V.finish(o, sched=False)
def p3_gemm(nq, name, V0):
    V = Variant(nq, name); V.vm = list(V0.vm); V.trace = list(V0.trace); V.pend = list(V0.pend)
    o = [label(f"L_{name}")]
    for u in range(cfg.odepth): o += p3_oload(u, nq)
    o += p3_reads(0)[:16]
    V.finish(o, sched=False)
    n = 16 * nq
    no = cfg.odepth; nw = cfg.pre + cfg.pre2
    o = p3_reads(0)[16:]
    for k, x in enumerate(o): x.tgt = -1 + k // 2
    prev = None
    for c in range(16):
        p = c & 1; G = n * c
        m = [mfma("v", a * 32 + 4 * tau, "a", wset3(p, sg, tau), "a", oset(c, sg, a), "0" if (c == 0 and sg == 0) else None) for tau in range(8) for a in range(nq) for sg in range(2)]
        w = wvm({f"o{c}", f"w{c+1}"}, tgt=G - 1, stream=["bar", "dma"])
        if prev: w.after = [prev[-2]]
        m[0].after = [w]
        o += [w]
        if c < 15:
            b = barrier(tgt=G, stream=["bar", "dma"])
            if prev: b.after = [prev[-1]]
            o += [b]
        o += m
        if c < 15:
            d = []
            if no < 16: d += p3_oload(no, nq); no += 1
            for rep in range(2 if nw <= c + 3 else 1):
                if nw < 16 and nw <= c + NW_ - 1: d += p3_wdma(nw); nw += 1
            rd = p3_reads(c + 1)
            rd[0].after = [b]
            vm = [x for x in d if x.k == "vmem"]
            vg = [int((k + 0.5) * n / len(vm)) for k in range(len(vm))] if vm else []
            for k, x in enumerate(vm): x.tgt = G + vg[k]
            free = [g for g in range(n) if g not in vg] if len(vg) < n - 4 else list(range(n))
            sh = cfg.gshift * nq // 2
            free = [g for g in free if g >= sh] + [g + n for g in free if g < sh]
            for k, x in enumerate(rd): x.tgt = G + free[k * len(free) // 32]
            for k, x in enumerate(d):
                if x.k == "salu": x.tgt = next(y.tgt for y in d[k:] if y.k == "vmem") - 1
            o += rd + d
        if c in (0, 1, 3, 7, 11): o += stampf(2 + (0, 1, 3, 7, 11).index(c), "g", m[-1], G + n - 1)
        prev = m
    V.finish(o, strict=True)
    V.finish(stamp(8) + stamp(7, "g") + [salu("s_cmp_eq_u32", None, s(sW), s(s3HG)), raw(f"s_cbranch_scc1 L_{name}_own", "branch", rd=["scc"])], sched=False)
    o = [salu("s_lshl_b32", s(sT0), s(sW), "2"), salu("s_add_u32", s(sT0), s(sT0), s(s3HG)), salu("s_lshl_b32", s(sT0), s(sT0), "14")]
    for q in range(2 * nq):
        for tau in range(4): o.append(bstore("v", q * 16 + 4 * tau, v(v3L16), S3X, s(sT0), 1024 * tau, cfg.xsc))
        o.append(salu("s_add_u32", s(sT0), s(sT0), "4096"))
    o += [raw("s_branch L_fin", "branch"), label(f"L_{name}_own")]
    for q in range(8 * nq): o.append(ds_w128(v(v3L16), "v", 4 * q, q * 1024))
    o += [raw("s_branch L_fin", "branch")]
    V.finish(o, sched=False)
    return V
def p3_final():
    V = Variant(4, "fin"); o = []; A = o.append
    A(label("L_fin"))
    A(salu("s_lshl_b32", s(sT0), s(s3HG), "2")); A(salu("s_add_u32", s(sT0), s(sT0), s(sF2))); A(valu("v_mov_b32", "v96", s(sT0))); A(valu("v_mov_b32", "v97", "1"))
    A(raw("s_waitcnt vmcnt(0) lgkmcnt(0)")); A(barrier()); o += stamp(8, "g") + stamp(2, "x")
    A(salu("s_cmp_lg_u32", None, s(sW), "0")); A(raw("s_cbranch_scc1 L_fin_a", "branch", rd=["scc"]))
    o += one_lane(raw(f"global_store_dword v96, v97, s[{sWS}:{sWS+1}] sc1"))
    o += poll("L_fin_p", sF2, 4)
    A(label("L_fin_a"))
    for q in range(4): A(ds_b128("v", 4 * q, v(v3Rr), (q >> 1) * 2048 + (q & 1) * 256))
    A(barrier())
    for k in range(1, 4):
        A(salu("s_add_u32", s(sT0), s(s3HG), str(k))); A(salu("s_and_b32", s(sT0), s(sT0), "3")); A(salu("s_lshl_b32", s(sT1), s(s3HG), "2")); A(salu("s_add_u32", s(sT0), s(sT0), s(sT1)))
        A(salu("s_lshl_b32", s(sT0), s(sT0), "14"))
        for q in range(4): A(bload("v", 16 * k + 4 * q, v(v3Rr), S3X, s(sT0), (q >> 1) * 2048 + (q & 1) * 256, "sc1", grp=f"x{k}"))
    for k in range(1, 4):
        A(wvm({f"x{k}"}))
        for r in range(16): A(valu("v_add_f32", v(r), v(r), v(16 * k + r)))
    for r in range(8): A(valu("v_cvt_pk_bf16_f32", v(16 + r), v(2 * r), v(2 * r + 1)))
    for sg in range(2): A(bstore("v", 16 + 4 * sg, v(v3St), S3Out, "0", 64 * sg))
    o += stamp(9) + stamp(9, "g") + dump_stamps(10, sWS, STAMP_OFF, v(vLane), "L_k1_done") + [raw("s_endpgm")]
    V.finish(o, sched=False)
    return V

HEAD = """; standalone__mha_block_cached__near_ridge: out = softmax((x wq) K^T / sqrt(128)) V wo
"""
def kd(name, vg, acc_off):
    return f""".amdhsa_kernel {name}
  .amdhsa_next_free_vgpr {vg}
  .amdhsa_next_free_sgpr 102
  .amdhsa_accum_offset {acc_off}
  .amdhsa_group_segment_fixed_size 0
  .amdhsa_kernarg_size 64
  .amdhsa_user_sgpr_count 2
  .amdhsa_user_sgpr_kernarg_segment_ptr 1
  .amdhsa_system_sgpr_workgroup_id_x 1
.end_amdhsa_kernel
"""
def check(pre, V):
    tr = pre + V.trace
    for nm, f in (("hazard", check_hazards), ("lgkm", check_lgkm), ("vm", check_vm)):
        bad = f(tr)
        if bad:
            print(V.name, nm, len(bad), bad[:6], file=sys.stderr); raise SystemExit(1)
def build():
    KN = "standalone__mha_block_cached__near_ridge_kernel"
    out = HEAD
    out += f"; @launch grid=(256,1,1) block=(256,1,1) lds={LDS1 + 64}\n"
    out += '.amdgcn_target "amdgcn-amd-amdhsa--gfx950"\n.text\n'
    out += f".globl {KN}\n.p2align 8\n.type {KN},@function\n{KN}:\n"
    pre = fix_hazards(k1_setup() + [salu("s_cmp_eq_u32", None, s(sW), "3"), raw("s_cbranch_scc1 L_w3", "branch")])
    out += text(pre)
    for nq, name in ((4, "w012"), (3, "w3")):
        V = k1_variant(nq, name); check(pre, V)
        print(name, "loop (mfma, est cycles):", V.loop_stats, "total est", gap_stats(V.trace), file=sys.stderr)
        out += text(V.static)
    F = Variant(4, "p3"); F.vm = [x for x in V.vm[:V.npre] if x.grp and x.grp[0] == "w"]
    p3_front(F); check([], F)
    out += text(F.static)
    for nq, name in ((2, "g2"), (1, "g1")):
        W = p3_gemm(nq, name, F); check([], W)
        print(name, "total est", gap_stats(W.static), file=sys.stderr)
        out += text(W.static)
    W = p3_final(); check([], W); out += text(W.static)
    out += "L_k1_done:\n  s_endpgm\n"
    out += '.section .rodata,"a"\n.p2align 6\n' + kd(KN, 512, 256)
    return out
if __name__ == "__main__":
    path = sys.argv[1]
    for kv in sys.argv[2:]:
        k, val = kv.split("=")
        cur = getattr(cfg, k)
        setattr(cfg, k, (val == "1") if isinstance(cur, bool) else type(cur)(val.replace("+", " ")))
    open(path, "w").write(build())
```

```python
import sys, math, struct
from core import *

PIECE = 1056; GRP = 4 * PIECE; UNIT = 16 * PIECE; SLOT = 2 * UNIT
X_BASE = 3 * UNIT; W_BASE = X_BASE + 2 * SLOT; LDS1 = W_BASE + 2 * UNIT
VOTE = LDS1
QSCALE = struct.unpack("<I", struct.pack("<f", math.log2(math.e) / math.sqrt(128.0)))[0]
LIMIT = 0x4b800000

class Cfg:
    stamps = False
    kvflags = "nt"
    xflags = ""
    wflags = ""
    oflags = ""
    k2_oflags = ""
    k2_wflags = ""
    fallback = True
    rot = 8
    xtouch = False
    g7 = 10
    order = 0
    nokv1 = False
    cpf = 1
    kv1 = True
    mbudget = 16
    fused = True
    pre = 2
    xsc = 'sc1'
    touch = True
    pre2 = 3
    gshift = 1
    odepth = 4
    tbudget = 24
    noo = False
    now = False
    o3flags = ''
    nomf3 = False
    forcemix = False
    kvpace = True
    sset = 'main'
    nomfma1 = False
    nord1 = False
    nodma1 = False
    w3dma = True
    kswap = True
    dbgst = False
    its = False
    tsel = '0123'
    pwarm = True
    tflags = ''
    tfrom = 13
    k2map = 1
cfg = Cfg()

sW = 3; SX, SWQ, SK, SV, SO = 8, 12, 16, 20, 24
sB, sH, sROT = 28, 29, 30
sXb, sG = 31, 32
sT0, sT1, sT2 = 33, 34, 35
sXo, sXo2, sWo = 36, 37, 38
sKo, sVo = 46, 47
sS1, sS2, sS3 = 48, 49, 50
sT = 51; sPASS = 52; sC = 53; sWS = 44; sS0 = 98
vKrd, vVrd, vKrd0, vVrd0, vXrd, vWrd = 232, 233, 234, 235, 236, 237
vOst = 238; vLane = 239; vT = 220
vKV, vX, vWq = 240, 244, 248
ACC = 0; QF = 128
S_ = (0, 32); P_ = (64, 80); NEGM = 192; LSUM = 208; MTRUE = 212; TMP = 216
KF, VF = 192, 224
def acc(a, tau): return ACC + a * 32 + tau * 4
def qf(a, s): return QF + (a * 4 + s) * 4
def wset(p, s, tau): return p * 96 + (s * 8 + tau) * 4
def xset(p, s, a): return p * 96 + 64 + (s * 4 + a) * 4
def oacc(a, t): return a * 32 + t * 4
v = lambda n: f"v{n}"
s = lambda n: f"s{n}"

STAMP_BASE = 60
def stamp(i, sset="main"):
    if not cfg.stamps or (i > 0 and sset != cfg.sset and sset != "k2"): return []
    return [raw(f"s_memrealtime s[{STAMP_BASE+4*i}:{STAMP_BASE+4*i+1}]"), raw(f"s_memtime s[{STAMP_BASE+4*i+2}:{STAMP_BASE+4*i+3}]"), waitlg(0)]
def GOFF(): return " offset:128" if cfg.dbgst else ""
def stampf(i, sset, after, tgt):
    if not cfg.stamps or sset != cfg.sset: return []
    o = [I(f"s_memrealtime s[{STAMP_BASE+4*i}:{STAMP_BASE+4*i+1}]", "salu", tgt=tgt), I(f"s_memtime s[{STAMP_BASE+4*i+2}:{STAMP_BASE+4*i+3}]", "salu", tgt=tgt)]
    for x in o: x.after = [after]
    return o
def dump_stamps(n, wsreg, off, lane, lab):
    if not cfg.stamps: return []
    o = [raw("s_waitcnt vmcnt(0) lgkmcnt(0)")]
    if cfg.dbgst:
        o += [raw("s_cmp_lg_u32 s2, 100"), raw(f"s_cbranch_scc1 {lab}"), raw(f"s_cmp_lg_u32 s{sW}, 0"), raw(f"s_cbranch_scc1 {lab}"), raw("v_mov_b32 v3, 0"), raw("s_mov_b64 exec, 1")]
        for i in range(1, n):
            o += [raw(f"s_sub_u32 s4, s{STAMP_BASE+4*i}, s{STAMP_BASE}"), raw("v_mov_b32 v4, s4"), raw(f"global_store_dword v3, v4, s[100:101] offset:{4*i}"), raw("s_nop 1")]
        o += [raw(f"s_sub_u32 s4, s{STAMP_BASE+4*n-2}, s{STAMP_BASE+2}"), raw("v_mov_b32 v4, s4"), raw(f"global_store_dword v3, v4, s[100:101] offset:0")]
        return o
    o += [raw(f"s_lshl_b32 s4, s2, 10"), raw(f"s_lshl_b32 s5, s{sW}, 8"), raw("s_add_u32 s4, s4, s5"), raw(f"s_add_u32 s4, s4, {off}"),
          raw(f"s_add_u32 s4, s{wsreg}, s4"), raw(f"s_addc_u32 s5, s{wsreg+1}, 0"),
          raw(f"v_cmp_eq_u32 vcc, 0, {lane}"), raw("s_and_saveexec_b64 s[6:7], vcc"), raw(f"s_cbranch_execz {lab}"), raw("v_mov_b32 v3, 0")]
    for i in range(n):
        o += [raw(f"v_mov_b32 v{4+j}, s{STAMP_BASE+4*i+j}") for j in range(4)]
        o += [raw(f"global_store_dwordx4 v3, v[4:7], s[4:5] offset:{16*i}"), raw("s_nop 1")]
    return o
STAMP_OFF = 0x2000000

def srd(reg, lo, hi, add, sub, nrec):
    o = [salu("s_add_u32", s(reg), s(lo), s(add)), salu("s_addc_u32", s(reg + 1), s(hi), "0")]
    if sub: o += [salu("s_sub_u32", s(reg), s(reg), str(sub)), salu("s_subb_u32", s(reg + 1), s(reg + 1), "0", scc_r=True, scc_w=True)]
    o += [salu("s_mov_b32", s(reg + 2), nrec), salu("s_mov_b32", s(reg + 3), "0x20000")]
    return o

def k1_setup():
    o = []
    A = o.append
    A(raw("s_cmp_ge_u32 s2, 256")); A(raw("s_cbranch_scc1 L_k1_done"))
    o += stamp(0)
    A(raw("s_load_dwordx4 s[4:7], s[0:1], 0"))
    A(raw("s_load_dwordx4 s[40:43], s[0:1], 16"))
    A(raw(f"s_load_dwordx2 s[{sWS}:{sWS+1}], s[0:1], 56"))
    A(raw("s_load_dwordx4 s[56:59], s[0:1], 32"))
    A(raw("s_load_dwordx2 s[100:101], s[0:1], 48"))
    if cfg.cpf:
        A(raw("s_getpc_b64 s[54:55]")); A(label("L_pc"))
        A(raw("v_cmp_gt_u32 vcc, 64, v0")); A(raw("s_and_saveexec_b64 s[34:35], vcc")); A(raw("s_cbranch_execz L_cpf"))
        A(raw("s_lshr_b32 s33, s2, 3")); A(raw("s_mul_i32 s33, s33, CODE_SHARE")); A(raw("v_lshrrev_b32 v2, 5, v0")); A(raw("v_mul_u32_u24 v2, s33, v2"))
        A(raw("v_lshl_add_u32 v1, v0, 7, v2")); A(raw("v_min_u32 v1, CODE_LAST, v1")); A(raw("global_load_dword v231, v1, s[54:55]"))
        A(label("L_cpf")); A(raw("s_mov_b64 exec, s[34:35]"))
    A(valu("v_lshrrev_b32", "v1", "6", "v0")); A(valu("v_and_b32", v(vLane), "63", "v0"))
    A(valu("v_readfirstlane_b32", s(sW), "v1"))
    A(salu("s_and_b32", s(sT0), "s2", "7")); A(salu("s_lshr_b32", s(sT1), "s2", "3"))
    A(salu("s_and_b32", s(sB), s(sT0), "1")); A(salu("s_lshl_b32", s(sB), s(sB), "2")); A(salu("s_and_b32", s(sT2), s(sT1), "3")); A(salu("s_add_u32", s(sB), s(sB), s(sT2)))
    A(salu("s_lshr_b32", s(sH), s(sT0), "1")); A(salu("s_lshl_b32", s(sH), s(sH), "3")); A(salu("s_lshr_b32", s(sT1), s(sT1), "2")); A(salu("s_add_u32", s(sH), s(sH), s(sT1)))
    A(salu("s_lshl_b32", s(sT2), s(sT2), "1")); A(salu("s_add_u32", s(sROT), s(sH), s(sT2)))
    if cfg.rot == 8: A(salu("s_and_b32", s(sROT), s(sROT), "7"))
    elif cfg.rot == 1: A(salu("s_mov_b32", s(sROT), "0"))
    else:
        A(salu("s_lshr_b32", s(sT2), s(sT2), "1")); A(salu("s_add_u32", s(sROT), s(sH), s(sT2)))
        A(salu("s_and_b32", s(sROT), s(sROT), str(cfg.rot - 1))); A(salu("s_mul_i32", s(sROT), s(sROT), str(8 // cfg.rot)))
    A(salu("s_mul_i32", s(sG), s(sW), str(GRP))); A(salu("s_lshl_b32", s(sXb), s(sG), "1")); A(salu("s_add_u32", s(sXb), s(sXb), str(X_BASE)))
    A(salu("s_mov_b32", s(sC), hex(QSCALE))); A(salu("s_mov_b32", s(sPASS), "0"))
    L = v(vLane)
    A(valu("v_and_b32", "v1", "15", L)); A(valu("v_lshrrev_b32", "v2", "4", L))
    A(valu("v_bfe_u32", "v3", L, "2", "2")); A(valu("v_and_b32", "v4", "3", L))
    A(valu("v_lshrrev_b32", "v5", "5", L)); A(valu("v_lshlrev_b32", "v5", "15", "v5"))
    A(valu("v_bfe_u32", "v6", L, "3", "2")); A(valu("v_lshl_add_u32", "v5", "v6", "12", "v5"))
    A(valu("v_and_b32", "v6", "7", L)); A(valu("v_lshl_add_u32", "v5", "v6", "4", "v5"))
    A(salu("s_lshl_b32", s(sT0), s(sW), "16")); A(salu("s_add_u32", s(sT0), s(sT0), "128"))
    A(valu("v_add_u32", v(vX), s(sT0), "v5"))
    for m in range(1, 4): A(valu("v_subrev_u32", v(vX + m), str(32 * m), v(vX)))
    A(salu("s_and_b32", s(sT0), s(sW), "1")); A(salu("s_lshl_b32", s(sT0), s(sT0), "16"))
    A(salu("s_lshr_b32", s(sT1), s(sW), "1")); A(salu("s_lshl_b32", s(sT1), s(sT1), "15")); A(salu("s_add_u32", s(sT0), s(sT0), s(sT1)))
    A(valu("v_lshlrev_b32", "v5", "17", "v2")); A(valu("v_lshl_add_u32", "v5", "v1", "4", "v5"))
    A(valu("v_add_u32", v(vWq), s(sT0), "v5"))
    for m in range(1, 4): A(valu("v_add_u32", v(vWq + m), str(m * (8192 - PIECE)), v(vWq)))
    A(salu("s_lshl_b32", s(sT0), s(sW), "12")); A(salu("s_add_u32", s(sT0), s(sT0), "128"))
    A(valu("v_lshlrev_b32", v(vOst), "4", L)); A(valu("v_add_u32", v(vKV), s(sT0), v(vOst)))
    for m in range(1, 4): A(valu("v_subrev_u32", v(vKV + m), str(32 * m), v(vKV)))
    o += k1_setup2() + (touch_setup1a() if cfg.xtouch else [])
    A(salu("s_mul_i32", s(sT0), s(sB), "245760")); A(salu("s_lshl_b32", s(sT1), s(sH), "8")); A(salu("s_sub_u32", s(sT2), "0x400000", s(sT1)))
    A(raw("s_waitcnt lgkmcnt(0)", "other"))
    o += stamp(1, "st")
    o += srd(SX, 4, 5, sT0, 128, str(245760 + 128)) + srd(SWQ, 42, 43, sT1, 0, s(sT2))
    rest = []; A = rest.append
    A(salu("s_lshl_b32", s(sT0), s(sB), "5")); A(salu("s_add_u32", s(sT0), s(sT0), s(sH))); A(salu("s_lshl_b32", s(sT0), s(sT0), "18"))
    rest += srd(SK, 6, 7, sT0, 128, str(262144 + 128)) + srd(SV, 40, 41, sT0, 128, str(262144 + 128))
    A(salu("s_lshl_b32", s(sT0), s(sB), "21")); A(salu("s_lshr_b32", s(sT1), s(sW), "1")); A(salu("s_lshl_b32", s(sT1), s(sT1), "20")); A(salu("s_add_u32", s(sT0), s(sT0), s(sT1)))
    A(salu("s_lshl_b32", s(sT1), s(sH), "15")); A(salu("s_add_u32", s(sT0), s(sT0), s(sT1)))
    A(salu("s_and_b32", s(sT1), s(sW), "1")); A(salu("s_lshl_b32", s(sT1), s(sT1), "12")); A(salu("s_add_u32", s(sT0), s(sT0), s(sT1)))
    rest += srd(SO, sWS, sWS + 1, sT0, 0, "28672")
    c0 = x_dma(0) + w_dma(0); c1 = x_dma(1) + w_dma(1); t = touch_setup1b() if cfg.xtouch else []
    if cfg.order == 0: o += c0 + stamp(2, "st") + c1 + stamp(3, "st") + t + xw_touch(2) + rest
    if cfg.order == 1: o += t + xw_touch(0) + c0 + stamp(2, "st") + xw_touch(2) + c1 + stamp(3, "st") + rest
    if cfg.order == 2: o += t + xw_touch(0) + xw_touch(2) + c0 + stamp(2, "st") + c1 + stamp(3, "st") + rest
    if cfg.order == 4: o += c0 + stamp(2, "st") + t + xw_touch(2) + c1 + stamp(3, "st") + rest
    return o

def k1_setup2():
    o = []; A = o.append
    A(salu("s_mov_b32", s(sT0), str(PIECE)))
    A(valu("v_and_b32", "v5", "7", "v1")); A(valu("v_mul_u32_u24", "v5", s(sT0), "v5"))
    A(valu("v_lshrrev_b32", "v6", "3", "v1")); A(valu("v_lshl_add_u32", "v5", "v6", "8", "v5")); A(valu("v_lshl_add_u32", v(vKrd0), "v2", "4", "v5"))
    A(valu("v_mov_b32", v(vKrd), v(vKrd0)))
    A(valu("v_and_b32", "v5", "1", "v2")); A(valu("v_lshl_add_u32", "v5", "v5", "2", "v3")); A(valu("v_mul_u32_u24", "v5", s(sT0), "v5"))
    A(valu("v_lshrrev_b32", "v6", "1", "v2")); A(valu("v_lshl_add_u32", "v5", "v6", "8", "v5")); A(valu("v_lshl_add_u32", "v5", "v4", "3", "v5"))
    A(valu("v_add_u32", v(vVrd0), str(UNIT), "v5")); A(valu("v_mov_b32", v(vVrd), v(vVrd0))); A(valu("v_add_u32", v(vWrd), str(W_BASE), "v5"))
    A(valu("v_mul_u32_u24", "v5", s(sT0), "v4")); A(valu("v_lshl_add_u32", "v5", "v3", "7", "v5")); A(valu("v_lshl_add_u32", "v5", "v2", "4", "v5"))
    A(valu("v_add_u32", v(vXrd), s(sXb), "v5"))
    for a in range(4): A(valu("v_mov_b32", v(MTRUE + a), "0xff800000"))
    A(valu("v_lshrrev_b32", "v5", "1", "v2")); A(valu("v_lshlrev_b32", "v5", "15", "v5")); A(valu("v_and_b32", "v6", "1", "v2")); A(valu("v_lshl_add_u32", "v5", "v6", "13", "v5"))
    A(valu("v_lshl_add_u32", "v5", "v1", "4", "v5"))
    A(salu("s_lshr_b32", s(sT0), s(sW), "1")); A(salu("s_lshl_b32", s(sT0), s(sT0), "14")); A(salu("s_and_b32", s(sT1), s(sW), "1")); A(salu("s_lshl_b32", s(sT1), s(sT1), "12"))
    A(salu("s_add_u32", s(sT0), s(sT0), s(sT1))); A(valu("v_add_u32", "v5", s(sT0), "v5"))
    for m in range(4): A(valu("v_add_u32", v(v3Wd + m), str(128 - 32 * m), "v5"))
    return o

def x_dma(c, t0=None, dt=1, after=None):
    p = c & 1; o = []; g = f"c{c}"; st = "dma"
    def T(k): return None if t0 is None else int(t0 + k * dt)
    def U(k): return None if t0 is None else int(t0 - 7 + k)
    o.append(salu("s_add_u32", s(sT0), s(sROT), str(c), tgt=U(0), stream="xa")); o.append(salu("s_and_b32", s(sT0), s(sT0), "7", tgt=U(1), stream="xa"))
    o.append(salu("s_lshl_b32", s(sXo), s(sT0), "7", tgt=U(2), stream="xa")); o.append(salu("s_lshl_b32", s(sWo), s(sT0), "19", tgt=U(3), stream="xa"))
    o.append(salu("s_add_u32", s(sXo2), s(sXo), "16384", tgt=U(4), stream="xa"))
    k = 0
    for half in range(2):
        o.append(salu("s_add_u32", "m0", s(sXb), str(p * SLOT + half * GRP), tgt=T(k - 1), stream=st))
        for m in range(4):
            d = dma(v(vX + m), SX, s(sXo2 if half else sXo), m * PIECE, cfg.xflags, grp=g, tgt=T(k), stream=st); k += 1
            if after: d.after = list(after)
            o.append(d)
    return o
def w_dma(c, t0=None, dt=1):
    p = c & 1; o = []; g = f"c{c}"; st = "dma"
    def T(k): return None if t0 is None else int(t0 + k * dt)
    o.append(salu("s_add_u32", "m0", s(sG), str(W_BASE + p * UNIT), tgt=T(-1), stream=st))
    for m in range(4): o.append(dma(v(vWq + m), SWQ, s(sWo), m * PIECE, cfg.wflags, grp=g, tgt=T(m), stream=st))
    return o
def kv_dma_static(which, tile, t0=None, dt=1, grp=0, ms=(0, 1, 2, 3)):
    st = "dma"
    def T(k): return None if t0 is None else t0 + k * dt
    o = [salu("s_mov_b32", s(sT1), str(tile * 16384 + grp * 4096), tgt=T(-1), stream=st),
         salu("s_add_u32", "m0", s(sG), str((tile & 3) * SLOT + (UNIT if which == "V" else 0) + grp * GRP), tgt=T(-1), stream=st)]
    for k, m in enumerate(ms): o.append(dma(v(vKV + m), SK if which == "K" else SV, s(sT1), m * PIECE, cfg.kvflags, grp=f"{which}{tile}", tgt=T(k), stream=st))
    return o
def chunk_reads(c, nq, t0=None, dt=1):
    p = c & 1; o = []; k = 0
    def T(k): return None if t0 is None else t0 + k * dt
    items = []
    for s_ in range(2):
        for a in range(nq): items.append(("x", s_, a))
    for tau in range(8):
        for s_ in range(2):
            for z in range(2): items.append(("w", s_, tau, z))
    for it in items:
        if it[0] == "x":
            _, s_, a = it
            o.append(ds_b128("a", xset(p, s_, a), v(vXrd), p * SLOT + (a & 1) * GRP + (a >> 1) * 512 + s_ * 64, tgt=T(k), stream="rd"))
        else:
            _, s_, tau, z = it
            o.append(ds_tr("a", wset(p, s_, tau) + 2 * z, v(vWrd), p * UNIT + z * 8 * PIECE + s_ * 512 + 32 * tau, tgt=T(k), stream="rd"))
        k += 1
    return o
def chunk_mfma(c, nq, amajor=False):
    p = c & 1; o = []
    order = [(a, tau) for a in range(nq) for tau in range(8)] if amajor else [(a, tau) for tau in range(8) for a in range(nq)]
    for a, tau in order:
        for s_ in range(2):
            z = (c == 0 and s_ == 0)
            o.append(mfma("v", acc(a, tau), "a", wset(p, s_, tau), "a", xset(p, s_, a), "0" if z else None))
    return o
def q_convert(a, t0, dt):
    o = []; k = 0
    for s_ in range(4):
        d = qf(a, s_)
        for half in range(2):
            b = acc(a, 2 * s_ + half)
            for r in range(4): o.append(valu("v_mul_f32", v(b + r), s(sC), v(b + r), tgt=t0 + k * dt)); k += 1
            for r in range(2): o.append(valu("v_cvt_pk_bf16_f32", v(d + 2 * half + r), v(b + 2 * r), v(b + 2 * r + 1), tgt=t0 + k * dt)); k += 1
        for r in range(2): o.append(swap("v_permlane32_swap_b32", v(d + r), v(d + 2 + r), tgt=t0 + k * dt)); k += 1
        for r in range(2): o.append(swap("v_permlane16_swap_b32", v(d + r), v(d + 2 + r), tgt=t0 + k * dt)); k += 1
    return o
def k_reads(j, t0=None, dt=4, after=None):
    o = []
    for r in range(8):
        kap, s_ = r >> 2, r & 3
        i = ds_b128("a", KF + 4 * r, v(vKrd), j * 8 * PIECE + kap * 512 + s_ * 64, tgt=None if t0 is None else t0 + r * dt, stream="rd")
        if after: i.after = list(after)
        o.append(i)
    return o
def v_reads(j, t0, dt):
    o = []
    for r in range(16):
        t, z = r >> 1, r & 1
        o.append(ds_tr("a", VF + 4 * t + 2 * z, v(vVrd), j * 8 * PIECE + z * 512 + 32 * t, tgt=t0 + r * dt, stream="rd"))
    return o
def qk(j, nq, first=False):
    o = []
    for a in range(nq):
        for kap in range(2):
            d = S_[j] + a * 8 + kap * 4
            for s_ in range(4):
                if s_ == 0: o.append(mfma("v", d, "a", KF + 4 * (kap * 4), "v", qf(a, 0), "0" if first else "v", None if first else NEGM + 4 * a))
                else: o.append(mfma("v", d, "a", KF + 4 * (kap * 4 + s_), "v", qf(a, s_)))
    return o
def pv(j, nq, first=False):
    return [mfma("a", oacc(a, t), "a", VF + 4 * t, "v", P_[j] + 4 * a, "0" if first else None) for t in range(8) for a in range(nq)]
def sm(j, nq, t0, dt=2.0):
    o = []
    for i in range(8 * nq):
        r = S_[j] + i; a = i >> 3
        o.append(valu("v_exp_f32", v(r), v(r), tgt=int(t0 + i * dt)))
        o.append(valu("v_add_f32", v(LSUM + a), v(LSUM + a), v(r), tgt=int(t0 + i * dt + 1)))
        if i & 1: o.append(valu("v_cvt_pk_bf16_f32", v(P_[j] + (i >> 1)), v(r - 1), v(r), tgt=int(t0 + i * dt + 1)))
    return o
def xreduce(op, reg, tmp, t0=None, dt=1):
    def T(k): return None if t0 is None else t0 + k * dt
    return [valu("v_mov_b32", v(tmp), v(reg), tgt=T(0)), swap("v_permlane16_swap_b32", v(reg), v(tmp), tgt=T(1)), valu(op, v(reg), v(reg), v(tmp), tgt=T(2)),
            valu("v_mov_b32", v(tmp), v(reg), tgt=T(3)), swap("v_permlane32_swap_b32", v(reg), v(tmp), tgt=T(4)), valu(op, v(reg), v(reg), v(tmp), tgt=T(5))]
def first_max(a, t0, dt):
    o = []; b = S_[0] + a * 8; m = TMP + 2 * a; k = 0
    o.append(valu("v_max3_f32", v(m), v(b), v(b + 1), v(MTRUE + a), tgt=t0))
    for r in range(1, 4): o.append(valu("v_max3_f32", v(m), v(b + 2 * r), v(b + 2 * r + 1), v(m), tgt=t0 + r * dt))
    o += xreduce("v_max_f32", m, m + 1, t0 + 4 * dt, dt)
    for r in range(4): o.append(valu("v_sub_f32", v(NEGM + 4 * a + r), "0", v(m), tgt=t0 + (10 + r) * dt))
    for r in range(8): o.append(valu("v_sub_f32", v(b + r), v(b + r), v(m), tgt=t0 + (14 + r) * dt))
    o.append(valu("v_mov_b32", v(LSUM + a), "0", tgt=t0))
    return o

class Variant:
    def __init__(s_, nq, name):
        s_.nq, s_.name = nq, name
        s_.static = []
        s_.trace = []
        s_.vm = []
        s_.pend = []
    def finish(s_, seq, sched=True, **kw):
        seq = schedule(seq, **kw) if sched else seq
        seq = s_.resolve_vm(seq)
        seq, s_.pend = insert_lgkm(seq, s_.pend)
        seq = fix_hazards(seq, s_.trace)
        s_.static += seq; s_.trace += seq
        return seq
    def resolve_vm(s_, seq):
        out = []
        for c in seq:
            if c.k == "wait" and c.meta == ("vm", None):
                n = min(vm_count(s_.vm, c.need), 63)
                w = waitvm(n, need=c.need); out.append(w)
            else:
                out.append(c)
                if c.k == "vmem": s_.vm.append(c)
        return out
def wvm(groups, **kw): return I("s_waitcnt vmcnt(?)", "wait", meta=("vm", None), need=set(groups), **kw)

sTo = 49 + 50
def iteration(T, nq, first=False, peeled=False):
    n = 8 * nq
    st = "dma"
    o = []
    vdt = 2 if nq == 4 else 1.5
    o += qk(0, nq)
    o += v_reads(0, 1, vdt)
    o += sm(1, nq, 0)
    o += k_reads(1, n + 1, (n - 4) / 8)
    o += pv(0, nq, first)
    B = 2 * n
    o += qk(1, nq)
    vr = v_reads(1, B + 1, vdt); o += vr
    o.append(valu("v_add_u32", v(vVrd), str(((T + 1) & 3) * SLOT) if peeled else s(sS1), v(vVrd0), tgt=B + n + 2))
    o += sm(0, nq, B - 2, 2.0)
    w = wvm({f"K{T+2}", f"V{T+1}"}, tgt=B + n - 3, stream=["rd2", st]); b = barrier(tgt=B + n - 2, stream=["rd2", st])
    w.after = [x for x in o if x.k == "mfma"][B + n - 4:B + n - 3]
    o += [w, b]
    if cfg.its:
        x1 = valu("v_mov_b32", "v126", "s90", tgt=B + n - 1); x1.after = [b]
        x2 = I("s_memrealtime s[90:91]", "salu", tgt=B + n - 1); x2.after = [x1]
        o += [x1, x2, valu("v_cmp_eq_u32", "vcc", "s51", v(vLane), tgt=B + n), valu("v_cndmask_b32", "v127", "v127", "v126", "vcc", tgt=B + n + 2)]
    e = 4 * n - 1
    t = B + n
    if T >= 12 and peeled:
        eA = []; eB = []
        if T == 12: eA = p3_srd_w() + p3_wdma(0) + p3_wdma(1); eB = kv_dma_static("V", 15)
        if T == 13: eA = p3_wdma(2); eB = p3_wdma(3)
        if T == 14: eA = p3_wdma(4); eB = p3_wdma(5) + p3_wdma(6)
        if nq == 3 and cfg.touch and T >= 13:
            eA = eA + [salu("s_mov_b32", s(sTo), str((T - 13) * 16384), stream=st)]
            for c_ in cfg.tsel:
                eA.append(bload("v", 231, v(vT + int(c_)), SX, s(sTo), 0, cfg.tflags, n=1, grp="touch", stream=st)); eA[-1].wr = set()
        for x in eA: x.stream = st
        place(eA, n + 2 if T > 12 else 26, 2 * n - 2); place(eB, t + 2, e - 4)
        k = o.index(w); o[k:k] = eA
        if T < 14:
            o.append(valu("v_add_u32", v(vKrd), str(((T + 2) & 3) * SLOT), v(vKrd0), tgt=B + n - 4))
            o += k_reads(0, B + n + 1, (n - 4) / 8, after=[b])
        else:
            o += [ds_tr("a", KF + 4 * (r >> 1) + 2 * (r & 1), v(vVrd), (r & 1) * 512 + 32 * (r >> 1), tgt=int(B + n + 4 + r * (n - 6) / 16), stream="rd") for r in range(16)]
            for x in o[-16:]: x.after = [b]
        return o + eB + pv(1, nq)
    o.append(valu("v_add_u32", v(vKrd), s(sS2), v(vKrd0), tgt=B + n - 4))
    o += k_reads(0, B + n + 1, (n - 4) / 8, after=[b])
    if not cfg.w3dma:
        dt = (n - 10) / 8
        o.append(salu("s_add_u32", s(sT0), s(sS3), s(sG), tgt=t - 1, stream=st)); o.append(salu("s_add_u32", "m0", s(sT0), str(UNIT), tgt=t, stream=st))
        for m in range(4): o.append(dma(v(vKV + m), SV, s(sVo), m * PIECE, cfg.kvflags, grp=f"V{T+3}", tgt=int(t + 1 + m * dt), stream=st))
        o.append(salu("s_add_u32", "m0", s(sS1), s(sG), tgt=int(t + 3 * dt + 2), stream=st))
        for m in range(4): o.append(dma(v(vKV + m), SK, s(sKo), m * PIECE, cfg.kvflags, grp=f"K{T+5}", tgt=int(t + 1 + (4 + m) * dt), stream=st))
        r = e - 9
        o.append(salu("s_add_u32", s(sVo), s(sVo), "16384", tgt=r, stream=st))
        qoff = sKo
    else:
        if cfg.kswap: q = (SV, sVo, sS3, UNIT, f"V{T+3}"); f = (SK, sKo, sS0, 0, f"K{T+4}")
        else: q = (SK, sKo, sS1, 0, f"K{T+5}"); f = (SV, sVo, sS2, UNIT, f"V{T+2}")
        if nq == 3:
            blk = []
            for gi in range(4):
                t0 = 2 + gi * 11
                blk.append(salu("s_add_u32", "m0", s(f[2]), str(f[3] + gi * GRP), tgt=t0 - 1, stream="dmaA"))
                for m in range(4): blk.append(dma(v(vKV + m), f[0], s(f[1]), m * PIECE, cfg.kvflags, grp=f[4], tgt=int(t0 + m * 2.5), stream="dmaA"))
                blk.append(salu("s_add_u32", s(f[1]), s(f[1]), "4096", tgt=t0 + 9, stream="dmaA"))
            k = o.index(w); o[k:k] = blk
            w.stream = ["rd2", st, "dmaA"]
        dt = (n - 12) / 4 if nq == 4 else 3
        if q[3]:
            o.append(salu("s_add_u32", s(sT0), s(q[2]), s(sG), tgt=t - 1, stream=st)); o.append(salu("s_add_u32", "m0", s(sT0), str(q[3]), tgt=t, stream=st))
        else: o.append(salu("s_add_u32", "m0", s(q[2]), s(sG), tgt=t, stream=st))
        for m in range(4): o.append(dma(v(vKV + m), q[0], s(q[1]), m * PIECE, cfg.kvflags, grp=q[4], tgt=int(t + 2 + m * dt), stream=st))
        r = e - 10
        qoff = q[1]
    o += pv(1, nq)
    o.append(salu("s_add_u32", s(qoff), s(qoff), "16384", tgt=r + 1, stream=st))
    if nq == 3 and cfg.w3dma and cfg.kswap: o.append(salu("s_mov_b32", s(sS0), s(sS1), tgt=r + 1, stream=st))
    o.append(salu("s_mov_b32", s(sS1), s(sS2), tgt=r + 2, stream=st)); o.append(salu("s_mov_b32", s(sS2), s(sS3), tgt=r + 3, stream=st))
    o.append(salu("s_add_u32", s(sS3), s(sS3), str(SLOT), tgt=r + 4, stream=st)); o.append(salu("s_cmp_eq_u32", None, s(sS3), str(4 * SLOT), tgt=r + 5, stream=st))
    o.append(salu("s_cselect_b32", s(sS3), "0", s(sS3), tgt=r + 6, stream=st))
    o.append(salu("s_add_u32", s(sT), s(sT), "1", tgt=r + 7, stream=st)); o.append(salu("s_cmp_lt_u32", None, s(sT), "12", tgt=r + 8, stream=st))
    return o

def place(seq, g0, g1):
    vec = [x for x in seq if x.k in COST]
    for k, x in enumerate(vec): x.tgt = g0 + k * (g1 - g0 + 1) // len(vec)
    nxt = g1
    for x in reversed(seq):
        if x.k in COST: nxt = x.tgt
        else: x.tgt = max(-1, nxt - 1); nxt = x.tgt if x.k == "salu" else nxt
    return seq
def weave(a, b, lead=0):
    grp = []; cur = []
    for x in b:
        cur.append(x)
        if x.k in COST: grp.append(cur); cur = []
    if cur: grp[-1] += cur
    out = list(a[:lead]); rest = a[lead:]; k = 0
    for n_, x in enumerate(rest):
        while k < len(grp) and k * len(rest) <= n_ * len(grp): out += grp[k]; k += 1
        out.append(x)
    for y in grp[k:]: out += y
    return out
def xw_touch(c):
    if not cfg.xtouch: return []
    x = bload("v", 231, v(vT + 2), STC, s(sTo), 0, n=1, grp="touch", stream="dma"); x.wr = set()
    return [salu("s_mul_i32", s(sTo), s(sTs), str(c), stream="dma"), x]
def wo_touch(k):
    x = I(f"global_load_dword v231, v{vT+3}, s[56:57]", "vmem", rd=[v(vT + 3)], meta="load", grp="touch", stream="dma")
    return [x, valu("v_add_u32", v(vT + 3), "0x2000", v(vT + 3), stream="dma")]
def first_tile(nq, G):
    h = 8 * nq
    o = qk(0, nq, first=True)
    o += kv_dma_static("K", 3, G + h, 3)
    for a in range(nq): o += first_max(a, G + 8 * (a + 1) + 2, 0.5)
    o += k_reads(1, G + h - 6, 1)
    q1 = qk(1, nq); o += q1
    o += sm(0, nq, G + h + 2, 0.9)
    w = wvm({"K1", "V0", "G"}, tgt=G + 2 * h - 3, stream=["dma"]); b = barrier(tgt=G + 2 * h - 2, stream=["dma"])
    w.after = [q1[h - 4]]
    o += [w, b, valu("v_add_u32", v(vKrd), str(SLOT), v(vKrd0), tgt=G + 2 * h - 2)]
    o += k_reads(0, G + 2 * h - 1, 0, after=[b])
    o += kv_dma_static("V", 2, G + 2 * h - 1, 0)
    for k, (r_, val) in enumerate(((sS0, 0), (sVo, 3 * 16384), (sKo, 4 * 16384 - 3 * 4096), (sS1, SLOT), (sS2, 2 * SLOT), (sS3, 3 * SLOT), (sT, 0))):
        o.append(salu("s_mov_b32", s(r_), str(val), tgt=G + 10 + k))
    o.append(valu("v_mov_b32", v(vVrd), v(vVrd0), tgt=G + 8))
    return o
def k1_variant(nq, name, pre):
    V = Variant(nq, name)
    V.finish([label(f"L_{name}")], sched=False)
    n = 16 * nq; nx = 2 * nq
    r0 = chunk_reads(0, nq)
    V.vm = [x for x in pre if x.k == "vmem"]
    o = (clear_flags() if nq == 3 else []) + stamp(4, "st") + [wvm({"c0"})] + stamp(5, "st") + [barrier()] + stamp(1) + stamp(1, "p1") + stamp(1, "p0") + stamp(6, "st") + r0[:nx + 8]
    V.finish(o, sched=False)
    for c in range(7):
        m = chunk_mfma(c, nq)
        w = wvm({f"c{c+1}"}, stream=["rd", "dma"]); b = barrier(stream=["rd", "dma"])
        rd = chunk_reads(c + 1, nq)
        extra = []
        if c in (0, 2): extra += xw_touch(c + 4)
        if c == 0:
            g = 14
            o = place(r0[nx + 8:], -1, g - 3) + [waitlg(0, tgt=g - 1, stream="rd"), w, b] + m
            w.tgt = g - 1; b.tgt = g
            o += place(weave(rd[:14], extra + x_dma(2) + w_dma(2)) + rd[14:], g + 1, n - 3) + [waitlg(0, tgt=n - 1, stream="rd")]
        elif c <= 4:
            w.tgt = 0; b.tgt = 1
            early = extra + (x_dma(3) + w_dma(3) if c == 1 else [])
            ne = sum(1 for x in early if x.k == "vmem")
            k0 = max(nx + 4, min(len(rd) - 8, ne))
            seq = weave(rd[:k0], early) + [waitlg(k0 - nx, stream=["rd", "dma"])] + weave(rd[k0:], x_dma(c + 3))
            o = [w, b] + m + place(seq, 2, n - 8)
            o += [waitlg(0, tgt=n - 6, stream="rd"), barrier(tgt=n - 5, stream=["rd", "dma"])] + place(w_dma(c + 3), n - 4, n - 1)
        else:
            w.tgt = 0; b.tgt = 1
            if c == 5: seq = weave(rd, kv_dma_static("K", 0) + kv_dma_static("V", 0) + kv_dma_static("K", 1, ms=(0, 1)))
            else: seq = rd[:30] + weave(rd[30:], kv_dma_static("K", 1, ms=(2, 3)))
            o = [w, b] + m + place(seq, 2, n - 6) + [waitlg(0, tgt=n - 1, stream="rd")]
        if c <= 2:
            bars = [x for x in o if x.k == "bar"]
            base = {0: 2, 1: 4, 2: 7}[c]
            for k_, x in enumerate(bars[:2 if c == 1 else 1]): o += stampf(base + k_, "p0", x, x.tgt)
            if c < 2: o += stampf(base + len(bars), "p0", m[-1], n - 1)
        V.finish(o, strict=True, lds_lat=3)
        if c == 1 and nq == 3: V.finish([wvm({"clr"})] + register(), sched=False)
        V.finish(stamp(c + 2, "p1") if c < 6 else [], sched=False)
    c7 = chunk_mfma(7, nq, amajor=True)
    g0 = wvm({"K0"}, tgt=cfg.g7, stream=["dma", "rd"]); g1 = barrier(tgt=cfg.g7 + 1, stream=["dma", "rd"])
    o = [g0, g1] + c7 + kv_dma_static("K", 2, cfg.g7 + 3, 3) + k_reads(0, cfg.g7 + 4, 1) + group_load(cfg.g7 + 14) + kv_dma_static("V", 1, n - 12, 3)
    for a in range(nq): o += q_convert(a, 16 * (a + 1) + 3, 0.3)
    o += stampf(2, "main", c7[-1], n - 1)
    V.finish(o + first_tile(nq, n), budget=cfg.mbudget)
    V.finish([label(f"L_{name}_join")] + stamp(3), sched=False)
    ge = group_eval() + (touch_setup2() if nq == 3 and cfg.touch else [])
    for k, x in enumerate(ge): x.tgt = 3 + 2 * k; x.stream = "ge"
    V.finish(ge + iteration(0, nq, first=True))
    V.static.append(label(f"L_{name}_loop"))
    seqs = [V.resolve_vm(schedule(iteration(T, nq))) for T in range(1, 12)]
    for k, c in enumerate(seqs[0]):
        if c.k == "wait" and c.meta[0] == "vm":
            n_ = min(q[k].meta[1] for q in seqs)
            for q in seqs: q[k] = waitvm(n_, need=q[k].need)
    _, p1 = insert_lgkm(seqs[0], V.pend)
    body, p2 = insert_lgkm(seqs[0], p1)
    body = fix_hazards(body + [raw(f"s_cbranch_scc1 L_{name}_loop", "branch", rd=["scc"])], body)
    V.static += body; V.pend = p2; V.loop_stats = gap_stats(body)
    for cur in seqs:
        new = []; k = 0
        for c in body:
            if k < len(cur) and cur[k].t == c.t: new.append(cur[k]); k += 1
            else: new.append(c)
        assert k == len(cur), ("loop body differs", cur[k].t)
        V.trace += new
    for T in (12, 13, 14): V.finish(iteration(T, nq, peeled=True))
    V.finish(stamp(4), sched=False)
    if cfg.its:
        V.finish([raw("s_lshl_b32 s4, s2, 10"), raw(f"s_lshl_b32 s5, s{sW}, 8"), raw("s_add_u32 s4, s4, s5"), raw(f"s_add_u32 s4, s4, {STAMP_OFF + 0x100000}"),
                  raw(f"s_add_u32 s4, s{sWS}, s4"), raw(f"s_addc_u32 s5, s{sWS+1}, 0"), raw(f"v_lshlrev_b32 v126, 2, v{vLane}"), raw("global_store_dword v126, v127, s[4:5]"), raw("s_nop 1")], sched=False)
    h2 = 16
    o = v_reads(1, -1, 0.5)
    inv = TMP
    A = o.append
    if cfg.fallback:
        A(salu("s_lshl_b32", s(sT2), s(sW), "2", tgt=12)); A(salu("s_add_u32", s(sT2), s(sT2), str(VOTE), tgt=13))
        A(valu("v_mov_b32", v(TMP + 13), s(sT2), tgt=14)); A(valu("v_mov_b32", v(TMP + 14), str(VOTE), tgt=14))
        A(salu("s_mov_b32", s(sT0), hex(LIMIT), tgt=14)); A(raw("s_mov_b64 s[54:55], 0", "salu", wr=["s54", "s55"], tgt=15))
    smx = sm(1, nq, 0, 1.0)
    def smt(a, t0, t1):
        x = smx[20 * a:20 * a + 20]
        for k, y in enumerate(x): y.tgt = int(t0 + (t1 - t0) * k / 20)
        return x
    k = 0
    for a in range(nq):
        t = h2 * a
        o += smt(a, max(-1, t - 14), t + 2 if a else 6)
        p0 = [mfma("a", oacc(a, tt), "a", KF + 4 * tt, "v", P_[0] + 4 * a) for tt in range(8)]
        p1 = [mfma("a", oacc(a, tt), "a", VF + 4 * tt, "v", P_[1] + 4 * a) for tt in range(8)]
        o += (p0 + p1) if a == 0 else [y for pr in zip(p0, p1) for y in pr]
        o += xreduce("v_add_f32", LSUM + a, TMP + 8 + a, t + 8, 1)
        A(valu("v_rcp_f32", v(inv + a), v(LSUM + a), tgt=t + 14))
        if cfg.fallback:
            A(valu("v_cmp_nge_f32", "vcc", s(sT0), v(LSUM + a), tgt=t + 14))
            A(raw("s_or_b64 s[54:55], s[54:55], vcc", "salu", rd=["vcc", "s54", "s55"], wr=["s54", "s55", "scc"], tgt=t + 15))
        if a == nq - 1:
            tv = t + 15
            if cfg.fallback:
                A(salu("s_cselect_b32", s(sT0), "1", "0", tgt=tv)); A(valu("v_mov_b32", v(TMP + 12), s(sT0), tgt=tv))
                A(I(f"ds_write_b32 v{TMP+13}, v{TMP+12}", "ldsw", rd=[v(TMP + 12), v(TMP + 13)], tgt=tv, stream="rd"))
    epi = []
    for a in range(nq):
        for sg in range(4):
            tb = 16 * (k % 4) if a else 96 + 16 * (k % 2)
            if a == 1: tb = 16 * (k % 2)
            t0 = h2 * (a + 1) + 3 + 3 * sg
            blk = [salu("s_mov_b32", s(sT1), str(8192 * sg), stream="st")]
            blk += [valu("v_accvgpr_read_b32", v(tb + r), f"a{oacc(a, 2*sg) + r}") for r in range(8)]
            blk += [valu("v_mul_f32", v(tb + r), v(inv + a), v(tb + r)) for r in range(8)]
            blk += [valu("v_cvt_pk_bf16_f32", v(tb + 8 + r), v(tb + 2 * r), v(tb + 2 * r + 1)) for r in range(4)]
            blk += [bstore("v", tb + 8, v(vOst), SO, s(sT1), 1024 * a, cfg.oflags, stream="st", grp="O")]
            for y in blk: y.tgt = t0
            k += 1
            if a < nq - 1: o += blk
            else: epi += blk
    V.finish(o, budget=cfg.tbudget)
    o = epi[:22] + [waitlg(0), barrier()]
    if cfg.fallback: o.append(ds_b128("v", TMP + 4, v(TMP + 14), 0))
    o += epi[22:]
    V.finish(o, sched=False)
    V.finish(stamp(5), sched=False)
    V.npre = len(V.vm)
    if cfg.fallback:
        o = []; A = o.append
        A(valu("v_or3_b32", v(TMP + 12), v(TMP + 4), v(TMP + 5), v(TMP + 6))); A(valu("v_or_b32", v(TMP + 12), v(TMP + 12), v(TMP + 7)))
        A(valu("v_readfirstlane_b32", s(sT0), v(TMP + 12)))
        A(salu("s_andn2_b32", s(sT0), s(sT0), s(sPASS))); A(raw(f"s_cbranch_scc0 L_{name}_end", "branch", rd=["scc"]))
        A(waitvm(0)); A(barrier())
        A(valu("v_mov_b32", v(vKrd), v(vKrd0))); A(salu("s_mov_b32", s(sKo), "0")); A(salu("s_mov_b32", "m0", s(sG)))
        A(label(f"L_{name}_mx"))
        for m in range(4): A(dma(v(vKV + m), SK, s(sKo), m * PIECE, cfg.kvflags))
        A(waitvm(0)); A(barrier())
        for j in range(2):
            o += k_reads(j) + [waitlg(0)] + qk(0, nq, first=True) + [nop(7)]
            for a in range(nq):
                for r in range(4): A(valu("v_max3_f32", v(MTRUE + a), v(S_[0] + 8 * a + 2 * r), v(S_[0] + 8 * a + 2 * r + 1), v(MTRUE + a)))
        A(barrier())
        A(salu("s_add_u32", s(sKo), s(sKo), "16384")); A(salu("s_cmp_lt_u32", None, s(sKo), "262144")); A(raw(f"s_cbranch_scc1 L_{name}_mx", "branch", rd=["scc"]))
        A(salu("s_mov_b32", s(sPASS), "1"))
        for wh, tl in (("K", 0), ("V", 0), ("K", 1), ("K", 2), ("V", 1)): o += kv_dma_static(wh, tl)
        o += group_load() + [waitvm(0), barrier()] + k_reads(0) + [waitlg(0)]
        V.finish(o, sched=False)
        V.finish(first_tile(nq, 0))
        V.finish([waitlg(0), raw(f"s_branch L_{name}_join", "branch")], sched=False)
    if cfg.fused:
        V.finish([label(f"L_{name}_end"), raw("s_branch L_p3", "branch")], sched=False)
    else:
        V.finish([label(f"L_{name}_end")] + stamp(6) + dump_stamps(10, sWS, STAMP_OFF, v(vLane), "L_k1_done") + [raw("s_endpgm")], sched=False)
    return V

XOFF = 0x1000000; FOFF = 0x3000000
S3O, S3W, S3X, S3Out = 8, 12, 16, 40
s3HG, s3RP, s3CQ, s3T, s3U, s3ROT, sUNI, sF1, sF2 = 36, 37, 38, 92, 93, 94, 39, 31, 30
v3Wd = 252; vG = 224
v3Or, v3Rr, v3St, v3L16, v3Wr = 104, 106, 107, 108, 109
NW_ = 9; WU = (8, 0, 2, 1, 4, 3, 6, 5, 7)
def oset(u, sg, a): return 128 + (u % 8) * 16 + (sg * 2 + a) * 4
def wset3(p, sg, tau): return p * 64 + (sg * 8 + tau) * 4
def one_lane(ins): return [raw("s_mov_b64 exec, 1", "salu"), ins, raw("s_mov_b64 exec, -1", "salu")]
def flag_addrs(t0=None):
    o = []; A = o.append
    A(salu("s_lshr_b32", s(s3HG), s(sH), "3")); A(salu("s_bfe_u32", s(s3RP), s(sH), "0x10002", scc_w=True)); A(salu("s_and_b32", s(s3CQ), s(sH), "3"))
    A(salu("s_lshl_b32", s(sF1), s(sB), "2")); A(salu("s_add_u32", s(sF1), s(sF1), s(s3HG))); A(salu("s_lshl_b32", s(sF1), s(sF1), "7")); A(salu("s_add_u32", s(sF1), s(sF1), hex(FOFF)))
    A(salu("s_lshl_b32", s(sF2), s(sB), "3")); A(salu("s_and_b32", s(s3T), s(sH), "7")); A(salu("s_add_u32", s(sF2), s(sF2), s(s3T))); A(salu("s_lshl_b32", s(sF2), s(sF2), "7")); A(salu("s_add_u32", s(sF2), s(sF2), hex(FOFF + 4096)))
    if t0 is not None:
        for k, x in enumerate(o): x.tgt = t0 + k; x.stream = "p3s"
    return o
def clear_flags():
    o = []; A = o.append
    A(salu("s_lshr_b32", s(54), s(sH), "3")); A(salu("s_and_b32", s(55), s(sH), "7"))
    A(salu("s_lshl_b32", s(sT0), s(sB), "2")); A(salu("s_add_u32", s(sT0), s(sT0), s(54))); A(salu("s_lshl_b32", s(sT0), s(sT0), "5")); A(salu("s_add_u32", s(sT0), s(sT0), s(55)))
    A(salu("s_lshl_b32", s(sT0), s(sT0), "2")); A(salu("s_add_u32", s(sT0), s(sT0), hex(FOFF)))
    A(salu("s_lshl_b32", s(sT1), s(sB), "3")); A(salu("s_add_u32", s(sT1), s(sT1), s(55))); A(salu("s_lshl_b32", s(sT1), s(sT1), "5")); A(salu("s_add_u32", s(sT1), s(sT1), s(54)))
    A(salu("s_lshl_b32", s(sT1), s(sT1), "2")); A(salu("s_add_u32", s(sT1), s(sT1), hex(FOFF + 4096)))
    A(valu("v_mov_b32", "v8", s(sT0))); A(valu("v_mov_b32", "v9", s(sT1))); A(valu("v_mov_b32", "v10", "0"))
    A(raw("s_mov_b64 exec, 1", "salu"))
    A(I(f"global_store_dword v8, v10, s[{sWS}:{sWS+1}] sc1", "vmem", rd=["v8", "v10"], meta="store", grp="clr"))
    A(I(f"global_store_dword v9, v10, s[{sWS}:{sWS+1}] sc1", "vmem", rd=["v9", "v10"], meta="store", grp="clr"))
    A(raw("s_mov_b64 exec, -1", "salu"))
    return o
def page_warm():
    o = []; A = o.append; L = v(vLane)
    A(valu("v_and_b32", "v8", "31", L)); A(valu("v_lshlrev_b32", "v8", "20", "v8"))
    A(valu("v_and_b32", "v9", "3", L)); A(valu("v_lshlrev_b32", "v10", "20", "v9")); A(valu("v_mul_u32_u24", "v9", "0x78000", "v9"))
    for a, b in (("v8", f"s[{sWS}:{sWS+1}]"), ("v10", "s[56:57]"), ("v9", "s[58:59]")):
        A(I(f"global_load_dword v231, {a}, {b}", "vmem", rd=[a], meta="load", grp="pw"))
    return o
def xcc_word(dst, tmp):
    o = [raw(f"s_getreg_b32 s{tmp}, hwreg(HW_REG_XCC_ID, 0, 4)", "salu", wr=[s(tmp)])]
    if cfg.forcemix: o.append(salu("s_and_b32", s(tmp), s(sH), "1"))
    o += [salu("s_mul_i32", s(dst), s(tmp), s(tmp)), salu("s_lshl_b32", s(dst), s(dst), "8"), salu("s_add_u32", s(dst), s(dst), s(tmp)),
          salu("s_lshl_b32", s(dst), s(dst), "8"), salu("s_add_u32", s(dst), s(dst), "1")]
    return o
def register():
    o = xcc_word(sT0, sT1); A = o.append
    A(salu("s_lshr_b32", s(sT1), s(sH), "3")); A(salu("s_lshl_b32", s(sT2), s(sB), "2")); A(salu("s_add_u32", s(sT1), s(sT1), s(sT2))); A(salu("s_lshl_b32", s(sT1), s(sT1), "2"))
    A(valu("v_mov_b32", "v228", s(sT1))); A(valu("v_mov_b32", "v229", s(sT0)))
    o += one_lane(I(f"global_atomic_add v228, v229, s[100:101]{GOFF()} sc1", "vmem", rd=["v228", "v229"], meta="store"))
    return o
sRDY = 97
def group_load(t0=None):
    o = [salu("s_lshl_b32", s(sT2), s(sB), "4"), valu("v_mov_b32", v(vG + 4), s(sT2)),
         I(f"global_load_dwordx4 v[{vG}:{vG+3}], v{vG+4}, s[100:101]{GOFF()} sc1", "vmem", rd=[v(vG + 4)], wr=R("v", vG, 4), meta="load", grp="G", stream="dma"),
         salu("s_lshr_b32", s(sRDY), s(sH), "3"), salu("s_lshl_b32", s(sRDY), s(sRDY), "2"), salu("s_add_u32", s(sT2), s(sT2), s(sRDY)), valu("v_mov_b32", v(vG + 4), s(sT2)),
         I(f"global_load_dword v{vG+5}, v{vG+4}, s[100:101]{GOFF()} sc1", "vmem", rd=[v(vG + 4)], wr=[v(vG + 5)], meta="load", grp="G", stream="dma")]
    if t0 is not None:
        for k, x in enumerate(o): x.tgt = t0 + k
    return o
def group_eval():
    o = []; A = o.append
    A(valu("v_and_b32", v(vG), v(vG), v(vG + 1))); A(valu("v_and_b32", v(vG + 2), v(vG + 2), v(vG + 3))); A(valu("v_and_b32", v(vG), v(vG), v(vG + 2)))
    A(valu("v_readfirstlane_b32", s(sRDY), v(vG))); A(valu("v_readfirstlane_b32", s(sUNI), v(vG + 5)))
    A(salu("s_and_b32", s(sRDY), s(sRDY), "8"))
    o += xcc_word(54, 55)
    A(salu("s_lshl_b32", s(54), s(54), "3")); A(salu("s_cmp_eq_u32", None, s(sUNI), s(54))); A(salu("s_cselect_b32", s(sUNI), "1", "0"))
    return o
def p3_srd_w():
    o = flag_addrs(); A = o.append
    A(salu("s_lshl_b32", s(s3ROT), s(s3T), "1"))
    A(salu("s_lshl_b32", s(s3T), s(s3HG), "20")); A(salu("s_lshl_b32", s(s3U), s(s3CQ), "8")); A(salu("s_add_u32", s(s3T), s(s3T), s(s3U)))
    A(salu("s_sub_u32", s(s3U), str(1048576 + 128), s(s3U)))
    o += srd(S3W, 56, 57, s3T, 128, s(s3U))
    return o
STC = 92; sTs = 96
def touch_setup1a():
    o = []; A = o.append; L = v(vLane)
    A(salu("s_and_b32", s(sT0), s(sW), "1")); A(salu("s_mul_i32", s(sTs), s(sT0), str(524288 - 128))); A(salu("s_add_u32", s(sTs), s(sTs), "128"))
    A(salu("s_cmp_eq_u32", None, s(sT0), "1")); A(raw("s_cselect_b64 vcc, -1, 0", "salu", rd=["scc"], wr=["vcc"]))
    A(valu("v_and_b32", "v8", "31", L)); A(valu("v_min_u32", "v9", "29", "v8"))
    A(salu("s_and_b32", s(sT0), s(sH), "7")); A(salu("s_mul_i32", s(sT0), s(sT0), "30")); A(valu("v_add_u32", "v9", s(sT0), "v9")); A(valu("v_lshlrev_b32", "v9", "10", "v9")); A(valu("v_add_u32", "v9", "128", "v9"))
    A(salu("s_and_b32", s(sT0), s(sB), "3")); A(salu("s_lshl_b32", s(sT0), s(sT0), "5")); A(valu("v_add_u32", "v8", s(sT0), "v8"))
    A(valu("v_lshrrev_b32", "v10", "1", "v8")); A(valu("v_lshlrev_b32", "v10", "13", "v10")); A(valu("v_and_b32", "v8", "1", "v8")); A(valu("v_lshl_add_u32", "v8", "v8", "7", "v10"))
    A(valu("v_cndmask_b32", "v8", "v9", "v8", "vcc"))
    A(valu("v_lshrrev_b32", "v9", "5", L)); A(valu("v_mul_lo_u32", "v9", s(sTs), "v9")); A(valu("v_add_u32", v(vT + 2), "v8", "v9"))
    A(salu("s_lshr_b32", s(sT0), "s2", "3")); A(salu("s_lshl_b32", s(sT0), s(sT0), "15")); A(salu("s_lshr_b32", s(sT1), s(sH), "3")); A(salu("s_lshl_b32", s(sT1), s(sT1), "20"))
    A(salu("s_add_u32", s(sT0), s(sT0), s(sT1))); A(valu("v_lshlrev_b32", v(vT + 3), "7", L)); A(valu("v_add_u32", v(vT + 3), s(sT0), v(vT + 3)))
    return o
def touch_setup1b():
    o = []; A = o.append
    A(salu("s_bitcmp1_b32", None, s(sW), "0", scc_w=True))
    for k in range(3): A(salu("s_cselect_b32", s(STC + k), s(SWQ + k), s(SX + k)))
    A(salu("s_mov_b32", s(STC + 3), "0x20000"))
    A(salu("s_cmp_ge_u32", None, s(sW), "2")); A(salu("s_cselect_b32", s(STC + 2), "0", s(STC + 2)))
    return o
def touch_setup2():
    o = []; A = o.append
    A(salu("s_lshl_b32", s(54), s(sB), "21")); A(salu("s_lshl_b32", s(55), s(sH), "15")); A(salu("s_add_u32", s(54), s(54), s(55)))
    o += srd(SX, sWS, sWS + 1, 54, 0, str(1048576 + 32768))
    A(valu("v_lshlrev_b32", v(vT), "7", v(vLane))); A(valu("v_add_u32", v(vT + 1), "0x100000", v(vT)))
    A(valu("v_add_u32", v(vT + 2), "0x2000", v(vT))); A(valu("v_add_u32", v(vT + 3), "0x102000", v(vT)))
    return o
def p3_wdma(u):
    st = "dma"
    o = [salu("s_add_u32", s(s3U), s(s3ROT), str(u), stream=st), salu("s_and_b32", s(s3U), s(s3U), "15", stream=st), salu("s_lshl_b32", s(s3U), s(s3U), "16", stream=st),
         salu("s_add_u32", "m0", s(sG), str(WU[u % NW_] * UNIT), stream=st)]
    for m in range(4): o.append(dma(v(v3Wd + m), S3W, "0" if cfg.now else s(s3U), m * PIECE, cfg.k2_wflags, grp=f"w{u}", stream=st))
    return o
sXo3 = 48
OWN = 0
def p3_oload(u, nq):
    st = "dma"
    o = [salu("s_add_u32", s(s3T), s(s3ROT), str(u), stream=st), salu("s_and_b32", s(s3T), s(s3T), "15", stream=st), salu("s_lshl_b32", s(s3T), s(s3T), "14", stream=st)]
    for sg in range(2):
        for a in range(nq): o.append(bload("a", oset(u, sg, a), v(v3Or + sg), S3O, "0" if cfg.noo else s(s3T), a * 1024, cfg.o3flags, grp=f"o{u}", stream=st))
    return o
def p3_reads(u):
    p = u & 1; o = []; sl = WU[u % NW_]
    for tau in range(8):
        for sg in range(2):
            for z in range(2):
                o.append(ds_tr("a", wset3(p, sg, tau) + 2 * z, v(v3Wr + sl // 3), (sl % 3) * UNIT + z * 8 * PIECE + sg * 512 + 32 * tau, stream="rd"))
    return o
def p3_setup2(L):
    o = []; A = o.append
    A(salu("s_lshl_b32", s(sT0), s(sB), "1")); A(salu("s_add_u32", s(sT0), s(sT0), s(s3RP)))
    A(salu("s_lshl_b32", s(sT1), s(sT0), "20")); A(salu("s_lshl_b32", s(sT2), s(s3HG), "18")); A(salu("s_add_u32", s(sT1), s(sT1), s(sT2))); o += srd(S3O, sWS, sWS + 1, sT1, 0, "262144")
    A(salu("s_lshl_b32", s(sT1), s(sT0), "2")); A(salu("s_add_u32", s(sT1), s(sT1), s(s3CQ))); A(salu("s_lshl_b32", s(sT1), s(sT1), "18")); A(salu("s_add_u32", s(sT1), s(sT1), hex(XOFF)))
    o += srd(S3X, sWS, sWS + 1, sT1, 0, "262144")
    A(salu("s_lshl_b32", s(sT1), s(s3RP), "2")); A(salu("s_add_u32", s(sT1), s(sT1), s(s3HG))); A(salu("s_lshl_b32", s(sT1), s(sT1), "15"))
    A(salu("s_lshl_b32", s(sT2), s(s3CQ), "8")); A(salu("s_add_u32", s(sT1), s(sT1), s(sT2)))
    A(salu("s_mul_i32", s(sT0), s(sB), "245760")); A(salu("s_add_u32", s(sT0), s(sT0), s(sT1))); A(salu("s_sub_u32", s(sT1), "245760", s(sT1)))
    o += srd(S3Out, 58, 59, sT0, 0, s(sT1))
    A(salu("s_lshl_b32", s(sXo3), s(sW), "12"))
    A(valu("v_lshlrev_b32", v(v3L16), "4", L))
    A(salu("s_lshl_b32", s(sT0), s(sW), "11")); A(valu("v_add_u32", v(v3Or), s(sT0), v(v3L16))); A(valu("v_add_u32", v(v3Or + 1), "0x2000", v(v3Or)))
    A(valu("v_subrev_u32", v(v3Wr), str(UNIT), v(vVrd0))); A(valu("v_add_u32", v(v3Wr + 1), str(3 * UNIT), v(v3Wr))); A(valu("v_add_u32", v(v3Wr + 2), str(6 * UNIT), v(v3Wr)))
    A(valu("v_and_b32", "v97", "15", L)); A(valu("v_lshrrev_b32", "v98", "4", L))
    A(valu("v_lshlrev_b32", "v101", "9", "v98")); A(valu("v_lshl_add_u32", "v101", "v97", "4", "v101")); A(valu("v_add_u32", v(v3Rr), s(sXo3), "v101"))
    A(salu("s_lshr_b32", s(sT0), s(sW), "1")); A(salu("s_lshl_b32", s(sT0), s(sT0), "14")); A(salu("s_and_b32", s(sT1), s(sW), "1")); A(salu("s_lshl_b32", s(sT1), s(sT1), "7")); A(salu("s_add_u32", s(sT0), s(sT0), s(sT1)))
    A(valu("v_lshlrev_b32", "v101", "10", "v97")); A(valu("v_lshl_add_u32", "v101", "v98", "4", "v101")); A(valu("v_add_u32", v(v3St), s(sT0), "v101"))
    return o
def poll(lab, base, n):
    o = []; A = o.append
    A(valu("v_lshlrev_b32", "v96", "2", v(vLane))); A(valu("v_add_u32", "v96", s(base), "v96")); A(salu("s_mov_b32", s(sT1), "0"))
    A(raw(f"s_mov_b64 exec, {(1 << n) - 1}", "salu"))
    A(label(lab))
    A(raw(f"global_load_dword v97, v96, s[{sWS}:{sWS+1}] sc1")); A(raw("s_waitcnt vmcnt(0)")); A(raw("v_cmp_ne_u32 vcc, 1, v97"))
    A(raw(f"s_add_u32 s{sT1}, s{sT1}, 1")); A(raw(f"s_cbranch_vccz {lab}_ok"))
    A(raw("s_sleep 1")); A(raw(f"s_cmp_lt_u32 s{sT1}, 0x200000")); A(raw(f"s_cbranch_scc1 {lab}"))
    A(label(f"{lab}_ok")); A(raw("s_mov_b64 exec, -1", "salu"))
    return o
def p3_front(V):
    L = v(vLane); o = []; A = o.append
    A(label("L_p3")); o += p3_setup2(L)
    A(label("L_p3_r")); A(salu("s_cmp_lg_u32", None, s(sRDY), "0")); A(raw("s_cbranch_scc1 L_p3_rok", "branch", rd=["scc"]))
    for x in group_load(): x.grp = None; x.k = "other" if x.k == "vmem" else x.k; A(x)
    A(raw("s_waitcnt vmcnt(0)")); o += group_eval(); A(raw("s_sleep 8")); A(raw("s_branch L_p3_r", "branch"))
    A(label("L_p3_rok"))
    A(salu("s_and_b32", s(sT0), s(sH), "7")); A(salu("s_lshl_b32", s(sT0), s(sT0), "2")); A(salu("s_add_u32", s(sT0), s(sT0), s(sF1)))
    A(valu("v_mov_b32", "v96", s(sT0))); A(valu("v_mov_b32", "v97", "1"))
    A(valu("v_and_b32", v(vPl), "7", L)); A(valu("v_lshlrev_b32", v(vPl), "2", v(vPl))); A(valu("v_add_u32", v(vPl), s(sF1), v(vPl)))
    A(waitvm(0)); A(barrier()); o += stamp(6)
    A(salu("s_cmp_lg_u32", None, s(sW), "0")); A(raw("s_cbranch_scc1 L_p3_a", "branch", rd=["scc"]))
    A(salu("s_cmp_eq_u32", None, s(sUNI), "1")); A(raw("s_cbranch_scc1 L_p3_u", "branch", rd=["scc"]))
    A(raw("buffer_wbl2 sc1")); A(raw("s_waitcnt vmcnt(0)"))
    o += one_lane(raw(f"global_store_dword v96, v97, s[{sWS}:{sWS+1}] sc1"))
    A(raw("s_branch L_p3_a", "branch"))
    A(label("L_p3_u"))
    o += one_lane(raw(f"global_store_dword v96, v97, s[{sWS}:{sWS+1}]"))
    A(label("L_p3_a"))
    A(salu("s_lshl_b32", s(sT0), s(s3RP), "2")); A(salu("s_add_u32", s(sT0), s(sT0), s(sW)))
    A(salu("s_cmp_eq_u32", None, s(sT0), "7")); A(raw("s_cbranch_scc1 L_g1", "branch", rd=["scc"]))
    V.finish(o, sched=False)
vPl = 112
def p3_gemm(nq, name, V0):
    V = Variant(nq, name); V.vm = list(V0.vm); V.trace = list(V0.trace); V.pend = list(V0.pend)
    pollld = lambda: I(f"global_load_dword v{vPl+1}, v{vPl}, s[{sWS}:{sWS+1}] sc1", "vmem", rd=[v(vPl)], wr=[v(vPl + 1)], meta="load", grp="poll", stream="dma")
    r0 = p3_reads(0)
    V.finish([label(f"L_{name}")] + p3_oload(0, nq) + p3_oload(1, nq) + r0[:16] + p3_wdma(7) + p3_wdma(8) + stamp(7) + stamp(1, "g"), sched=False)
    n = 16 * nq
    no = 2; nw = NW_
    o = r0[16:]
    for k, x in enumerate(o): x.tgt = -1 + k // 2
    prev = None; G = 0
    for c in range(16):
        p = c & 1
        m = [mfma("v", a * 32 + 4 * tau, "a", wset3(p, sg, tau), "a", oset(c, sg, a), "0" if (c == 0 and sg == 0) else None) for tau in range(8) for a in range(nq) for sg in range(2)]
        w = wvm({f"o{c}", f"w{c+1}"}, tgt=G - 1, stream=["bar", "dma"])
        if prev: w.after = [prev[-2]]
        m[0].after = [w]
        o += [w]
        b = None
        if 0 < c < 15:
            b = barrier(tgt=G, stream=["bar", "dma"])
            if prev: b.after = [prev[-1]]
            o += [b]
        o += m
        if c < 15:
            d = []
            if c == 0: d += [pollld()]
            else:
                for rep in range(3 if c == 1 else 2):
                    if no < 16 and no <= c + cfg.odepth: d += p3_oload(no, nq); no += 1
                if nw < 16 and nw <= c + NW_ - 1: d += p3_wdma(nw); nw += 1
            rd = p3_reads(c + 1)
            if b: rd[0].after = [b]
            vm = [x for x in d if x.k == "vmem"]
            vg = [int((k + 0.5) * n / len(vm)) for k in range(len(vm))] if vm else []
            if c == 0: vg = [n // 2]
            if c == 1: vg = [1 + k * (n - 2) // len(vm) for k in range(len(vm))]
            for k, x in enumerate(vm): x.tgt = G + vg[k]
            lo = 8 * nq // 2 if c == 0 else 1
            free = [g for g in range(lo, n) if g not in vg] if len(vg) < n - 4 else list(range(lo, n))
            for k, x in enumerate(rd): x.tgt = G + free[k * len(free) // 32]
            nxt = G + n
            for x in reversed(d):
                if x.k == "vmem": nxt = x.tgt
                else: nxt = x.tgt = max(G, nxt - 1)
            o += rd + d
        if c in (0, 1, 3, 7, 11): o += stampf(2 + (0, 1, 3, 7, 11).index(c), "g", m[-1], G + n - 1)
        prev = m; G += n
        if c == 0:
            V.finish(o, strict=True)
            q = [wvm({"poll"}), label(f"L_{name}_pl"), valu("v_cmp_ne_u32", "vcc", "1", v(vPl + 1)), salu("s_mov_b32", s(sT1), "0"), raw(f"s_cbranch_vccz L_{name}_pok", "branch"),
                 label(f"L_{name}_pl2"), raw("s_sleep 1"), raw(pollld().t), raw("s_waitcnt vmcnt(0)"), raw(f"v_cmp_ne_u32 vcc, 1, v{vPl+1}"), raw(f"s_add_u32 s{sT1}, s{sT1}, 1"),
                 raw(f"s_cbranch_vccz L_{name}_pok"), raw(f"s_cmp_lt_u32 s{sT1}, 0x200000"), raw(f"s_cbranch_scc1 L_{name}_pl2"),
                 label(f"L_{name}_pok"), salu("s_cmp_eq_u32", None, s(sUNI), "1"), raw(f"s_cbranch_scc1 L_{name}_pgo", "branch"),
                 raw("buffer_inv sc1"), raw("s_waitcnt vmcnt(0)"), label(f"L_{name}_pgo")]
            V.finish(q, sched=False)
            o = []; prev = None; G = 0
    V.finish(o, strict=True)
    V.finish(stamp(8) + stamp(7, "g") + [salu("s_cmp_eq_u32", None, s(sW), s(s3HG)), raw(f"s_cbranch_scc1 L_{name}_own", "branch", rd=["scc"])], sched=False)
    o = [salu("s_lshl_b32", s(sT0), s(sW), "2"), salu("s_add_u32", s(sT0), s(sT0), s(s3HG)), salu("s_lshl_b32", s(sT0), s(sT0), "14")]
    for q in range(2 * nq):
        for tau in range(4): o.append(bstore("v", q * 16 + 4 * tau, v(v3L16), S3X, s(sT0), 1024 * tau, cfg.xsc))
        o.append(salu("s_add_u32", s(sT0), s(sT0), "4096"))
    o += [raw("s_branch L_fin", "branch"), label(f"L_{name}_own")]
    for q in range(8 * nq): o.append(ds_w128(v(v3L16), "v", 4 * q, OWN + q * 1024))
    o += [raw("s_branch L_fin", "branch")]
    V.finish(o, sched=False)
    return V
def p3_final():
    V = Variant(4, "fin"); o = []; A = o.append
    A(label("L_fin"))
    A(salu("s_lshl_b32", s(sT0), s(s3HG), "2")); A(salu("s_add_u32", s(sT0), s(sT0), s(sF2))); A(valu("v_mov_b32", "v96", s(sT0))); A(valu("v_mov_b32", "v97", "1"))
    A(raw("s_waitcnt vmcnt(0) lgkmcnt(0)")); A(barrier()); o += stamp(8, "g") + stamp(2, "x")
    A(salu("s_cmp_lg_u32", None, s(sW), "0")); A(raw("s_cbranch_scc1 L_fin_a", "branch", rd=["scc"]))
    o += one_lane(raw(f"global_store_dword v96, v97, s[{sWS}:{sWS+1}] sc1"))
    o += poll("L_fin_p", sF2, 4)
    A(label("L_fin_a"))
    for q in range(4): A(ds_b128("v", 4 * q, v(v3Rr), OWN + (q >> 1) * 2048 + (q & 1) * 256))
    A(barrier())
    for k in range(1, 4):
        A(salu("s_add_u32", s(sT0), s(s3HG), str(k))); A(salu("s_and_b32", s(sT0), s(sT0), "3")); A(salu("s_lshl_b32", s(sT1), s(s3HG), "2")); A(salu("s_add_u32", s(sT0), s(sT0), s(sT1)))
        A(salu("s_lshl_b32", s(sT0), s(sT0), "14"))
        for q in range(4): A(bload("v", 16 * k + 4 * q, v(v3Rr), S3X, s(sT0), (q >> 1) * 2048 + (q & 1) * 256, "sc1", grp=f"x{k}"))
    for k in range(1, 4):
        A(wvm({f"x{k}"}))
        for r in range(16): A(valu("v_add_f32", v(r), v(r), v(16 * k + r)))
    for r in range(8): A(valu("v_cvt_pk_bf16_f32", v(16 + r), v(2 * r), v(2 * r + 1)))
    for sg in range(2): A(bstore("v", 16 + 4 * sg, v(v3St), S3Out, "0", 64 * sg))
    o += stamp(9) + stamp(9, "g") + dump_stamps(10, sWS, STAMP_OFF, v(vLane), "L_k1_done") + [raw("s_endpgm")]
    V.finish(o, sched=False)
    return V

HEAD = """; standalone__mha_block_cached__near_ridge: out = softmax((x wq) K^T / sqrt(128)) V wo
"""
def kd(name, vg, acc_off):
    return f""".amdhsa_kernel {name}
  .amdhsa_next_free_vgpr {vg}
  .amdhsa_next_free_sgpr 102
  .amdhsa_accum_offset {acc_off}
  .amdhsa_group_segment_fixed_size 0
  .amdhsa_kernarg_size 64
  .amdhsa_user_sgpr_count 2
  .amdhsa_user_sgpr_kernarg_segment_ptr 1
  .amdhsa_system_sgpr_workgroup_id_x 1
.end_amdhsa_kernel
"""
def check(pre, V):
    tr = pre + V.trace
    for nm, f in (("hazard", check_hazards), ("lgkm", check_lgkm), ("vm", check_vm)):
        bad = f(tr)
        if bad:
            print(V.name, nm, len(bad), bad[:6], file=sys.stderr); raise SystemExit(1)
def build():
    KN = "standalone__mha_block_cached__near_ridge_kernel"
    out = HEAD
    out += f"; @launch grid=(256,1,1) block=(256,1,1) lds={LDS1 + 64}\n"
    out += '.amdgcn_target "amdgcn-amd-amdhsa--gfx950"\n.text\n'
    out += f".globl {KN}\n.p2align 8\n.type {KN},@function\n{KN}:\n"
    pre = fix_hazards(k1_setup() + [salu("s_cmp_eq_u32", None, s(sW), "3"), raw("s_cbranch_scc1 L_w3", "branch")])
    out += text(pre)
    for nq, name in ((4, "w012"), (3, "w3")):
        V = k1_variant(nq, name, pre); check(pre, V)
        print(name, "loop (mfma, est cycles):", V.loop_stats, "total est", gap_stats(V.trace), file=sys.stderr)
        out += text(V.static)
    F = Variant(4, "p3"); F.vm = [x for x in V.vm[:V.npre] if x.grp and x.grp[0] == "w"]
    p3_front(F); check([], F)
    out += text(F.static)
    for nq, name in ((2, "g2"), (1, "g1")):
        W = p3_gemm(nq, name, F); check([], W)
        print(name, "total est", gap_stats(W.static), file=sys.stderr)
        out += text(W.static)
    W = p3_final(); check([], W); out += text(W.static)
    out += "L_k1_done:\n  s_endpgm\n"

    out += '.section .rodata,"a"\n.p2align 6\n' + kd(KN, 512, 256)
    return out
if __name__ == "__main__":
    path = sys.argv[1]
    for kv in sys.argv[2:]:
        k, val = kv.split("=")
        cur = getattr(cfg, k)
        setattr(cfg, k, (val == "1") if isinstance(cur, bool) else type(cur)(val.replace("+", " ")))
    txt = build()
    if cfg.cpf:
        import subprocess
        open("_p1.s", "w").write(txt.replace("CODE_SHARE", "0x1000").replace("CODE_LAST", "0x10000"))
        subprocess.check_call(["clang", "-x", "assembler", "-target", "amdgcn-amd-amdhsa", "-mcpu=gfx950", "-c", "_p1.s", "-o", "_p1.o"])
        sym = {l.split()[7]: int(l.split()[1], 16) for l in subprocess.check_output(["llvm-readelf", "-s", "_p1.o"], text=True).splitlines() if len(l.split()) == 8 and l.split()[7].startswith("L_")}
        last = sym["L_k1_done"] - sym["L_pc"]; share = ((last - 4096) // 32 + 127) & ~127
        assert share <= 4096
        txt = txt.replace("CODE_SHARE", hex(share)).replace("CODE_LAST", hex(last))
    open(path, "w").write(txt)
```

```python
import re

def R(f, a, n=1):
    return [f"{f}{a+i}" for i in range(n)]
def rng(f, a, n):
    return f"{f}{a}" if n == 1 else f"{f}[{a}:{a+n-1}]"

class I:
    __slots__ = ("t", "k", "rd", "wr", "crd", "tgt", "grp", "need", "after", "uid", "stream", "meta")
    _n = 0
    def __init__(s, t, k, rd=(), wr=(), crd=(), tgt=None, grp=None, need=None, stream=None, meta=None):
        s.t, s.k, s.rd, s.wr, s.crd = t, k, set(rd), set(wr), set(crd)
        s.rd |= s.crd
        s.tgt, s.grp, s.need, s.stream, s.meta = tgt, grp, need, stream, meta
        s.after = []
        I._n += 1; s.uid = I._n
    def __repr__(s): return s.t

def mfma(df, d, af, a, bf, b, cf=None, c=None):
    if cf is None: cf, c = df, d
    if cf == "0":
        cs, crd = "0", []
    else:
        assert cf == df
        cs, crd = rng(cf, c, 4), R(cf, c, 4)
    return I(f"v_mfma_f32_16x16x32_bf16 {rng(df,d,4)}, {rng(af,a,4)}, {rng(bf,b,4)}, {cs}", "mfma",
             rd=R(af, a, 4) + R(bf, b, 4), wr=R(df, d, 4), crd=crd)
def _regs(op):
    m = re.fullmatch(r"-?([vas])(\d+)", op)
    if m: return [m.group(1) + m.group(2)]
    m = re.fullmatch(r"-?([vas])\[(\d+):(\d+)\]", op)
    if m: return [f"{m.group(1)}{i}" for i in range(int(m.group(2)), int(m.group(3)) + 1)]
    if op in ("vcc", "m0", "exec", "scc"): return [op]
    return []
def valu(op, dst, *src, rmw=False, kind=None, extra="", **kw):
    k = kind or ("trans" if op.split("_")[1] in ("exp", "rcp", "log", "rsq", "sqrt") else "valu")
    rd = [r for s in src for r in _regs(s)]
    wr = _regs(dst)
    if rmw: rd += wr
    return I(f"{op} {dst}, " + ", ".join(src) + extra, k, rd=rd, wr=wr, **kw)
def swap(op, a, b, **kw):
    return I(f"{op} {a}, {b}", "valu", rd=[a, b], wr=[a, b], meta="permlane", **kw)
def salu(op, dst, *src, scc_w=None, scc_r=False, **kw):
    rd = [r for s in src for r in _regs(s)]
    wr = _regs(dst) if dst else []
    base = op.split("_")[1]
    if scc_w is None: scc_w = base in ("add", "sub", "addc", "and", "or", "xor", "lshl", "lshr", "cmp", "min", "max", "andn2")
    if scc_w: wr.append("scc")
    if scc_r or base in ("cselect", "addc"): rd.append("scc")
    ops = ([dst] if dst else []) + list(src)
    return I(f"{op} " + ", ".join(ops), "salu", rd=rd, wr=wr, **kw)
def ds_b128(df, d, addr, off, **kw):
    assert 0 <= off < 65536 and off % 16 == 0, off
    return I(f"ds_read_b128 {rng(df,d,4)}, {addr} offset:{off}", "lds", rd=[addr], wr=R(df, d, 4), **kw)
def ds_tr(df, d, addr, off, **kw):
    assert 0 <= off < 65536 and off % 8 == 0
    return I(f"ds_read_b64_tr_b16 {rng(df,d,2)}, {addr} offset:{off}", "lds", rd=[addr], wr=R(df, d, 2), **kw)
def ds_w128(addr, sf, s, off, **kw):
    return I(f"ds_write_b128 {addr}, {rng(sf,s,4)} offset:{off}", "ldsw", rd=[addr] + R(sf, s, 4), **kw)
def dma(voff, srd, soff, off, flags="", **kw):
    assert 0 <= off < 4096
    f = (" " + flags) if flags else ""
    return I(f"buffer_load_dwordx4 {voff}, s[{srd}:{srd+3}], {soff} offen offset:{off}{f} lds", "vmem",
             rd=[voff, "m0"] + R("s", srd, 4) + _regs(soff), meta="dma", **kw)
def bload(df, d, voff, srd, soff, off, flags="", n=4, **kw):
    f = (" " + flags) if flags else ""
    op = {1: "dword", 2: "dwordx2", 4: "dwordx4"}[n]
    return I(f"buffer_load_{op} {rng(df,d,n)}, {voff}, s[{srd}:{srd+3}], {soff} offen offset:{off}{f}", "vmem",
             rd=[voff] + R("s", srd, 4) + _regs(soff), wr=R(df, d, n), meta="load", **kw)
def bstore(sf, s, voff, srd, soff, off, flags="", n=4, **kw):
    f = (" " + flags) if flags else ""
    op = {1: "dword", 2: "dwordx2", 4: "dwordx4"}[n]
    return I(f"buffer_store_{op} {rng(sf,s,n)}, {voff}, s[{srd}:{srd+3}], {soff} offen offset:{off}{f}", "vmem",
             rd=[voff] + R("s", srd, 4) + _regs(soff) + R(sf, s, n), meta="store", **kw)
def waitvm(n, **kw): return I(f"s_waitcnt vmcnt({n})", "wait", meta=("vm", n), **kw)
def waitlg(n, **kw): return I(f"s_waitcnt lgkmcnt({n})", "wait", meta=("lg", n), **kw)
def barrier(**kw): return I("s_barrier", "bar", **kw)
def nop(n): return I(f"s_nop {n}", "nop", meta=n)
def raw(t, k="other", **kw): return I(t, k, **kw)
def label(n): return I(f"{n}:", "label")

def need_states(p, c):
    n = 0
    vec_c = c.k in ("valu", "trans")
    if p.k == "mfma":
        if p.wr & c.rd or p.wr & c.wr:
            if c.k == "mfma":
                if p.wr & (c.rd - c.crd): n = max(n, 8)
                ab = set()
                m = re.findall(r"([va])\[(\d+):(\d+)\]", c.t)
                for f, lo, hi in m[1:3]: ab |= {f"{f}{i}" for i in range(int(lo), int(hi) + 1)}
                if p.wr & ab: n = max(n, 8)
                if p.wr & c.crd and p.wr != c.crd: n = max(n, 6)
                if p.wr & c.wr and not (p.wr & c.crd): n = max(n, 6)
            else:
                n = max(n, 8)
        if vec_c and p.crd & c.wr: n = max(n, 3)
    if p.k in ("valu", "trans"):
        vw = {r for r in p.wr if r[0] in "va" and r != "vcc"}
        sw = {r for r in p.wr if r[0] == "s" or r == "vcc"}
        if c.k == "mfma" and vw & c.rd: n = max(n, 2)
        if c.meta == "permlane" and vw & c.rd: n = max(n, 2)
        if p.k == "trans" and c.k == "valu" and vw & c.rd: n = max(n, 1)
        if p.k == "trans" and c.k in ("vmem", "ldsw", "lds") and vw & c.rd: n = max(n, 1)
        if c.t.startswith("v_readfirstlane") and vw & c.rd: n = max(n, 1)
        if c.k == "vmem" and sw & c.rd: n = max(n, 5)
        if vec_c and sw & c.rd: n = max(n, 2)
        if c.k == "salu" and sw & c.rd: n = max(n, 1)
    if p.k == "salu" and "m0" in p.wr and c.k == "vmem" and "m0" in c.rd: n = max(n, 1)
    if p.k == "vmem" and p.meta == "store" and (p.rd & c.wr) and c.k in ("valu", "trans", "lds", "mfma"):
        n = max(n, 2)
    return n
def states(i):
    if i.k == "label": return 0
    if i.k == "nop": return i.meta + 1
    return 1

def fix_hazards(seq, prefix=()):
    out = list(prefix)[-24:]; npre = len(out)
    for c in seq:
        need = 0; d = 0
        for p in reversed(out[-24:]):
            n = need_states(p, c)
            if n > d: need = max(need, n - d)
            d += states(p)
            if d >= 12: break
        if need:
            out.append(nop(need - 1))
        out.append(c)
    return out[npre:]
def check_hazards(trace):
    bad = []
    for j, c in enumerate(trace):
        d = 0
        for p in reversed(trace[max(0, j - 24):j]):
            n = need_states(p, c)
            if n > d: bad.append((j, p.t, c.t, n, d))
            d += states(p)
            if d >= 12: break
    return bad

EAGER = [0]; TAIL = {}
def insert_lgkm(seq, pending=None):
    q = list(pending or []); out = []
    for c in seq:
        if c.k == "wait" and c.meta[0] == "lg":
            n = c.meta[1]; q = q[len(q) - n:] if n < len(q) and n > 0 else ([] if n == 0 else q)
            out.append(c); continue
        touch = c.rd | c.wr
        idx = -1
        for x, p in enumerate(q):
            if p.wr & touch: idx = x
        if idx >= 0:
            if EAGER[0]:
                pos_of = {id(y): k for k, y in enumerate(out)}
                for x in range(idx + 1, len(q)):
                    k = pos_of.get(id(q[x]))
                    age = (len(out) - k) if k is not None else (len(out) + getattr(q[x], "tail", 0) if False else len(out) + TAIL.get(id(q[x]), 0))
                    if age >= EAGER[0]: idx = x
                    else: break
            n = len(q) - 1 - idx
            pos = len(out)
            if c.k == "mfma":
                while pos > 0 and out[pos - 1].k in ("valu", "trans"): pos -= 1
                k = pos
                if k > 0 and out[k - 1].k == "lds":
                    k -= 1; n2 = n - 1
                    if n2 >= 0 and not (out[k].wr & touch): pos, n = k, n2
            n = min(n, 15)
            w = waitlg(n)
            out.insert(pos, w)
            later = sum(1 for y in out[pos + 1:] if y.k in ("lds", "ldsw"))
            keep = n + later
            q = q[len(q) - keep:] if keep > 0 else []
        out.append(c)
        if c.k in ("lds", "ldsw"): q.append(c)
    for k, y in enumerate(out):
        if y.k in ("lds", "ldsw"): TAIL[id(y)] = len(out) - k
    return out, q
def check_lgkm(trace):
    q = []; bad = []
    for j, c in enumerate(trace):
        if c.k == "wait" and c.meta[0] == "lg":
            n = c.meta[1]; q = q[len(q) - n:] if 0 < n < len(q) else ([] if n == 0 else q); continue
        touch = c.rd | c.wr
        for p in q:
            if p.wr & touch: bad.append((j, p.t, c.t))
        if c.k in ("lds", "ldsw"): q.append(c)
    return bad
def check_vm(trace):
    q = []; bad = []; issued = set()
    for j, c in enumerate(trace):
        if c.k == "wait" and c.meta[0] == "vm":
            n = c.meta[1]; q = q[len(q) - n:] if 0 < n < len(q) else ([] if n == 0 else q)
            if c.need:
                for gname in c.need:
                    if any(p.grp == gname for p in q): bad.append((j, "group not complete", gname, c.t))
            continue
        touch = c.rd | c.wr
        for p in q:
            if p.wr & touch: bad.append((j, p.t, c.t))
        if c.k == "vmem":
            q.append(c)
            if len(q) > 63 and not __import__("os").environ.get("VMOK"): bad.append((j, "vmcnt overflow", len(q)))
    return bad
def vm_count(history, groups):
    last = -1
    for x, p in enumerate(history):
        if p.grp in groups: last = x
    return len(history) - 1 - last

COST = {"valu": 4, "trans": 8, "lds": 4, "ldsw": 8, "vmem": 12}
LDS_LAT = 5
def schedule(prog, lag=3, look=2, lds_lat=LDS_LAT, budget=8, strict=False):
    n = len(prog)
    preds = [[] for _ in range(n)]
    lastw = {}; readers = {}; laststream = {}
    for j, c in enumerate(prog):
        ps = set()
        for r in c.rd:
            if r in lastw: ps.add(lastw[r])
        for r in c.wr:
            if r in lastw: ps.add(lastw[r])
            for x in readers.get(r, ()): ps.add(x)
        if c.stream is not None:
            for st in (c.stream if isinstance(c.stream, (list, tuple)) else [c.stream]):
                if st in laststream: ps.add(laststream[st])
                laststream[st] = j
        for a in c.after:
            ps.add(prog.index(a))
        ps.discard(j)
        preds[j] = sorted(ps)
        for r in c.rd: readers.setdefault(r, []).append(j)
        for r in c.wr: lastw[r] = j; readers[r] = []
    mf = [j for j, c in enumerate(prog) if c.k == "mfma"]
    midx = {j: k for k, j in enumerate(mf)}
    INF = 10 ** 9
    dl = [INF] * n
    succs = [[] for _ in range(n)]
    for j in range(n):
        for p in preds[j]: succs[p].append(j)
    for j in range(n - 1, -1, -1):
        c = prog[j]
        if c.k == "mfma": dl[j] = midx[j] - 1; continue
        d = INF
        for s in succs[j]:
            ds = dl[s]
            if prog[s].k == "mfma" and c.k == "lds" and (c.wr & prog[s].rd): ds -= lds_lat
            d = min(d, ds)
        dl[j] = d
    for j, c in enumerate(prog):
        if c.k != "mfma":
            if c.tgt is None: c.tgt = min(dl[j], len(mf) - 1)
    done = [False] * n; out = []; pos = {}
    def dist_ok(j):
        c = prog[j]; d = 0
        for p in reversed(out[-20:]):
            if need_states(p, c) > d: return False
            d += states(p)
            if d >= 12: break
        return True
    def ready(j): return (not done[j]) and all(done[p] for p in preds[j])
    def emit(j):
        done[j] = True; out.append(prog[j])
    def force(j):
        for p in preds[j]:
            if not done[p]:
                assert prog[p].k != "mfma", ("filler needs a later MFMA", prog[j].t, prog[p].t)
                force(p)
        emit(j)
    fill = [j for j in range(n) if prog[j].k != "mfma"]
    def key(j): return (min(prog[j].tgt, dl[j]), j)
    def gap_strict(g):
        rank = {"salu": 0, "wait": 0, "bar": 0, "vmem": 1, "lds": 2, "ldsw": 2, "trans": 3, "valu": 3}
        while True:
            cand = [j for j in fill if ready(j) and min(prog[j].tgt, dl[j]) <= g and dist_ok(j)]
            if not cand: break
            emit(min(cand, key=lambda j: (rank.get(prog[j].k, 4), key(j))))
    def gap(g):
        if strict: return gap_strict(g)
        used = 0; nsc = 0; first = True
        while True:
            cand = sorted((j for j in fill if ready(j) and min(prog[j].tgt, dl[j]) <= g + look), key=key)
            if not cand: break
            pick = None
            urgent = [j for j in cand if min(prog[j].tgt + lag, dl[j]) <= g]
            sc = [j for j in cand if prog[j].k in ("salu", "wait", "bar") and min(prog[j].tgt, dl[j]) <= g]
            if sc and nsc == 0 and first:
                j = sc[0]
                if dist_ok(j): emit(j); nsc += 1; continue
            vec = [j for j in cand if prog[j].k in COST and dist_ok(j)]
            fit = []
            for j in vec:
                k = prog[j].k
                if k in ("lds", "vmem", "ldsw") and not first: continue
                if k == "vmem" and min(prog[j].tgt, dl[j]) > g: continue
                if used + min(COST[k], budget) <= budget: fit.append(j)
            if fit:
                pick = fit[0]
                if first and prog[pick].k == "valu":
                    l = [j for j in fit if prog[j].k == "lds"]
                    if l: pick = l[0]
                    elif sum(1 for j in fit if prog[j].k == "valu") < 2:
                        e = [j for j in fit if prog[j].k == "trans"]
                        if e and pick not in urgent: pick = e[0]
                elif first and prog[pick].k == "lds":
                    if not any(prog[j].k == "valu" for j in fit):
                        e = [j for j in fit if prog[j].k == "trans"]
                        if e and pick not in urgent: pick = e[0]
            else:
                u = [j for j in urgent if dist_ok(j) and (prog[j].k not in ("lds", "vmem") or dl[j] <= g or first)]
                if u: pick = u[0]
            if pick is None: break
            emit(pick)
            if prog[pick].k in COST:
                used += COST[prog[pick].k]; first = False
            else: nsc += 1
    gap(-1)
    for k, j in enumerate(mf):
        for p in preds[j]:
            if not done[p]: force(p)
        emit(j)
        gap(k)
    for j in fill:
        if not done[j]: force(j)
    return out

def fuse_scc(seq):
    out = []
    for c in seq:
        if c.k == "salu" and "scc" in c.rd:
            p = out[-1]
            assert p.k == "salu" and ("scc" in p.wr or "\n" in p.t), (p.t, c.t)
            p.t += "\n  " + c.t; p.rd |= (c.rd - p.wr); p.wr |= c.wr
        else: out.append(c)
    sc = [c for c in out if c.k == "salu"]
    for c in sc: c.rd.discard("scc"); c.wr.discard("scc")
    if sc and sc[-1].t.startswith("s_cmp") and "\n" not in sc[-1].t: sc[-1].after = list(sc[-1].after) + sc[:-1]
    return out
def gap_stats(seq):
    cyc = 0; cur = None; nm = 0
    gaps = []
    for c in seq:
        if c.k == "mfma":
            if cur is not None: gaps.append(cur)
            cur = []; nm += 1
        elif c.k != "label":
            if cur is None: cyc += COST.get(c.k, 4)
            else: cur.append(c)
    if cur is not None: gaps.append(cur)
    for g in gaps:
        u = 0; sc = 0
        for x, c in enumerate(g):
            if c.k in COST:
                u += COST[c.k]
                if c.k in ("lds", "vmem") and any(y.k in COST for y in g[:x]): u += 4
            elif c.k == "nop": u += 4 * (c.meta + 1)
            else:
                sc += 1
                if sc > 1: u += 4
        cyc += max(16, 8 + u)
    return nm, cyc
def text(seq): return "\n".join(("" if c.k == "label" else "  ") + c.t for c in seq) + "\n"

_E32 = ("v_exp_f32", "v_add_f32", "v_mul_f32", "v_sub_f32", "v_mov_b32", "v_max_f32", "v_rcp_f32", "v_add_u32", "v_and_b32", "v_lshlrev_b32", "v_or_b32", "v_subrev_u32")
def _lit(t):
    for op in re.split(r",\s*", t.split(None, 1)[1] if " " in t else ""):
        op = op.strip()
        if re.fullmatch(r"-?\d+", op):
            if not -16 <= int(op) <= 64: return True
        elif re.fullmatch(r"0x[0-9a-f]+", op):
            if int(op, 16) > 64: return True
        elif op.startswith("CODE_"): return True
    return False
def isize(c):
    if "\n" in c.t: return sum(isize(I(x.strip(), c.k)) for x in c.t.split("\n"))
    t = c.t; op = t.split()[0]
    if c.k == "label": return 0
    if op.startswith(("s_load", "s_mem", "ds_", "buffer_", "global_", "v_mfma")): return 8
    if op.startswith("s_"):
        if op.startswith(("s_waitcnt", "s_nop", "s_barrier", "s_branch", "s_cbranch", "s_sleep", "s_endpgm", "s_getreg", "s_setprio")): return 4
        return 8 if _lit(t) else 4
    if op.endswith("_e64"): return 8
    if op in _E32 or op.startswith(("v_cmp", "v_readfirstlane", "v_permlane", "v_lshrrev", "v_min_u32", "v_max_u32", "v_mul_u32_u24", "v_cndmask")): return 8 if _lit(t) else 4
    return 8
def align8(seq, off=0, pad=False):
    out = []; cand = None; miss = 0
    for c in seq:
        n = isize(c)
        if n == 8 and off % 8:
            if cand is not None:
                x = out[cand]; op = x.t.split()[0]
                out[cand] = I(x.t.replace(op, op + "_e64", 1), x.k, x.rd, x.wr, x.crd, x.tgt, x.grp, x.need, x.stream, x.meta); off += 4
            elif pad: out.append(nop(0)); off += 4
            else: miss += 1
        if n == 8 or c.k in ("label", "branch"): cand = None
        if n == 4 and c.t.split()[0] in _E32: cand = len(out)
        out.append(c); off += n
    return out, off, miss
```

```python
import sys, math, struct
from core import *

PIECE = 1056; GRP = 4 * PIECE; UNIT = 16 * PIECE; SLOT = 2 * UNIT
X_BASE = 3 * UNIT; W_BASE = X_BASE + 2 * SLOT; LDS1 = W_BASE + 2 * UNIT
VOTE = LDS1
QSCALE = struct.unpack("<I", struct.pack("<f", math.log2(math.e) / math.sqrt(128.0)))[0]
LIMIT = 0x4b800000

class Cfg:
    stamps = False
    kvflags = "nt"
    xflags = ""
    wflags = ""
    oflags = ""
    k2_oflags = ""
    k2_wflags = ""
    fallback = True
    rot = 4
    xtouch = False
    g7 = 10
    order = 0
    nokv1 = False
    cpf = 1
    kv1 = True
    mbudget = 16
    fused = True
    pre = 2
    xsc = 'sc1'
    xbf = True
    wrate = 3
    outflags = ''
    touch = True
    pre2 = 3
    gshift = 1
    odepth = 4
    tbudget = 24
    noo = False
    now = False
    o3flags = ''
    nomf3 = False
    forcemix = False
    kvpace = True
    sset = 'main'
    nomfma1 = False
    nord1 = False
    nodma1 = False
    w3dma = True
    kswap = True
    dK = 5
    frac = 1.0
    fracK = 1.0
    dbgst = False
    its = False
    longloop = 0
    kick = 0
    align = 0
    slow = 0
    wtouch = False
    wil = False
    wlate = False
    wroll = 0
    gdl = False
    msum = 2
    cap3 = 0
    otm = 0
    otd = '044'
    otw = False
    cap0 = 0
    backlog = 3
    mix2 = 1
    pack = True
    eager = 16
    extra = 0
    kdt = 2.5
    kgap = 11
    trot = False
    tsel = '0123'
    pwarm = True
    tflags = ''
    tfrom = 13
    k2map = 1
cfg = Cfg()

sW = 3; SX, SWQ, SK, SV, SO = 8, 12, 16, 20, 24
sB, sH, sROT = 28, 29, 30
sXb, sG = 31, 32
sT0, sT1, sT2 = 33, 34, 35
sXo, sXo2, sWo = 36, 37, 38
sKo, sVo = 46, 47
sS1, sS2, sS3 = 48, 49, 50
sT = 51; sPASS = 52; sC = 53; sWS = 44; sS0 = 98
vKrd, vVrd, vKrd0, vVrd0, vXrd, vWrd = 232, 233, 234, 235, 236, 237
vOst = 238; vLane = 239; vT = 220
vKV, vX, vWq = 240, 244, 248
ACC = 0; QF = 128
S_ = (0, 32); P_ = (64, 80); NEGM = 192; LSUM = 208; MTRUE = 212; TMP = 216
KF, VF = 192, 224
def acc(a, tau): return ACC + a * 32 + tau * 4
def qf(a, s): return QF + (a * 4 + s) * 4
def wset(p, s, tau): return p * 96 + (s * 8 + tau) * 4
def xset(p, s, a): return p * 96 + 64 + (s * 4 + a) * 4
def oacc(a, t): return a * 32 + t * 4
v = lambda n: f"v{n}"
s = lambda n: f"s{n}"

STAMP_BASE = 60
def stamp(i, sset="main"):
    if not cfg.stamps or (i > 0 and sset != cfg.sset and sset != "k2"): return []
    return [raw(f"s_memrealtime s[{STAMP_BASE+4*i}:{STAMP_BASE+4*i+1}]"), raw(f"s_memtime s[{STAMP_BASE+4*i+2}:{STAMP_BASE+4*i+3}]"), waitlg(0)]
def GOFF(): return " offset:128" if cfg.dbgst else ""
def stampf(i, sset, after, tgt):
    if not cfg.stamps or sset != cfg.sset: return []
    o = [I(f"s_memrealtime s[{STAMP_BASE+4*i}:{STAMP_BASE+4*i+1}]", "salu", tgt=tgt), I(f"s_memtime s[{STAMP_BASE+4*i+2}:{STAMP_BASE+4*i+3}]", "salu", tgt=tgt)]
    for x in o: x.after = [after]
    return o
def dump_stamps(n, wsreg, off, lane, lab):
    if not cfg.stamps: return []
    o = [raw("s_waitcnt vmcnt(0) lgkmcnt(0)")]
    if cfg.dbgst:
        o += [raw("s_cmp_lg_u32 s2, 100"), raw(f"s_cbranch_scc1 {lab}"), raw(f"s_cmp_lg_u32 s{sW}, 0"), raw(f"s_cbranch_scc1 {lab}"), raw("v_mov_b32 v3, 0"), raw("s_mov_b64 exec, 1")]
        for i in range(1, n):
            o += [raw(f"s_sub_u32 s4, s{STAMP_BASE+4*i}, s{STAMP_BASE}"), raw("v_mov_b32 v4, s4"), raw(f"global_store_dword v3, v4, s[100:101] offset:{4*i}"), raw("s_nop 1")]
        o += [raw(f"s_sub_u32 s4, s{STAMP_BASE+4*n-2}, s{STAMP_BASE+2}"), raw("v_mov_b32 v4, s4"), raw(f"global_store_dword v3, v4, s[100:101] offset:0")]
        return o
    o += [raw(f"s_lshl_b32 s4, s2, 10"), raw(f"s_lshl_b32 s5, s{sW}, 8"), raw("s_add_u32 s4, s4, s5"), raw(f"s_add_u32 s4, s4, {off}"),
          raw(f"s_add_u32 s4, s{wsreg}, s4"), raw(f"s_addc_u32 s5, s{wsreg+1}, 0"),
          raw(f"v_cmp_eq_u32 vcc, 0, {lane}"), raw("s_and_saveexec_b64 s[6:7], vcc"), raw(f"s_cbranch_execz {lab}"), raw("v_mov_b32 v3, 0")]
    for i in range(n):
        o += [raw(f"v_mov_b32 v{4+j}, s{STAMP_BASE+4*i+j}") for j in range(4)]
        o += [raw(f"global_store_dwordx4 v3, v[4:7], s[4:5] offset:{16*i}"), raw("s_nop 1")]
    return o
STAMP_OFF = 0x2000000

def srd(reg, lo, hi, add, sub, nrec):
    o = [salu("s_add_u32", s(reg), s(lo), s(add)), salu("s_addc_u32", s(reg + 1), s(hi), "0")]
    if sub: o += [salu("s_sub_u32", s(reg), s(reg), str(sub)), salu("s_subb_u32", s(reg + 1), s(reg + 1), "0", scc_r=True, scc_w=True)]
    o += [salu("s_mov_b32", s(reg + 2), nrec), salu("s_mov_b32", s(reg + 3), "0x20000")]
    return o

def k1_setup():
    o = []
    A = o.append
    A(raw("s_cmp_ge_u32 s2, 256")); A(raw("s_cbranch_scc1 L_k1_done"))
    o += stamp(0)
    A(raw("s_load_dwordx4 s[4:7], s[0:1], 0"))
    A(raw("s_load_dwordx4 s[40:43], s[0:1], 16"))
    A(raw(f"s_load_dwordx2 s[{sWS}:{sWS+1}], s[0:1], 56"))
    A(raw("s_load_dwordx4 s[56:59], s[0:1], 32"))
    A(raw("s_load_dwordx2 s[100:101], s[0:1], 48"))
    if cfg.cpf:
        A(raw("s_getpc_b64 s[54:55]")); A(label("L_pc"))
        A(raw("v_cmp_gt_u32 vcc, 64, v0")); A(raw("s_and_saveexec_b64 s[34:35], vcc")); A(raw("s_cbranch_execz L_cpf"))
        A(raw("s_lshr_b32 s33, s2, 3")); A(raw("s_mul_i32 s33, s33, CODE_SHARE")); A(raw("v_lshrrev_b32 v2, 5, v0")); A(raw("v_mul_u32_u24 v2, s33, v2"))
        A(raw("v_lshl_add_u32 v1, v0, 7, v2")); A(raw("v_min_u32 v1, CODE_LAST, v1")); A(raw("global_load_dword v231, v1, s[54:55]"))
        A(label("L_cpf")); A(raw("s_mov_b64 exec, s[34:35]"))
    A(valu("v_lshrrev_b32", "v1", "6", "v0")); A(valu("v_and_b32", v(vLane), "63", "v0"))
    A(valu("v_readfirstlane_b32", s(sW), "v1"))
    A(salu("s_and_b32", s(sT0), "s2", "7")); A(salu("s_lshr_b32", s(sT1), "s2", "3"))
    A(salu("s_and_b32", s(sB), s(sT0), "1")); A(salu("s_lshl_b32", s(sB), s(sB), "2")); A(salu("s_and_b32", s(sT2), s(sT1), "3")); A(salu("s_add_u32", s(sB), s(sB), s(sT2)))
    A(salu("s_lshr_b32", s(sH), s(sT0), "1")); A(salu("s_lshl_b32", s(sH), s(sH), "3")); A(salu("s_lshr_b32", s(sT1), s(sT1), "2")); A(salu("s_add_u32", s(sH), s(sH), s(sT1)))
    A(salu("s_lshl_b32", s(sT2), s(sT2), "1")); A(salu("s_add_u32", s(sROT), s(sH), s(sT2)))
    if cfg.rot == 8: A(salu("s_and_b32", s(sROT), s(sROT), "7"))
    elif cfg.rot == 1: A(salu("s_mov_b32", s(sROT), "0"))
    else:
        A(salu("s_lshr_b32", s(sT2), s(sT2), "1")); A(salu("s_add_u32", s(sROT), s(sH), s(sT2)))
        A(salu("s_and_b32", s(sROT), s(sROT), str(cfg.rot - 1))); A(salu("s_mul_i32", s(sROT), s(sROT), str(8 // cfg.rot)))
    A(salu("s_mul_i32", s(sG), s(sW), str(GRP))); A(salu("s_lshl_b32", s(sXb), s(sG), "1")); A(salu("s_add_u32", s(sXb), s(sXb), str(X_BASE)))
    A(salu("s_mov_b32", s(sC), hex(QSCALE))); A(salu("s_mov_b32", s(sPASS), "0"))
    L = v(vLane)
    A(valu("v_and_b32", "v1", "15", L)); A(valu("v_lshrrev_b32", "v2", "4", L))
    A(valu("v_bfe_u32", "v3", L, "2", "2")); A(valu("v_and_b32", "v4", "3", L))
    A(valu("v_lshrrev_b32", "v5", "5", L)); A(valu("v_lshlrev_b32", "v5", "15", "v5"))
    A(valu("v_bfe_u32", "v6", L, "3", "2")); A(valu("v_lshl_add_u32", "v5", "v6", "12", "v5"))
    A(valu("v_and_b32", "v6", "7", L)); A(valu("v_lshl_add_u32", "v5", "v6", "4", "v5"))
    A(salu("s_lshl_b32", s(sT0), s(sW), "16")); A(salu("s_add_u32", s(sT0), s(sT0), "128"))
    A(valu("v_add_u32", v(vX), s(sT0), "v5"))
    for m in range(1, 4): A(valu("v_subrev_u32", v(vX + m), str(32 * m), v(vX)))
    A(salu("s_and_b32", s(sT0), s(sW), "1")); A(salu("s_lshl_b32", s(sT0), s(sT0), "16"))
    A(salu("s_lshr_b32", s(sT1), s(sW), "1")); A(salu("s_lshl_b32", s(sT1), s(sT1), "15")); A(salu("s_add_u32", s(sT0), s(sT0), s(sT1)))
    A(valu("v_lshlrev_b32", "v5", "17", "v2")); A(valu("v_lshl_add_u32", "v5", "v1", "4", "v5"))
    A(valu("v_add_u32", v(vWq), s(sT0), "v5"))
    for m in range(1, 4): A(valu("v_add_u32", v(vWq + m), str(m * (8192 - PIECE)), v(vWq)))
    A(salu("s_lshl_b32", s(sT0), s(sW), "12")); A(salu("s_add_u32", s(sT0), s(sT0), "128"))
    A(valu("v_lshlrev_b32", v(vOst), "4", L)); A(valu("v_add_u32", v(vKV), s(sT0), v(vOst)))
    for m in range(1, 4): A(valu("v_subrev_u32", v(vKV + m), str(32 * m), v(vKV)))
    o += k1_setup2() + (touch_setup1a() if cfg.xtouch else [])
    A(salu("s_mul_i32", s(sT0), s(sB), "245760")); A(salu("s_lshl_b32", s(sT1), s(sH), "8")); A(salu("s_sub_u32", s(sT2), "0x400000", s(sT1)))
    A(raw("s_waitcnt lgkmcnt(0)", "other"))
    o += stamp(1, "st")
    o += srd(SX, 4, 5, sT0, 128, str(245760 + 128)) + srd(SWQ, 42, 43, sT1, 0, s(sT2))
    rest = []; A = rest.append
    A(salu("s_lshl_b32", s(sT0), s(sB), "5")); A(salu("s_add_u32", s(sT0), s(sT0), s(sH))); A(salu("s_lshl_b32", s(sT0), s(sT0), "18"))
    rest += srd(SK, 6, 7, sT0, 128, str(262144 + 128)) + srd(SV, 40, 41, sT0, 128, str(262144 + 128))
    A(salu("s_lshl_b32", s(sT0), s(sB), "21")); A(salu("s_lshr_b32", s(sT1), s(sW), "1")); A(salu("s_lshl_b32", s(sT1), s(sT1), "20")); A(salu("s_add_u32", s(sT0), s(sT0), s(sT1)))
    A(salu("s_lshl_b32", s(sT1), s(sH), "15")); A(salu("s_add_u32", s(sT0), s(sT0), s(sT1)))
    A(salu("s_and_b32", s(sT1), s(sW), "1")); A(salu("s_lshl_b32", s(sT1), s(sT1), "12")); A(salu("s_add_u32", s(sT0), s(sT0), s(sT1)))
    rest += srd(SO, sWS, sWS + 1, sT0, 0, "28672")
    c0 = x_dma(0) + w_dma(0); c1 = x_dma(1) + w_dma(1); t = touch_setup1b() if cfg.xtouch else []
    if cfg.order == 0: o += c0 + stamp(2, "st") + c1 + stamp(3, "st") + t + xw_touch(2) + rest
    if cfg.order == 1: o += t + xw_touch(0) + c0 + stamp(2, "st") + xw_touch(2) + c1 + stamp(3, "st") + rest
    if cfg.order == 2: o += t + xw_touch(0) + xw_touch(2) + c0 + stamp(2, "st") + c1 + stamp(3, "st") + rest
    if cfg.order == 4: o += c0 + stamp(2, "st") + t + xw_touch(2) + c1 + stamp(3, "st") + rest
    return o

def k1_setup2():
    o = []; A = o.append
    A(salu("s_mov_b32", s(sT0), str(PIECE)))
    A(valu("v_and_b32", "v5", "7", "v1")); A(valu("v_mul_u32_u24", "v5", s(sT0), "v5"))
    A(valu("v_lshrrev_b32", "v6", "3", "v1")); A(valu("v_lshl_add_u32", "v5", "v6", "8", "v5")); A(valu("v_lshl_add_u32", v(vKrd0), "v2", "4", "v5"))
    A(valu("v_mov_b32", v(vKrd), v(vKrd0)))
    A(valu("v_and_b32", "v5", "1", "v2")); A(valu("v_lshl_add_u32", "v5", "v5", "2", "v3")); A(valu("v_mul_u32_u24", "v5", s(sT0), "v5"))
    A(valu("v_lshrrev_b32", "v6", "1", "v2")); A(valu("v_lshl_add_u32", "v5", "v6", "8", "v5")); A(valu("v_lshl_add_u32", "v5", "v4", "3", "v5"))
    A(valu("v_add_u32", v(vVrd0), str(UNIT), "v5")); A(valu("v_mov_b32", v(vVrd), v(vVrd0))); A(valu("v_add_u32", v(vWrd), str(W_BASE), "v5"))
    A(valu("v_mul_u32_u24", "v5", s(sT0), "v4")); A(valu("v_lshl_add_u32", "v5", "v3", "7", "v5")); A(valu("v_lshl_add_u32", "v5", "v2", "4", "v5"))
    A(valu("v_add_u32", v(vXrd), s(sXb), "v5"))
    for a in range(4): A(valu("v_mov_b32", v(MTRUE + a), "0xff800000"))
    A(valu("v_lshrrev_b32", "v5", "1", "v2")); A(valu("v_lshlrev_b32", "v5", "15", "v5")); A(valu("v_and_b32", "v6", "1", "v2")); A(valu("v_lshl_add_u32", "v5", "v6", "13", "v5"))
    if cfg.wil: A(valu("v_lshl_add_u32", "v5", "v3", "8", "v5")); A(valu("v_lshl_add_u32", "v5", "v4", "4", "v5"))
    else: A(valu("v_lshl_add_u32", "v5", "v1", "4", "v5"))
    A(salu("s_lshr_b32", s(sT0), s(sW), "1")); A(salu("s_lshl_b32", s(sT0), s(sT0), "14")); A(salu("s_and_b32", s(sT1), s(sW), "1")); A(salu("s_lshl_b32", s(sT1), s(sT1), "12"))
    A(salu("s_add_u32", s(sT0), s(sT0), s(sT1))); A(valu("v_add_u32", "v5", s(sT0), "v5"))
    for m in range(4): A(valu("v_add_u32", v(v3Wd + m), str(128 - 32 * m), "v5"))
    return o

def x_dma(c, t0=None, dt=1, after=None):
    p = c & 1; o = []; g = f"c{c}"; st = "dma"
    def T(k): return None if t0 is None else int(t0 + k * dt)
    def U(k): return None if t0 is None else int(t0 - 7 + k)
    o.append(salu("s_add_u32", s(sT0), s(sROT), str(c), tgt=U(0), stream="xa")); o.append(salu("s_and_b32", s(sT0), s(sT0), "7", tgt=U(1), stream="xa"))
    o.append(salu("s_lshl_b32", s(sXo), s(sT0), "7", tgt=U(2), stream="xa")); o.append(salu("s_lshl_b32", s(sWo), s(sT0), "19", tgt=U(3), stream="xa"))
    o.append(salu("s_add_u32", s(sXo2), s(sXo), "16384", tgt=U(4), stream="xa"))
    k = 0
    for half in range(2):
        o.append(salu("s_add_u32", "m0", s(sXb), str(p * SLOT + half * GRP), tgt=T(k - 1), stream=st))
        for m in range(4):
            d = dma(v(vX + m), SX, s(sXo2 if half else sXo), m * PIECE, cfg.xflags, grp=g, tgt=T(k), stream=st); k += 1
            if after: d.after = list(after)
            o.append(d)
    return o
def w_dma(c, t0=None, dt=1):
    p = c & 1; o = []; g = f"c{c}"; st = "dma"
    def T(k): return None if t0 is None else int(t0 + k * dt)
    o.append(salu("s_add_u32", "m0", s(sG), str(W_BASE + p * UNIT), tgt=T(-1), stream=st))
    for m in range(4): o.append(dma(v(vWq + m), SWQ, s(sWo), m * PIECE, cfg.wflags, grp=g, tgt=T(m), stream=st))
    return o
def kv_dma_static(which, tile, t0=None, dt=1, grp=0, ms=(0, 1, 2, 3)):
    st = "dma"
    def T(k): return None if t0 is None else t0 + k * dt
    o = [salu("s_mov_b32", s(sT1), str(tile * 16384 + grp * 4096), tgt=T(-1), stream=st),
         salu("s_add_u32", "m0", s(sG), str((tile & 3) * SLOT + (UNIT if which == "V" else 0) + grp * GRP), tgt=T(-1), stream=st)]
    for k, m in enumerate(ms): o.append(dma(v(vKV + m), SK if which == "K" else SV, s(sT1), m * PIECE, cfg.kvflags, grp=f"{which}{tile}", tgt=T(k), stream=st))
    return o
def chunk_reads(c, nq, t0=None, dt=1):
    p = c & 1; o = []; k = 0
    def T(k): return None if t0 is None else t0 + k * dt
    items = []
    for s_ in range(2):
        for a in range(nq): items.append(("x", s_, a))
    for tau in range(8):
        for s_ in range(2):
            for z in range(2): items.append(("w", s_, tau, z))
    for it in items:
        if it[0] == "x":
            _, s_, a = it
            o.append(ds_b128("a", xset(p, s_, a), v(vXrd), p * SLOT + (a & 1) * GRP + (a >> 1) * 512 + s_ * 64, tgt=T(k), stream="rd"))
        else:
            _, s_, tau, z = it
            o.append(ds_tr("a", wset(p, s_, tau) + 2 * z, v(vWrd), p * UNIT + z * 8 * PIECE + s_ * 512 + 32 * tau, tgt=T(k), stream="rd"))
        k += 1
    return o
def chunk_mfma(c, nq, amajor=False):
    p = c & 1; o = []
    order = [(a, tau) for a in range(nq) for tau in range(8)] if amajor else [(a, tau) for tau in range(8) for a in range(nq)]
    for a, tau in order:
        for s_ in range(2):
            z = (c == 0 and s_ == 0)
            o.append(mfma("v", acc(a, tau), "a", wset(p, s_, tau), "a", xset(p, s_, a), "0" if z else None))
    return o
def q_convert(a, t0, dt):
    o = []; k = 0
    for s_ in range(4):
        d = qf(a, s_)
        for half in range(2):
            b = acc(a, 2 * s_ + half)
            for r in range(4): o.append(valu("v_mul_f32", v(b + r), s(sC), v(b + r), tgt=t0 + k * dt)); k += 1
            for r in range(2): o.append(valu("v_cvt_pk_bf16_f32", v(d + 2 * half + r), v(b + 2 * r), v(b + 2 * r + 1), tgt=t0 + k * dt)); k += 1
        for r in range(2): o.append(swap("v_permlane32_swap_b32", v(d + r), v(d + 2 + r), tgt=t0 + k * dt)); k += 1
        for r in range(2): o.append(swap("v_permlane16_swap_b32", v(d + r), v(d + 2 + r), tgt=t0 + k * dt)); k += 1
    return o
def k_reads(j, t0=None, dt=4, after=None):
    o = []
    for r in range(8):
        kap, s_ = r >> 2, r & 3
        i = ds_b128("a", KF + 4 * r, v(vKrd), j * 8 * PIECE + kap * 512 + s_ * 64, tgt=None if t0 is None else t0 + r * dt, stream="rd")
        if after: i.after = list(after)
        o.append(i)
    return o
def v_reads(j, t0, dt):
    o = []
    for r in range(16):
        t, z = r >> 1, r & 1
        o.append(ds_tr("a", VF + 4 * t + 2 * z, v(vVrd), j * 8 * PIECE + z * 512 + 32 * t, tgt=t0 + r * dt, stream="rd"))
    return o
def qk(j, nq, first=False):
    o = []
    for a in range(nq):
        for kap in range(2):
            d = S_[j] + a * 8 + kap * 4
            for s_ in range(4):
                if s_ == 0: o.append(mfma("v", d, "a", KF + 4 * (kap * 4), "v", qf(a, 0), "0" if first else "v", None if first else NEGM + 4 * a))
                else: o.append(mfma("v", d, "a", KF + 4 * (kap * 4 + s_), "v", qf(a, s_)))
    return o
ONES = 128; LM = 96
def mtiles(nq): return list(range(cfg.msum)) if nq == 4 else []
def lsreg(a, nq): return LM + 4 * a if a in mtiles(nq) else LSUM + a
def lsum_mfma(j, a, first=False): return mfma("v", LM + 4 * a, "a", ONES, "v", P_[j] + 4 * a, "0" if first else None)
def pv(j, nq, first=False):
    o = [mfma("a", oacc(a, t), "a", VF + 4 * t, "v", P_[j] + 4 * a, "0" if first else None) for t in range(8) for a in range(nq)]
    return o + [lsum_mfma(j, a, first) for a in mtiles(nq)]
def sm(j, nq, t0, dt=2.0, mix=False):
    o = []
    order = list(range(8 * nq))
    if mix and len(mtiles(nq)) == 2:
        order = [e_ for k in range(8) for e_ in (2 * k, 2 * k + 1, 16 + 2 * k, 17 + 2 * k)]
        if cfg.mix2 == 0: order = list(range(32))
        if cfg.mix2 == 2: order = [e_ for k in range(4) for e_ in (2 * k, 2 * k + 1, 16 + 2 * k, 17 + 2 * k)] + [e_ for k in range(4) for e_ in (24 + 2 * k, 25 + 2 * k, 8 + 2 * k, 9 + 2 * k)]
    if mix and len(mtiles(nq)) == 1:
        order = [e_ for k in range(4) for e_ in (2 * k, 2 * k + 1, 8 + 2 * k, 9 + 2 * k)] + list(range(16, 32))
    for n_, i in enumerate(order):
        r = S_[j] + i; a = i >> 3
        o.append(valu("v_exp_f32", v(r), v(r), tgt=int(t0 + n_ * dt)))
        if a not in mtiles(nq): o.append(valu("v_add_f32", v(LSUM + a), v(LSUM + a), v(r), tgt=int(t0 + n_ * dt + 1)))
        if i & 1: o.append(valu("v_cvt_pk_bf16_f32", v(P_[j] + (i >> 1)), v(r - 1), v(r), tgt=int(t0 + n_ * dt + 1)))
    return o
def xreduce(op, reg, tmp, t0=None, dt=1):
    def T(k): return None if t0 is None else t0 + k * dt
    return [valu("v_mov_b32", v(tmp), v(reg), tgt=T(0)), swap("v_permlane16_swap_b32", v(reg), v(tmp), tgt=T(1)), valu(op, v(reg), v(reg), v(tmp), tgt=T(2)),
            valu("v_mov_b32", v(tmp), v(reg), tgt=T(3)), swap("v_permlane32_swap_b32", v(reg), v(tmp), tgt=T(4)), valu(op, v(reg), v(reg), v(tmp), tgt=T(5))]
def first_max(a, t0, dt):
    o = []; b = S_[0] + a * 8; m = TMP + 2 * a; k = 0
    o.append(valu("v_max3_f32", v(m), v(b), v(b + 1), v(MTRUE + a), tgt=t0))
    for r in range(1, 4): o.append(valu("v_max3_f32", v(m), v(b + 2 * r), v(b + 2 * r + 1), v(m), tgt=t0 + r * dt))
    o += xreduce("v_max_f32", m, m + 1, t0 + 4 * dt, dt)
    for r in range(4): o.append(valu("v_sub_f32", v(NEGM + 4 * a + r), "0", v(m), tgt=t0 + (10 + r) * dt))
    for r in range(8): o.append(valu("v_sub_f32", v(b + r), v(b + r), v(m), tgt=t0 + (14 + r) * dt))
    o.append(valu("v_mov_b32", v(LSUM + a), "0", tgt=t0))
    return o

class Variant:
    def __init__(s_, nq, name):
        s_.nq, s_.name = nq, name
        s_.static = []
        s_.trace = []
        s_.vm = []
        s_.pend = []
    def finish(s_, seq, sched=True, **kw):
        seq = schedule(seq, **kw) if sched else seq
        seq = s_.resolve_vm(seq)
        seq, s_.pend = insert_lgkm(seq, s_.pend)
        seq = fix_hazards(seq, s_.trace)
        s_.static += seq; s_.trace += seq
        return seq
    def resolve_vm(s_, seq):
        out = []
        for c in seq:
            if c.k == "wait" and c.meta == ("vm", None):
                n = min(vm_count(s_.vm, c.need), 63)
                w = waitvm(n, need=c.need); out.append(w)
            else:
                out.append(c)
                if c.k == "vmem": s_.vm.append(c)
        return out
def wvm(groups, **kw): return I("s_waitcnt vmcnt(?)", "wait", meta=("vm", None), need=set(groups), **kw)

sTo = 49 + 50
sKt = 95
def window(T, nq, part, static):
    n = 8 * nq; st = "dma"
    ps = [((m + 0.5) / 4, "V", 0, m) for m in range(4)]
    if nq == 3: ps += [((k + 0.25) / 16, "K", k >> 2, k & 3) for k in range(16)]
    fv = 0.24 if (cfg.wlate and T == 12) else cfg.frac
    ps = sorted((p * (fv if w_ == 'V' else cfg.fracK), w_, g_, m) for p, w_, g_, m in ps)
    o = []; cur = None
    It = T + part
    for p, w_, g_, m in ps:
        if (p >= 0.25) != bool(part): continue
        tile = T + (3 if w_ == "V" else cfg.dK)
        if static and tile > 15: continue
        tg = int(3 * n + len(mtiles(nq)) + p * (4 * n - 4)) if part == 0 else int((p - 0.25) * (4 * n - 6)) + 1
        if (w_, g_) != cur:
            cur = (w_, g_)
            if static:
                o.append(salu("s_mov_b32", s(sKt), str(tile * 16384 + ((g_ - 3) * 4096 if w_ == "K" else 0)), tgt=tg - 2, stream=st))
                if w_ == "V": o.append(salu("s_add_u32", "m0", s(sG), str((tile & 3) * SLOT + UNIT), tgt=tg - 1, stream=st))
                else: o.append(salu("s_mov_b32", "m0", str((tile & 3) * SLOT + g_ * GRP), tgt=tg - 1, stream=st))
            else:
                sl = (sS0, sS1, sS2, sS3)[(tile - It) & 3]
                if w_ == "V":
                    o.append(salu("s_add_u32", s(sT0), s(sl), s(sG), tgt=tg - 2, stream=st)); o.append(salu("s_add_u32", "m0", s(sT0), str(UNIT), tgt=tg - 1, stream=st))
                else:
                    o.append(salu("s_add_u32", s(sKt), s(sKo), str(g_ * 4096), tgt=tg - 2, stream=st)); o.append(salu("s_add_u32", "m0", s(sl), str(g_ * GRP), tgt=tg - 1, stream=st))
        cap = cfg.cap3 if nq == 3 else cfg.cap0
        if cap: o.append(waitvm(cap - 1, tgt=tg - 1, stream=st))
        so = sKt if (static or w_ == "K") else sVo
        o.append(dma(v(vKV + m), SV if w_ == "V" else SK, s(so), m * PIECE, cfg.kvflags, grp=f"{w_}{tile}", tgt=tg, stream=st))
    return o
def iteration(T, nq, first=False, peeled=False):
    n = 8 * nq
    st = "dma"
    o = []
    vdt = 2 if nq == 4 else 1.5
    o += qk(0, nq)
    o += v_reads(0, 1, vdt)
    o += sm(1, nq, 0, mix=True)
    o += k_reads(1, n + 1, (n - 4) / 8)
    o += pv(0, nq, first)
    mx = len(mtiles(nq))
    B = 2 * n + mx
    o += qk(1, nq)
    vr = v_reads(1, B + 1, vdt); o += vr
    o.append(valu("v_add_u32", v(vVrd), str(((T + 1) & 3) * SLOT) if peeled else s(sS1), v(vVrd0), tgt=B + n + 2))
    o += sm(0, nq, B - 2, 2.0, mix=True)
    w = wvm({f"K{T+2}", f"V{T+1}"}, tgt=B + n - 3, stream=["rd2", st]); b = barrier(tgt=B + n - 2, stream=["rd2", st])
    w.after = [x for x in o if x.k == "mfma"][B + n - 4:B + n - 3]
    o += [w, b]
    if cfg.its:
        x1 = valu("v_mov_b32", "v126", "s90", tgt=B + n - 1); x1.after = [b]
        x2 = I("s_memrealtime s[90:91]", "salu", tgt=B + n - 1); x2.after = [x1]
        o += [x1, x2, valu("v_cmp_eq_u32", "vcc", "s51", v(vLane), tgt=B + n), valu("v_cndmask_b32", "v127", "v127", "v126", "vcc", tgt=B + n + 2)]
    e = 4 * n + 2 * mx - 1
    t = B + n
    if T >= 12 and peeled:
        eA = []; eB = []
        if T == 12: eA = p3_wdma(0) + p3_wdma(1)
        if T == 13: eA = p3_wdma(2); eB = p3_wdma(3)
        if cfg.wlate:
            if T == 12: eA = []
            if T == 13: eA = p3_wdma(0) + p3_wdma(1) + p3_wdma(2)
        if cfg.wtouch and T == 12:
            x = I(f"global_load_dword v231, v230, s[56:57]", "vmem", rd=["v230"], meta="load", grp="touch")
            eA = [x]; eB = p3_wdma(0)
        if cfg.wtouch and T == 13: eA = p3_wdma(1) + p3_wdma(2)
        if T == 14: eA = p3_wdma(4); eB = p3_wdma(5) + p3_wdma(6)
        if cfg.touch and cfg.otm == 0 and nq == 3:
            cnt = [int(c_) for c_ in cfg.otd]; k0 = sum(cnt[:T - 12]); tl = []
            for k in range(k0, k0 + cnt[T - 12]):
                tl.append(salu("s_mov_b32", s(sTo), str((k >> 2) * 16384), stream=st))
                tl.append(bload("v", 231, v(vT + (k & 3)), SX, s(sTo), 0, cfg.tflags, n=1, grp="touch", stream=st)); tl[-1].wr = set()
            eA = weave(eA, tl) if (eA and tl and cfg.otw) else eA + tl
        if cfg.touch and cfg.otm:
            def ot(k):
                x = bload("v", 231, "v230", SO, s(sTo), 0, cfg.tflags, n=1, grp="touch", stream=st); x.wr = set()
                return [salu("s_mov_b32", s(sTo), str(k * 16384), stream=st), x]
            where = {1: ((13, "B"), (14, "A")), 2: ((14, "A"), (14, "A")), 3: ((13, "B"), (13, "B")), 4: ((13, "A"), (13, "B")), 5: ((14, "A"), (14, "B"))}[cfg.otm]
            for k, (tt, ab) in reversed(list(enumerate(where))):
                if tt == T and ab == "A": eA = ot(k) + eA
                if tt == T and ab == "B": eB = ot(k) + eB
        for x in eA: x.stream = st
        pre = window(T - 1, nq, 1, True); post = window(T, nq, 0, True)
        if eA: place(eA, 3 if T == 12 else 6, 3 * n - 8)
        if eB: place(eB, t + 2, e - 4)
        def merge(a_, b_):
            items = []
            for z, seq in enumerate((a_, b_)):
                setup = []; m0 = None
                for x in seq:
                    if x.k == "vmem": items.append((x.tgt, len(items), z, setup, m0, x)); setup = []
                    else:
                        setup.append(x)
                        if "m0" in x.wr: m0 = x
            items.sort(key=lambda q_: q_[:2]); res = []; cur = None
            for tg, _, z, setup, m0, x in items:
                if any("m0" in y.wr for y in setup): m0 = next(y for y in setup if "m0" in y.wr)
                elif "m0" in x.rd and cur is not m0: setup = setup + [I(m0.t, m0.k, m0.rd, m0.wr, tgt=tg - 1, stream=m0.stream)]
                if "m0" in x.rd: cur = m0
                res += setup + [x]
            return res
        eA = merge(pre, eA); eB = merge(post, eB)
        k = o.index(w); o[k:k] = eA
        if T < 14:
            o.append(valu("v_add_u32", v(vKrd), str(((T + 2) & 3) * SLOT), v(vKrd0), tgt=B + n - 4))
            o += k_reads(0, B + n + 1, (n - 4) / 8, after=[b])
        else:
            o += [ds_tr("a", KF + 4 * (r >> 1) + 2 * (r & 1), v(vVrd), (r & 1) * 512 + 32 * (r >> 1), tgt=int(B + n + 4 + r * (n - 6) / 16), stream="rd") for r in range(16)]
            for x in o[-16:]: x.after = [b]
        return o + eB + pv(1, nq)
    o.append(valu("v_add_u32", v(vKrd), s(sS2), v(vKrd0), tgt=B + n - 4))
    o += k_reads(0, B + n + 1, (n - 4) / 8, after=[b])
    pre = window(T - 1, nq, 1, False)
    pre += [salu("s_add_u32", s(sVo), s(sVo), "16384", tgt=t - 5, stream=st)] + ([salu("s_add_u32", s(sKo), s(sKo), "16384", tgt=t - 4, stream=st)] if nq == 3 else [])
    if cfg.wroll and nq == 3:
        x = bload("v", 231, v(vT), STC2, s(sTo), 0, n=1, grp="touch", tgt=B + 6, stream=st); x.wr = set()
        pre += [salu("s_sub_u32", s(sT2), s(sT), str(cfg.wroll), tgt=B, stream="tch"), salu("s_lshl_b32", s(sTo), s(sT2), "13", tgt=B + 1, stream="tch"), x]
        pre.sort(key=lambda y: 0)
    if cfg.kick and nq == 3:
        kk = [salu("s_cmp_eq_u32", None, s(sT), "5", tgt=B + 2, stream=st), salu("s_cselect_b32", s(sTo), "0", "0x7ff00000", tgt=B + 3, stream=st)]
        for z in range(cfg.kick):
            kk.append(bload("v", 231, v(vT + (z & 1)), SX, s(sTo), 0, "nt", n=1, grp="touch", tgt=B + 4 + z, stream=st)); kk[-1].wr = set()
            kk.append(salu("s_add_u32", s(sTo), s(sTo), "8192" if z & 1 else "0", tgt=B + 4 + z, stream=st))
        pre += kk
    if cfg.extra and nq == 4:
        ex = [salu("s_mul_i32", s(sTo), "s2", "0x40000", tgt=4, stream=st), salu("s_lshl_b32", s(sT2), s(sT), "12", tgt=5, stream=st), salu("s_add_u32", s(sTo), s(sTo), s(sT2), tgt=6, stream=st),
              salu("s_add_u32", s(sTo), s(sTo), "0x4000000", tgt=6, stream=st), salu("s_mul_i32", s(sT2), s(sW), "0x4000000", tgt=6, stream=st), salu("s_add_u32", s(sTo), s(sTo), s(sT2), tgt=6, stream=st),
              valu("v_add_u32", "v125", s(sTo), v(vOst), tgt=7), salu("s_mov_b32", "m0", str(8 * UNIT), tgt=8, stream=st)]
        for z in range(cfg.extra): ex.append(I(f"global_load_lds_dwordx4 v125, s[{sWS}:{sWS+1}] offset:{z*1024} nt", "vmem", rd=["v125", "m0"], meta="dma", grp="ex", tgt=9 + z, stream=st))
        pre = ex + pre
    k = o.index(w); o[k:k] = pre
    o += window(T, nq, 0, False)
    r = e - 9
    o += pv(1, nq)
    o.append(salu("s_mov_b32", s(sS0), s(sS1), tgt=r + 1, stream=st))
    o.append(salu("s_mov_b32", s(sS1), s(sS2), tgt=r + 2, stream=st)); o.append(salu("s_mov_b32", s(sS2), s(sS3), tgt=r + 3, stream=st))
    o.append(salu("s_add_u32", s(sS3), s(sS3), str(SLOT), tgt=r + 4, stream=st)); o.append(salu("s_cmp_eq_u32", None, s(sS3), str(4 * SLOT), tgt=r + 5, stream=st))
    o.append(salu("s_cselect_b32", s(sS3), "0", s(sS3), tgt=r + 6, stream=st))
    o.append(salu("s_add_u32", s(sT), s(sT), "1", tgt=r + 7, stream=st));
    if cfg.longloop:
        for rg_ in (sKo, sVo):
            o += [salu("s_cmp_ge_u32", None, s(rg_), str(262144 - 16384), tgt=r + 8, stream=st), salu("s_cselect_b32", s(sT0), str(14 * 16384), "0", tgt=r + 8, stream=st), salu("s_sub_u32", s(rg_), s(rg_), s(sT0), tgt=r + 8, stream=st)]
    o.append(salu("s_cmp_lt_u32", None, s(sT), str(cfg.longloop or 12), tgt=r + 8, stream=st))
    return o

def pack_iter(o, nq):
    N = sum(1 for x in o if x.k == "mfma"); H = N // 2
    ex = [x for x in o if x.k == "trans"]; ld = [x for x in o if x.k == "lds"]; vm = [x for x in o if x.k == "vmem"]
    va = [x for x in o if x.k == "valu"]
    for i, x in enumerate(ex): x.tgt = (i // 32) * H + ((i % 32) * H) // 32
    eg = {x.tgt for x in ex}
    expo = {next(iter(x.wr)): x.tgt for x in ex[:32]}; expo2 = {next(iter(x.wr)): x.tgt for x in ex[32:]}
    dg = set()
    for x in vm:
        g = min(x.tgt, N - 1)
        while g in dg or g in eg: g += 1
        x.tgt = g; dg.add(g)
    xg = [g for g in range(N) if g not in dg and g not in eg]
    lg = {}
    for x in ld:
        left = len(ld) - len(lg); last = max(lg, default=-1)
        free = [g for g in xg if g > last]
        if len([g for g in free if g >= x.tgt]) >= left: g = next(g for g in free if g >= x.tgt)
        else: g = max(last + 1, min(int(x.tgt), N - 2 - left)); g += g in dg
        lg[g] = x; x.tgt = g
    rdy = []
    for x in va:
        op = x.t.split()[0]
        if op in ("v_add_f32", "v_cvt_pk_bf16_f32"):
            r = max((expo.get(q, expo2.get(q, -1)) if o.index(x) < o.index(ex[32]) else expo2.get(q, -1)) for q in x.rd) + 1
        else: r = x.tgt
        rdy.append((r, len(rdy), x))
    rdy.sort(key=lambda z: z[:2])
    bonus = set()
    def fill():
        k = 0; back = {}
        for g in xg:
            cap = (1 if g in lg else 2) + (g in bonus); take = 0
            while k < len(rdy) and rdy[k][0] <= g and take < cap: rdy[k][2].tgt = g; k += 1; take += 1
            back[g] = sum(1 for z in rdy[k:] if z[0] <= g)
        return len(rdy) - k, back
    while True:
        left, back = fill()
        worst = max(back.values())
        if left == 0 and worst <= cfg.backlog: break
        cand = [g for g in xg if g not in bonus and back[g] > (cfg.backlog if worst > cfg.backlog else 0)]
        if not cand: break
        bonus.add(cand[0] if worst > cfg.backlog else cand[-1])
    left, back = fill()
    if left:
        for z in rdy[len(rdy) - left:]: z[2].tgt = N - 1
    taken = {x.tgt for x in o if x.k in ("wait", "bar")}
    dl = {}
    for idx in range(len(o) - 1, -1, -1):
        x = o[idx]
        if x.k == "salu":
            nx = next((y for y in o[idx + 1:] if y.k in ("vmem", "salu", "wait") and (y.stream == x.stream or (isinstance(y.stream, list) and x.stream in y.stream))), None)
            if nx is not None and (nx.k != "salu" or id(nx) in dl):
                g = nx.tgt - 1
                while g in taken and g > -1: g -= 1
                x.tgt = g; taken.add(g); dl[id(x)] = g
    last = {}
    for x in o:
        if x.k == "salu" and id(x) not in dl:
            g = max(int(x.tgt), last.get(str(x.stream), -1) + 1)
            while g in taken and g < N - 1: g += 1
            x.tgt = min(g, N - 1); taken.add(g); last[str(x.stream)] = g
    return o
def sched_iter(T, nq, **kw):
    extra = kw.pop("extra", [])
    o = fuse_scc(extra + iteration(T, nq, **kw)); extra = []
    if nq == 4 and cfg.pack: return schedule(pack_iter(extra + o, nq), strict=True)
    return schedule(extra + o)
def place(seq, g0, g1):
    vec = [x for x in seq if x.k in COST]
    for k, x in enumerate(vec): x.tgt = g0 + k * (g1 - g0 + 1) // len(vec)
    nxt = g1
    for x in reversed(seq):
        if x.k in COST: nxt = x.tgt
        else: x.tgt = max(-1, nxt - 1); nxt = x.tgt if x.k == "salu" else nxt
    return seq
def weave(a, b, lead=0):
    grp = []; cur = []
    for x in b:
        cur.append(x)
        if x.k in COST: grp.append(cur); cur = []
    if cur: grp[-1] += cur
    out = list(a[:lead]); rest = a[lead:]; k = 0
    for n_, x in enumerate(rest):
        while k < len(grp) and k * len(rest) <= n_ * len(grp): out += grp[k]; k += 1
        out.append(x)
    for y in grp[k:]: out += y
    return out
def xw_touch(c):
    if not cfg.xtouch: return []
    x = bload("v", 231, v(vT + 2), STC, s(sTo), 0, n=1, grp="touch", stream="dma"); x.wr = set()
    return [salu("s_mul_i32", s(sTo), s(sTs), str(c), stream="dma"), x]
def wo_touch(k):
    x = I(f"global_load_dword v231, v{vT+3}, s[56:57]", "vmem", rd=[v(vT + 3)], meta="load", grp="touch", stream="dma")
    return [x, valu("v_add_u32", v(vT + 3), "0x2000", v(vT + 3), stream="dma")]
def first_tile(nq, G):
    h = 8 * nq
    o = qk(0, nq, first=True)
    if cfg.dK == 5: o += kv_dma_static("K", 3, G + h, 3)
    for a in range(nq): o += first_max(a, G + 8 * (a + 1) + 2, 0.5)
    o += k_reads(1, G + h - 6, 1)
    q1 = qk(1, nq); o += q1
    o += sm(0, nq, G + h + 2, 0.9)
    w = wvm({"K1", "V0", "G"}, tgt=G + 2 * h - 3, stream=["dma"]); b = barrier(tgt=G + 2 * h - 2, stream=["dma"])
    w.after = [q1[h - 4]]
    o += [w, b, valu("v_add_u32", v(vKrd), str(SLOT), v(vKrd0), tgt=G + 2 * h - 2)]
    o += k_reads(0, G + 2 * h - 1, 0, after=[b])
    for x in window(-1, nq, 0, True): x.tgt = G + 2 * h - 1; o.append(x)
    for k, (r_, val) in enumerate(((sS0, 0), (sVo, 2 * 16384), (sKo, (cfg.dK - 1) * 16384 - 3 * 4096), (sS1, SLOT), (sS2, 2 * SLOT), (sS3, 3 * SLOT), (sT, 0))):
        o.append(salu("s_mov_b32", s(r_), str(val), tgt=G + 10 + k))
    o.append(valu("v_mov_b32", v(vVrd), v(vVrd0), tgt=G + 8))
    if mtiles(nq):
        o.append(valu("v_mov_b32", v(LM), "0x3f803f80", tgt=G + h))
        for r in range(4): o.append(valu("v_accvgpr_write_b32", f"a{ONES + r}", v(LM), tgt=G + h + 1))
    return o
def k1_variant(nq, name, pre):
    V = Variant(nq, name)
    V.finish([label(f"L_{name}")], sched=False)
    n = 16 * nq; nx = 2 * nq
    r0 = chunk_reads(0, nq)
    V.vm = [x for x in pre if x.k == "vmem"]
    o = (clear_flags() if nq == 3 else []) + stamp(4, "st") + [wvm({"c0"})] + stamp(5, "st") + [barrier()] + stamp(1) + stamp(1, "p1") + stamp(1, "p0") + stamp(6, "st") + r0[:nx + 8]
    V.finish(o, sched=False)
    for c in range(7):
        m = chunk_mfma(c, nq)
        w = wvm({f"c{c+1}"}, stream=["rd", "dma"]); b = barrier(stream=["rd", "dma"])
        rd = chunk_reads(c + 1, nq)
        extra = []
        if c in (0, 2): extra += xw_touch(c + 4)
        if c == 0:
            g = 14
            o = place(r0[nx + 8:], -1, g - 3) + [waitlg(0, tgt=g - 1, stream="rd"), w, b] + m
            w.tgt = g - 1; b.tgt = g
            o += place(weave(rd[:14], extra + x_dma(2) + w_dma(2)) + rd[14:], g + 1, n - 3) + [waitlg(0, tgt=n - 1, stream="rd")]
        elif c <= 4:
            w.tgt = 0; b.tgt = 1
            early = extra + (x_dma(3) + w_dma(3) if c == 1 else [])
            ne = sum(1 for x in early if x.k == "vmem")
            k0 = max(nx + 4, min(len(rd) - 8, ne))
            seq = weave(rd[:k0], early) + [waitlg(k0 - nx, stream=["rd", "dma"])] + weave(rd[k0:], x_dma(c + 3))
            o = [w, b] + m + place(seq, 2, n - 8)
            o += [waitlg(0, tgt=n - 6, stream="rd"), barrier(tgt=n - 5, stream=["rd", "dma"])] + place(w_dma(c + 3), n - 4, n - 1)
        else:
            w.tgt = 0; b.tgt = 1
            if c == 5: seq = weave(rd, kv_dma_static("K", 0) + kv_dma_static("V", 0) + kv_dma_static("K", 1, ms=(0, 1)))
            else: seq = rd[:30] + weave(rd[30:], kv_dma_static("K", 1, ms=(2, 3)))
            o = [w, b] + m + place(seq, 2, n - 6) + [waitlg(0, tgt=n - 1, stream="rd")]
        if c <= 2:
            bars = [x for x in o if x.k == "bar"]
            base = {0: 2, 1: 4, 2: 7}[c]
            for k_, x in enumerate(bars[:2 if c == 1 else 1]): o += stampf(base + k_, "p0", x, x.tgt)
            if c < 2: o += stampf(base + len(bars), "p0", m[-1], n - 1)
        V.finish(o, strict=True, lds_lat=3)
        if c == 1 and nq == 3: V.finish([wvm({"clr"})] + register(), sched=False)
        V.finish(stamp(c + 2, "p1") if c < 6 else [], sched=False)
    c7 = chunk_mfma(7, nq, amajor=True)
    g0 = wvm({"K0"}, tgt=cfg.g7, stream=["dma", "rd"]); g1 = barrier(tgt=cfg.g7 + 1, stream=["dma", "rd"])
    o = [g0, g1] + c7 + kv_dma_static("K", 2, cfg.g7 + 3, 3) + k_reads(0, cfg.g7 + 4, 1) + group_load(cfg.g7 + 14) + kv_dma_static("V", 1, n - 12, 3)
    for a in range(nq): o += q_convert(a, 16 * (a + 1) + 3, 0.3)
    o += stampf(2, "main", c7[-1], n - 1)
    V.finish(o + first_tile(nq, n), budget=cfg.mbudget)
    V.finish([label(f"L_{name}_join")] + stamp(3), sched=False)
    ge = group_eval() + p3_srd_w() + (touch_setup3() if cfg.wtouch else []) + (touch_setup4() if cfg.otm else touch_setup2() if nq == 3 and cfg.touch else [])
    for k, x in enumerate(ge): x.tgt = 3 + 2 * k; x.stream = "ge"
    V.finish(sched_iter(0, nq, first=True, extra=ge), sched=False)
    seqs = [V.resolve_vm(sched_iter(T, nq)) for T in range(1, 12)]
    for k, c in enumerate(seqs[0]):
        if c.k == "wait" and c.meta[0] == "vm":
            n_ = min(q[k].meta[1] for q in seqs)
            for q in seqs: q[k] = waitvm(n_, need=q[k].need)
    _, p1 = insert_lgkm(seqs[0], V.pend)
    body, p2 = insert_lgkm(seqs[0], p1)
    body = fix_hazards(body + [nop(15)] * cfg.slow + [raw(f"s_cbranch_scc1 L_{name}_loop", "branch", rd=["scc"])], body)
    if len(V.pend) > len(p1): V.static.append(waitlg(len(p1))); V.trace.append(V.static[-1])
    V.static.append(label(f"L_{name}_loop"))
    V.static += body; V.pend = p2; V.loop_stats = gap_stats(body)
    for cur in seqs:
        new = []; k = 0
        for c in body:
            if k < len(cur) and cur[k].t == c.t: new.append(cur[k]); k += 1
            else: new.append(c)
        assert k == len(cur), ("loop body differs", cur[k].t)
        V.trace += new
    for T in (12, 13, 14): V.finish(sched_iter(T, nq, peeled=True), sched=False)
    V.finish(stamp(4), sched=False)
    if cfg.its:
        V.finish([raw("s_lshl_b32 s4, s2, 10"), raw(f"s_lshl_b32 s5, s{sW}, 8"), raw("s_add_u32 s4, s4, s5"), raw(f"s_add_u32 s4, s4, {STAMP_OFF + 0x100000}"),
                  raw(f"s_add_u32 s4, s{sWS}, s4"), raw(f"s_addc_u32 s5, s{sWS+1}, 0"), raw(f"v_lshlrev_b32 v126, 2, v{vLane}"), raw("global_store_dword v126, v127, s[4:5]"), raw("s_nop 1")], sched=False)
    h2 = 16
    o = v_reads(1, -1, 0.5)
    inv = TMP
    A = o.append
    if cfg.fallback:
        A(salu("s_lshl_b32", s(sT2), s(sW), "2", tgt=12)); A(salu("s_add_u32", s(sT2), s(sT2), str(VOTE), tgt=13))
        A(valu("v_mov_b32", v(TMP + 13), s(sT2), tgt=14)); A(valu("v_mov_b32", v(TMP + 14), str(VOTE), tgt=14))
        A(salu("s_mov_b32", s(sT0), hex(LIMIT), tgt=14)); A(raw("s_mov_b64 s[54:55], 0", "salu", wr=["s54", "s55"], tgt=15))
    smx = sm(1, nq, 0, 1.0)
    def smt(a, t0, t1):
        x = [y for y in smx if (y.rd | y.wr) & set(R("v", S_[1] + 8 * a, 8))]
        for k, y in enumerate(x): y.tgt = int(t0 + (t1 - t0) * k / len(x))
        return x
    k = 0; t = 0
    for a in range(nq):
        o += smt(a, max(-1, t - 14), t + 2 if a else 6)
        p0 = [mfma("a", oacc(a, tt), "a", KF + 4 * tt, "v", P_[0] + 4 * a) for tt in range(8)]
        p1 = [mfma("a", oacc(a, tt), "a", VF + 4 * tt, "v", P_[1] + 4 * a) for tt in range(8)]
        if a in mtiles(nq):
            if a == 0: p0.append(lsum_mfma(0, a)); p1.insert(0, lsum_mfma(1, a))
            else: p0.insert(0, lsum_mfma(0, a)); p1.insert(0, lsum_mfma(1, a))
        o += (p0 + p1) if a == 0 else [y for pr in zip(p0, p1) for y in pr]
        if a not in mtiles(nq): o += xreduce("v_add_f32", LSUM + a, TMP + 8 + a, t + 8, 1)
        A(valu("v_rcp_f32", v(inv + a), v(lsreg(a, nq)), tgt=t + 14))
        if cfg.fallback:
            A(valu("v_cmp_nge_f32", "vcc", s(sT0), v(lsreg(a, nq)), tgt=t + 14))
            A(raw("s_or_b64 s[54:55], s[54:55], vcc", "salu", rd=["vcc", "s54", "s55"], wr=["s54", "s55", "scc"], tgt=t + 15))
        if a < nq - 1: t += len(p0) + len(p1)
        if a == nq - 1:
            tv = t + 15
            if cfg.fallback:
                A(salu("s_cselect_b32", s(sT0), "1", "0", tgt=tv)); A(valu("v_mov_b32", v(TMP + 12), s(sT0), tgt=tv))
                A(I(f"ds_write_b32 v{TMP+13}, v{TMP+12}", "ldsw", rd=[v(TMP + 12), v(TMP + 13)], tgt=tv, stream="rd"))
    epi = []
    for a in range(nq):
        for sg in range(4):
            tb = 16 * (k % 4) if a else 104 + 12 * (k % 2)
            if a == 1: tb = 16 * (k % 2)
            t0 = h2 * (a + 1) + 2 * min(a + 1, len(mtiles(nq))) + 3 + 3 * sg
            blk = [salu("s_mov_b32", s(sT1), str(8192 * sg), stream="st")]
            blk += [valu("v_accvgpr_read_b32", v(tb + r), f"a{oacc(a, 2*sg) + r}") for r in range(8)]
            blk += [valu("v_mul_f32", v(tb + r), v(inv + a), v(tb + r)) for r in range(8)]
            blk += [valu("v_cvt_pk_bf16_f32", v(tb + 8 + r), v(tb + 2 * r), v(tb + 2 * r + 1)) for r in range(4)]
            blk += [bstore("v", tb + 8, v(vOst), SO, s(sT1), 1024 * a, cfg.oflags, stream="st", grp="O")]
            for y in blk: y.tgt = t0
            k += 1
            if a < nq - 1: o += blk
            else: epi += blk
    V.finish(o, budget=cfg.tbudget)
    o = epi[:22] + [waitlg(0), barrier()]
    if cfg.fallback: o.append(ds_b128("v", TMP + 4, v(TMP + 14), 0))
    o += epi[22:]
    V.finish(o, sched=False)
    V.finish(stamp(5), sched=False)
    V.npre = len(V.vm)
    if cfg.fallback:
        o = []; A = o.append
        A(valu("v_or3_b32", v(TMP + 12), v(TMP + 4), v(TMP + 5), v(TMP + 6))); A(valu("v_or_b32", v(TMP + 12), v(TMP + 12), v(TMP + 7)))
        A(valu("v_readfirstlane_b32", s(sT0), v(TMP + 12)))
        A(salu("s_andn2_b32", s(sT0), s(sT0), s(sPASS))); A(raw(f"s_cbranch_scc0 L_{name}_end", "branch", rd=["scc"]))
        A(waitvm(0)); A(barrier())
        A(valu("v_mov_b32", v(vKrd), v(vKrd0))); A(salu("s_mov_b32", s(sKo), "0")); A(salu("s_mov_b32", "m0", s(sG)))
        A(label(f"L_{name}_mx"))
        for m in range(4): A(dma(v(vKV + m), SK, s(sKo), m * PIECE, cfg.kvflags))
        A(waitvm(0)); A(barrier())
        for j in range(2):
            o += k_reads(j) + [waitlg(0)] + qk(0, nq, first=True) + [nop(7)]
            for a in range(nq):
                for r in range(4): A(valu("v_max3_f32", v(MTRUE + a), v(S_[0] + 8 * a + 2 * r), v(S_[0] + 8 * a + 2 * r + 1), v(MTRUE + a)))
        A(barrier())
        A(salu("s_add_u32", s(sKo), s(sKo), "16384")); A(salu("s_cmp_lt_u32", None, s(sKo), "262144")); A(raw(f"s_cbranch_scc1 L_{name}_mx", "branch", rd=["scc"]))
        A(salu("s_mov_b32", s(sPASS), "1"))
        for wh, tl in (("K", 0), ("V", 0), ("K", 1), ("K", 2), ("V", 1)): o += kv_dma_static(wh, tl)
        o += group_load() + [waitvm(0), barrier()] + k_reads(0) + [waitlg(0)]
        V.finish(o, sched=False)
        V.finish(first_tile(nq, 0))
        V.finish([waitlg(0), raw(f"s_branch L_{name}_join", "branch")], sched=False)
    if cfg.fused:
        V.finish([label(f"L_{name}_end"), raw("s_branch L_p3", "branch")], sched=False)
    else:
        V.finish([label(f"L_{name}_end")] + stamp(6) + dump_stamps(10, sWS, STAMP_OFF, v(vLane), "L_k1_done") + [raw("s_endpgm")], sched=False)
    return V

XOFF = 0x1000000; FOFF = 0x3000000
S3O, S3W, S3X, S3Out = 8, 12, 16, 40
s3HG, s3RP, s3CQ, s3T, s3U, s3ROT, sUNI, sF1, sF2 = 36, 37, 38, 92, 93, 94, 39, 31, 30
v3Wd = 252; vG = 224
v3Or, v3Rr, v3St, v3L16, v3Wr = 104, 106, 107, 108, 109
NW_ = 9; WU = (8, 0, 2, 1, 4, 3, 6, 5, 7)
def oset(u, sg, a): return 128 + (u % 8) * 16 + (sg * 2 + a) * 4
def wset3(p, sg, tau): return p * 64 + (sg * 8 + tau) * 4
def one_lane(ins): return [raw("s_mov_b64 exec, 1", "salu"), ins, raw("s_mov_b64 exec, -1", "salu")]
def flag_addrs(t0=None):
    o = []; A = o.append
    A(salu("s_lshr_b32", s(s3HG), s(sH), "3")); A(salu("s_bfe_u32", s(s3RP), s(sH), "0x10002", scc_w=True)); A(salu("s_and_b32", s(s3CQ), s(sH), "3"))
    A(salu("s_lshl_b32", s(sF1), s(sB), "2")); A(salu("s_add_u32", s(sF1), s(sF1), s(s3HG))); A(salu("s_lshl_b32", s(sF1), s(sF1), "7")); A(salu("s_add_u32", s(sF1), s(sF1), hex(FOFF)))
    A(salu("s_lshl_b32", s(sF2), s(sB), "3")); A(salu("s_and_b32", s(s3T), s(sH), "7")); A(salu("s_add_u32", s(sF2), s(sF2), s(s3T))); A(salu("s_lshl_b32", s(sF2), s(sF2), "9")); A(salu("s_add_u32", s(sF2), s(sF2), hex(FOFF + 4096)))
    if t0 is not None:
        for k, x in enumerate(o): x.tgt = t0 + k; x.stream = "p3s"
    return o
def clear_flags():
    o = []; A = o.append
    A(salu("s_lshr_b32", s(54), s(sH), "3")); A(salu("s_and_b32", s(55), s(sH), "7"))
    A(salu("s_lshl_b32", s(sT0), s(sB), "2")); A(salu("s_add_u32", s(sT0), s(sT0), s(54))); A(salu("s_lshl_b32", s(sT0), s(sT0), "5")); A(salu("s_add_u32", s(sT0), s(sT0), s(55)))
    A(salu("s_lshl_b32", s(sT0), s(sT0), "2")); A(salu("s_add_u32", s(sT0), s(sT0), hex(FOFF)))
    A(salu("s_lshl_b32", s(sT1), s(sB), "3")); A(salu("s_add_u32", s(sT1), s(sT1), s(55))); A(salu("s_lshl_b32", s(sT1), s(sT1), "7")); A(salu("s_add_u32", s(sT1), s(sT1), s(54)))
    A(salu("s_lshl_b32", s(sT1), s(sT1), "2")); A(salu("s_add_u32", s(sT1), s(sT1), hex(FOFF + 4096)))
    A(valu("v_mov_b32", "v8", s(sT0))); A(valu("v_lshlrev_b32", "v9", "7", v(vLane))); A(valu("v_add_u32", "v9", s(sT1), "v9")); A(valu("v_mov_b32", "v10", "0"))
    A(raw("s_mov_b64 exec, 1", "salu"))
    A(I(f"global_store_dword v8, v10, s[{sWS}:{sWS+1}] sc1", "vmem", rd=["v8", "v10"], meta="store", grp="clr"))
    A(raw("s_mov_b64 exec, 15", "salu"))
    A(I(f"global_store_dword v9, v10, s[{sWS}:{sWS+1}] sc1", "vmem", rd=["v9", "v10"], meta="store", grp="clr"))
    A(raw("s_mov_b64 exec, -1", "salu"))
    return o
def page_warm():
    o = []; A = o.append; L = v(vLane)
    A(valu("v_and_b32", "v8", "31", L)); A(valu("v_lshlrev_b32", "v8", "20", "v8"))
    A(valu("v_and_b32", "v9", "3", L)); A(valu("v_lshlrev_b32", "v10", "20", "v9")); A(valu("v_mul_u32_u24", "v9", "0x78000", "v9"))
    for a, b in (("v8", f"s[{sWS}:{sWS+1}]"), ("v10", "s[56:57]"), ("v9", "s[58:59]")):
        A(I(f"global_load_dword v231, {a}, {b}", "vmem", rd=[a], meta="load", grp="pw"))
    return o
def xcc_word(dst, tmp):
    o = [raw(f"s_getreg_b32 s{tmp}, hwreg(HW_REG_XCC_ID, 0, 4)", "salu", wr=[s(tmp)])]
    if cfg.forcemix: o.append(salu("s_and_b32", s(tmp), s(sH), "1"))
    o += [salu("s_mul_i32", s(dst), s(tmp), s(tmp)), salu("s_lshl_b32", s(dst), s(dst), "8"), salu("s_add_u32", s(dst), s(dst), s(tmp)),
          salu("s_lshl_b32", s(dst), s(dst), "8"), salu("s_add_u32", s(dst), s(dst), "1")]
    return o
def register():
    o = xcc_word(sT0, sT1); A = o.append
    A(salu("s_lshr_b32", s(sT1), s(sH), "3")); A(salu("s_lshl_b32", s(sT2), s(sB), "2")); A(salu("s_add_u32", s(sT1), s(sT1), s(sT2))); A(salu("s_lshl_b32", s(sT1), s(sT1), "2"))
    A(valu("v_mov_b32", "v228", s(sT1))); A(valu("v_mov_b32", "v229", s(sT0)))
    o += one_lane(I(f"global_atomic_add v228, v229, s[100:101]{GOFF()} sc1", "vmem", rd=["v228", "v229"], meta="store"))
    return o
sRDY = 97
def group_load(t0=None):
    o = [salu("s_lshl_b32", s(sT2), s(sB), "4"), valu("v_mov_b32", v(vG + 4), s(sT2)),
         I(f"global_load_dwordx4 v[{vG}:{vG+3}], v{vG+4}, s[100:101]{GOFF()} sc1", "vmem", rd=[v(vG + 4)], wr=R("v", vG, 4), meta="load", grp="G", stream="dma"),
         salu("s_lshr_b32", s(sRDY), s(sH), "3"), salu("s_lshl_b32", s(sRDY), s(sRDY), "2"), salu("s_add_u32", s(sT2), s(sT2), s(sRDY)), valu("v_mov_b32", v(vG + 4), s(sT2)),
         I(f"global_load_dword v{vG+5}, v{vG+4}, s[100:101]{GOFF()} sc1", "vmem", rd=[v(vG + 4)], wr=[v(vG + 5)], meta="load", grp="G", stream="dma")]
    if t0 is not None:
        for k, x in enumerate(o): x.tgt = t0 + k
    return o
def group_eval():
    o = []; A = o.append
    A(valu("v_and_b32", v(vG), v(vG), v(vG + 1))); A(valu("v_and_b32", v(vG + 2), v(vG + 2), v(vG + 3))); A(valu("v_and_b32", v(vG), v(vG), v(vG + 2)))
    A(valu("v_readfirstlane_b32", s(sRDY), v(vG))); A(valu("v_readfirstlane_b32", s(sUNI), v(vG + 5)))
    A(salu("s_and_b32", s(sRDY), s(sRDY), "8"))
    o += xcc_word(54, 55)
    A(salu("s_lshl_b32", s(54), s(54), "3")); A(salu("s_cmp_eq_u32", None, s(sUNI), s(54))); A(salu("s_cselect_b32", s(sUNI), "1", "0"))
    return o
def p3_srd_w():
    o = flag_addrs(); A = o.append
    A(salu("s_lshl_b32", s(s3ROT), s(s3T), "1"))
    A(salu("s_lshl_b32", s(s3T), s(s3HG), "20")); A(salu("s_lshl_b32", s(s3U), s(s3CQ), "6" if cfg.wil else "8")); A(salu("s_add_u32", s(s3T), s(s3T), s(s3U)))
    A(salu("s_sub_u32", s(s3U), str(1048576 + 128), s(s3U)))
    o += srd(S3W, 56, 57, s3T, 128, s(s3U))
    return o
STC = 92; sTs = 96; STC2 = 4
def touch_setup1a():
    o = []; A = o.append; L = v(vLane)
    A(salu("s_and_b32", s(sT0), s(sW), "1")); A(salu("s_mul_i32", s(sTs), s(sT0), str(524288 - 128))); A(salu("s_add_u32", s(sTs), s(sTs), "128"))
    A(salu("s_cmp_eq_u32", None, s(sT0), "1")); A(raw("s_cselect_b64 vcc, -1, 0", "salu", rd=["scc"], wr=["vcc"]))
    A(valu("v_and_b32", "v8", "31", L)); A(valu("v_min_u32", "v9", "29", "v8"))
    A(salu("s_and_b32", s(sT0), s(sH), "7")); A(salu("s_mul_i32", s(sT0), s(sT0), "30")); A(valu("v_add_u32", "v9", s(sT0), "v9")); A(valu("v_lshlrev_b32", "v9", "10", "v9")); A(valu("v_add_u32", "v9", "128", "v9"))
    A(salu("s_and_b32", s(sT0), s(sB), "3")); A(salu("s_lshl_b32", s(sT0), s(sT0), "5")); A(valu("v_add_u32", "v8", s(sT0), "v8"))
    A(valu("v_lshrrev_b32", "v10", "1", "v8")); A(valu("v_lshlrev_b32", "v10", "13", "v10")); A(valu("v_and_b32", "v8", "1", "v8")); A(valu("v_lshl_add_u32", "v8", "v8", "7", "v10"))
    A(valu("v_cndmask_b32", "v8", "v9", "v8", "vcc"))
    A(valu("v_lshrrev_b32", "v9", "5", L)); A(valu("v_mul_lo_u32", "v9", s(sTs), "v9")); A(valu("v_add_u32", v(vT + 2), "v8", "v9"))
    A(salu("s_lshr_b32", s(sT0), "s2", "3")); A(salu("s_lshl_b32", s(sT0), s(sT0), "15")); A(salu("s_lshr_b32", s(sT1), s(sH), "3")); A(salu("s_lshl_b32", s(sT1), s(sT1), "20"))
    A(salu("s_add_u32", s(sT0), s(sT0), s(sT1))); A(valu("v_lshlrev_b32", v(vT + 3), "7", L)); A(valu("v_add_u32", v(vT + 3), s(sT0), v(vT + 3)))
    return o
def touch_setup1b():
    o = []; A = o.append
    A(salu("s_bitcmp1_b32", None, s(sW), "0", scc_w=True))
    for k in range(3): A(salu("s_cselect_b32", s(STC + k), s(SWQ + k), s(SX + k)))
    A(salu("s_mov_b32", s(STC + 3), "0x20000"))
    A(salu("s_cmp_ge_u32", None, s(sW), "2")); A(salu("s_cselect_b32", s(STC + 2), "0", s(STC + 2)))
    return o
def touch_setup3():
    o = []; A = o.append
    A(salu("s_lshr_b32", s(54), "s2", "3")); A(salu("s_lshl_b32", s(54), s(54), "2")); A(salu("s_add_u32", s(54), s(54), s(sW))); A(salu("s_lshl_b32", s(54), s(54), "13"))
    A(salu("s_lshl_b32", s(55), s(s3HG), "20")); A(salu("s_add_u32", s(54), s(54), s(55)))
    A(valu("v_lshlrev_b32", "v230", "7", v(vLane))); A(valu("v_add_u32", "v230", s(54), "v230"))
    return o
def touch_setup4():
    return [valu("v_lshrrev_b32", "v230", "5", v(vLane)), valu("v_lshlrev_b32", "v230", "13", "v230"), valu("v_and_b32", "v229", "31", v(vLane)), valu("v_lshl_add_u32", "v230", "v229", "7", "v230")]
def touch_setup2():
    o = []; A = o.append
    A(salu("s_lshl_b32", s(54), s(sB), "21")); A(salu("s_lshl_b32", s(55), s(sH), "15")); A(salu("s_add_u32", s(54), s(54), s(55)))
    o += srd(SX, sWS, sWS + 1, 54, 0, str(1048576 + 32768))
    A(salu("s_lshr_b32", s(54), "s2", "3")); A(salu("s_lshl_b32", s(54), s(54), "15")); A(salu("s_lshl_b32", s(55), s(s3HG), "20")); A(salu("s_add_u32", s(54), s(54), s(55)))
    o += srd(STC2, 56, 57, 54, 0, "32768")
    A(salu("s_lshl_b32", s(54), s(s3RP), "20")); A(valu("v_lshlrev_b32", v(vT + 1), "7", v(vLane))); A(valu("v_add_u32", v(vT + 1), s(54), v(vT + 1)))
    A(valu("v_xor_b32", v(vT), "0x100000", v(vT + 1)))
    A(valu("v_add_u32", v(vT + 2), "0x2000", v(vT))); A(valu("v_add_u32", v(vT + 3), "0x2000", v(vT + 1)))
    return o
def p3_wdma(u):
    st = "dma"
    o = [salu("s_add_u32", s(s3U), s(s3ROT), str(u), stream=st), salu("s_and_b32", s(s3U), s(s3U), "15", stream=st), salu("s_lshl_b32", s(s3U), s(s3U), "16", stream=st),
         salu("s_add_u32", "m0", s(sG), str(WU[u % NW_] * UNIT), stream=st)]
    for m in range(4): o.append(dma(v(v3Wd + m), S3W, "0" if cfg.now else s(s3U), m * PIECE, cfg.k2_wflags, grp=f"w{u}", stream=st))
    return o
sXo3 = 48; sXs = 49
OWN = 0
def p3_oload(u, nq):
    st = "dma"
    o = [salu("s_add_u32", s(s3T), s(s3ROT), str(u), stream=st), salu("s_and_b32", s(s3T), s(s3T), "15", stream=st), salu("s_lshl_b32", s(s3T), s(s3T), "14", stream=st)]
    for sg in range(2):
        for a in range(nq): o.append(bload("a", oset(u, sg, a), v(v3Or + sg), S3O, "0" if cfg.noo else s(s3T), a * 1024, cfg.o3flags, grp=f"o{u}", stream=st))
    return o
def p3_reads(u):
    p = u & 1; o = []; sl = WU[u % NW_]
    for tau in range(8):
        for sg in range(2):
            for z in range(2):
                o.append(ds_tr("a", wset3(p, sg, tau) + 2 * z, v(v3Wr + sl // 3), (sl % 3) * UNIT + z * 8 * PIECE + sg * 512 + 32 * tau, stream="rd"))
    return o
def p3_setup2(L):
    o = []; A = o.append
    A(salu("s_lshl_b32", s(sT0), s(sB), "1")); A(salu("s_add_u32", s(sT0), s(sT0), s(s3RP)))
    A(salu("s_lshl_b32", s(sT1), s(sT0), "20")); A(salu("s_lshl_b32", s(sT2), s(s3HG), "18")); A(salu("s_add_u32", s(sT1), s(sT1), s(sT2))); o += srd(S3O, sWS, sWS + 1, sT1, 0, "262144")
    A(salu("s_lshl_b32", s(sT1), s(sT0), "2")); A(salu("s_add_u32", s(sT1), s(sT1), s(s3CQ))); A(salu("s_lshl_b32", s(sT1), s(sT1), "18")); A(salu("s_add_u32", s(sT1), s(sT1), hex(XOFF)))
    o += srd(S3X, sWS, sWS + 1, sT1, 0, "262144")
    A(salu("s_lshl_b32", s(sT1), s(s3RP), "2")); A(salu("s_add_u32", s(sT1), s(sT1), s(s3HG))); A(salu("s_lshl_b32", s(sT1), s(sT1), "15"))
    A(salu("s_lshl_b32", s(sT2), s(s3CQ), "6" if cfg.wil else "8")); A(salu("s_add_u32", s(sT1), s(sT1), s(sT2)))
    A(salu("s_mul_i32", s(sT0), s(sB), "245760")); A(salu("s_add_u32", s(sT0), s(sT0), s(sT1))); A(salu("s_sub_u32", s(sT1), "245760", s(sT1)))
    o += srd(S3Out, 58, 59, sT0, 0, s(sT1))
    A(salu("s_lshl_b32", s(sXo3), s(sW), "12"))
    A(valu("v_lshlrev_b32", v(v3L16), "4", L))
    A(salu("s_lshl_b32", s(sT0), s(sW), "11")); A(valu("v_add_u32", v(v3Or), s(sT0), v(v3L16))); A(valu("v_add_u32", v(v3Or + 1), "0x2000", v(v3Or)))
    A(valu("v_subrev_u32", v(v3Wr), str(UNIT), v(vVrd0))); A(valu("v_add_u32", v(v3Wr + 1), str(3 * UNIT), v(v3Wr))); A(valu("v_add_u32", v(v3Wr + 2), str(6 * UNIT), v(v3Wr)))
    A(valu("v_and_b32", "v97", "15", L)); A(valu("v_lshrrev_b32", "v98", "4", L))
    if cfg.xbf:
        A(valu("v_add_u32", v(v3Rr), s(sXo3), v(v3L16))); A(salu("s_lshl_b32", s(sT0), s(sW), "11")); A(valu("v_add_u32", v(v3Rr + 9), s(sT0), v(v3L16)))
    else:
        A(valu("v_lshlrev_b32", "v101", "9", "v98")); A(valu("v_lshl_add_u32", "v101", "v97", "4", "v101")); A(valu("v_add_u32", v(v3Rr), s(sXo3), "v101"))
        A(valu("v_add_u32", v(v3L16 + 8), "0x2000", v(v3L16)))
    for k in range(1, 4):
        A(salu("s_add_u32", s(sT0), s(s3HG), str(k))); A(salu("s_and_b32", s(sT0), s(sT0), "3")); A(salu("s_lshl_b32", s(sT1), s(s3HG), "2")); A(salu("s_add_u32", s(sT0), s(sT0), s(sT1)))
        A(salu("s_lshl_b32", s(sXs + k - 1), s(sT0), "14"))
    A(valu("v_and_b32", "v101", "3", L)); A(valu("v_max_u32", "v101", "1", "v101")); A(valu("v_add_u32", "v101", s(s3HG), "v101")); A(valu("v_and_b32", "v101", "3", "v101"))
    A(salu("s_lshl_b32", s(sT0), s(s3HG), "7")); A(salu("s_add_u32", s(sT0), s(sT0), s(sF2))); A(valu("v_lshlrev_b32", "v101", "2", "v101")); A(valu("v_add_u32", v(vPl + 2), s(sT0), "v101"))
    A(salu("s_lshr_b32", s(sT0), s(sW), "1")); A(salu("s_lshl_b32", s(sT0), s(sT0), "14")); A(salu("s_and_b32", s(sT1), s(sW), "1")); A(salu("s_lshl_b32", s(sT1), s(sT1), "9" if cfg.wil else "7")); A(salu("s_add_u32", s(sT0), s(sT0), s(sT1)))
    A(valu("v_lshlrev_b32", "v101", "10", "v97")); A(valu("v_lshl_add_u32", "v101", "v98", "3" if cfg.xbf else "4", "v101")); A(valu("v_add_u32", v(v3St), s(sT0), "v101"))
    return o
def poll(lab, base, n):
    o = []; A = o.append
    A(valu("v_lshlrev_b32", "v96", "2", v(vLane))); A(valu("v_add_u32", "v96", s(base), "v96")); A(salu("s_mov_b32", s(sT1), "0"))
    A(raw(f"s_mov_b64 exec, {(1 << n) - 1}", "salu"))
    A(label(lab))
    A(raw(f"global_load_dword v97, v96, s[{sWS}:{sWS+1}] sc1")); A(raw("s_waitcnt vmcnt(0)")); A(raw("v_cmp_ne_u32 vcc, 1, v97"))
    A(raw(f"s_add_u32 s{sT1}, s{sT1}, 1")); A(raw(f"s_cbranch_vccz {lab}_ok"))
    A(raw("s_sleep 1")); A(raw(f"s_cmp_lt_u32 s{sT1}, 0x200000")); A(raw(f"s_cbranch_scc1 {lab}"))
    A(label(f"{lab}_ok")); A(raw("s_mov_b64 exec, -1", "salu"))
    return o
def p3_front(V):
    L = v(vLane); o = []; A = o.append
    A(label("L_p3")); o += p3_setup2(L)
    A(label("L_p3_r")); A(salu("s_cmp_lg_u32", None, s(sRDY), "0")); A(raw("s_cbranch_scc1 L_p3_rok", "branch", rd=["scc"]))
    for x in group_load(): x.grp = None; x.k = "other" if x.k == "vmem" else x.k; A(x)
    A(raw("s_waitcnt vmcnt(0)")); o += group_eval(); A(raw("s_sleep 8")); A(raw("s_branch L_p3_r", "branch"))
    A(label("L_p3_rok"))
    A(salu("s_and_b32", s(sT0), s(sH), "7")); A(salu("s_lshl_b32", s(sT0), s(sT0), "2")); A(salu("s_add_u32", s(sT0), s(sT0), s(sF1)))
    A(valu("v_mov_b32", "v96", s(sT0))); A(valu("v_mov_b32", "v97", "1"))
    A(valu("v_and_b32", v(vPl), "7", L)); A(valu("v_lshlrev_b32", v(vPl), "2", v(vPl))); A(valu("v_add_u32", v(vPl), s(sF1), v(vPl)))
    A(waitvm(0)); A(barrier()); o += stamp(6)
    A(salu("s_cmp_lg_u32", None, s(sW), "0")); A(raw("s_cbranch_scc1 L_p3_a", "branch", rd=["scc"]))
    A(salu("s_cmp_eq_u32", None, s(sUNI), "1")); A(raw("s_cbranch_scc1 L_p3_u", "branch", rd=["scc"]))
    A(raw("buffer_wbl2 sc1")); A(raw("s_waitcnt vmcnt(0)"))
    o += one_lane(raw(f"global_store_dword v96, v97, s[{sWS}:{sWS+1}] sc1"))
    A(raw("s_branch L_p3_a", "branch"))
    A(label("L_p3_u"))
    o += one_lane(raw(f"global_store_dword v96, v97, s[{sWS}:{sWS+1}]"))
    A(label("L_p3_a"))
    A(salu("s_lshl_b32", s(sT0), s(s3RP), "2")); A(salu("s_add_u32", s(sT0), s(sT0), s(sW)))
    A(salu("s_cmp_eq_u32", None, s(sT0), "7")); A(raw("s_cbranch_scc1 L_g1", "branch", rd=["scc"]))
    V.finish(o, sched=False)
vPl = 112
def p3_gemm(nq, name, V0):
    V = Variant(nq, name); V.vm = list(V0.vm); V.trace = list(V0.trace); V.pend = list(V0.pend)
    pollld = lambda: I(f"global_load_dword v{vPl+1}, v{vPl}, s[{sWS}:{sWS+1}] sc1", "vmem", rd=[v(vPl)], wr=[v(vPl + 1)], meta="load", grp="poll", stream="dma")
    r0 = p3_reads(0)
    V.finish([label(f"L_{name}")] + p3_oload(0, nq) + r0[:16] + p3_oload(1, nq) + stamp(7) + stamp(1, "g"), sched=False)
    n = 16 * nq
    no = 2; nw = NW_
    o = r0[16:]
    for k, x in enumerate(o): x.tgt = -1 + k // 2
    prev = None; G = 0; wq = []
    for c in range(16):
        p = c & 1
        m = [mfma("v", a * 32 + 4 * tau, "a", wset3(p, sg, tau), "a", oset(c, sg, a), "0" if (c == 0 and sg == 0) else None) for tau in range(8) for a in range(nq) for sg in range(2)]
        w = wvm({f"o{c}", f"w{c+1}"}, tgt=G - 1, stream=["bar", "dma"])
        if prev: w.after = [prev[-2]]
        m[0].after = [w]
        o += [w]
        b = None
        if 0 < c < 15:
            b = barrier(tgt=G, stream=["bar", "dma"])
            if prev: b.after = [prev[-1]]
            o += [b]
        o += m
        if c < 15:
            d = []
            if c == 0: d += p3_wdma(7) + [pollld()] + p3_wdma(8)
            else:
                for rep in range(3 if c == 1 else 2):
                    if no < 16 and no <= c + cfg.odepth: d += p3_oload(no, nq); no += 1
                k = 0
                while c >= 2 and k < cfg.wrate and (wq or (nw < 16 and nw <= c + NW_ - 1)):
                    if not wq: wq = p3_wdma(nw); nw += 1
                    elif k == 0: d.append(salu("s_add_u32", "m0", s(sG), str(WU[(nw - 1) % NW_] * UNIT), stream="dma"))
                    while wq[0].k != "vmem": d.append(wq.pop(0))
                    d.append(wq.pop(0)); k += 1
            rd = p3_reads(c + 1)
            if b: rd[0].after = [b]
            vm = [x for x in d if x.k == "vmem"]
            vg = [int((k + 0.5) * n / len(vm)) for k in range(len(vm))] if vm else []
            if c == 1: vg = [1 + k * (n - 2) // len(vm) for k in range(len(vm))]
            for k, x in enumerate(vm): x.tgt = G + vg[k]
            lo = 8 * nq // 2 if c == 0 else 1
            free = [g for g in range(lo, n) if g not in vg] if (len(vg) < n - 4 and not cfg.gdl) else list(range(lo, n))
            for k, x in enumerate(rd): x.tgt = G + free[k * len(free) // 32]
            nxt = G + n
            for x in reversed(d):
                if x.k == "vmem": nxt = x.tgt
                else: nxt = x.tgt = max(G, nxt - 1)
            o += rd + d
        if c in (0, 1, 3, 7, 11): o += stampf(2 + (0, 1, 3, 7, 11).index(c), "g", m[-1], G + n - 1)
        prev = m; G += n
        if c == 0:
            V.finish(o, strict=True)
            q = [wvm({"poll"}), label(f"L_{name}_pl"), valu("v_cmp_ne_u32", "vcc", "1", v(vPl + 1)), salu("s_mov_b32", s(sT1), "0"), raw(f"s_cbranch_vccz L_{name}_pok", "branch"),
                 label(f"L_{name}_pl2"), raw("s_sleep 1"), raw(pollld().t), raw("s_waitcnt vmcnt(0)"), raw(f"v_cmp_ne_u32 vcc, 1, v{vPl+1}"), raw(f"s_add_u32 s{sT1}, s{sT1}, 1"),
                 raw(f"s_cbranch_vccz L_{name}_pok"), raw(f"s_cmp_lt_u32 s{sT1}, 0x200000"), raw(f"s_cbranch_scc1 L_{name}_pl2"),
                 label(f"L_{name}_pok"), salu("s_cmp_eq_u32", None, s(sUNI), "1"), raw(f"s_cbranch_scc1 L_{name}_pgo", "branch"),
                 raw("buffer_inv sc1"), raw("s_waitcnt vmcnt(0)"), label(f"L_{name}_pgo")]
            V.finish(q, sched=False)
            o = []; prev = None; G = 0
        if c == 14:
            V.finish(o, strict=True)
            o = []; prev = None; G = 0
    last = o
    V.finish([salu("s_lshl_b32", s(sT0), s(sW), "2"), salu("s_add_u32", s(sT0), s(sT0), s(s3HG)), salu("s_lshl_b32", s(sT0), s(sT0), "14"), salu("s_add_u32", s(sT2), s(sT0), "4096"),
              salu("s_cmp_eq_u32", None, s(sW), s(s3HG)), raw(f"s_cbranch_scc1 L_{name}_own", "branch", rd=["scc"])], sched=False)
    save = (list(V.vm), list(V.trace), list(V.pend))
    import copy
    def clone(seq):
        mp = {x.uid: I(x.t, x.k, x.rd, x.wr, x.crd, x.tgt, x.grp, x.need, x.stream, x.meta) for x in seq}
        for x in seq: mp[x.uid].after = [mp[a_.uid] for a_ in x.after]
        return [mp[x.uid] for x in seq]
    o = clone(last)
    for tau in range(8):
        for a in range(nq):
            t = 2 * nq * tau + 2 * a + 6; r = a * 32 + 4 * tau
            if cfg.xbf:
                d = 64 + a * 16 + 2 * tau
                o += [valu("v_cvt_pk_bf16_f32", v(d), v(r), v(r + 1), tgt=t), valu("v_cvt_pk_bf16_f32", v(d + 1), v(r + 2), v(r + 3), tgt=t)]
                if tau & 1: o.append(bstore("v", d - 2, v(v3L16), S3X, s(sT2 if a else sT0), 1024 * (tau >> 1), cfg.xsc, tgt=t + 1, stream="st"))
            else:
                o.append(bstore("v", r, v(v3L16 + (8 if a else 0)), S3X, s(sT2 if tau >> 2 else sT0), 1024 * (tau & 3), cfg.xsc, tgt=t, stream="st"))
    V.finish(o, strict=True)
    V.finish(stamp(8) + stamp(7, "g") + [barrier(), raw("s_branch L_fin_s", "branch"), label(f"L_{name}_own")], sched=False)
    V.vm, tr, V.pend = list(save[0]), V.trace, list(save[2]); V.trace = list(save[1])
    o = clone(last)
    for tau in range(8):
        for a in range(nq): o.append(ds_w128(v(v3L16), "v", a * 32 + 4 * tau, OWN + (a * 8 + tau) * 1024, tgt=2 * nq * tau + 2 * a + 6, stream="rd"))
    V.finish(o, strict=True)
    V.finish(stamp(8) + stamp(7, "g") + [waitlg(0), barrier(), raw("s_branch L_fin", "branch")], sched=False)
    V.trace2 = tr
    return V
def p3_final():
    V = Variant(4, "fin"); o = []; A = o.append
    A(label("L_fin_s"))
    A(salu("s_lshl_b32", s(sT0), s(sW), "5")); A(salu("s_add_u32", s(sT0), s(sT0), s(s3HG))); A(salu("s_lshl_b32", s(sT0), s(sT0), "2")); A(salu("s_add_u32", s(sT0), s(sT0), s(sF2)))
    A(valu("v_mov_b32", "v96", s(sT0))); A(valu("v_mov_b32", "v97", "1")); A(raw("s_waitcnt vmcnt(0)"))
    o += one_lane(raw(f"global_store_dword v96, v97, s[{sWS}:{sWS+1}] sc1"))
    A(label("L_fin")); o += stamp(8, "g")
    for q in range(4): A(ds_b128("v", 4 * q, v(v3Rr), OWN + (q * 1024 if cfg.xbf else (q >> 1) * 2048 + (q & 1) * 256)))
    A(salu("s_mov_b32", s(sT1), "0"))
    A(label("L_fin_p"))
    A(raw(f"global_load_dword v97, v{vPl+2}, s[{sWS}:{sWS+1}] sc1")); A(raw("s_waitcnt vmcnt(0)")); A(raw("v_cmp_ne_u32 vcc, 1, v97"))
    A(raw(f"s_add_u32 s{sT1}, s{sT1}, 1")); A(raw("s_cbranch_vccz L_fin_ok")); A(raw("s_sleep 1")); A(raw(f"s_cmp_lt_u32 s{sT1}, 0x200000")); A(raw("s_cbranch_scc1 L_fin_p"))
    A(label("L_fin_ok"))
    for k in range(1, 4):
        if cfg.xbf:
            for q in range(2): A(bload("v", 16 + 8 * k + 4 * q, v(v3Rr + 9), S3X, s(sXs + k - 1), q * 1024, "sc1", grp=f"x{k}"))
        else:
            for q in range(4): A(bload("v", 16 * k + 4 * q, v(v3Rr), S3X, s(sXs + k - 1), (q >> 1) * 2048 + (q & 1) * 256, "sc1", grp=f"x{k}"))
    for k in range(1, 4):
        A(wvm({f"x{k}"}))
        if cfg.xbf:
            for r in range(8):
                A(valu("v_lshlrev_b32", v(64 + r), "16", v(16 + 8 * k + r))); A(valu("v_and_b32", v(72 + r), "0xffff0000", v(16 + 8 * k + r)))
            for r in range(8):
                A(valu("v_add_f32", v(2 * r), v(2 * r), v(64 + r))); A(valu("v_add_f32", v(2 * r + 1), v(2 * r + 1), v(72 + r)))
        else:
            for r in range(16): A(valu("v_add_f32", v(r), v(r), v(16 * k + r)))
    for r in range(8): A(valu("v_cvt_pk_bf16_f32", v(16 + r), v(2 * r), v(2 * r + 1)))
    if cfg.xbf:
        for q in range(4): A(bstore("v", 16 + 2 * q, v(v3St), S3Out, "0", (256 * (q >> 1) + 32 * (q & 1)) if cfg.wil else 32 * q, cfg.outflags, n=2))
    else:
        for sg in range(2): A(bstore("v", 16 + 4 * sg, v(v3St), S3Out, "0", (256 if cfg.wil else 64) * sg, cfg.outflags))
    o += stamp(9) + stamp(9, "g") + dump_stamps(10, sWS, STAMP_OFF, v(vLane), "L_k1_done") + [raw("s_endpgm")]
    V.finish(o, sched=False)
    return V

HEAD = """; standalone__mha_block_cached__near_ridge: out = softmax((x wq) K^T / sqrt(128)) V wo
"""
def kd(name, vg, acc_off):
    return f""".amdhsa_kernel {name}
  .amdhsa_next_free_vgpr {vg}
  .amdhsa_next_free_sgpr 102
  .amdhsa_accum_offset {acc_off}
  .amdhsa_group_segment_fixed_size 0
  .amdhsa_kernarg_size 64
  .amdhsa_user_sgpr_count 2
  .amdhsa_user_sgpr_kernarg_segment_ptr 1
  .amdhsa_system_sgpr_workgroup_id_x 1
.end_amdhsa_kernel
"""
def check(pre, V):
    tr = pre + V.trace
    for nm, f in (("hazard", check_hazards), ("lgkm", check_lgkm), ("vm", check_vm)):
        bad = f(tr)
        if bad:
            print(V.name, nm, len(bad), bad[:6], file=sys.stderr); raise SystemExit(1)
def build():
    KN = "standalone__mha_block_cached__near_ridge_kernel"
    out = HEAD
    out += f"; @launch grid=(256,1,1) block=(256,1,1) lds={LDS1 + 64}\n"
    out += '.amdgcn_target "amdgcn-amd-amdhsa--gfx950"\n.text\n'
    out += f".globl {KN}\n.p2align 8\n.type {KN},@function\n{KN}:\n"
    pre = fix_hazards(k1_setup() + [salu("s_cmp_eq_u32", None, s(sW), "3"), raw("s_cbranch_scc1 L_w3", "branch")])
    import core
    def text(seq, _t=core.text):
        if not cfg.align: return _t(seq)
        r = ""; blk = []
        for c in seq + [None]:
            if c is None or (c.k == "label" and blk):
                a, _, miss = align8(blk); r += _t(a); blk = []
                if c is not None: r += "  .p2align 3, , 4\n" if False else "  .p2alignl 3, 0xbf800000\n"
            if c is not None: blk.append(c)
        return r
    out += text(pre)
    for nq, name in ((4, "w012"), (3, "w3")):
        V = k1_variant(nq, name, pre); check(pre, V)
        print(name, "loop (mfma, est cycles):", V.loop_stats, "total est", gap_stats(V.trace), file=sys.stderr)
        out += text(V.static)
    F = Variant(4, "p3"); F.vm = [x for x in V.vm[:V.npre] if x.grp and x.grp[0] == "w"]
    p3_front(F); check([], F)
    out += text(F.static)
    for nq, name in ((2, "g2"), (1, "g1")):
        W = p3_gemm(nq, name, F); check([], W); W.trace = W.trace2; check([], W)
        print(name, "total est", gap_stats(W.static), file=sys.stderr)
        out += text(W.static)
    W = p3_final(); check([], W); out += text(W.static)
    out += "L_k1_done:\n  s_endpgm\n"

    out += '.section .rodata,"a"\n.p2align 6\n' + kd(KN, 512, 256)
    return out
if __name__ == "__main__":
    path = sys.argv[1]
    for kv in sys.argv[2:]:
        k, val = kv.split("=")
        cur = getattr(cfg, k)
        setattr(cfg, k, (val == "1") if isinstance(cur, bool) else type(cur)(val.replace("+", " ")))
    EAGER[0] = cfg.eager
    txt = build()
    if cfg.cpf:
        import subprocess
        open("_p1.s", "w").write(txt.replace("CODE_SHARE", "0x1000").replace("CODE_LAST", "0x10000"))
        subprocess.check_call(["clang", "-x", "assembler", "-target", "amdgcn-amd-amdhsa", "-mcpu=gfx950", "-c", "_p1.s", "-o", "_p1.o"])
        sym = {l.split()[7]: int(l.split()[1], 16) for l in subprocess.check_output(["llvm-readelf", "-s", "_p1.o"], text=True).splitlines() if len(l.split()) == 8 and l.split()[7].startswith("L_")}
        last = sym["L_k1_done"] - sym["L_pc"]; share = ((last - 4096) // 32 + 127) & ~127
        assert share <= 4096
        txt = txt.replace("CODE_SHARE", hex(share)).replace("CODE_LAST", hex(last))
    open(path, "w").write(txt)
```

```python
import sys, math, struct
from core import *

PIECE = 1056; GRP = 4 * PIECE; UNIT = 16 * PIECE; SLOT = 2 * UNIT
X_BASE = 3 * UNIT; W_BASE = X_BASE + 2 * SLOT; LDS1 = W_BASE + 2 * UNIT
VOTE = LDS1
QSCALE = struct.unpack("<I", struct.pack("<f", math.log2(math.e) / math.sqrt(128.0)))[0]
LIMIT = 0x4b800000

class Cfg:
    stamps = False
    kvflags = "nt"
    xflags = ""
    wflags = ""
    oflags = ""
    k2_oflags = ""
    k2_wflags = ""
    fallback = True
    rot = 4
    xtouch = False
    g7 = 10
    order = 0
    nokv1 = False
    cpf = 1
    kv1 = True
    mbudget = 16
    fused = True
    pre = 2
    xsc = 'sc1'
    xbf = True
    wrate = 3
    outflags = ''
    touch = True
    pre2 = 3
    gshift = 1
    odepth = 4
    tbudget = 24
    noo = False
    now = False
    o3flags = ''
    nomf3 = False
    forcemix = False
    kvpace = True
    sset = 'main'
    nomfma1 = False
    nord1 = False
    nodma1 = False
    w3dma = True
    kswap = True
    dK = 5
    frac = 1.0
    fracK = 1.0
    dbgst = False
    its = False
    longloop = 0
    kick = 0
    align = 0
    slow = 0
    wtouch = False
    wil = False
    wlate = False
    wroll = 0
    gdl = False
    msum = 2
    cap3 = 0
    otm = 0
    kve = 3
    otd = '044'
    otw = False
    cap0 = 0
    backlog = 3
    mix2 = 1
    pack = True
    eager = 16
    extra = 0
    kdt = 2.5
    kgap = 11
    trot = False
    tsel = '0123'
    pwarm = True
    tflags = ''
    tfrom = 13
    k2map = 1
cfg = Cfg()

sW = 3; SX, SWQ, SK, SV, SO = 8, 12, 16, 20, 24
sB, sH, sROT = 28, 29, 30
sXb, sG = 31, 32
sT0, sT1, sT2 = 33, 34, 35
sXo, sXo2, sWo = 36, 37, 38
sKo, sVo = 46, 47
sS1, sS2, sS3 = 48, 49, 50
sT = 51; sPASS = 52; sC = 53; sWS = 44; sS0 = 98
vKrd, vVrd, vKrd0, vVrd0, vXrd, vWrd = 232, 233, 234, 235, 236, 237
vOst = 238; vLane = 239; vT = 220
vKV, vX, vWq = 240, 244, 248
ACC = 0; QF = 128
S_ = (0, 32); P_ = (64, 80); NEGM = 192; LSUM = 208; MTRUE = 212; TMP = 216
KF, VF = 192, 224
def acc(a, tau): return ACC + a * 32 + tau * 4
def qf(a, s): return QF + (a * 4 + s) * 4
def wset(p, s, tau): return p * 96 + (s * 8 + tau) * 4
def xset(p, s, a): return p * 96 + 64 + (s * 4 + a) * 4
def oacc(a, t): return a * 32 + t * 4
v = lambda n: f"v{n}"
s = lambda n: f"s{n}"

STAMP_BASE = 60
def stamp(i, sset="main"):
    if not cfg.stamps or (i > 0 and sset != cfg.sset and sset != "k2"): return []
    return [raw(f"s_memrealtime s[{STAMP_BASE+4*i}:{STAMP_BASE+4*i+1}]"), raw(f"s_memtime s[{STAMP_BASE+4*i+2}:{STAMP_BASE+4*i+3}]"), waitlg(0)]
def GOFF(): return " offset:128" if cfg.dbgst else ""
def stampf(i, sset, after, tgt):
    if not cfg.stamps or sset != cfg.sset: return []
    o = [I(f"s_memrealtime s[{STAMP_BASE+4*i}:{STAMP_BASE+4*i+1}]", "salu", tgt=tgt), I(f"s_memtime s[{STAMP_BASE+4*i+2}:{STAMP_BASE+4*i+3}]", "salu", tgt=tgt)]
    for x in o: x.after = [after]
    return o
def dump_stamps(n, wsreg, off, lane, lab):
    if not cfg.stamps: return []
    o = [raw("s_waitcnt vmcnt(0) lgkmcnt(0)")]
    if cfg.dbgst:
        o += [raw("s_cmp_lg_u32 s2, 100"), raw(f"s_cbranch_scc1 {lab}"), raw(f"s_cmp_lg_u32 s{sW}, 0"), raw(f"s_cbranch_scc1 {lab}"), raw("v_mov_b32 v3, 0"), raw("s_mov_b64 exec, 1")]
        for i in range(1, n):
            o += [raw(f"s_sub_u32 s4, s{STAMP_BASE+4*i}, s{STAMP_BASE}"), raw("v_mov_b32 v4, s4"), raw(f"global_store_dword v3, v4, s[100:101] offset:{4*i}"), raw("s_nop 1")]
        o += [raw(f"s_sub_u32 s4, s{STAMP_BASE+4*n-2}, s{STAMP_BASE+2}"), raw("v_mov_b32 v4, s4"), raw(f"global_store_dword v3, v4, s[100:101] offset:0")]
        return o
    o += [raw(f"s_lshl_b32 s4, s2, 10"), raw(f"s_lshl_b32 s5, s{sW}, 8"), raw("s_add_u32 s4, s4, s5"), raw(f"s_add_u32 s4, s4, {off}"),
          raw(f"s_add_u32 s4, s{wsreg}, s4"), raw(f"s_addc_u32 s5, s{wsreg+1}, 0"),
          raw(f"v_cmp_eq_u32 vcc, 0, {lane}"), raw("s_and_saveexec_b64 s[6:7], vcc"), raw(f"s_cbranch_execz {lab}"), raw("v_mov_b32 v3, 0")]
    for i in range(n):
        o += [raw(f"v_mov_b32 v{4+j}, s{STAMP_BASE+4*i+j}") for j in range(4)]
        o += [raw(f"global_store_dwordx4 v3, v[4:7], s[4:5] offset:{16*i}"), raw("s_nop 1")]
    return o
STAMP_OFF = 0x2000000

def srd(reg, lo, hi, add, sub, nrec):
    o = [salu("s_add_u32", s(reg), s(lo), s(add)), salu("s_addc_u32", s(reg + 1), s(hi), "0")]
    if sub: o += [salu("s_sub_u32", s(reg), s(reg), str(sub)), salu("s_subb_u32", s(reg + 1), s(reg + 1), "0", scc_r=True, scc_w=True)]
    o += [salu("s_mov_b32", s(reg + 2), nrec), salu("s_mov_b32", s(reg + 3), "0x20000")]
    return o

def k1_setup():
    o = []
    A = o.append
    A(raw("s_cmp_ge_u32 s2, 256")); A(raw("s_cbranch_scc1 L_k1_done"))
    o += stamp(0)
    A(raw("s_load_dwordx4 s[4:7], s[0:1], 0"))
    A(raw("s_load_dwordx4 s[40:43], s[0:1], 16"))
    A(raw(f"s_load_dwordx2 s[{sWS}:{sWS+1}], s[0:1], 56"))
    A(raw("s_load_dwordx4 s[56:59], s[0:1], 32"))
    A(raw("s_load_dwordx2 s[100:101], s[0:1], 48"))
    if cfg.cpf:
        A(raw("s_getpc_b64 s[54:55]")); A(label("L_pc"))
        A(raw("v_cmp_gt_u32 vcc, 64, v0")); A(raw("s_and_saveexec_b64 s[34:35], vcc")); A(raw("s_cbranch_execz L_cpf"))
        A(raw("s_lshr_b32 s33, s2, 3")); A(raw("s_mul_i32 s33, s33, CODE_SHARE")); A(raw("v_lshrrev_b32 v2, 5, v0")); A(raw("v_mul_u32_u24 v2, s33, v2"))
        A(raw("v_lshl_add_u32 v1, v0, 7, v2")); A(raw("v_min_u32 v1, CODE_LAST, v1")); A(raw("global_load_dword v231, v1, s[54:55]"))
        A(label("L_cpf")); A(raw("s_mov_b64 exec, s[34:35]"))
    A(valu("v_lshrrev_b32", "v1", "6", "v0")); A(valu("v_and_b32", v(vLane), "63", "v0"))
    A(valu("v_readfirstlane_b32", s(sW), "v1"))
    A(salu("s_and_b32", s(sT0), "s2", "7")); A(salu("s_lshr_b32", s(sT1), "s2", "3"))
    A(salu("s_and_b32", s(sB), s(sT0), "1")); A(salu("s_lshl_b32", s(sB), s(sB), "2")); A(salu("s_and_b32", s(sT2), s(sT1), "3")); A(salu("s_add_u32", s(sB), s(sB), s(sT2)))
    A(salu("s_lshr_b32", s(sH), s(sT0), "1")); A(salu("s_lshl_b32", s(sH), s(sH), "3")); A(salu("s_lshr_b32", s(sT1), s(sT1), "2")); A(salu("s_add_u32", s(sH), s(sH), s(sT1)))
    A(salu("s_lshl_b32", s(sT2), s(sT2), "1")); A(salu("s_add_u32", s(sROT), s(sH), s(sT2)))
    if cfg.rot == 8: A(salu("s_and_b32", s(sROT), s(sROT), "7"))
    elif cfg.rot == 1: A(salu("s_mov_b32", s(sROT), "0"))
    else:
        A(salu("s_lshr_b32", s(sT2), s(sT2), "1")); A(salu("s_add_u32", s(sROT), s(sH), s(sT2)))
        A(salu("s_and_b32", s(sROT), s(sROT), str(cfg.rot - 1))); A(salu("s_mul_i32", s(sROT), s(sROT), str(8 // cfg.rot)))
    A(salu("s_mul_i32", s(sG), s(sW), str(GRP))); A(salu("s_lshl_b32", s(sXb), s(sG), "1")); A(salu("s_add_u32", s(sXb), s(sXb), str(X_BASE)))
    A(salu("s_mov_b32", s(sC), hex(QSCALE))); A(salu("s_mov_b32", s(sPASS), "0"))
    L = v(vLane)
    A(valu("v_and_b32", "v1", "15", L)); A(valu("v_lshrrev_b32", "v2", "4", L))
    A(valu("v_bfe_u32", "v3", L, "2", "2")); A(valu("v_and_b32", "v4", "3", L))
    A(valu("v_lshrrev_b32", "v5", "5", L)); A(valu("v_lshlrev_b32", "v5", "15", "v5"))
    A(valu("v_bfe_u32", "v6", L, "3", "2")); A(valu("v_lshl_add_u32", "v5", "v6", "12", "v5"))
    A(valu("v_and_b32", "v6", "7", L)); A(valu("v_lshl_add_u32", "v5", "v6", "4", "v5"))
    A(salu("s_lshl_b32", s(sT0), s(sW), "16")); A(salu("s_add_u32", s(sT0), s(sT0), "128"))
    A(valu("v_add_u32", v(vX), s(sT0), "v5"))
    for m in range(1, 4): A(valu("v_subrev_u32", v(vX + m), str(32 * m), v(vX)))
    A(salu("s_and_b32", s(sT0), s(sW), "1")); A(salu("s_lshl_b32", s(sT0), s(sT0), "16"))
    A(salu("s_lshr_b32", s(sT1), s(sW), "1")); A(salu("s_lshl_b32", s(sT1), s(sT1), "15")); A(salu("s_add_u32", s(sT0), s(sT0), s(sT1)))
    A(valu("v_lshlrev_b32", "v5", "17", "v2")); A(valu("v_lshl_add_u32", "v5", "v1", "4", "v5"))
    A(valu("v_add_u32", v(vWq), s(sT0), "v5"))
    for m in range(1, 4): A(valu("v_add_u32", v(vWq + m), str(m * (8192 - PIECE)), v(vWq)))
    A(salu("s_lshl_b32", s(sT0), s(sW), "12")); A(salu("s_add_u32", s(sT0), s(sT0), "128"))
    A(valu("v_lshlrev_b32", v(vOst), "4", L)); A(valu("v_add_u32", v(vKV), s(sT0), v(vOst)))
    for m in range(1, 4): A(valu("v_subrev_u32", v(vKV + m), str(32 * m), v(vKV)))
    o += k1_setup2() + (touch_setup1a() if cfg.xtouch else [])
    A(salu("s_mul_i32", s(sT0), s(sB), "245760")); A(salu("s_lshl_b32", s(sT1), s(sH), "8")); A(salu("s_sub_u32", s(sT2), "0x400000", s(sT1)))
    A(raw("s_waitcnt lgkmcnt(0)", "other"))
    o += stamp(1, "st")
    o += srd(SX, 4, 5, sT0, 128, str(245760 + 128)) + srd(SWQ, 42, 43, sT1, 0, s(sT2))
    rest = []; A = rest.append
    A(salu("s_lshl_b32", s(sT0), s(sB), "5")); A(salu("s_add_u32", s(sT0), s(sT0), s(sH))); A(salu("s_lshl_b32", s(sT0), s(sT0), "18"))
    rest += srd(SK, 6, 7, sT0, 128, str(262144 + 128)) + srd(SV, 40, 41, sT0, 128, str(262144 + 128))
    A(salu("s_lshl_b32", s(sT0), s(sB), "21")); A(salu("s_lshr_b32", s(sT1), s(sW), "1")); A(salu("s_lshl_b32", s(sT1), s(sT1), "20")); A(salu("s_add_u32", s(sT0), s(sT0), s(sT1)))
    A(salu("s_lshl_b32", s(sT1), s(sH), "15")); A(salu("s_add_u32", s(sT0), s(sT0), s(sT1)))
    A(salu("s_and_b32", s(sT1), s(sW), "1")); A(salu("s_lshl_b32", s(sT1), s(sT1), "12")); A(salu("s_add_u32", s(sT0), s(sT0), s(sT1)))
    rest += srd(SO, sWS, sWS + 1, sT0, 0, "28672")
    c0 = x_dma(0) + w_dma(0); c1 = x_dma(1) + w_dma(1); t = touch_setup1b() if cfg.xtouch else []
    if cfg.order == 0: o += c0 + stamp(2, "st") + c1 + stamp(3, "st") + t + xw_touch(2) + rest
    if cfg.order == 1: o += t + xw_touch(0) + c0 + stamp(2, "st") + xw_touch(2) + c1 + stamp(3, "st") + rest
    if cfg.order == 2: o += t + xw_touch(0) + xw_touch(2) + c0 + stamp(2, "st") + c1 + stamp(3, "st") + rest
    if cfg.order == 4: o += c0 + stamp(2, "st") + t + xw_touch(2) + c1 + stamp(3, "st") + rest
    return o

def k1_setup2():
    o = []; A = o.append
    A(salu("s_mov_b32", s(sT0), str(PIECE)))
    A(valu("v_and_b32", "v5", "7", "v1")); A(valu("v_mul_u32_u24", "v5", s(sT0), "v5"))
    A(valu("v_lshrrev_b32", "v6", "3", "v1")); A(valu("v_lshl_add_u32", "v5", "v6", "8", "v5")); A(valu("v_lshl_add_u32", v(vKrd0), "v2", "4", "v5"))
    A(valu("v_mov_b32", v(vKrd), v(vKrd0)))
    A(valu("v_and_b32", "v5", "1", "v2")); A(valu("v_lshl_add_u32", "v5", "v5", "2", "v3")); A(valu("v_mul_u32_u24", "v5", s(sT0), "v5"))
    A(valu("v_lshrrev_b32", "v6", "1", "v2")); A(valu("v_lshl_add_u32", "v5", "v6", "8", "v5")); A(valu("v_lshl_add_u32", "v5", "v4", "3", "v5"))
    A(valu("v_add_u32", v(vVrd0), str(UNIT), "v5")); A(valu("v_mov_b32", v(vVrd), v(vVrd0))); A(valu("v_add_u32", v(vWrd), str(W_BASE), "v5"))
    A(valu("v_mul_u32_u24", "v5", s(sT0), "v4")); A(valu("v_lshl_add_u32", "v5", "v3", "7", "v5")); A(valu("v_lshl_add_u32", "v5", "v2", "4", "v5"))
    A(valu("v_add_u32", v(vXrd), s(sXb), "v5"))
    for a in range(4): A(valu("v_mov_b32", v(MTRUE + a), "0xff800000"))
    A(valu("v_lshrrev_b32", "v5", "1", "v2")); A(valu("v_lshlrev_b32", "v5", "15", "v5")); A(valu("v_and_b32", "v6", "1", "v2")); A(valu("v_lshl_add_u32", "v5", "v6", "13", "v5"))
    if cfg.wil: A(valu("v_lshl_add_u32", "v5", "v3", "8", "v5")); A(valu("v_lshl_add_u32", "v5", "v4", "4", "v5"))
    else: A(valu("v_lshl_add_u32", "v5", "v1", "4", "v5"))
    A(salu("s_lshr_b32", s(sT0), s(sW), "1")); A(salu("s_lshl_b32", s(sT0), s(sT0), "14")); A(salu("s_and_b32", s(sT1), s(sW), "1")); A(salu("s_lshl_b32", s(sT1), s(sT1), "12"))
    A(salu("s_add_u32", s(sT0), s(sT0), s(sT1))); A(valu("v_add_u32", "v5", s(sT0), "v5"))
    for m in range(4): A(valu("v_add_u32", v(v3Wd + m), str(128 - 32 * m), "v5"))
    return o

def x_dma(c, t0=None, dt=1, after=None):
    p = c & 1; o = []; g = f"c{c}"; st = "dma"
    def T(k): return None if t0 is None else int(t0 + k * dt)
    def U(k): return None if t0 is None else int(t0 - 7 + k)
    o.append(salu("s_add_u32", s(sT0), s(sROT), str(c), tgt=U(0), stream="xa")); o.append(salu("s_and_b32", s(sT0), s(sT0), "7", tgt=U(1), stream="xa"))
    o.append(salu("s_lshl_b32", s(sXo), s(sT0), "7", tgt=U(2), stream="xa")); o.append(salu("s_lshl_b32", s(sWo), s(sT0), "19", tgt=U(3), stream="xa"))
    o.append(salu("s_add_u32", s(sXo2), s(sXo), "16384", tgt=U(4), stream="xa"))
    k = 0
    for half in range(2):
        o.append(salu("s_add_u32", "m0", s(sXb), str(p * SLOT + half * GRP), tgt=T(k - 1), stream=st))
        for m in range(4):
            d = dma(v(vX + m), SX, s(sXo2 if half else sXo), m * PIECE, cfg.xflags, grp=g, tgt=T(k), stream=st); k += 1
            if after: d.after = list(after)
            o.append(d)
    return o
def w_dma(c, t0=None, dt=1):
    p = c & 1; o = []; g = f"c{c}"; st = "dma"
    def T(k): return None if t0 is None else int(t0 + k * dt)
    o.append(salu("s_add_u32", "m0", s(sG), str(W_BASE + p * UNIT), tgt=T(-1), stream=st))
    for m in range(4): o.append(dma(v(vWq + m), SWQ, s(sWo), m * PIECE, cfg.wflags, grp=g, tgt=T(m), stream=st))
    return o
def kv_dma_static(which, tile, t0=None, dt=1, grp=0, ms=(0, 1, 2, 3)):
    st = "dma"
    def T(k): return None if t0 is None else t0 + k * dt
    o = [salu("s_mov_b32", s(sT1), str(tile * 16384 + grp * 4096), tgt=T(-1), stream=st),
         salu("s_add_u32", "m0", s(sG), str((tile & 3) * SLOT + (UNIT if which == "V" else 0) + grp * GRP), tgt=T(-1), stream=st)]
    for k, m in enumerate(ms): o.append(dma(v(vKV + m), SK if which == "K" else SV, s(sT1), m * PIECE, cfg.kvflags, grp=f"{which}{tile}", tgt=T(k), stream=st))
    return o
def chunk_reads(c, nq, t0=None, dt=1):
    p = c & 1; o = []; k = 0
    def T(k): return None if t0 is None else t0 + k * dt
    items = []
    for s_ in range(2):
        for a in range(nq): items.append(("x", s_, a))
    for tau in range(8):
        for s_ in range(2):
            for z in range(2): items.append(("w", s_, tau, z))
    for it in items:
        if it[0] == "x":
            _, s_, a = it
            o.append(ds_b128("a", xset(p, s_, a), v(vXrd), p * SLOT + (a & 1) * GRP + (a >> 1) * 512 + s_ * 64, tgt=T(k), stream="rd"))
        else:
            _, s_, tau, z = it
            o.append(ds_tr("a", wset(p, s_, tau) + 2 * z, v(vWrd), p * UNIT + z * 8 * PIECE + s_ * 512 + 32 * tau, tgt=T(k), stream="rd"))
        k += 1
    return o
def chunk_mfma(c, nq, amajor=False):
    p = c & 1; o = []
    order = [(a, tau) for a in range(nq) for tau in range(8)] if amajor else [(a, tau) for tau in range(8) for a in range(nq)]
    for a, tau in order:
        for s_ in range(2):
            z = (c == 0 and s_ == 0)
            o.append(mfma("v", acc(a, tau), "a", wset(p, s_, tau), "a", xset(p, s_, a), "0" if z else None))
    return o
def q_convert(a, t0, dt):
    o = []; k = 0
    for s_ in range(4):
        d = qf(a, s_)
        for half in range(2):
            b = acc(a, 2 * s_ + half)
            for r in range(4): o.append(valu("v_mul_f32", v(b + r), s(sC), v(b + r), tgt=t0 + k * dt)); k += 1
            for r in range(2): o.append(valu("v_cvt_pk_bf16_f32", v(d + 2 * half + r), v(b + 2 * r), v(b + 2 * r + 1), tgt=t0 + k * dt)); k += 1
        for r in range(2): o.append(swap("v_permlane32_swap_b32", v(d + r), v(d + 2 + r), tgt=t0 + k * dt)); k += 1
        for r in range(2): o.append(swap("v_permlane16_swap_b32", v(d + r), v(d + 2 + r), tgt=t0 + k * dt)); k += 1
    return o
def k_reads(j, t0=None, dt=4, after=None):
    o = []
    for r in range(8):
        kap, s_ = r >> 2, r & 3
        i = ds_b128("a", KF + 4 * r, v(vKrd), j * 8 * PIECE + kap * 512 + s_ * 64, tgt=None if t0 is None else t0 + r * dt, stream="rd")
        if after: i.after = list(after)
        o.append(i)
    return o
def v_reads(j, t0, dt):
    o = []
    for r in range(16):
        t, z = r >> 1, r & 1
        o.append(ds_tr("a", VF + 4 * t + 2 * z, v(vVrd), j * 8 * PIECE + z * 512 + 32 * t, tgt=t0 + r * dt, stream="rd"))
    return o
def qk(j, nq, first=False):
    o = []
    for a in range(nq):
        for kap in range(2):
            d = S_[j] + a * 8 + kap * 4
            for s_ in range(4):
                if s_ == 0: o.append(mfma("v", d, "a", KF + 4 * (kap * 4), "v", qf(a, 0), "0" if first else "v", None if first else NEGM + 4 * a))
                else: o.append(mfma("v", d, "a", KF + 4 * (kap * 4 + s_), "v", qf(a, s_)))
    return o
ONES = 128; LM = 96
def mtiles(nq): return list(range(cfg.msum)) if nq == 4 else []
def lsreg(a, nq): return LM + 4 * a if a in mtiles(nq) else LSUM + a
def lsum_mfma(j, a, first=False): return mfma("v", LM + 4 * a, "a", ONES, "v", P_[j] + 4 * a, "0" if first else None)
def pv(j, nq, first=False):
    o = [mfma("a", oacc(a, t), "a", VF + 4 * t, "v", P_[j] + 4 * a, "0" if first else None) for t in range(8) for a in range(nq)]
    return o + [lsum_mfma(j, a, first) for a in mtiles(nq)]
def sm(j, nq, t0, dt=2.0, mix=False):
    o = []
    order = list(range(8 * nq))
    if mix and len(mtiles(nq)) == 2:
        order = [e_ for k in range(8) for e_ in (2 * k, 2 * k + 1, 16 + 2 * k, 17 + 2 * k)]
        if cfg.mix2 == 0: order = list(range(32))
        if cfg.mix2 == 2: order = [e_ for k in range(4) for e_ in (2 * k, 2 * k + 1, 16 + 2 * k, 17 + 2 * k)] + [e_ for k in range(4) for e_ in (24 + 2 * k, 25 + 2 * k, 8 + 2 * k, 9 + 2 * k)]
    if mix and len(mtiles(nq)) == 1:
        order = [e_ for k in range(4) for e_ in (2 * k, 2 * k + 1, 8 + 2 * k, 9 + 2 * k)] + list(range(16, 32))
    for n_, i in enumerate(order):
        r = S_[j] + i; a = i >> 3
        o.append(valu("v_exp_f32", v(r), v(r), tgt=int(t0 + n_ * dt)))
        if a not in mtiles(nq): o.append(valu("v_add_f32", v(LSUM + a), v(LSUM + a), v(r), tgt=int(t0 + n_ * dt + 1)))
        if i & 1: o.append(valu("v_cvt_pk_bf16_f32", v(P_[j] + (i >> 1)), v(r - 1), v(r), tgt=int(t0 + n_ * dt + 1)))
    return o
def xreduce(op, reg, tmp, t0=None, dt=1):
    def T(k): return None if t0 is None else t0 + k * dt
    return [valu("v_mov_b32", v(tmp), v(reg), tgt=T(0)), swap("v_permlane16_swap_b32", v(reg), v(tmp), tgt=T(1)), valu(op, v(reg), v(reg), v(tmp), tgt=T(2)),
            valu("v_mov_b32", v(tmp), v(reg), tgt=T(3)), swap("v_permlane32_swap_b32", v(reg), v(tmp), tgt=T(4)), valu(op, v(reg), v(reg), v(tmp), tgt=T(5))]
def first_max(a, t0, dt):
    o = []; b = S_[0] + a * 8; m = TMP + 2 * a; k = 0
    o.append(valu("v_max3_f32", v(m), v(b), v(b + 1), v(MTRUE + a), tgt=t0))
    for r in range(1, 4): o.append(valu("v_max3_f32", v(m), v(b + 2 * r), v(b + 2 * r + 1), v(m), tgt=t0 + r * dt))
    o += xreduce("v_max_f32", m, m + 1, t0 + 4 * dt, dt)
    for r in range(4): o.append(valu("v_sub_f32", v(NEGM + 4 * a + r), "0", v(m), tgt=t0 + (10 + r) * dt))
    for r in range(8): o.append(valu("v_sub_f32", v(b + r), v(b + r), v(m), tgt=t0 + (14 + r) * dt))
    o.append(valu("v_mov_b32", v(LSUM + a), "0", tgt=t0))
    return o

class Variant:
    def __init__(s_, nq, name):
        s_.nq, s_.name = nq, name
        s_.static = []
        s_.trace = []
        s_.vm = []
        s_.pend = []
    def finish(s_, seq, sched=True, **kw):
        seq = schedule(seq, **kw) if sched else seq
        seq = s_.resolve_vm(seq)
        seq, s_.pend = insert_lgkm(seq, s_.pend)
        seq = fix_hazards(seq, s_.trace)
        s_.static += seq; s_.trace += seq
        return seq
    def resolve_vm(s_, seq):
        out = []
        for c in seq:
            if c.k == "wait" and c.meta == ("vm", None):
                n = min(vm_count(s_.vm, c.need), 63)
                w = waitvm(n, need=c.need); out.append(w)
            else:
                out.append(c)
                if c.k == "vmem": s_.vm.append(c)
        return out
def wvm(groups, **kw): return I("s_waitcnt vmcnt(?)", "wait", meta=("vm", None), need=set(groups), **kw)

sTo = 49 + 50
sKt = 95
def window(T, nq, part, static):
    n = 8 * nq; st = "dma"
    ps = [((m + 0.5) / 4, "V", 0, m) for m in range(4)]
    if nq == 3: ps += [((k + 0.25) / 16, "K", k >> 2, k & 3) for k in range(16)]
    fv = 0.24 if (cfg.wlate and T == 12) else cfg.frac
    ps = sorted((p * (fv if w_ == 'V' else cfg.fracK), w_, g_, m) for p, w_, g_, m in ps)
    o = []; cur = None
    It = T + part
    for p, w_, g_, m in ps:
        if (p >= 0.25) != bool(part): continue
        tile = T + (3 if w_ == "V" else cfg.dK)
        if static and tile > 15: continue
        tg = int(3 * n + len(mtiles(nq)) + p * (4 * n - 4)) if part == 0 else int((p - 0.25) * (4 * n - 6)) + 1
        if (w_, g_) != cur:
            cur = (w_, g_)
            if static:
                o.append(salu("s_mov_b32", s(sKt), str(tile * 16384 + ((g_ - 3) * 4096 if w_ == "K" else 0)), tgt=tg - 2, stream=st))
                if w_ == "V": o.append(salu("s_add_u32", "m0", s(sG), str((tile & 3) * SLOT + UNIT), tgt=tg - 1, stream=st))
                else: o.append(salu("s_mov_b32", "m0", str((tile & 3) * SLOT + g_ * GRP), tgt=tg - 1, stream=st))
            else:
                sl = (sS0, sS1, sS2, sS3)[(tile - It) & 3]
                if w_ == "V":
                    o.append(salu("s_add_u32", s(sT0), s(sl), s(sG), tgt=tg - 2, stream=st)); o.append(salu("s_add_u32", "m0", s(sT0), str(UNIT), tgt=tg - 1, stream=st))
                else:
                    o.append(salu("s_add_u32", s(sKt), s(sKo), str(g_ * 4096), tgt=tg - 2, stream=st)); o.append(salu("s_add_u32", "m0", s(sl), str(g_ * GRP), tgt=tg - 1, stream=st))
        cap = cfg.cap3 if nq == 3 else cfg.cap0
        if cap: o.append(waitvm(cap - 1, tgt=tg - 1, stream=st))
        so = sKt if (static or w_ == "K") else sVo
        o.append(dma(v(vKV + m), SV if w_ == "V" else SK, s(so), m * PIECE, cfg.kvflags, grp=f"{w_}{tile}", tgt=tg, stream=st))
    return o
def iteration(T, nq, first=False, peeled=False):
    n = 8 * nq
    st = "dma"
    o = []
    vdt = 2 if nq == 4 else 1.5
    o += qk(0, nq)
    o += v_reads(0, 1, vdt)
    o += sm(1, nq, 0, mix=True)
    o += k_reads(1, n + 1, (n - 4) / 8)
    o += pv(0, nq, first)
    mx = len(mtiles(nq))
    B = 2 * n + mx
    o += qk(1, nq)
    vr = v_reads(1, B + 1, vdt); o += vr
    o.append(valu("v_add_u32", v(vVrd), str(((T + 1) & 3) * SLOT) if peeled else s(sS1), v(vVrd0), tgt=B + n + 2))
    o += sm(0, nq, B - 2, 2.0, mix=True)
    w = wvm({f"K{T+2}", f"V{T+1}"}, tgt=B + n - 3, stream=["rd2", st]); b = barrier(tgt=B + n - 2, stream=["rd2", st])
    w.after = [x for x in o if x.k == "mfma"][B + n - 4:B + n - 3]
    o += [w, b]
    if cfg.its:
        x1 = valu("v_mov_b32", "v126", "s90", tgt=B + n - 1); x1.after = [b]
        x2 = I("s_memrealtime s[90:91]", "salu", tgt=B + n - 1); x2.after = [x1]
        o += [x1, x2, valu("v_cmp_eq_u32", "vcc", "s51", v(vLane), tgt=B + n), valu("v_cndmask_b32", "v127", "v127", "v126", "vcc", tgt=B + n + 2)]
    e = 4 * n + 2 * mx - 1
    t = B + n
    if T >= 12 and peeled:
        eA = []; eB = []
        if T == 12: eA = p3_wdma(0) + p3_wdma(1)
        if T == 13: eA = p3_wdma(2); eB = p3_wdma(3)
        if cfg.wlate:
            if T == 12: eA = []
            if T == 13: eA = p3_wdma(0) + p3_wdma(1) + p3_wdma(2)
        if cfg.wtouch and T == 12:
            x = I(f"global_load_dword v231, v230, s[56:57]", "vmem", rd=["v230"], meta="load", grp="touch")
            eA = [x]; eB = p3_wdma(0)
        if cfg.wtouch and T == 13: eA = p3_wdma(1) + p3_wdma(2)
        if T == 14: eA = p3_wdma(4); eB = p3_wdma(5) + p3_wdma(6)
        if cfg.touch and cfg.otm == 0 and nq == 3:
            cnt = [int(c_) for c_ in cfg.otd]; k0 = sum(cnt[:T - 12]); tl = []
            for k in range(k0, k0 + cnt[T - 12]):
                tl.append(salu("s_mov_b32", s(sTo), str((k >> 2) * 16384), stream=st))
                tl.append(bload("v", 231, v(vT + (k & 3)), SX, s(sTo), 0, cfg.tflags, n=1, grp="touch", stream=st)); tl[-1].wr = set()
            eA = weave(eA, tl) if (eA and tl and cfg.otw) else eA + tl
        if cfg.touch and cfg.otm:
            def ot(k):
                x = bload("v", 231, "v230", SO, s(sTo), 0, cfg.tflags, n=1, grp="touch", stream=st); x.wr = set()
                return [salu("s_mov_b32", s(sTo), str(k * 16384), stream=st), x]
            where = {1: ((13, "B"), (14, "A")), 2: ((14, "A"), (14, "A")), 3: ((13, "B"), (13, "B")), 4: ((13, "A"), (13, "B")), 5: ((14, "A"), (14, "B"))}[cfg.otm]
            for k, (tt, ab) in reversed(list(enumerate(where))):
                if tt == T and ab == "A": eA = ot(k) + eA
                if tt == T and ab == "B": eB = ot(k) + eB
        for x in eA: x.stream = st
        pre = window(T - 1, nq, 1, True); post = window(T, nq, 0, True)
        if eA: place(eA, 3 if T == 12 else 6, 3 * n - 8)
        if eB: place(eB, t + 2, e - 4)
        def merge(a_, b_):
            items = []
            for z, seq in enumerate((a_, b_)):
                setup = []; m0 = None
                for x in seq:
                    if x.k == "vmem": items.append((x.tgt, len(items), z, setup, m0, x)); setup = []
                    else:
                        setup.append(x)
                        if "m0" in x.wr: m0 = x
            items.sort(key=lambda q_: q_[:2]); res = []; cur = None
            for tg, _, z, setup, m0, x in items:
                if any("m0" in y.wr for y in setup): m0 = next(y for y in setup if "m0" in y.wr)
                elif "m0" in x.rd and cur is not m0: setup = setup + [I(m0.t, m0.k, m0.rd, m0.wr, tgt=tg - 1, stream=m0.stream)]
                if "m0" in x.rd: cur = m0
                res += setup + [x]
            return res
        eA = merge(pre, eA); eB = merge(post, eB)
        k = o.index(w); o[k:k] = eA
        if T < 14:
            o.append(valu("v_add_u32", v(vKrd), str(((T + 2) & 3) * SLOT), v(vKrd0), tgt=B + n - 4))
            o += k_reads(0, B + n + 1, (n - 4) / 8, after=[b])
        else:
            o += [ds_tr("a", KF + 4 * (r >> 1) + 2 * (r & 1), v(vVrd), (r & 1) * 512 + 32 * (r >> 1), tgt=int(B + n + 4 + r * (n - 6) / 16), stream="rd") for r in range(16)]
            for x in o[-16:]: x.after = [b]
        return o + eB + pv(1, nq)
    o.append(valu("v_add_u32", v(vKrd), s(sS2), v(vKrd0), tgt=B + n - 4))
    o += k_reads(0, B + n + 1, (n - 4) / 8, after=[b])
    pre = window(T - 1, nq, 1, False)
    pre += [salu("s_add_u32", s(sVo), s(sVo), "16384", tgt=t - 5, stream=st)] + ([salu("s_add_u32", s(sKo), s(sKo), "16384", tgt=t - 4, stream=st)] if nq == 3 else [])
    if cfg.wroll and nq == 3:
        x = bload("v", 231, v(vT), STC2, s(sTo), 0, n=1, grp="touch", tgt=B + 6, stream=st); x.wr = set()
        pre += [salu("s_sub_u32", s(sT2), s(sT), str(cfg.wroll), tgt=B, stream="tch"), salu("s_lshl_b32", s(sTo), s(sT2), "13", tgt=B + 1, stream="tch"), x]
        pre.sort(key=lambda y: 0)
    if cfg.kick and nq == 3:
        kk = [salu("s_cmp_eq_u32", None, s(sT), "5", tgt=B + 2, stream=st), salu("s_cselect_b32", s(sTo), "0", "0x7ff00000", tgt=B + 3, stream=st)]
        for z in range(cfg.kick):
            kk.append(bload("v", 231, v(vT + (z & 1)), SX, s(sTo), 0, "nt", n=1, grp="touch", tgt=B + 4 + z, stream=st)); kk[-1].wr = set()
            kk.append(salu("s_add_u32", s(sTo), s(sTo), "8192" if z & 1 else "0", tgt=B + 4 + z, stream=st))
        pre += kk
    if cfg.extra and nq == 4:
        ex = [salu("s_mul_i32", s(sTo), "s2", "0x40000", tgt=4, stream=st), salu("s_lshl_b32", s(sT2), s(sT), "12", tgt=5, stream=st), salu("s_add_u32", s(sTo), s(sTo), s(sT2), tgt=6, stream=st),
              salu("s_add_u32", s(sTo), s(sTo), "0x4000000", tgt=6, stream=st), salu("s_mul_i32", s(sT2), s(sW), "0x4000000", tgt=6, stream=st), salu("s_add_u32", s(sTo), s(sTo), s(sT2), tgt=6, stream=st),
              valu("v_add_u32", "v125", s(sTo), v(vOst), tgt=7), salu("s_mov_b32", "m0", str(8 * UNIT), tgt=8, stream=st)]
        for z in range(cfg.extra): ex.append(I(f"global_load_lds_dwordx4 v125, s[{sWS}:{sWS+1}] offset:{z*1024} nt", "vmem", rd=["v125", "m0"], meta="dma", grp="ex", tgt=9 + z, stream=st))
        pre = ex + pre
    k = o.index(w); o[k:k] = pre
    o += window(T, nq, 0, False)
    r = e - 9
    o += pv(1, nq)
    o.append(salu("s_mov_b32", s(sS0), s(sS1), tgt=r + 1, stream=st))
    o.append(salu("s_mov_b32", s(sS1), s(sS2), tgt=r + 2, stream=st)); o.append(salu("s_mov_b32", s(sS2), s(sS3), tgt=r + 3, stream=st))
    o.append(salu("s_add_u32", s(sS3), s(sS3), str(SLOT), tgt=r + 4, stream=st)); o.append(salu("s_cmp_eq_u32", None, s(sS3), str(4 * SLOT), tgt=r + 5, stream=st))
    o.append(salu("s_cselect_b32", s(sS3), "0", s(sS3), tgt=r + 6, stream=st))
    o.append(salu("s_add_u32", s(sT), s(sT), "1", tgt=r + 7, stream=st));
    if cfg.longloop:
        for rg_ in (sKo, sVo):
            o += [salu("s_cmp_ge_u32", None, s(rg_), str(262144 - 16384), tgt=r + 8, stream=st), salu("s_cselect_b32", s(sT0), str(14 * 16384), "0", tgt=r + 8, stream=st), salu("s_sub_u32", s(rg_), s(rg_), s(sT0), tgt=r + 8, stream=st)]
    o.append(salu("s_cmp_lt_u32", None, s(sT), str(cfg.longloop or 12), tgt=r + 8, stream=st))
    return o

def pack_iter(o, nq):
    N = sum(1 for x in o if x.k == "mfma"); H = N // 2
    ex = [x for x in o if x.k == "trans"]; ld = [x for x in o if x.k == "lds"]; vm = [x for x in o if x.k == "vmem"]
    va = [x for x in o if x.k == "valu"]
    for i, x in enumerate(ex): x.tgt = (i // 32) * H + ((i % 32) * H) // 32
    eg = {x.tgt for x in ex}
    expo = {next(iter(x.wr)): x.tgt for x in ex[:32]}; expo2 = {next(iter(x.wr)): x.tgt for x in ex[32:]}
    dg = set()
    for x in vm:
        g = min(x.tgt, N - 1)
        while g in dg or g in eg: g += 1
        x.tgt = g; dg.add(g)
    xg = [g for g in range(N) if g not in dg and g not in eg]
    lg = {}
    for x in ld:
        left = len(ld) - len(lg); last = max(lg, default=-1)
        free = [g for g in xg if g > last]
        if len([g for g in free if g >= x.tgt]) >= left: g = next(g for g in free if g >= x.tgt)
        else: g = max(last + 1, min(int(x.tgt), N - 2 - left)); g += g in dg
        lg[g] = x; x.tgt = g
    rdy = []
    for x in va:
        op = x.t.split()[0]
        if op in ("v_add_f32", "v_cvt_pk_bf16_f32"):
            r = max((expo.get(q, expo2.get(q, -1)) if o.index(x) < o.index(ex[32]) else expo2.get(q, -1)) for q in x.rd) + 1
        else: r = x.tgt
        rdy.append((r, len(rdy), x))
    rdy.sort(key=lambda z: z[:2])
    bonus = set()
    def fill():
        k = 0; back = {}
        for g in xg:
            cap = (1 if g in lg else 2) + (g in bonus); take = 0
            while k < len(rdy) and rdy[k][0] <= g and take < cap: rdy[k][2].tgt = g; k += 1; take += 1
            back[g] = sum(1 for z in rdy[k:] if z[0] <= g)
        return len(rdy) - k, back
    while True:
        left, back = fill()
        worst = max(back.values())
        if left == 0 and worst <= cfg.backlog: break
        cand = [g for g in xg if g not in bonus and back[g] > (cfg.backlog if worst > cfg.backlog else 0)]
        if not cand: break
        bonus.add(cand[0] if worst > cfg.backlog else cand[-1])
    left, back = fill()
    if left:
        for z in rdy[len(rdy) - left:]: z[2].tgt = N - 1
    taken = {x.tgt for x in o if x.k in ("wait", "bar")}
    dl = {}
    for idx in range(len(o) - 1, -1, -1):
        x = o[idx]
        if x.k == "salu":
            nx = next((y for y in o[idx + 1:] if y.k in ("vmem", "salu", "wait") and (y.stream == x.stream or (isinstance(y.stream, list) and x.stream in y.stream))), None)
            if nx is not None and (nx.k != "salu" or id(nx) in dl):
                g = nx.tgt - 1
                while g in taken and g > -1: g -= 1
                x.tgt = g; taken.add(g); dl[id(x)] = g
    last = {}
    for x in o:
        if x.k == "salu" and id(x) not in dl:
            g = max(int(x.tgt), last.get(str(x.stream), -1) + 1)
            while g in taken and g < N - 1: g += 1
            x.tgt = min(g, N - 1); taken.add(g); last[str(x.stream)] = g
    return o
def sched_iter(T, nq, **kw):
    extra = kw.pop("extra", [])
    o = fuse_scc(extra + iteration(T, nq, **kw)); extra = []
    if nq == 4 and cfg.pack: return schedule(pack_iter(extra + o, nq), strict=True)
    return schedule(extra + o)
def place(seq, g0, g1):
    vec = [x for x in seq if x.k in COST]
    for k, x in enumerate(vec): x.tgt = g0 + k * (g1 - g0 + 1) // len(vec)
    nxt = g1
    for x in reversed(seq):
        if x.k in COST: nxt = x.tgt
        else: x.tgt = max(-1, nxt - 1); nxt = x.tgt if x.k == "salu" else nxt
    return seq
def weave(a, b, lead=0):
    grp = []; cur = []
    for x in b:
        cur.append(x)
        if x.k in COST: grp.append(cur); cur = []
    if cur: grp[-1] += cur
    out = list(a[:lead]); rest = a[lead:]; k = 0
    for n_, x in enumerate(rest):
        while k < len(grp) and k * len(rest) <= n_ * len(grp): out += grp[k]; k += 1
        out.append(x)
    for y in grp[k:]: out += y
    return out
def xw_touch(c):
    if not cfg.xtouch: return []
    x = bload("v", 231, v(vT + 2), STC, s(sTo), 0, n=1, grp="touch", stream="dma"); x.wr = set()
    return [salu("s_mul_i32", s(sTo), s(sTs), str(c), stream="dma"), x]
def wo_touch(k):
    x = I(f"global_load_dword v231, v{vT+3}, s[56:57]", "vmem", rd=[v(vT + 3)], meta="load", grp="touch", stream="dma")
    return [x, valu("v_add_u32", v(vT + 3), "0x2000", v(vT + 3), stream="dma")]
def first_tile(nq, G, redo=False):
    h = 8 * nq
    o = qk(0, nq, first=True)
    if cfg.dK == 5 and (cfg.kve == 0 or redo): o += kv_dma_static("K", 3, G + h, 3)
    for a in range(nq): o += first_max(a, G + 8 * (a + 1) + 2, 0.5)
    o += k_reads(1, G + h - 6, 1)
    q1 = qk(1, nq); o += q1
    o += sm(0, nq, G + h + 2, 0.9)
    w = wvm({"K1", "V0", "G"}, tgt=G + 2 * h - 3, stream=["dma"]); b = barrier(tgt=G + 2 * h - 2, stream=["dma"])
    w.after = [q1[h - 4]]
    o += [w, b, valu("v_add_u32", v(vKrd), str(SLOT), v(vKrd0), tgt=G + 2 * h - 2)]
    o += k_reads(0, G + 2 * h - 1, 0, after=[b])
    for x in window(-1, nq, 0, True): x.tgt = G + 2 * h - 1; o.append(x)
    for k, (r_, val) in enumerate(((sS0, 0), (sVo, 2 * 16384), (sKo, (cfg.dK - 1) * 16384 - 3 * 4096), (sS1, SLOT), (sS2, 2 * SLOT), (sS3, 3 * SLOT), (sT, 0))):
        o.append(salu("s_mov_b32", s(r_), str(val), tgt=G + 10 + k))
    o.append(valu("v_mov_b32", v(vVrd), v(vVrd0), tgt=G + 8))
    if mtiles(nq):
        o.append(valu("v_mov_b32", v(LM), "0x3f803f80", tgt=G + h))
        for r in range(4): o.append(valu("v_accvgpr_write_b32", f"a{ONES + r}", v(LM), tgt=G + h + 1))
    return o
def k1_variant(nq, name, pre):
    V = Variant(nq, name)
    V.finish([label(f"L_{name}")], sched=False)
    n = 16 * nq; nx = 2 * nq
    r0 = chunk_reads(0, nq)
    V.vm = [x for x in pre if x.k == "vmem"]
    o = (clear_flags() if nq == 3 else []) + stamp(4, "st") + [wvm({"c0"})] + stamp(5, "st") + [barrier()] + stamp(1) + stamp(1, "p1") + stamp(1, "p0") + stamp(6, "st") + r0[:nx + 8]
    V.finish(o, sched=False)
    for c in range(7):
        m = chunk_mfma(c, nq)
        w = wvm({f"c{c+1}"}, stream=["rd", "dma"]); b = barrier(stream=["rd", "dma"])
        rd = chunk_reads(c + 1, nq)
        extra = []
        if c in (0, 2): extra += xw_touch(c + 4)
        plan = {0: {5: [("K", 0, (0, 1, 2, 3)), ("V", 0, (0, 1, 2, 3)), ("K", 1, (0, 1))], 6: [("K", 1, (2, 3))]},
                1: {1: [("K", 0, (0, 1))], 2: [("K", 0, (2, 3))], 3: [("V", 0, (0, 1))], 4: [("V", 0, (2, 3))], 5: [("K", 1, (0, 1, 2, 3))], 6: [("K", 2, (0, 1, 2, 3)), ("V", 1, (0, 1, 2, 3))]},
                2: {2: [("K", 0, (0, 1, 2, 3))], 3: [("V", 0, (0, 1, 2, 3))], 4: [("K", 1, (0, 1, 2, 3))], 6: [("K", 2, (0, 1, 2, 3)), ("V", 1, (0, 1, 2, 3))]},
                3: {2: [("K", 0, (0, 1, 2, 3)), ("V", 0, (0, 1, 2, 3)), ("K", 1, (0, 1, 2, 3))], 6: [("K", 2, (0, 1, 2, 3)), ("V", 1, (0, 1, 2, 3))]},
                4: {4: [("K", 0, (0, 1, 2, 3))], 5: [("V", 0, (0, 1, 2, 3)), ("K", 1, (0, 1, 2, 3))], 6: [("K", 2, (0, 1, 2, 3)), ("V", 1, (0, 1, 2, 3))]},
                5: {5: [("K", 0, (0, 1, 2, 3)), ("V", 0, (0, 1, 2, 3)), ("K", 1, (0, 1, 2, 3))], 6: [("K", 2, (0, 1, 2, 3)), ("V", 1, (0, 1, 2, 3))]}}[cfg.kve]
        kv = [x for wh, tl, ms in plan.get(c, []) for x in kv_dma_static(wh, tl, ms=ms)]
        if c <= 4: extra += kv
        if c == 0:
            g = 14
            o = place(r0[nx + 8:], -1, g - 3) + [waitlg(0, tgt=g - 1, stream="rd"), w, b] + m
            w.tgt = g - 1; b.tgt = g
            o += place(weave(rd[:14], extra + x_dma(2) + w_dma(2)) + rd[14:], g + 1, n - 3) + [waitlg(0, tgt=n - 1, stream="rd")]
        elif c <= 4:
            w.tgt = 0; b.tgt = 1
            early = extra + (x_dma(3) + w_dma(3) if c == 1 else [])
            ne = sum(1 for x in early if x.k == "vmem")
            k0 = max(nx + 4, min(len(rd) - 8, ne))
            seq = weave(rd[:k0], early) + [waitlg(k0 - nx, stream=["rd", "dma"])] + weave(rd[k0:], x_dma(c + 3))
            o = [w, b] + m + place(seq, 2, n - 8)
            o += [waitlg(0, tgt=n - 6, stream="rd"), barrier(tgt=n - 5, stream=["rd", "dma"])] + place(w_dma(c + 3), n - 4, n - 1)
        else:
            w.tgt = 0; b.tgt = 1
            if not kv: seq = rd
            elif c == 6 and cfg.kve == 0: seq = rd[:30] + weave(rd[30:], kv)
            else: seq = weave(rd, kv)
            o = [w, b] + m + place(seq, 2, n - 6) + [waitlg(0, tgt=n - 1, stream="rd")]
        if c <= 2:
            bars = [x for x in o if x.k == "bar"]
            base = {0: 2, 1: 4, 2: 7}[c]
            for k_, x in enumerate(bars[:2 if c == 1 else 1]): o += stampf(base + k_, "p0", x, x.tgt)
            if c < 2: o += stampf(base + len(bars), "p0", m[-1], n - 1)
        V.finish(o, strict=True, lds_lat=3)
        if c == 1 and nq == 3: V.finish([wvm({"clr"})] + register(), sched=False)
        V.finish(stamp(c + 2, "p1") if c < 6 else [], sched=False)
    c7 = chunk_mfma(7, nq, amajor=True)
    g0 = wvm({"K0"}, tgt=cfg.g7, stream=["dma", "rd"]); g1 = barrier(tgt=cfg.g7 + 1, stream=["dma", "rd"])
    if cfg.kve == 0: o = [g0, g1] + c7 + kv_dma_static("K", 2, cfg.g7 + 3, 3) + k_reads(0, cfg.g7 + 4, 1) + group_load(cfg.g7 + 14) + kv_dma_static("V", 1, n - 12, 3)
    else: o = [g0, g1] + c7 + kv_dma_static("K", 3, cfg.g7 + 3, 3) + k_reads(0, cfg.g7 + 4, 1) + group_load(cfg.g7 + 14)
    for a in range(nq): o += q_convert(a, 16 * (a + 1) + 3, 0.3)
    o += stampf(2, "main", c7[-1], n - 1)
    V.finish(o + first_tile(nq, n), budget=cfg.mbudget)
    V.finish([label(f"L_{name}_join")] + stamp(3), sched=False)
    ge = group_eval() + p3_srd_w() + (touch_setup3() if cfg.wtouch else []) + (touch_setup4() if cfg.otm else touch_setup2() if nq == 3 and cfg.touch else [])
    for k, x in enumerate(ge): x.tgt = 3 + 2 * k; x.stream = "ge"
    V.finish(sched_iter(0, nq, first=True, extra=ge), sched=False)
    seqs = [V.resolve_vm(sched_iter(T, nq)) for T in range(1, 12)]
    for k, c in enumerate(seqs[0]):
        if c.k == "wait" and c.meta[0] == "vm":
            n_ = min(q[k].meta[1] for q in seqs)
            for q in seqs: q[k] = waitvm(n_, need=q[k].need)
    _, p1 = insert_lgkm(seqs[0], V.pend)
    body, p2 = insert_lgkm(seqs[0], p1)
    body = fix_hazards(body + [nop(15)] * cfg.slow + [raw(f"s_cbranch_scc1 L_{name}_loop", "branch", rd=["scc"])], body)
    if len(V.pend) > len(p1): V.static.append(waitlg(len(p1))); V.trace.append(V.static[-1])
    V.static.append(label(f"L_{name}_loop"))
    V.static += body; V.pend = p2; V.loop_stats = gap_stats(body)
    for cur in seqs:
        new = []; k = 0
        for c in body:
            if k < len(cur) and cur[k].t == c.t: new.append(cur[k]); k += 1
            else: new.append(c)
        assert k == len(cur), ("loop body differs", cur[k].t)
        V.trace += new
    for T in (12, 13, 14): V.finish(sched_iter(T, nq, peeled=True), sched=False)
    V.finish(stamp(4), sched=False)
    if cfg.its:
        V.finish([raw("s_lshl_b32 s4, s2, 10"), raw(f"s_lshl_b32 s5, s{sW}, 8"), raw("s_add_u32 s4, s4, s5"), raw(f"s_add_u32 s4, s4, {STAMP_OFF + 0x100000}"),
                  raw(f"s_add_u32 s4, s{sWS}, s4"), raw(f"s_addc_u32 s5, s{sWS+1}, 0"), raw(f"v_lshlrev_b32 v126, 2, v{vLane}"), raw("global_store_dword v126, v127, s[4:5]"), raw("s_nop 1")], sched=False)
    h2 = 16
    o = v_reads(1, -1, 0.5)
    inv = TMP
    A = o.append
    if cfg.fallback:
        A(salu("s_lshl_b32", s(sT2), s(sW), "2", tgt=12)); A(salu("s_add_u32", s(sT2), s(sT2), str(VOTE), tgt=13))
        A(valu("v_mov_b32", v(TMP + 13), s(sT2), tgt=14)); A(valu("v_mov_b32", v(TMP + 14), str(VOTE), tgt=14))
        A(salu("s_mov_b32", s(sT0), hex(LIMIT), tgt=14)); A(raw("s_mov_b64 s[54:55], 0", "salu", wr=["s54", "s55"], tgt=15))
    smx = sm(1, nq, 0, 1.0)
    def smt(a, t0, t1):
        x = [y for y in smx if (y.rd | y.wr) & set(R("v", S_[1] + 8 * a, 8))]
        for k, y in enumerate(x): y.tgt = int(t0 + (t1 - t0) * k / len(x))
        return x
    k = 0; t = 0
    for a in range(nq):
        o += smt(a, max(-1, t - 14), t + 2 if a else 6)
        p0 = [mfma("a", oacc(a, tt), "a", KF + 4 * tt, "v", P_[0] + 4 * a) for tt in range(8)]
        p1 = [mfma("a", oacc(a, tt), "a", VF + 4 * tt, "v", P_[1] + 4 * a) for tt in range(8)]
        if a in mtiles(nq):
            if a == 0: p0.append(lsum_mfma(0, a)); p1.insert(0, lsum_mfma(1, a))
            else: p0.insert(0, lsum_mfma(0, a)); p1.insert(0, lsum_mfma(1, a))
        o += (p0 + p1) if a == 0 else [y for pr in zip(p0, p1) for y in pr]
        if a not in mtiles(nq): o += xreduce("v_add_f32", LSUM + a, TMP + 8 + a, t + 8, 1)
        A(valu("v_rcp_f32", v(inv + a), v(lsreg(a, nq)), tgt=t + 14))
        if cfg.fallback:
            A(valu("v_cmp_nge_f32", "vcc", s(sT0), v(lsreg(a, nq)), tgt=t + 14))
            A(raw("s_or_b64 s[54:55], s[54:55], vcc", "salu", rd=["vcc", "s54", "s55"], wr=["s54", "s55", "scc"], tgt=t + 15))
        if a < nq - 1: t += len(p0) + len(p1)
        if a == nq - 1:
            tv = t + 15
            if cfg.fallback:
                A(salu("s_cselect_b32", s(sT0), "1", "0", tgt=tv)); A(valu("v_mov_b32", v(TMP + 12), s(sT0), tgt=tv))
                A(I(f"ds_write_b32 v{TMP+13}, v{TMP+12}", "ldsw", rd=[v(TMP + 12), v(TMP + 13)], tgt=tv, stream="rd"))
    epi = []
    for a in range(nq):
        for sg in range(4):
            tb = 16 * (k % 4) if a else 104 + 12 * (k % 2)
            if a == 1: tb = 16 * (k % 2)
            t0 = h2 * (a + 1) + 2 * min(a + 1, len(mtiles(nq))) + 3 + 3 * sg
            blk = [salu("s_mov_b32", s(sT1), str(8192 * sg), stream="st")]
            blk += [valu("v_accvgpr_read_b32", v(tb + r), f"a{oacc(a, 2*sg) + r}") for r in range(8)]
            blk += [valu("v_mul_f32", v(tb + r), v(inv + a), v(tb + r)) for r in range(8)]
            blk += [valu("v_cvt_pk_bf16_f32", v(tb + 8 + r), v(tb + 2 * r), v(tb + 2 * r + 1)) for r in range(4)]
            blk += [bstore("v", tb + 8, v(vOst), SO, s(sT1), 1024 * a, cfg.oflags, stream="st", grp="O")]
            for y in blk: y.tgt = t0
            k += 1
            if a < nq - 1: o += blk
            else: epi += blk
    V.finish(o, budget=cfg.tbudget)
    o = epi[:22] + [waitlg(0), barrier()]
    if cfg.fallback: o.append(ds_b128("v", TMP + 4, v(TMP + 14), 0))
    o += epi[22:]
    V.finish(o, sched=False)
    V.finish(stamp(5), sched=False)
    V.npre = len(V.vm)
    if cfg.fallback:
        o = []; A = o.append
        A(valu("v_or3_b32", v(TMP + 12), v(TMP + 4), v(TMP + 5), v(TMP + 6))); A(valu("v_or_b32", v(TMP + 12), v(TMP + 12), v(TMP + 7)))
        A(valu("v_readfirstlane_b32", s(sT0), v(TMP + 12)))
        A(salu("s_andn2_b32", s(sT0), s(sT0), s(sPASS))); A(raw(f"s_cbranch_scc0 L_{name}_end", "branch", rd=["scc"]))
        A(waitvm(0)); A(barrier())
        A(valu("v_mov_b32", v(vKrd), v(vKrd0))); A(salu("s_mov_b32", s(sKo), "0")); A(salu("s_mov_b32", "m0", s(sG)))
        A(label(f"L_{name}_mx"))
        for m in range(4): A(dma(v(vKV + m), SK, s(sKo), m * PIECE, cfg.kvflags))
        A(waitvm(0)); A(barrier())
        for j in range(2):
            o += k_reads(j) + [waitlg(0)] + qk(0, nq, first=True) + [nop(7)]
            for a in range(nq):
                for r in range(4): A(valu("v_max3_f32", v(MTRUE + a), v(S_[0] + 8 * a + 2 * r), v(S_[0] + 8 * a + 2 * r + 1), v(MTRUE + a)))
        A(barrier())
        A(salu("s_add_u32", s(sKo), s(sKo), "16384")); A(salu("s_cmp_lt_u32", None, s(sKo), "262144")); A(raw(f"s_cbranch_scc1 L_{name}_mx", "branch", rd=["scc"]))
        A(salu("s_mov_b32", s(sPASS), "1"))
        for wh, tl in (("K", 0), ("V", 0), ("K", 1), ("K", 2), ("V", 1)): o += kv_dma_static(wh, tl)
        o += group_load() + [waitvm(0), barrier()] + k_reads(0) + [waitlg(0)]
        V.finish(o, sched=False)
        V.finish(first_tile(nq, 0, redo=True))
        V.finish([waitlg(0), raw(f"s_branch L_{name}_join", "branch")], sched=False)
    if cfg.fused:
        V.finish([label(f"L_{name}_end"), raw("s_branch L_p3", "branch")], sched=False)
    else:
        V.finish([label(f"L_{name}_end")] + stamp(6) + dump_stamps(10, sWS, STAMP_OFF, v(vLane), "L_k1_done") + [raw("s_endpgm")], sched=False)
    return V

XOFF = 0x1000000; FOFF = 0x3000000
S3O, S3W, S3X, S3Out = 8, 12, 16, 40
s3HG, s3RP, s3CQ, s3T, s3U, s3ROT, sUNI, sF1, sF2 = 36, 37, 38, 92, 93, 94, 39, 31, 30
v3Wd = 252; vG = 224
v3Or, v3Rr, v3St, v3L16, v3Wr = 104, 106, 107, 108, 109
NW_ = 9; WU = (8, 0, 2, 1, 4, 3, 6, 5, 7)
def oset(u, sg, a): return 128 + (u % 8) * 16 + (sg * 2 + a) * 4
def wset3(p, sg, tau): return p * 64 + (sg * 8 + tau) * 4
def one_lane(ins): return [raw("s_mov_b64 exec, 1", "salu"), ins, raw("s_mov_b64 exec, -1", "salu")]
def flag_addrs(t0=None):
    o = []; A = o.append
    A(salu("s_lshr_b32", s(s3HG), s(sH), "3")); A(salu("s_bfe_u32", s(s3RP), s(sH), "0x10002", scc_w=True)); A(salu("s_and_b32", s(s3CQ), s(sH), "3"))
    A(salu("s_lshl_b32", s(sF1), s(sB), "2")); A(salu("s_add_u32", s(sF1), s(sF1), s(s3HG))); A(salu("s_lshl_b32", s(sF1), s(sF1), "7")); A(salu("s_add_u32", s(sF1), s(sF1), hex(FOFF)))
    A(salu("s_lshl_b32", s(sF2), s(sB), "3")); A(salu("s_and_b32", s(s3T), s(sH), "7")); A(salu("s_add_u32", s(sF2), s(sF2), s(s3T))); A(salu("s_lshl_b32", s(sF2), s(sF2), "9")); A(salu("s_add_u32", s(sF2), s(sF2), hex(FOFF + 4096)))
    if t0 is not None:
        for k, x in enumerate(o): x.tgt = t0 + k; x.stream = "p3s"
    return o
def clear_flags():
    o = []; A = o.append
    A(salu("s_lshr_b32", s(54), s(sH), "3")); A(salu("s_and_b32", s(55), s(sH), "7"))
    A(salu("s_lshl_b32", s(sT0), s(sB), "2")); A(salu("s_add_u32", s(sT0), s(sT0), s(54))); A(salu("s_lshl_b32", s(sT0), s(sT0), "5")); A(salu("s_add_u32", s(sT0), s(sT0), s(55)))
    A(salu("s_lshl_b32", s(sT0), s(sT0), "2")); A(salu("s_add_u32", s(sT0), s(sT0), hex(FOFF)))
    A(salu("s_lshl_b32", s(sT1), s(sB), "3")); A(salu("s_add_u32", s(sT1), s(sT1), s(55))); A(salu("s_lshl_b32", s(sT1), s(sT1), "7")); A(salu("s_add_u32", s(sT1), s(sT1), s(54)))
    A(salu("s_lshl_b32", s(sT1), s(sT1), "2")); A(salu("s_add_u32", s(sT1), s(sT1), hex(FOFF + 4096)))
    A(valu("v_mov_b32", "v8", s(sT0))); A(valu("v_lshlrev_b32", "v9", "7", v(vLane))); A(valu("v_add_u32", "v9", s(sT1), "v9")); A(valu("v_mov_b32", "v10", "0"))
    A(raw("s_mov_b64 exec, 1", "salu"))
    A(I(f"global_store_dword v8, v10, s[{sWS}:{sWS+1}] sc1", "vmem", rd=["v8", "v10"], meta="store", grp="clr"))
    A(raw("s_mov_b64 exec, 15", "salu"))
    A(I(f"global_store_dword v9, v10, s[{sWS}:{sWS+1}] sc1", "vmem", rd=["v9", "v10"], meta="store", grp="clr"))
    A(raw("s_mov_b64 exec, -1", "salu"))
    return o
def page_warm():
    o = []; A = o.append; L = v(vLane)
    A(valu("v_and_b32", "v8", "31", L)); A(valu("v_lshlrev_b32", "v8", "20", "v8"))
    A(valu("v_and_b32", "v9", "3", L)); A(valu("v_lshlrev_b32", "v10", "20", "v9")); A(valu("v_mul_u32_u24", "v9", "0x78000", "v9"))
    for a, b in (("v8", f"s[{sWS}:{sWS+1}]"), ("v10", "s[56:57]"), ("v9", "s[58:59]")):
        A(I(f"global_load_dword v231, {a}, {b}", "vmem", rd=[a], meta="load", grp="pw"))
    return o
def xcc_word(dst, tmp):
    o = [raw(f"s_getreg_b32 s{tmp}, hwreg(HW_REG_XCC_ID, 0, 4)", "salu", wr=[s(tmp)])]
    if cfg.forcemix: o.append(salu("s_and_b32", s(tmp), s(sH), "1"))
    o += [salu("s_mul_i32", s(dst), s(tmp), s(tmp)), salu("s_lshl_b32", s(dst), s(dst), "8"), salu("s_add_u32", s(dst), s(dst), s(tmp)),
          salu("s_lshl_b32", s(dst), s(dst), "8"), salu("s_add_u32", s(dst), s(dst), "1")]
    return o
def register():
    o = xcc_word(sT0, sT1); A = o.append
    A(salu("s_lshr_b32", s(sT1), s(sH), "3")); A(salu("s_lshl_b32", s(sT2), s(sB), "2")); A(salu("s_add_u32", s(sT1), s(sT1), s(sT2))); A(salu("s_lshl_b32", s(sT1), s(sT1), "2"))
    A(valu("v_mov_b32", "v228", s(sT1))); A(valu("v_mov_b32", "v229", s(sT0)))
    o += one_lane(I(f"global_atomic_add v228, v229, s[100:101]{GOFF()} sc1", "vmem", rd=["v228", "v229"], meta="store"))
    return o
sRDY = 97
def group_load(t0=None):
    o = [salu("s_lshl_b32", s(sT2), s(sB), "4"), valu("v_mov_b32", v(vG + 4), s(sT2)),
         I(f"global_load_dwordx4 v[{vG}:{vG+3}], v{vG+4}, s[100:101]{GOFF()} sc1", "vmem", rd=[v(vG + 4)], wr=R("v", vG, 4), meta="load", grp="G", stream="dma"),
         salu("s_lshr_b32", s(sRDY), s(sH), "3"), salu("s_lshl_b32", s(sRDY), s(sRDY), "2"), salu("s_add_u32", s(sT2), s(sT2), s(sRDY)), valu("v_mov_b32", v(vG + 4), s(sT2)),
         I(f"global_load_dword v{vG+5}, v{vG+4}, s[100:101]{GOFF()} sc1", "vmem", rd=[v(vG + 4)], wr=[v(vG + 5)], meta="load", grp="G", stream="dma")]
    if t0 is not None:
        for k, x in enumerate(o): x.tgt = t0 + k
    return o
def group_eval():
    o = []; A = o.append
    A(valu("v_and_b32", v(vG), v(vG), v(vG + 1))); A(valu("v_and_b32", v(vG + 2), v(vG + 2), v(vG + 3))); A(valu("v_and_b32", v(vG), v(vG), v(vG + 2)))
    A(valu("v_readfirstlane_b32", s(sRDY), v(vG))); A(valu("v_readfirstlane_b32", s(sUNI), v(vG + 5)))
    A(salu("s_and_b32", s(sRDY), s(sRDY), "8"))
    o += xcc_word(54, 55)
    A(salu("s_lshl_b32", s(54), s(54), "3")); A(salu("s_cmp_eq_u32", None, s(sUNI), s(54))); A(salu("s_cselect_b32", s(sUNI), "1", "0"))
    return o
def p3_srd_w():
    o = flag_addrs(); A = o.append
    A(salu("s_lshl_b32", s(s3ROT), s(s3T), "1"))
    A(salu("s_lshl_b32", s(s3T), s(s3HG), "20")); A(salu("s_lshl_b32", s(s3U), s(s3CQ), "6" if cfg.wil else "8")); A(salu("s_add_u32", s(s3T), s(s3T), s(s3U)))
    A(salu("s_sub_u32", s(s3U), str(1048576 + 128), s(s3U)))
    o += srd(S3W, 56, 57, s3T, 128, s(s3U))
    return o
STC = 92; sTs = 96; STC2 = 4
def touch_setup1a():
    o = []; A = o.append; L = v(vLane)
    A(salu("s_and_b32", s(sT0), s(sW), "1")); A(salu("s_mul_i32", s(sTs), s(sT0), str(524288 - 128))); A(salu("s_add_u32", s(sTs), s(sTs), "128"))
    A(salu("s_cmp_eq_u32", None, s(sT0), "1")); A(raw("s_cselect_b64 vcc, -1, 0", "salu", rd=["scc"], wr=["vcc"]))
    A(valu("v_and_b32", "v8", "31", L)); A(valu("v_min_u32", "v9", "29", "v8"))
    A(salu("s_and_b32", s(sT0), s(sH), "7")); A(salu("s_mul_i32", s(sT0), s(sT0), "30")); A(valu("v_add_u32", "v9", s(sT0), "v9")); A(valu("v_lshlrev_b32", "v9", "10", "v9")); A(valu("v_add_u32", "v9", "128", "v9"))
    A(salu("s_and_b32", s(sT0), s(sB), "3")); A(salu("s_lshl_b32", s(sT0), s(sT0), "5")); A(valu("v_add_u32", "v8", s(sT0), "v8"))
    A(valu("v_lshrrev_b32", "v10", "1", "v8")); A(valu("v_lshlrev_b32", "v10", "13", "v10")); A(valu("v_and_b32", "v8", "1", "v8")); A(valu("v_lshl_add_u32", "v8", "v8", "7", "v10"))
    A(valu("v_cndmask_b32", "v8", "v9", "v8", "vcc"))
    A(valu("v_lshrrev_b32", "v9", "5", L)); A(valu("v_mul_lo_u32", "v9", s(sTs), "v9")); A(valu("v_add_u32", v(vT + 2), "v8", "v9"))
    A(salu("s_lshr_b32", s(sT0), "s2", "3")); A(salu("s_lshl_b32", s(sT0), s(sT0), "15")); A(salu("s_lshr_b32", s(sT1), s(sH), "3")); A(salu("s_lshl_b32", s(sT1), s(sT1), "20"))
    A(salu("s_add_u32", s(sT0), s(sT0), s(sT1))); A(valu("v_lshlrev_b32", v(vT + 3), "7", L)); A(valu("v_add_u32", v(vT + 3), s(sT0), v(vT + 3)))
    return o
def touch_setup1b():
    o = []; A = o.append
    A(salu("s_bitcmp1_b32", None, s(sW), "0", scc_w=True))
    for k in range(3): A(salu("s_cselect_b32", s(STC + k), s(SWQ + k), s(SX + k)))
    A(salu("s_mov_b32", s(STC + 3), "0x20000"))
    A(salu("s_cmp_ge_u32", None, s(sW), "2")); A(salu("s_cselect_b32", s(STC + 2), "0", s(STC + 2)))
    return o
def touch_setup3():
    o = []; A = o.append
    A(salu("s_lshr_b32", s(54), "s2", "3")); A(salu("s_lshl_b32", s(54), s(54), "2")); A(salu("s_add_u32", s(54), s(54), s(sW))); A(salu("s_lshl_b32", s(54), s(54), "13"))
    A(salu("s_lshl_b32", s(55), s(s3HG), "20")); A(salu("s_add_u32", s(54), s(54), s(55)))
    A(valu("v_lshlrev_b32", "v230", "7", v(vLane))); A(valu("v_add_u32", "v230", s(54), "v230"))
    return o
def touch_setup4():
    return [valu("v_lshrrev_b32", "v230", "5", v(vLane)), valu("v_lshlrev_b32", "v230", "13", "v230"), valu("v_and_b32", "v229", "31", v(vLane)), valu("v_lshl_add_u32", "v230", "v229", "7", "v230")]
def touch_setup2():
    o = []; A = o.append
    A(salu("s_lshl_b32", s(54), s(sB), "21")); A(salu("s_lshl_b32", s(55), s(sH), "15")); A(salu("s_add_u32", s(54), s(54), s(55)))
    o += srd(SX, sWS, sWS + 1, 54, 0, str(1048576 + 32768))
    A(salu("s_lshr_b32", s(54), "s2", "3")); A(salu("s_lshl_b32", s(54), s(54), "15")); A(salu("s_lshl_b32", s(55), s(s3HG), "20")); A(salu("s_add_u32", s(54), s(54), s(55)))
    o += srd(STC2, 56, 57, 54, 0, "32768")
    A(salu("s_lshl_b32", s(54), s(s3RP), "20")); A(valu("v_lshlrev_b32", v(vT + 1), "7", v(vLane))); A(valu("v_add_u32", v(vT + 1), s(54), v(vT + 1)))
    A(valu("v_xor_b32", v(vT), "0x100000", v(vT + 1)))
    A(valu("v_add_u32", v(vT + 2), "0x2000", v(vT))); A(valu("v_add_u32", v(vT + 3), "0x2000", v(vT + 1)))
    return o
def p3_wdma(u):
    st = "dma"
    o = [salu("s_add_u32", s(s3U), s(s3ROT), str(u), stream=st), salu("s_and_b32", s(s3U), s(s3U), "15", stream=st), salu("s_lshl_b32", s(s3U), s(s3U), "16", stream=st),
         salu("s_add_u32", "m0", s(sG), str(WU[u % NW_] * UNIT), stream=st)]
    for m in range(4): o.append(dma(v(v3Wd + m), S3W, "0" if cfg.now else s(s3U), m * PIECE, cfg.k2_wflags, grp=f"w{u}", stream=st))
    return o
sXo3 = 48; sXs = 49
OWN = 0
def p3_oload(u, nq):
    st = "dma"
    o = [salu("s_add_u32", s(s3T), s(s3ROT), str(u), stream=st), salu("s_and_b32", s(s3T), s(s3T), "15", stream=st), salu("s_lshl_b32", s(s3T), s(s3T), "14", stream=st)]
    for sg in range(2):
        for a in range(nq): o.append(bload("a", oset(u, sg, a), v(v3Or + sg), S3O, "0" if cfg.noo else s(s3T), a * 1024, cfg.o3flags, grp=f"o{u}", stream=st))
    return o
def p3_reads(u):
    p = u & 1; o = []; sl = WU[u % NW_]
    for tau in range(8):
        for sg in range(2):
            for z in range(2):
                o.append(ds_tr("a", wset3(p, sg, tau) + 2 * z, v(v3Wr + sl // 3), (sl % 3) * UNIT + z * 8 * PIECE + sg * 512 + 32 * tau, stream="rd"))
    return o
def p3_setup2(L):
    o = []; A = o.append
    A(salu("s_lshl_b32", s(sT0), s(sB), "1")); A(salu("s_add_u32", s(sT0), s(sT0), s(s3RP)))
    A(salu("s_lshl_b32", s(sT1), s(sT0), "20")); A(salu("s_lshl_b32", s(sT2), s(s3HG), "18")); A(salu("s_add_u32", s(sT1), s(sT1), s(sT2))); o += srd(S3O, sWS, sWS + 1, sT1, 0, "262144")
    A(salu("s_lshl_b32", s(sT1), s(sT0), "2")); A(salu("s_add_u32", s(sT1), s(sT1), s(s3CQ))); A(salu("s_lshl_b32", s(sT1), s(sT1), "18")); A(salu("s_add_u32", s(sT1), s(sT1), hex(XOFF)))
    o += srd(S3X, sWS, sWS + 1, sT1, 0, "262144")
    A(salu("s_lshl_b32", s(sT1), s(s3RP), "2")); A(salu("s_add_u32", s(sT1), s(sT1), s(s3HG))); A(salu("s_lshl_b32", s(sT1), s(sT1), "15"))
    A(salu("s_lshl_b32", s(sT2), s(s3CQ), "6" if cfg.wil else "8")); A(salu("s_add_u32", s(sT1), s(sT1), s(sT2)))
    A(salu("s_mul_i32", s(sT0), s(sB), "245760")); A(salu("s_add_u32", s(sT0), s(sT0), s(sT1))); A(salu("s_sub_u32", s(sT1), "245760", s(sT1)))
    o += srd(S3Out, 58, 59, sT0, 0, s(sT1))
    A(salu("s_lshl_b32", s(sXo3), s(sW), "12"))
    A(valu("v_lshlrev_b32", v(v3L16), "4", L))
    A(salu("s_lshl_b32", s(sT0), s(sW), "11")); A(valu("v_add_u32", v(v3Or), s(sT0), v(v3L16))); A(valu("v_add_u32", v(v3Or + 1), "0x2000", v(v3Or)))
    A(valu("v_subrev_u32", v(v3Wr), str(UNIT), v(vVrd0))); A(valu("v_add_u32", v(v3Wr + 1), str(3 * UNIT), v(v3Wr))); A(valu("v_add_u32", v(v3Wr + 2), str(6 * UNIT), v(v3Wr)))
    A(valu("v_and_b32", "v97", "15", L)); A(valu("v_lshrrev_b32", "v98", "4", L))
    if cfg.xbf:
        A(valu("v_add_u32", v(v3Rr), s(sXo3), v(v3L16))); A(salu("s_lshl_b32", s(sT0), s(sW), "11")); A(valu("v_add_u32", v(v3Rr + 9), s(sT0), v(v3L16)))
    else:
        A(valu("v_lshlrev_b32", "v101", "9", "v98")); A(valu("v_lshl_add_u32", "v101", "v97", "4", "v101")); A(valu("v_add_u32", v(v3Rr), s(sXo3), "v101"))
        A(valu("v_add_u32", v(v3L16 + 8), "0x2000", v(v3L16)))
    for k in range(1, 4):
        A(salu("s_add_u32", s(sT0), s(s3HG), str(k))); A(salu("s_and_b32", s(sT0), s(sT0), "3")); A(salu("s_lshl_b32", s(sT1), s(s3HG), "2")); A(salu("s_add_u32", s(sT0), s(sT0), s(sT1)))
        A(salu("s_lshl_b32", s(sXs + k - 1), s(sT0), "14"))
    A(valu("v_and_b32", "v101", "3", L)); A(valu("v_max_u32", "v101", "1", "v101")); A(valu("v_add_u32", "v101", s(s3HG), "v101")); A(valu("v_and_b32", "v101", "3", "v101"))
    A(salu("s_lshl_b32", s(sT0), s(s3HG), "7")); A(salu("s_add_u32", s(sT0), s(sT0), s(sF2))); A(valu("v_lshlrev_b32", "v101", "2", "v101")); A(valu("v_add_u32", v(vPl + 2), s(sT0), "v101"))
    A(salu("s_lshr_b32", s(sT0), s(sW), "1")); A(salu("s_lshl_b32", s(sT0), s(sT0), "14")); A(salu("s_and_b32", s(sT1), s(sW), "1")); A(salu("s_lshl_b32", s(sT1), s(sT1), "9" if cfg.wil else "7")); A(salu("s_add_u32", s(sT0), s(sT0), s(sT1)))
    A(valu("v_lshlrev_b32", "v101", "10", "v97")); A(valu("v_lshl_add_u32", "v101", "v98", "3" if cfg.xbf else "4", "v101")); A(valu("v_add_u32", v(v3St), s(sT0), "v101"))
    return o
def poll(lab, base, n):
    o = []; A = o.append
    A(valu("v_lshlrev_b32", "v96", "2", v(vLane))); A(valu("v_add_u32", "v96", s(base), "v96")); A(salu("s_mov_b32", s(sT1), "0"))
    A(raw(f"s_mov_b64 exec, {(1 << n) - 1}", "salu"))
    A(label(lab))
    A(raw(f"global_load_dword v97, v96, s[{sWS}:{sWS+1}] sc1")); A(raw("s_waitcnt vmcnt(0)")); A(raw("v_cmp_ne_u32 vcc, 1, v97"))
    A(raw(f"s_add_u32 s{sT1}, s{sT1}, 1")); A(raw(f"s_cbranch_vccz {lab}_ok"))
    A(raw("s_sleep 1")); A(raw(f"s_cmp_lt_u32 s{sT1}, 0x200000")); A(raw(f"s_cbranch_scc1 {lab}"))
    A(label(f"{lab}_ok")); A(raw("s_mov_b64 exec, -1", "salu"))
    return o
def p3_front(V):
    L = v(vLane); o = []; A = o.append
    A(label("L_p3")); o += p3_setup2(L)
    A(label("L_p3_r")); A(salu("s_cmp_lg_u32", None, s(sRDY), "0")); A(raw("s_cbranch_scc1 L_p3_rok", "branch", rd=["scc"]))
    for x in group_load(): x.grp = None; x.k = "other" if x.k == "vmem" else x.k; A(x)
    A(raw("s_waitcnt vmcnt(0)")); o += group_eval(); A(raw("s_sleep 8")); A(raw("s_branch L_p3_r", "branch"))
    A(label("L_p3_rok"))
    A(salu("s_and_b32", s(sT0), s(sH), "7")); A(salu("s_lshl_b32", s(sT0), s(sT0), "2")); A(salu("s_add_u32", s(sT0), s(sT0), s(sF1)))
    A(valu("v_mov_b32", "v96", s(sT0))); A(valu("v_mov_b32", "v97", "1"))
    A(valu("v_and_b32", v(vPl), "7", L)); A(valu("v_lshlrev_b32", v(vPl), "2", v(vPl))); A(valu("v_add_u32", v(vPl), s(sF1), v(vPl)))
    A(waitvm(0)); A(barrier()); o += stamp(6)
    A(salu("s_cmp_lg_u32", None, s(sW), "0")); A(raw("s_cbranch_scc1 L_p3_a", "branch", rd=["scc"]))
    A(salu("s_cmp_eq_u32", None, s(sUNI), "1")); A(raw("s_cbranch_scc1 L_p3_u", "branch", rd=["scc"]))
    A(raw("buffer_wbl2 sc1")); A(raw("s_waitcnt vmcnt(0)"))
    o += one_lane(raw(f"global_store_dword v96, v97, s[{sWS}:{sWS+1}] sc1"))
    A(raw("s_branch L_p3_a", "branch"))
    A(label("L_p3_u"))
    o += one_lane(raw(f"global_store_dword v96, v97, s[{sWS}:{sWS+1}]"))
    A(label("L_p3_a"))
    A(salu("s_lshl_b32", s(sT0), s(s3RP), "2")); A(salu("s_add_u32", s(sT0), s(sT0), s(sW)))
    A(salu("s_cmp_eq_u32", None, s(sT0), "7")); A(raw("s_cbranch_scc1 L_g1", "branch", rd=["scc"]))
    V.finish(o, sched=False)
vPl = 112
def p3_gemm(nq, name, V0):
    V = Variant(nq, name); V.vm = list(V0.vm); V.trace = list(V0.trace); V.pend = list(V0.pend)
    pollld = lambda: I(f"global_load_dword v{vPl+1}, v{vPl}, s[{sWS}:{sWS+1}] sc1", "vmem", rd=[v(vPl)], wr=[v(vPl + 1)], meta="load", grp="poll", stream="dma")
    r0 = p3_reads(0)
    V.finish([label(f"L_{name}")] + p3_oload(0, nq) + r0[:16] + p3_oload(1, nq) + stamp(7) + stamp(1, "g"), sched=False)
    n = 16 * nq
    no = 2; nw = NW_
    o = r0[16:]
    for k, x in enumerate(o): x.tgt = -1 + k // 2
    prev = None; G = 0; wq = []
    for c in range(16):
        p = c & 1
        m = [mfma("v", a * 32 + 4 * tau, "a", wset3(p, sg, tau), "a", oset(c, sg, a), "0" if (c == 0 and sg == 0) else None) for tau in range(8) for a in range(nq) for sg in range(2)]
        w = wvm({f"o{c}", f"w{c+1}"}, tgt=G - 1, stream=["bar", "dma"])
        if prev: w.after = [prev[-2]]
        m[0].after = [w]
        o += [w]
        b = None
        if 0 < c < 15:
            b = barrier(tgt=G, stream=["bar", "dma"])
            if prev: b.after = [prev[-1]]
            o += [b]
        o += m
        if c < 15:
            d = []
            if c == 0: d += p3_wdma(7) + [pollld()] + p3_wdma(8)
            else:
                for rep in range(3 if c == 1 else 2):
                    if no < 16 and no <= c + cfg.odepth: d += p3_oload(no, nq); no += 1
                k = 0
                while c >= 2 and k < cfg.wrate and (wq or (nw < 16 and nw <= c + NW_ - 1)):
                    if not wq: wq = p3_wdma(nw); nw += 1
                    elif k == 0: d.append(salu("s_add_u32", "m0", s(sG), str(WU[(nw - 1) % NW_] * UNIT), stream="dma"))
                    while wq[0].k != "vmem": d.append(wq.pop(0))
                    d.append(wq.pop(0)); k += 1
            rd = p3_reads(c + 1)
            if b: rd[0].after = [b]
            vm = [x for x in d if x.k == "vmem"]
            vg = [int((k + 0.5) * n / len(vm)) for k in range(len(vm))] if vm else []
            if c == 1: vg = [1 + k * (n - 2) // len(vm) for k in range(len(vm))]
            for k, x in enumerate(vm): x.tgt = G + vg[k]
            lo = 8 * nq // 2 if c == 0 else 1
            free = [g for g in range(lo, n) if g not in vg] if (len(vg) < n - 4 and not cfg.gdl) else list(range(lo, n))
            for k, x in enumerate(rd): x.tgt = G + free[k * len(free) // 32]
            nxt = G + n
            for x in reversed(d):
                if x.k == "vmem": nxt = x.tgt
                else: nxt = x.tgt = max(G, nxt - 1)
            o += rd + d
        if c in (0, 1, 3, 7, 11): o += stampf(2 + (0, 1, 3, 7, 11).index(c), "g", m[-1], G + n - 1)
        prev = m; G += n
        if c == 0:
            V.finish(o, strict=True)
            q = [wvm({"poll"}), label(f"L_{name}_pl"), valu("v_cmp_ne_u32", "vcc", "1", v(vPl + 1)), salu("s_mov_b32", s(sT1), "0"), raw(f"s_cbranch_vccz L_{name}_pok", "branch"),
                 label(f"L_{name}_pl2"), raw("s_sleep 1"), raw(pollld().t), raw("s_waitcnt vmcnt(0)"), raw(f"v_cmp_ne_u32 vcc, 1, v{vPl+1}"), raw(f"s_add_u32 s{sT1}, s{sT1}, 1"),
                 raw(f"s_cbranch_vccz L_{name}_pok"), raw(f"s_cmp_lt_u32 s{sT1}, 0x200000"), raw(f"s_cbranch_scc1 L_{name}_pl2"),
                 label(f"L_{name}_pok"), salu("s_cmp_eq_u32", None, s(sUNI), "1"), raw(f"s_cbranch_scc1 L_{name}_pgo", "branch"),
                 raw("buffer_inv sc1"), raw("s_waitcnt vmcnt(0)"), label(f"L_{name}_pgo")]
            V.finish(q, sched=False)
            o = []; prev = None; G = 0
        if c == 14:
            V.finish(o, strict=True)
            o = []; prev = None; G = 0
    last = o
    V.finish([salu("s_lshl_b32", s(sT0), s(sW), "2"), salu("s_add_u32", s(sT0), s(sT0), s(s3HG)), salu("s_lshl_b32", s(sT0), s(sT0), "14"), salu("s_add_u32", s(sT2), s(sT0), "4096"),
              salu("s_cmp_eq_u32", None, s(sW), s(s3HG)), raw(f"s_cbranch_scc1 L_{name}_own", "branch", rd=["scc"])], sched=False)
    save = (list(V.vm), list(V.trace), list(V.pend))
    import copy
    def clone(seq):
        mp = {x.uid: I(x.t, x.k, x.rd, x.wr, x.crd, x.tgt, x.grp, x.need, x.stream, x.meta) for x in seq}
        for x in seq: mp[x.uid].after = [mp[a_.uid] for a_ in x.after]
        return [mp[x.uid] for x in seq]
    o = clone(last)
    for tau in range(8):
        for a in range(nq):
            t = 2 * nq * tau + 2 * a + 6; r = a * 32 + 4 * tau
            if cfg.xbf:
                d = 64 + a * 16 + 2 * tau
                o += [valu("v_cvt_pk_bf16_f32", v(d), v(r), v(r + 1), tgt=t), valu("v_cvt_pk_bf16_f32", v(d + 1), v(r + 2), v(r + 3), tgt=t)]
                if tau & 1: o.append(bstore("v", d - 2, v(v3L16), S3X, s(sT2 if a else sT0), 1024 * (tau >> 1), cfg.xsc, tgt=t + 1, stream="st"))
            else:
                o.append(bstore("v", r, v(v3L16 + (8 if a else 0)), S3X, s(sT2 if tau >> 2 else sT0), 1024 * (tau & 3), cfg.xsc, tgt=t, stream="st"))
    V.finish(o, strict=True)
    V.finish(stamp(8) + stamp(7, "g") + [barrier(), raw("s_branch L_fin_s", "branch"), label(f"L_{name}_own")], sched=False)
    V.vm, tr, V.pend = list(save[0]), V.trace, list(save[2]); V.trace = list(save[1])
    o = clone(last)
    for tau in range(8):
        for a in range(nq): o.append(ds_w128(v(v3L16), "v", a * 32 + 4 * tau, OWN + (a * 8 + tau) * 1024, tgt=2 * nq * tau + 2 * a + 6, stream="rd"))
    V.finish(o, strict=True)
    V.finish(stamp(8) + stamp(7, "g") + [waitlg(0), barrier(), raw("s_branch L_fin", "branch")], sched=False)
    V.trace2 = tr
    return V
def p3_final():
    V = Variant(4, "fin"); o = []; A = o.append
    A(label("L_fin_s"))
    A(salu("s_lshl_b32", s(sT0), s(sW), "5")); A(salu("s_add_u32", s(sT0), s(sT0), s(s3HG))); A(salu("s_lshl_b32", s(sT0), s(sT0), "2")); A(salu("s_add_u32", s(sT0), s(sT0), s(sF2)))
    A(valu("v_mov_b32", "v96", s(sT0))); A(valu("v_mov_b32", "v97", "1")); A(raw("s_waitcnt vmcnt(0)"))
    o += one_lane(raw(f"global_store_dword v96, v97, s[{sWS}:{sWS+1}] sc1"))
    A(label("L_fin")); o += stamp(8, "g")
    for q in range(4): A(ds_b128("v", 4 * q, v(v3Rr), OWN + (q * 1024 if cfg.xbf else (q >> 1) * 2048 + (q & 1) * 256)))
    A(salu("s_mov_b32", s(sT1), "0"))
    A(label("L_fin_p"))
    A(raw(f"global_load_dword v97, v{vPl+2}, s[{sWS}:{sWS+1}] sc1")); A(raw("s_waitcnt vmcnt(0)")); A(raw("v_cmp_ne_u32 vcc, 1, v97"))
    A(raw(f"s_add_u32 s{sT1}, s{sT1}, 1")); A(raw("s_cbranch_vccz L_fin_ok")); A(raw("s_sleep 1")); A(raw(f"s_cmp_lt_u32 s{sT1}, 0x200000")); A(raw("s_cbranch_scc1 L_fin_p"))
    A(label("L_fin_ok"))
    for k in range(1, 4):
        if cfg.xbf:
            for q in range(2): A(bload("v", 16 + 8 * k + 4 * q, v(v3Rr + 9), S3X, s(sXs + k - 1), q * 1024, "sc1", grp=f"x{k}"))
        else:
            for q in range(4): A(bload("v", 16 * k + 4 * q, v(v3Rr), S3X, s(sXs + k - 1), (q >> 1) * 2048 + (q & 1) * 256, "sc1", grp=f"x{k}"))
    for k in range(1, 4):
        A(wvm({f"x{k}"}))
        if cfg.xbf:
            for r in range(8):
                A(valu("v_lshlrev_b32", v(64 + r), "16", v(16 + 8 * k + r))); A(valu("v_and_b32", v(72 + r), "0xffff0000", v(16 + 8 * k + r)))
            for r in range(8):
                A(valu("v_add_f32", v(2 * r), v(2 * r), v(64 + r))); A(valu("v_add_f32", v(2 * r + 1), v(2 * r + 1), v(72 + r)))
        else:
            for r in range(16): A(valu("v_add_f32", v(r), v(r), v(16 * k + r)))
    for r in range(8): A(valu("v_cvt_pk_bf16_f32", v(16 + r), v(2 * r), v(2 * r + 1)))
    if cfg.xbf:
        for q in range(4): A(bstore("v", 16 + 2 * q, v(v3St), S3Out, "0", (256 * (q >> 1) + 32 * (q & 1)) if cfg.wil else 32 * q, cfg.outflags, n=2))
    else:
        for sg in range(2): A(bstore("v", 16 + 4 * sg, v(v3St), S3Out, "0", (256 if cfg.wil else 64) * sg, cfg.outflags))
    o += stamp(9) + stamp(9, "g") + dump_stamps(10, sWS, STAMP_OFF, v(vLane), "L_k1_done") + [raw("s_endpgm")]
    V.finish(o, sched=False)
    return V

HEAD = """; standalone__mha_block_cached__near_ridge: out = softmax((x wq) K^T / sqrt(128)) V wo
"""
def kd(name, vg, acc_off):
    return f""".amdhsa_kernel {name}
  .amdhsa_next_free_vgpr {vg}
  .amdhsa_next_free_sgpr 102
  .amdhsa_accum_offset {acc_off}
  .amdhsa_group_segment_fixed_size 0
  .amdhsa_kernarg_size 64
  .amdhsa_user_sgpr_count 2
  .amdhsa_user_sgpr_kernarg_segment_ptr 1
  .amdhsa_system_sgpr_workgroup_id_x 1
.end_amdhsa_kernel
"""
def check(pre, V):
    tr = pre + V.trace
    for nm, f in (("hazard", check_hazards), ("lgkm", check_lgkm), ("vm", check_vm)):
        bad = f(tr)
        if bad:
            print(V.name, nm, len(bad), bad[:6], file=sys.stderr); raise SystemExit(1)
def build():
    KN = "standalone__mha_block_cached__near_ridge_kernel"
    out = HEAD
    out += f"; @launch grid=(256,1,1) block=(256,1,1) lds={LDS1 + 64}\n"
    out += '.amdgcn_target "amdgcn-amd-amdhsa--gfx950"\n.text\n'
    out += f".globl {KN}\n.p2align 8\n.type {KN},@function\n{KN}:\n"
    pre = fix_hazards(k1_setup() + [salu("s_cmp_eq_u32", None, s(sW), "3"), raw("s_cbranch_scc1 L_w3", "branch")])
    import core
    def text(seq, _t=core.text):
        if not cfg.align: return _t(seq)
        r = ""; blk = []
        for c in seq + [None]:
            if c is None or (c.k == "label" and blk):
                a, _, miss = align8(blk); r += _t(a); blk = []
                if c is not None: r += "  .p2align 3, , 4\n" if False else "  .p2alignl 3, 0xbf800000\n"
            if c is not None: blk.append(c)
        return r
    out += text(pre)
    for nq, name in ((4, "w012"), (3, "w3")):
        V = k1_variant(nq, name, pre); check(pre, V)
        print(name, "loop (mfma, est cycles):", V.loop_stats, "total est", gap_stats(V.trace), file=sys.stderr)
        out += text(V.static)
    F = Variant(4, "p3"); F.vm = [x for x in V.vm[:V.npre] if x.grp and x.grp[0] == "w"]
    p3_front(F); check([], F)
    out += text(F.static)
    for nq, name in ((2, "g2"), (1, "g1")):
        W = p3_gemm(nq, name, F); check([], W); W.trace = W.trace2; check([], W)
        print(name, "total est", gap_stats(W.static), file=sys.stderr)
        out += text(W.static)
    W = p3_final(); check([], W); out += text(W.static)
    out += "L_k1_done:\n  s_endpgm\n"

    out += '.section .rodata,"a"\n.p2align 6\n' + kd(KN, 512, 256)
    return out
if __name__ == "__main__":
    path = sys.argv[1]
    for kv in sys.argv[2:]:
        k, val = kv.split("=")
        cur = getattr(cfg, k)
        setattr(cfg, k, (val == "1") if isinstance(cur, bool) else type(cur)(val.replace("+", " ")))
    EAGER[0] = cfg.eager
    txt = build()
    if cfg.cpf:
        import subprocess
        open("_p1.s", "w").write(txt.replace("CODE_SHARE", "0x1000").replace("CODE_LAST", "0x10000"))
        subprocess.check_call(["clang", "-x", "assembler", "-target", "amdgcn-amd-amdhsa", "-mcpu=gfx950", "-c", "_p1.s", "-o", "_p1.o"])
        sym = {l.split()[7]: int(l.split()[1], 16) for l in subprocess.check_output(["llvm-readelf", "-s", "_p1.o"], text=True).splitlines() if len(l.split()) == 8 and l.split()[7].startswith("L_")}
        last = sym["L_k1_done"] - sym["L_pc"]; share = ((last - 4096) // 32 + 127) & ~127
        assert share <= 4096
        txt = txt.replace("CODE_SHARE", hex(share)).replace("CODE_LAST", hex(last))
    open(path, "w").write(txt)
```

```python
import sys, math, struct
from core import *

PIECE = 1056; GRP = 4 * PIECE; UNIT = 16 * PIECE; SLOT = 2 * UNIT
X_BASE = 3 * UNIT; W_BASE = X_BASE + 2 * SLOT; LDS1 = W_BASE + 2 * UNIT
VOTE = LDS1
QSCALE = struct.unpack("<I", struct.pack("<f", math.log2(math.e) / math.sqrt(128.0)))[0]
LIMIT = 0x4b800000

class Cfg:
    stamps = False
    kvflags = "nt"
    xflags = ""
    wflags = ""
    oflags = ""
    k2_oflags = ""
    k2_wflags = ""
    fallback = True
    rot = 4
    xtouch = False
    g7 = 10
    order = 0
    nokv1 = False
    cpf = 1
    kv1 = True
    mbudget = 16
    fused = True
    pre = 2
    xsc = 'sc1'
    xbf = True
    wrate = 3
    outflags = ''
    touch = True
    pre2 = 3
    gshift = 1
    odepth = 4
    tbudget = 24
    noo = False
    now = False
    o3flags = ''
    nomf3 = False
    forcemix = False
    kvpace = True
    sset = 'main'
    nomfma1 = False
    nord1 = False
    nodma1 = False
    w3dma = True
    kswap = True
    dK = 5
    frac = 1.0
    fracK = 1.0
    dbgst = False
    its = False
    longloop = 0
    kick = 0
    align = 0
    slow = 0
    wtouch = False
    wil = False
    wlate = False
    wroll = 0
    gdl = False
    msum = 2
    cap3 = 0
    otm = 0
    kve = 1
    dV = 4
    otd = '044'
    otw = False
    cap0 = 0
    backlog = 3
    mix2 = 1
    pack = True
    eager = 16
    extra = 0
    kdt = 2.5
    kgap = 11
    trot = False
    tsel = '0123'
    pwarm = True
    tflags = ''
    tfrom = 13
    k2map = 1
cfg = Cfg()

sW = 3; SX, SWQ, SK, SV, SO = 8, 12, 16, 20, 24
sB, sH, sROT = 28, 29, 30
sXb, sG = 31, 32
sT0, sT1, sT2 = 33, 34, 35
sXo, sXo2, sWo = 36, 37, 38
sKo, sVo = 46, 47
sS1, sS2, sS3 = 48, 49, 50
sV = (40, 41, 42, 43, 7)
def vslot(tile):
    if cfg.dV == 3: return (tile & 3) * SLOT
    return (0, SLOT, 2 * SLOT, 3 * SLOT, 4 * SLOT - UNIT)[tile % 5]
sT = 51; sPASS = 52; sC = 53; sWS = 44; sS0 = 98
vKrd, vVrd, vKrd0, vVrd0, vXrd, vWrd = 232, 233, 234, 235, 236, 237
vOst = 238; vLane = 239; vT = 220
vKV, vX, vWq = 240, 244, 248
ACC = 0; QF = 128
S_ = (0, 32); P_ = (64, 80); NEGM = 192; LSUM = 208; MTRUE = 212; TMP = 216
KF, VF = 192, 224
def acc(a, tau): return ACC + a * 32 + tau * 4
def qf(a, s): return QF + (a * 4 + s) * 4
def wset(p, s, tau): return p * 96 + (s * 8 + tau) * 4
def xset(p, s, a): return p * 96 + 64 + (s * 4 + a) * 4
def oacc(a, t): return a * 32 + t * 4
v = lambda n: f"v{n}"
s = lambda n: f"s{n}"

STAMP_BASE = 60
def stamp(i, sset="main"):
    if not cfg.stamps or (i > 0 and sset != cfg.sset and sset != "k2"): return []
    return [raw(f"s_memrealtime s[{STAMP_BASE+4*i}:{STAMP_BASE+4*i+1}]"), raw(f"s_memtime s[{STAMP_BASE+4*i+2}:{STAMP_BASE+4*i+3}]"), waitlg(0)]
def GOFF(): return " offset:128" if cfg.dbgst else ""
def stampf(i, sset, after, tgt):
    if not cfg.stamps or sset != cfg.sset: return []
    o = [I(f"s_memrealtime s[{STAMP_BASE+4*i}:{STAMP_BASE+4*i+1}]", "salu", tgt=tgt), I(f"s_memtime s[{STAMP_BASE+4*i+2}:{STAMP_BASE+4*i+3}]", "salu", tgt=tgt)]
    for x in o: x.after = [after]
    return o
def dump_stamps(n, wsreg, off, lane, lab):
    if not cfg.stamps: return []
    o = [raw("s_waitcnt vmcnt(0) lgkmcnt(0)")]
    if cfg.dbgst:
        o += [raw("s_cmp_lg_u32 s2, 100"), raw(f"s_cbranch_scc1 {lab}"), raw(f"s_cmp_lg_u32 s{sW}, 0"), raw(f"s_cbranch_scc1 {lab}"), raw("v_mov_b32 v3, 0"), raw("s_mov_b64 exec, 1")]
        for i in range(1, n):
            o += [raw(f"s_sub_u32 s4, s{STAMP_BASE+4*i}, s{STAMP_BASE}"), raw("v_mov_b32 v4, s4"), raw(f"global_store_dword v3, v4, s[100:101] offset:{4*i}"), raw("s_nop 1")]
        o += [raw(f"s_sub_u32 s4, s{STAMP_BASE+4*n-2}, s{STAMP_BASE+2}"), raw("v_mov_b32 v4, s4"), raw(f"global_store_dword v3, v4, s[100:101] offset:0")]
        return o
    o += [raw(f"s_lshl_b32 s4, s2, 10"), raw(f"s_lshl_b32 s5, s{sW}, 8"), raw("s_add_u32 s4, s4, s5"), raw(f"s_add_u32 s4, s4, {off}"),
          raw(f"s_add_u32 s4, s{wsreg}, s4"), raw(f"s_addc_u32 s5, s{wsreg+1}, 0"),
          raw(f"v_cmp_eq_u32 vcc, 0, {lane}"), raw("s_and_saveexec_b64 s[6:7], vcc"), raw(f"s_cbranch_execz {lab}"), raw("v_mov_b32 v3, 0")]
    for i in range(n):
        o += [raw(f"v_mov_b32 v{4+j}, s{STAMP_BASE+4*i+j}") for j in range(4)]
        o += [raw(f"global_store_dwordx4 v3, v[4:7], s[4:5] offset:{16*i}"), raw("s_nop 1")]
    return o
STAMP_OFF = 0x2000000

def srd(reg, lo, hi, add, sub, nrec):
    o = [salu("s_add_u32", s(reg), s(lo), s(add)), salu("s_addc_u32", s(reg + 1), s(hi), "0")]
    if sub: o += [salu("s_sub_u32", s(reg), s(reg), str(sub)), salu("s_subb_u32", s(reg + 1), s(reg + 1), "0", scc_r=True, scc_w=True)]
    o += [salu("s_mov_b32", s(reg + 2), nrec), salu("s_mov_b32", s(reg + 3), "0x20000")]
    return o

def k1_setup():
    o = []
    A = o.append
    A(raw("s_cmp_ge_u32 s2, 256")); A(raw("s_cbranch_scc1 L_k1_done"))
    o += stamp(0)
    A(raw("s_load_dwordx4 s[4:7], s[0:1], 0"))
    A(raw("s_load_dwordx4 s[40:43], s[0:1], 16"))
    A(raw(f"s_load_dwordx2 s[{sWS}:{sWS+1}], s[0:1], 56"))
    A(raw("s_load_dwordx4 s[56:59], s[0:1], 32"))
    A(raw("s_load_dwordx2 s[100:101], s[0:1], 48"))
    if cfg.cpf:
        A(raw("s_getpc_b64 s[54:55]")); A(label("L_pc"))
        A(raw("v_cmp_gt_u32 vcc, 64, v0")); A(raw("s_and_saveexec_b64 s[34:35], vcc")); A(raw("s_cbranch_execz L_cpf"))
        A(raw("s_lshr_b32 s33, s2, 3")); A(raw("s_mul_i32 s33, s33, CODE_SHARE")); A(raw("v_lshrrev_b32 v2, 5, v0")); A(raw("v_mul_u32_u24 v2, s33, v2"))
        A(raw("v_lshl_add_u32 v1, v0, 7, v2")); A(raw("v_min_u32 v1, CODE_LAST, v1")); A(raw("global_load_dword v231, v1, s[54:55]"))
        A(label("L_cpf")); A(raw("s_mov_b64 exec, s[34:35]"))
    A(valu("v_lshrrev_b32", "v1", "6", "v0")); A(valu("v_and_b32", v(vLane), "63", "v0"))
    A(valu("v_readfirstlane_b32", s(sW), "v1"))
    A(salu("s_and_b32", s(sT0), "s2", "7")); A(salu("s_lshr_b32", s(sT1), "s2", "3"))
    A(salu("s_and_b32", s(sB), s(sT0), "1")); A(salu("s_lshl_b32", s(sB), s(sB), "2")); A(salu("s_and_b32", s(sT2), s(sT1), "3")); A(salu("s_add_u32", s(sB), s(sB), s(sT2)))
    A(salu("s_lshr_b32", s(sH), s(sT0), "1")); A(salu("s_lshl_b32", s(sH), s(sH), "3")); A(salu("s_lshr_b32", s(sT1), s(sT1), "2")); A(salu("s_add_u32", s(sH), s(sH), s(sT1)))
    A(salu("s_lshl_b32", s(sT2), s(sT2), "1")); A(salu("s_add_u32", s(sROT), s(sH), s(sT2)))
    if cfg.rot == 8: A(salu("s_and_b32", s(sROT), s(sROT), "7"))
    elif cfg.rot == 1: A(salu("s_mov_b32", s(sROT), "0"))
    else:
        A(salu("s_lshr_b32", s(sT2), s(sT2), "1")); A(salu("s_add_u32", s(sROT), s(sH), s(sT2)))
        A(salu("s_and_b32", s(sROT), s(sROT), str(cfg.rot - 1))); A(salu("s_mul_i32", s(sROT), s(sROT), str(8 // cfg.rot)))
    A(salu("s_mul_i32", s(sG), s(sW), str(GRP))); A(salu("s_lshl_b32", s(sXb), s(sG), "1")); A(salu("s_add_u32", s(sXb), s(sXb), str(X_BASE)))
    A(salu("s_mov_b32", s(sC), hex(QSCALE))); A(salu("s_mov_b32", s(sPASS), "0"))
    L = v(vLane)
    A(valu("v_and_b32", "v1", "15", L)); A(valu("v_lshrrev_b32", "v2", "4", L))
    A(valu("v_bfe_u32", "v3", L, "2", "2")); A(valu("v_and_b32", "v4", "3", L))
    A(valu("v_lshrrev_b32", "v5", "5", L)); A(valu("v_lshlrev_b32", "v5", "15", "v5"))
    A(valu("v_bfe_u32", "v6", L, "3", "2")); A(valu("v_lshl_add_u32", "v5", "v6", "12", "v5"))
    A(valu("v_and_b32", "v6", "7", L)); A(valu("v_lshl_add_u32", "v5", "v6", "4", "v5"))
    A(salu("s_lshl_b32", s(sT0), s(sW), "16")); A(salu("s_add_u32", s(sT0), s(sT0), "128"))
    A(valu("v_add_u32", v(vX), s(sT0), "v5"))
    for m in range(1, 4): A(valu("v_subrev_u32", v(vX + m), str(32 * m), v(vX)))
    A(salu("s_and_b32", s(sT0), s(sW), "1")); A(salu("s_lshl_b32", s(sT0), s(sT0), "16"))
    A(salu("s_lshr_b32", s(sT1), s(sW), "1")); A(salu("s_lshl_b32", s(sT1), s(sT1), "15")); A(salu("s_add_u32", s(sT0), s(sT0), s(sT1)))
    A(valu("v_lshlrev_b32", "v5", "17", "v2")); A(valu("v_lshl_add_u32", "v5", "v1", "4", "v5"))
    A(valu("v_add_u32", v(vWq), s(sT0), "v5"))
    for m in range(1, 4): A(valu("v_add_u32", v(vWq + m), str(m * (8192 - PIECE)), v(vWq)))
    A(salu("s_lshl_b32", s(sT0), s(sW), "12")); A(salu("s_add_u32", s(sT0), s(sT0), "128"))
    A(valu("v_lshlrev_b32", v(vOst), "4", L)); A(valu("v_add_u32", v(vKV), s(sT0), v(vOst)))
    for m in range(1, 4): A(valu("v_subrev_u32", v(vKV + m), str(32 * m), v(vKV)))
    o += k1_setup2() + (touch_setup1a() if cfg.xtouch else [])
    A(salu("s_mul_i32", s(sT0), s(sB), "245760")); A(salu("s_lshl_b32", s(sT1), s(sH), "8")); A(salu("s_sub_u32", s(sT2), "0x400000", s(sT1)))
    A(raw("s_waitcnt lgkmcnt(0)", "other"))
    o += stamp(1, "st")
    o += srd(SX, 4, 5, sT0, 128, str(245760 + 128)) + srd(SWQ, 42, 43, sT1, 0, s(sT2))
    rest = []; A = rest.append
    A(salu("s_lshl_b32", s(sT0), s(sB), "5")); A(salu("s_add_u32", s(sT0), s(sT0), s(sH))); A(salu("s_lshl_b32", s(sT0), s(sT0), "18"))
    rest += srd(SK, 6, 7, sT0, 128, str(262144 + 128)) + srd(SV, 40, 41, sT0, 128, str(262144 + 128))
    A(salu("s_lshl_b32", s(sT0), s(sB), "21")); A(salu("s_lshr_b32", s(sT1), s(sW), "1")); A(salu("s_lshl_b32", s(sT1), s(sT1), "20")); A(salu("s_add_u32", s(sT0), s(sT0), s(sT1)))
    A(salu("s_lshl_b32", s(sT1), s(sH), "15")); A(salu("s_add_u32", s(sT0), s(sT0), s(sT1)))
    A(salu("s_and_b32", s(sT1), s(sW), "1")); A(salu("s_lshl_b32", s(sT1), s(sT1), "12")); A(salu("s_add_u32", s(sT0), s(sT0), s(sT1)))
    rest += srd(SO, sWS, sWS + 1, sT0, 0, "28672")
    c0 = x_dma(0) + w_dma(0); c1 = x_dma(1) + w_dma(1); t = touch_setup1b() if cfg.xtouch else []
    if cfg.order == 0: o += c0 + stamp(2, "st") + c1 + stamp(3, "st") + t + xw_touch(2) + rest
    if cfg.order == 1: o += t + xw_touch(0) + c0 + stamp(2, "st") + xw_touch(2) + c1 + stamp(3, "st") + rest
    if cfg.order == 2: o += t + xw_touch(0) + xw_touch(2) + c0 + stamp(2, "st") + c1 + stamp(3, "st") + rest
    if cfg.order == 4: o += c0 + stamp(2, "st") + t + xw_touch(2) + c1 + stamp(3, "st") + rest
    return o

def k1_setup2():
    o = []; A = o.append
    A(salu("s_mov_b32", s(sT0), str(PIECE)))
    A(valu("v_and_b32", "v5", "7", "v1")); A(valu("v_mul_u32_u24", "v5", s(sT0), "v5"))
    A(valu("v_lshrrev_b32", "v6", "3", "v1")); A(valu("v_lshl_add_u32", "v5", "v6", "8", "v5")); A(valu("v_lshl_add_u32", v(vKrd0), "v2", "4", "v5"))
    A(valu("v_mov_b32", v(vKrd), v(vKrd0)))
    A(valu("v_and_b32", "v5", "1", "v2")); A(valu("v_lshl_add_u32", "v5", "v5", "2", "v3")); A(valu("v_mul_u32_u24", "v5", s(sT0), "v5"))
    A(valu("v_lshrrev_b32", "v6", "1", "v2")); A(valu("v_lshl_add_u32", "v5", "v6", "8", "v5")); A(valu("v_lshl_add_u32", "v5", "v4", "3", "v5"))
    A(valu("v_add_u32", v(vVrd0), str(UNIT), "v5")); A(valu("v_mov_b32", v(vVrd), v(vVrd0))); A(valu("v_add_u32", v(vWrd), str(W_BASE), "v5"))
    A(valu("v_mul_u32_u24", "v5", s(sT0), "v4")); A(valu("v_lshl_add_u32", "v5", "v3", "7", "v5")); A(valu("v_lshl_add_u32", "v5", "v2", "4", "v5"))
    A(valu("v_add_u32", v(vXrd), s(sXb), "v5"))
    for a in range(4): A(valu("v_mov_b32", v(MTRUE + a), "0xff800000"))
    A(valu("v_lshrrev_b32", "v5", "1", "v2")); A(valu("v_lshlrev_b32", "v5", "15", "v5")); A(valu("v_and_b32", "v6", "1", "v2")); A(valu("v_lshl_add_u32", "v5", "v6", "13", "v5"))
    if cfg.wil: A(valu("v_lshl_add_u32", "v5", "v3", "8", "v5")); A(valu("v_lshl_add_u32", "v5", "v4", "4", "v5"))
    else: A(valu("v_lshl_add_u32", "v5", "v1", "4", "v5"))
    A(salu("s_lshr_b32", s(sT0), s(sW), "1")); A(salu("s_lshl_b32", s(sT0), s(sT0), "14")); A(salu("s_and_b32", s(sT1), s(sW), "1")); A(salu("s_lshl_b32", s(sT1), s(sT1), "12"))
    A(salu("s_add_u32", s(sT0), s(sT0), s(sT1))); A(valu("v_add_u32", "v5", s(sT0), "v5"))
    for m in range(4): A(valu("v_add_u32", v(v3Wd + m), str(128 - 32 * m), "v5"))
    return o

def x_dma(c, t0=None, dt=1, after=None):
    p = c & 1; o = []; g = f"c{c}"; st = "dma"
    def T(k): return None if t0 is None else int(t0 + k * dt)
    def U(k): return None if t0 is None else int(t0 - 7 + k)
    o.append(salu("s_add_u32", s(sT0), s(sROT), str(c), tgt=U(0), stream="xa")); o.append(salu("s_and_b32", s(sT0), s(sT0), "7", tgt=U(1), stream="xa"))
    o.append(salu("s_lshl_b32", s(sXo), s(sT0), "7", tgt=U(2), stream="xa")); o.append(salu("s_lshl_b32", s(sWo), s(sT0), "19", tgt=U(3), stream="xa"))
    o.append(salu("s_add_u32", s(sXo2), s(sXo), "16384", tgt=U(4), stream="xa"))
    k = 0
    for half in range(2):
        o.append(salu("s_add_u32", "m0", s(sXb), str(p * SLOT + half * GRP), tgt=T(k - 1), stream=st))
        for m in range(4):
            d = dma(v(vX + m), SX, s(sXo2 if half else sXo), m * PIECE, cfg.xflags, grp=g, tgt=T(k), stream=st); k += 1
            if after: d.after = list(after)
            o.append(d)
    return o
def w_dma(c, t0=None, dt=1):
    p = c & 1; o = []; g = f"c{c}"; st = "dma"
    def T(k): return None if t0 is None else int(t0 + k * dt)
    o.append(salu("s_add_u32", "m0", s(sG), str(W_BASE + p * UNIT), tgt=T(-1), stream=st))
    for m in range(4): o.append(dma(v(vWq + m), SWQ, s(sWo), m * PIECE, cfg.wflags, grp=g, tgt=T(m), stream=st))
    return o
def kv_dma_static(which, tile, t0=None, dt=1, grp=0, ms=(0, 1, 2, 3)):
    st = "dma"
    def T(k): return None if t0 is None else t0 + k * dt
    o = [salu("s_mov_b32", s(sT1), str(tile * 16384 + grp * 4096), tgt=T(-1), stream=st),
         salu("s_add_u32", "m0", s(sG), str((vslot(tile) + UNIT if which == "V" else (tile & 3) * SLOT) + grp * GRP), tgt=T(-1), stream=st)]
    for k, m in enumerate(ms): o.append(dma(v(vKV + m), SK if which == "K" else SV, s(sT1), m * PIECE, cfg.kvflags, grp=f"{which}{tile}", tgt=T(k), stream=st))
    return o
def chunk_reads(c, nq, t0=None, dt=1):
    p = c & 1; o = []; k = 0
    def T(k): return None if t0 is None else t0 + k * dt
    items = []
    for s_ in range(2):
        for a in range(nq): items.append(("x", s_, a))
    for tau in range(8):
        for s_ in range(2):
            for z in range(2): items.append(("w", s_, tau, z))
    for it in items:
        if it[0] == "x":
            _, s_, a = it
            o.append(ds_b128("a", xset(p, s_, a), v(vXrd), p * SLOT + (a & 1) * GRP + (a >> 1) * 512 + s_ * 64, tgt=T(k), stream="rd"))
        else:
            _, s_, tau, z = it
            o.append(ds_tr("a", wset(p, s_, tau) + 2 * z, v(vWrd), p * UNIT + z * 8 * PIECE + s_ * 512 + 32 * tau, tgt=T(k), stream="rd"))
        k += 1
    return o
def chunk_mfma(c, nq, amajor=False):
    p = c & 1; o = []
    order = [(a, tau) for a in range(nq) for tau in range(8)] if amajor else [(a, tau) for tau in range(8) for a in range(nq)]
    for a, tau in order:
        for s_ in range(2):
            z = (c == 0 and s_ == 0)
            o.append(mfma("v", acc(a, tau), "a", wset(p, s_, tau), "a", xset(p, s_, a), "0" if z else None))
    return o
def q_convert(a, t0, dt):
    o = []; k = 0
    for s_ in range(4):
        d = qf(a, s_)
        for half in range(2):
            b = acc(a, 2 * s_ + half)
            for r in range(4): o.append(valu("v_mul_f32", v(b + r), s(sC), v(b + r), tgt=t0 + k * dt)); k += 1
            for r in range(2): o.append(valu("v_cvt_pk_bf16_f32", v(d + 2 * half + r), v(b + 2 * r), v(b + 2 * r + 1), tgt=t0 + k * dt)); k += 1
        for r in range(2): o.append(swap("v_permlane32_swap_b32", v(d + r), v(d + 2 + r), tgt=t0 + k * dt)); k += 1
        for r in range(2): o.append(swap("v_permlane16_swap_b32", v(d + r), v(d + 2 + r), tgt=t0 + k * dt)); k += 1
    return o
def k_reads(j, t0=None, dt=4, after=None):
    o = []
    for r in range(8):
        kap, s_ = r >> 2, r & 3
        i = ds_b128("a", KF + 4 * r, v(vKrd), j * 8 * PIECE + kap * 512 + s_ * 64, tgt=None if t0 is None else t0 + r * dt, stream="rd")
        if after: i.after = list(after)
        o.append(i)
    return o
def v_reads(j, t0, dt):
    o = []
    for r in range(16):
        t, z = r >> 1, r & 1
        o.append(ds_tr("a", VF + 4 * t + 2 * z, v(vVrd), j * 8 * PIECE + z * 512 + 32 * t, tgt=t0 + r * dt, stream="rd"))
    return o
def qk(j, nq, first=False):
    o = []
    for a in range(nq):
        for kap in range(2):
            d = S_[j] + a * 8 + kap * 4
            for s_ in range(4):
                if s_ == 0: o.append(mfma("v", d, "a", KF + 4 * (kap * 4), "v", qf(a, 0), "0" if first else "v", None if first else NEGM + 4 * a))
                else: o.append(mfma("v", d, "a", KF + 4 * (kap * 4 + s_), "v", qf(a, s_)))
    return o
ONES = 128; LM = 96
def mtiles(nq): return list(range(cfg.msum)) if nq == 4 else []
def lsreg(a, nq): return LM + 4 * a if a in mtiles(nq) else LSUM + a
def lsum_mfma(j, a, first=False): return mfma("v", LM + 4 * a, "a", ONES, "v", P_[j] + 4 * a, "0" if first else None)
def pv(j, nq, first=False):
    o = [mfma("a", oacc(a, t), "a", VF + 4 * t, "v", P_[j] + 4 * a, "0" if first else None) for t in range(8) for a in range(nq)]
    return o + [lsum_mfma(j, a, first) for a in mtiles(nq)]
def sm(j, nq, t0, dt=2.0, mix=False):
    o = []
    order = list(range(8 * nq))
    if mix and len(mtiles(nq)) == 2:
        order = [e_ for k in range(8) for e_ in (2 * k, 2 * k + 1, 16 + 2 * k, 17 + 2 * k)]
        if cfg.mix2 == 0: order = list(range(32))
        if cfg.mix2 == 2: order = [e_ for k in range(4) for e_ in (2 * k, 2 * k + 1, 16 + 2 * k, 17 + 2 * k)] + [e_ for k in range(4) for e_ in (24 + 2 * k, 25 + 2 * k, 8 + 2 * k, 9 + 2 * k)]
    if mix and len(mtiles(nq)) == 1:
        order = [e_ for k in range(4) for e_ in (2 * k, 2 * k + 1, 8 + 2 * k, 9 + 2 * k)] + list(range(16, 32))
    for n_, i in enumerate(order):
        r = S_[j] + i; a = i >> 3
        o.append(valu("v_exp_f32", v(r), v(r), tgt=int(t0 + n_ * dt)))
        if a not in mtiles(nq): o.append(valu("v_add_f32", v(LSUM + a), v(LSUM + a), v(r), tgt=int(t0 + n_ * dt + 1)))
        if i & 1: o.append(valu("v_cvt_pk_bf16_f32", v(P_[j] + (i >> 1)), v(r - 1), v(r), tgt=int(t0 + n_ * dt + 1)))
    return o
def xreduce(op, reg, tmp, t0=None, dt=1):
    def T(k): return None if t0 is None else t0 + k * dt
    return [valu("v_mov_b32", v(tmp), v(reg), tgt=T(0)), swap("v_permlane16_swap_b32", v(reg), v(tmp), tgt=T(1)), valu(op, v(reg), v(reg), v(tmp), tgt=T(2)),
            valu("v_mov_b32", v(tmp), v(reg), tgt=T(3)), swap("v_permlane32_swap_b32", v(reg), v(tmp), tgt=T(4)), valu(op, v(reg), v(reg), v(tmp), tgt=T(5))]
def first_max(a, t0, dt):
    o = []; b = S_[0] + a * 8; m = TMP + 2 * a; k = 0
    o.append(valu("v_max3_f32", v(m), v(b), v(b + 1), v(MTRUE + a), tgt=t0))
    for r in range(1, 4): o.append(valu("v_max3_f32", v(m), v(b + 2 * r), v(b + 2 * r + 1), v(m), tgt=t0 + r * dt))
    o += xreduce("v_max_f32", m, m + 1, t0 + 4 * dt, dt)
    for r in range(4): o.append(valu("v_sub_f32", v(NEGM + 4 * a + r), "0", v(m), tgt=t0 + (10 + r) * dt))
    for r in range(8): o.append(valu("v_sub_f32", v(b + r), v(b + r), v(m), tgt=t0 + (14 + r) * dt))
    o.append(valu("v_mov_b32", v(LSUM + a), "0", tgt=t0))
    return o

class Variant:
    def __init__(s_, nq, name):
        s_.nq, s_.name = nq, name
        s_.static = []
        s_.trace = []
        s_.vm = []
        s_.pend = []
    def finish(s_, seq, sched=True, **kw):
        seq = schedule(seq, **kw) if sched else seq
        seq = s_.resolve_vm(seq)
        seq, s_.pend = insert_lgkm(seq, s_.pend)
        seq = fix_hazards(seq, s_.trace)
        s_.static += seq; s_.trace += seq
        return seq
    def resolve_vm(s_, seq):
        out = []
        for c in seq:
            if c.k == "wait" and c.meta == ("vm", None):
                n = min(vm_count(s_.vm, c.need), 63)
                w = waitvm(n, need=c.need); out.append(w)
            else:
                out.append(c)
                if c.k == "vmem": s_.vm.append(c)
        return out
def wvm(groups, **kw): return I("s_waitcnt vmcnt(?)", "wait", meta=("vm", None), need=set(groups), **kw)

sTo = 49 + 50
sKt = 95
def window(T, nq, part, static):
    n = 8 * nq; st = "dma"
    ps = [((m + 0.5) / 4, "V", 0, m) for m in range(4)]
    if nq == 3: ps += [((k + 0.25) / 16, "K", k >> 2, k & 3) for k in range(16)]
    fv = 0.24 if (cfg.wlate and T == 12) else cfg.frac
    ps = sorted((p * (fv if w_ == 'V' else cfg.fracK), w_, g_, m) for p, w_, g_, m in ps)
    o = []; cur = None
    It = T + part
    for p, w_, g_, m in ps:
        if (p >= 0.25) != bool(part): continue
        tile = T + (cfg.dV if w_ == "V" else cfg.dK)
        if static and tile > 15: continue
        tg = int(3 * n + len(mtiles(nq)) + p * (4 * n - 4)) if part == 0 else int((p - 0.25) * (4 * n - 6)) + 1
        if (w_, g_) != cur:
            cur = (w_, g_)
            if static:
                o.append(salu("s_mov_b32", s(sKt), str(tile * 16384 + ((g_ - 3) * 4096 if w_ == "K" else 0)), tgt=tg - 2, stream=st))
                if w_ == "V": o.append(salu("s_add_u32", "m0", s(sG), str(vslot(tile) + UNIT), tgt=tg - 1, stream=st))
                else: o.append(salu("s_mov_b32", "m0", str((tile & 3) * SLOT + g_ * GRP), tgt=tg - 1, stream=st))
            else:
                sl = sV[tile - It] if (w_ == "V" and cfg.dV == 4) else (sS0, sS1, sS2, sS3)[(tile - It) & 3]
                if w_ == "V":
                    o.append(salu("s_add_u32", s(sT0), s(sl), s(sG), tgt=tg - 2, stream=st)); o.append(salu("s_add_u32", "m0", s(sT0), str(UNIT), tgt=tg - 1, stream=st))
                else:
                    o.append(salu("s_add_u32", s(sKt), s(sKo), str(g_ * 4096), tgt=tg - 2, stream=st)); o.append(salu("s_add_u32", "m0", s(sl), str(g_ * GRP), tgt=tg - 1, stream=st))
        cap = cfg.cap3 if nq == 3 else cfg.cap0
        if cap: o.append(waitvm(cap - 1, tgt=tg - 1, stream=st))
        so = sKt if (static or w_ == "K") else sVo
        o.append(dma(v(vKV + m), SV if w_ == "V" else SK, s(so), m * PIECE, cfg.kvflags, grp=f"{w_}{tile}", tgt=tg, stream=st))
    return o
def iteration(T, nq, first=False, peeled=False):
    n = 8 * nq
    st = "dma"
    o = []
    vdt = 2 if nq == 4 else 1.5
    o += qk(0, nq)
    o += v_reads(0, 1, vdt)
    o += sm(1, nq, 0, mix=True)
    o += k_reads(1, n + 1, (n - 4) / 8)
    o += pv(0, nq, first)
    mx = len(mtiles(nq))
    B = 2 * n + mx
    o += qk(1, nq)
    vr = v_reads(1, B + 1, vdt); o += vr
    o.append(valu("v_add_u32", v(vVrd), str(vslot(T + 1)) if peeled else s(sV[1] if cfg.dV == 4 else sS1), v(vVrd0), tgt=B + n + 2))
    o += sm(0, nq, B - 2, 2.0, mix=True)
    w = wvm({f"K{T+2}", f"V{T+1}"}, tgt=B + n - 3, stream=["rd2", st]); b = barrier(tgt=B + n - 2, stream=["rd2", st])
    w.after = [x for x in o if x.k == "mfma"][B + n - 4:B + n - 3]
    o += [w, b]
    if cfg.its:
        x1 = valu("v_mov_b32", "v126", "s90", tgt=B + n - 1); x1.after = [b]
        x2 = I("s_memrealtime s[90:91]", "salu", tgt=B + n - 1); x2.after = [x1]
        o += [x1, x2, valu("v_cmp_eq_u32", "vcc", "s51", v(vLane), tgt=B + n), valu("v_cndmask_b32", "v127", "v127", "v126", "vcc", tgt=B + n + 2)]
    e = 4 * n + 2 * mx - 1
    t = B + n
    if T >= 12 and peeled:
        eA = []; eB = []
        if T == 12: eA = p3_wdma(0) + p3_wdma(1)
        if T == 13: eA = p3_wdma(2); eB = p3_wdma(3)
        if cfg.dV == 4:
            assert cfg.dK == 5
            eA, eB = {12: (p3_wdma(0), p3_wdma(1)), 13: (p3_wdma(2), p3_wdma(3)), 14: (p3_wdma(4), p3_wdma(5) + p3_wdma(6))}[T]
        if cfg.wlate:
            if T == 12: eA = []
            if T == 13: eA = p3_wdma(0) + p3_wdma(1) + p3_wdma(2)
        if cfg.wtouch and T == 12:
            x = I(f"global_load_dword v231, v230, s[56:57]", "vmem", rd=["v230"], meta="load", grp="touch")
            eA = [x]; eB = p3_wdma(0)
        if cfg.wtouch and T == 13: eA = p3_wdma(1) + p3_wdma(2)
        if T == 14 and cfg.dV == 3: eA = p3_wdma(4); eB = p3_wdma(5) + p3_wdma(6)
        if cfg.touch and cfg.otm == 0 and nq == 3:
            cnt = [int(c_) for c_ in cfg.otd]; k0 = sum(cnt[:T - 12]); tl = []
            for k in range(k0, k0 + cnt[T - 12]):
                tl.append(salu("s_mov_b32", s(sTo), str((k >> 2) * 16384), stream=st))
                tl.append(bload("v", 231, v(vT + (k & 3)), SX, s(sTo), 0, cfg.tflags, n=1, grp="touch", stream=st)); tl[-1].wr = set()
            eA = weave(eA, tl) if (eA and tl and cfg.otw) else eA + tl
        if cfg.touch and cfg.otm:
            def ot(k):
                x = bload("v", 231, "v230", SO, s(sTo), 0, cfg.tflags, n=1, grp="touch", stream=st); x.wr = set()
                return [salu("s_mov_b32", s(sTo), str(k * 16384), stream=st), x]
            where = {1: ((13, "B"), (14, "A")), 2: ((14, "A"), (14, "A")), 3: ((13, "B"), (13, "B")), 4: ((13, "A"), (13, "B")), 5: ((14, "A"), (14, "B"))}[cfg.otm]
            for k, (tt, ab) in reversed(list(enumerate(where))):
                if tt == T and ab == "A": eA = ot(k) + eA
                if tt == T and ab == "B": eB = ot(k) + eB
        for x in eA: x.stream = st
        pre = window(T - 1, nq, 1, True); post = window(T, nq, 0, True)
        if eA: place(eA, 3 if T == 12 else 6, 3 * n - 8)
        if eB: place(eB, t + 2, e - 4)
        def merge(a_, b_):
            items = []
            for z, seq in enumerate((a_, b_)):
                setup = []; m0 = None
                for x in seq:
                    if x.k == "vmem": items.append((x.tgt, len(items), z, setup, m0, x)); setup = []
                    else:
                        setup.append(x)
                        if "m0" in x.wr: m0 = x
            items.sort(key=lambda q_: q_[:2]); res = []; cur = None
            for tg, _, z, setup, m0, x in items:
                if any("m0" in y.wr for y in setup): m0 = next(y for y in setup if "m0" in y.wr)
                elif "m0" in x.rd and cur is not m0: setup = setup + [I(m0.t, m0.k, m0.rd, m0.wr, tgt=tg - 1, stream=m0.stream)]
                if "m0" in x.rd: cur = m0
                res += setup + [x]
            return res
        eA = merge(pre, eA); eB = merge(post, eB)
        k = o.index(w); o[k:k] = eA
        if T < 14:
            o.append(valu("v_add_u32", v(vKrd), str(((T + 2) & 3) * SLOT), v(vKrd0), tgt=B + n - 4))
            o += k_reads(0, B + n + 1, (n - 4) / 8, after=[b])
        else:
            o += [ds_tr("a", KF + 4 * (r >> 1) + 2 * (r & 1), v(vVrd), (r & 1) * 512 + 32 * (r >> 1), tgt=int(B + n + 4 + r * (n - 6) / 16), stream="rd") for r in range(16)]
            for x in o[-16:]: x.after = [b]
        return o + eB + pv(1, nq)
    o.append(valu("v_add_u32", v(vKrd), s(sS2), v(vKrd0), tgt=B + n - 4))
    o += k_reads(0, B + n + 1, (n - 4) / 8, after=[b])
    pre = window(T - 1, nq, 1, False)
    pre += [salu("s_add_u32", s(sVo), s(sVo), "16384", tgt=t - 5, stream=st)] + ([salu("s_add_u32", s(sKo), s(sKo), "16384", tgt=t - 4, stream=st)] if nq == 3 else [])
    if cfg.wroll and nq == 3:
        x = bload("v", 231, v(vT), STC2, s(sTo), 0, n=1, grp="touch", tgt=B + 6, stream=st); x.wr = set()
        pre += [salu("s_sub_u32", s(sT2), s(sT), str(cfg.wroll), tgt=B, stream="tch"), salu("s_lshl_b32", s(sTo), s(sT2), "13", tgt=B + 1, stream="tch"), x]
        pre.sort(key=lambda y: 0)
    if cfg.kick and nq == 3:
        kk = [salu("s_cmp_eq_u32", None, s(sT), "5", tgt=B + 2, stream=st), salu("s_cselect_b32", s(sTo), "0", "0x7ff00000", tgt=B + 3, stream=st)]
        for z in range(cfg.kick):
            kk.append(bload("v", 231, v(vT + (z & 1)), SX, s(sTo), 0, "nt", n=1, grp="touch", tgt=B + 4 + z, stream=st)); kk[-1].wr = set()
            kk.append(salu("s_add_u32", s(sTo), s(sTo), "8192" if z & 1 else "0", tgt=B + 4 + z, stream=st))
        pre += kk
    if cfg.extra and nq == 4:
        ex = [salu("s_mul_i32", s(sTo), "s2", "0x40000", tgt=4, stream=st), salu("s_lshl_b32", s(sT2), s(sT), "12", tgt=5, stream=st), salu("s_add_u32", s(sTo), s(sTo), s(sT2), tgt=6, stream=st),
              salu("s_add_u32", s(sTo), s(sTo), "0x4000000", tgt=6, stream=st), salu("s_mul_i32", s(sT2), s(sW), "0x4000000", tgt=6, stream=st), salu("s_add_u32", s(sTo), s(sTo), s(sT2), tgt=6, stream=st),
              valu("v_add_u32", "v125", s(sTo), v(vOst), tgt=7), salu("s_mov_b32", "m0", str(8 * UNIT), tgt=8, stream=st)]
        for z in range(cfg.extra): ex.append(I(f"global_load_lds_dwordx4 v125, s[{sWS}:{sWS+1}] offset:{z*1024} nt", "vmem", rd=["v125", "m0"], meta="dma", grp="ex", tgt=9 + z, stream=st))
        pre = ex + pre
    k = o.index(w); o[k:k] = pre
    o += window(T, nq, 0, False)
    r = e - 9
    o += pv(1, nq)
    o.append(salu("s_mov_b32", s(sS0), s(sS1), tgt=r + 1, stream=st))
    if cfg.dV == 4:
        rot = [(sT2, sV[0])] + [(sV[k], sV[k + 1]) for k in range(4)] + [(sV[4], sT2)]
        for k, (d_, s_) in enumerate(rot): o.append(salu("s_mov_b32", s(d_), s(s_), tgt=r - 8 + k, stream="vrot"))
    o.append(salu("s_mov_b32", s(sS1), s(sS2), tgt=r + 2, stream=st)); o.append(salu("s_mov_b32", s(sS2), s(sS3), tgt=r + 3, stream=st))
    o.append(salu("s_add_u32", s(sS3), s(sS3), str(SLOT), tgt=r + 4, stream=st)); o.append(salu("s_cmp_eq_u32", None, s(sS3), str(4 * SLOT), tgt=r + 5, stream=st))
    o.append(salu("s_cselect_b32", s(sS3), "0", s(sS3), tgt=r + 6, stream=st))
    o.append(salu("s_add_u32", s(sT), s(sT), "1", tgt=r + 7, stream=st));
    if cfg.longloop:
        for rg_ in (sKo, sVo):
            o += [salu("s_cmp_ge_u32", None, s(rg_), str(262144 - 16384), tgt=r + 8, stream=st), salu("s_cselect_b32", s(sT0), str(14 * 16384), "0", tgt=r + 8, stream=st), salu("s_sub_u32", s(rg_), s(rg_), s(sT0), tgt=r + 8, stream=st)]
    o.append(salu("s_cmp_lt_u32", None, s(sT), str(cfg.longloop or 12), tgt=r + 8, stream=st))
    return o

def pack_iter(o, nq):
    N = sum(1 for x in o if x.k == "mfma"); H = N // 2
    ex = [x for x in o if x.k == "trans"]; ld = [x for x in o if x.k == "lds"]; vm = [x for x in o if x.k == "vmem"]
    va = [x for x in o if x.k == "valu"]
    for i, x in enumerate(ex): x.tgt = (i // 32) * H + ((i % 32) * H) // 32
    eg = {x.tgt for x in ex}
    expo = {next(iter(x.wr)): x.tgt for x in ex[:32]}; expo2 = {next(iter(x.wr)): x.tgt for x in ex[32:]}
    dg = set()
    for x in vm:
        g = min(x.tgt, N - 1)
        while g in dg or g in eg: g += 1
        x.tgt = g; dg.add(g)
    xg = [g for g in range(N) if g not in dg and g not in eg]
    lg = {}
    for x in ld:
        left = len(ld) - len(lg); last = max(lg, default=-1)
        free = [g for g in xg if g > last]
        if len([g for g in free if g >= x.tgt]) >= left: g = next(g for g in free if g >= x.tgt)
        else: g = max(last + 1, min(int(x.tgt), N - 2 - left)); g += g in dg
        lg[g] = x; x.tgt = g
    rdy = []
    for x in va:
        op = x.t.split()[0]
        if op in ("v_add_f32", "v_cvt_pk_bf16_f32"):
            r = max((expo.get(q, expo2.get(q, -1)) if o.index(x) < o.index(ex[32]) else expo2.get(q, -1)) for q in x.rd) + 1
        else: r = x.tgt
        rdy.append((r, len(rdy), x))
    rdy.sort(key=lambda z: z[:2])
    bonus = set()
    def fill():
        k = 0; back = {}
        for g in xg:
            cap = (1 if g in lg else 2) + (g in bonus); take = 0
            while k < len(rdy) and rdy[k][0] <= g and take < cap: rdy[k][2].tgt = g; k += 1; take += 1
            back[g] = sum(1 for z in rdy[k:] if z[0] <= g)
        return len(rdy) - k, back
    while True:
        left, back = fill()
        worst = max(back.values())
        if left == 0 and worst <= cfg.backlog: break
        cand = [g for g in xg if g not in bonus and back[g] > (cfg.backlog if worst > cfg.backlog else 0)]
        if not cand: break
        bonus.add(cand[0] if worst > cfg.backlog else cand[-1])
    left, back = fill()
    if left:
        for z in rdy[len(rdy) - left:]: z[2].tgt = N - 1
    taken = {x.tgt for x in o if x.k in ("wait", "bar")}
    dl = {}
    for idx in range(len(o) - 1, -1, -1):
        x = o[idx]
        if x.k == "salu":
            nx = next((y for y in o[idx + 1:] if y.k in ("vmem", "salu", "wait") and (y.stream == x.stream or (isinstance(y.stream, list) and x.stream in y.stream))), None)
            if nx is not None and (nx.k != "salu" or id(nx) in dl):
                g = nx.tgt - 1
                while g in taken and g > -1: g -= 1
                x.tgt = g; taken.add(g); dl[id(x)] = g
    last = {}
    for x in o:
        if x.k == "salu" and id(x) not in dl:
            g = max(int(x.tgt), last.get(str(x.stream), -1) + 1)
            while g in taken and g < N - 1: g += 1
            x.tgt = min(g, N - 1); taken.add(g); last[str(x.stream)] = g
    return o
def sched_iter(T, nq, **kw):
    extra = kw.pop("extra", [])
    o = fuse_scc(extra + iteration(T, nq, **kw)); extra = []
    if nq == 4 and cfg.pack: return schedule(pack_iter(extra + o, nq), strict=True)
    return schedule(extra + o)
def place(seq, g0, g1):
    vec = [x for x in seq if x.k in COST]
    for k, x in enumerate(vec): x.tgt = g0 + k * (g1 - g0 + 1) // len(vec)
    nxt = g1
    for x in reversed(seq):
        if x.k in COST: nxt = x.tgt
        else: x.tgt = max(-1, nxt - 1); nxt = x.tgt if x.k == "salu" else nxt
    return seq
def weave(a, b, lead=0):
    grp = []; cur = []
    for x in b:
        cur.append(x)
        if x.k in COST: grp.append(cur); cur = []
    if cur: grp[-1] += cur
    out = list(a[:lead]); rest = a[lead:]; k = 0
    for n_, x in enumerate(rest):
        while k < len(grp) and k * len(rest) <= n_ * len(grp): out += grp[k]; k += 1
        out.append(x)
    for y in grp[k:]: out += y
    return out
def xw_touch(c):
    if not cfg.xtouch: return []
    x = bload("v", 231, v(vT + 2), STC, s(sTo), 0, n=1, grp="touch", stream="dma"); x.wr = set()
    return [salu("s_mul_i32", s(sTo), s(sTs), str(c), stream="dma"), x]
def wo_touch(k):
    x = I(f"global_load_dword v231, v{vT+3}, s[56:57]", "vmem", rd=[v(vT + 3)], meta="load", grp="touch", stream="dma")
    return [x, valu("v_add_u32", v(vT + 3), "0x2000", v(vT + 3), stream="dma")]
def first_tile(nq, G, redo=False):
    h = 8 * nq
    o = qk(0, nq, first=True)
    if cfg.dK == 5 and (cfg.kve == 0 or redo): o += kv_dma_static("K", 3, G + h, 3)
    elif cfg.dK == 5 and cfg.kve == 9: o += kv_dma_static("K", 3, G + h, h // 5)
    elif cfg.dK == 5 and cfg.kve >= 6: o += kv_dma_static("K", 3, G + 4, h // 3)
    if cfg.dV == 4: o += kv_dma_static("V", 2, G + (h + 12 if (cfg.kve in (0, 9) or redo) else 2 * h - 6 - 4 * (h // 4) if cfg.kve >= 6 else 2), h // 4)
    for a in range(nq): o += first_max(a, G + 8 * (a + 1) + 2, 0.5)
    o += k_reads(1, G + h - 6, 1)
    q1 = qk(1, nq); o += q1
    o += sm(0, nq, G + h + 2, 0.9)
    w = wvm({"K1", "V0", "G"}, tgt=G + 2 * h - 3, stream=["dma"]); b = barrier(tgt=G + 2 * h - 2, stream=["dma"])
    w.after = [q1[h - 4]]
    o += [w, b, valu("v_add_u32", v(vKrd), str(SLOT), v(vKrd0), tgt=G + 2 * h - 2)]
    o += k_reads(0, G + 2 * h - 1, 0, after=[b])
    for x in window(-1, nq, 0, True): x.tgt = G + 2 * h - 1; o.append(x)
    for k, (r_, val) in enumerate(((sS0, 0), (sVo, (cfg.dV - 1) * 16384), (sKo, (cfg.dK - 1) * 16384 - 3 * 4096), (sS1, SLOT), (sS2, 2 * SLOT), (sS3, 3 * SLOT), (sT, 0)) + (tuple((sV[k], vslot(k)) for k in range(5)) if cfg.dV == 4 else ())):
        o.append(salu("s_mov_b32", s(r_), str(val), tgt=G + 10 + k))
    o.append(valu("v_mov_b32", v(vVrd), v(vVrd0), tgt=G + 8))
    if mtiles(nq):
        o.append(valu("v_mov_b32", v(LM), "0x3f803f80", tgt=G + h))
        for r in range(4): o.append(valu("v_accvgpr_write_b32", f"a{ONES + r}", v(LM), tgt=G + h + 1))
    return o
def k1_variant(nq, name, pre):
    V = Variant(nq, name)
    V.finish([label(f"L_{name}")], sched=False)
    n = 16 * nq; nx = 2 * nq
    r0 = chunk_reads(0, nq)
    V.vm = [x for x in pre if x.k == "vmem"]
    o = (clear_flags() if nq == 3 else []) + stamp(4, "st") + [wvm({"c0"})] + stamp(5, "st") + [barrier()] + stamp(1) + stamp(1, "p1") + stamp(1, "p0") + stamp(6, "st") + r0[:nx + 8]
    V.finish(o, sched=False)
    for c in range(7):
        m = chunk_mfma(c, nq)
        w = wvm({f"c{c+1}"}, stream=["rd", "dma"]); b = barrier(stream=["rd", "dma"])
        rd = chunk_reads(c + 1, nq)
        extra = []
        if c in (0, 2): extra += xw_touch(c + 4)
        plan = {0: {5: [("K", 0, (0, 1, 2, 3)), ("V", 0, (0, 1, 2, 3)), ("K", 1, (0, 1))], 6: [("K", 1, (2, 3))]},
                1: {1: [("K", 0, (0, 1))], 2: [("K", 0, (2, 3))], 3: [("V", 0, (0, 1))], 4: [("V", 0, (2, 3))], 5: [("K", 1, (0, 1, 2, 3))], 6: [("K", 2, (0, 1, 2, 3)), ("V", 1, (0, 1, 2, 3))]},
                2: {2: [("K", 0, (0, 1, 2, 3))], 3: [("V", 0, (0, 1, 2, 3))], 4: [("K", 1, (0, 1, 2, 3))], 6: [("K", 2, (0, 1, 2, 3)), ("V", 1, (0, 1, 2, 3))]},
                3: {2: [("K", 0, (0, 1, 2, 3)), ("V", 0, (0, 1, 2, 3)), ("K", 1, (0, 1, 2, 3))], 6: [("K", 2, (0, 1, 2, 3)), ("V", 1, (0, 1, 2, 3))]},
                4: {4: [("K", 0, (0, 1, 2, 3))], 5: [("V", 0, (0, 1, 2, 3)), ("K", 1, (0, 1, 2, 3))], 6: [("K", 2, (0, 1, 2, 3)), ("V", 1, (0, 1, 2, 3))]},
                6: {1: [("K", 0, (0, 1))], 2: [("K", 0, (2, 3))], 3: [("V", 0, (0, 1))], 4: [("V", 0, (2, 3)), ("K", 1, (0,))], 5: [("K", 1, (1, 2, 3))], 6: [("K", 2, (0, 1, 2, 3))]},
                7: {2: [("K", 0, (0, 1, 2))], 3: [("K", 0, (3,)), ("V", 0, (0, 1))], 4: [("V", 0, (2, 3)), ("K", 1, (0,))], 5: [("K", 1, (1, 2, 3))], 6: [("K", 2, (0, 1, 2, 3))]},
                8: {3: [("K", 0, (0, 1, 2, 3))], 4: [("V", 0, (0, 1, 2, 3))], 5: [("K", 1, (0, 1, 2, 3))], 6: [("K", 2, (0, 1, 2, 3))]},
                9: {4: [("K", 0, (0, 1, 2, 3))], 5: [("V", 0, (0, 1, 2, 3))], 6: [("K", 1, (0, 1, 2, 3))]},
                -1: {1: [("K", 0, (0, 1, 2))], 2: [("K", 0, (3,)), ("V", 0, (0, 1))], 3: [("V", 0, (2, 3)), ("K", 1, (0,))], 4: [("K", 1, (1, 2, 3))], 6: [("K", 2, (0, 1, 2, 3)), ("V", 1, (0, 1, 2, 3))]},
                -2: {0: [("K", 0, (0, 1))], 1: [("K", 0, (2, 3))], 2: [("V", 0, (0, 1))], 3: [("V", 0, (2, 3))], 4: [("K", 1, (0, 1))], 5: [("K", 1, (2, 3))], 6: [("K", 2, (0, 1, 2, 3)), ("V", 1, (0, 1, 2, 3))]},
                5: {5: [("K", 0, (0, 1, 2, 3)), ("V", 0, (0, 1, 2, 3)), ("K", 1, (0, 1, 2, 3))], 6: [("K", 2, (0, 1, 2, 3)), ("V", 1, (0, 1, 2, 3))]}}[cfg.kve]
        kv = [x for wh, tl, ms in plan.get(c, []) for x in kv_dma_static(wh, tl, ms=ms)]
        if c <= 4: extra += kv
        if c == 0:
            g = 14
            o = place(r0[nx + 8:], -1, g - 3) + [waitlg(0, tgt=g - 1, stream="rd"), w, b] + m
            w.tgt = g - 1; b.tgt = g
            o += place(weave(rd[:14], extra + x_dma(2) + w_dma(2)) + rd[14:], g + 1, n - 3) + [waitlg(0, tgt=n - 1, stream="rd")]
        elif c <= 4:
            w.tgt = 0; b.tgt = 1
            early = extra + (x_dma(3) + w_dma(3) if c == 1 else [])
            ne = sum(1 for x in early if x.k == "vmem")
            k0 = max(nx + 4, min(len(rd) - 8, ne))
            seq = weave(rd[:k0], early) + [waitlg(k0 - nx, stream=["rd", "dma"])] + weave(rd[k0:], x_dma(c + 3))
            o = [w, b] + m + place(seq, 2, n - 8)
            o += [waitlg(0, tgt=n - 6, stream="rd"), barrier(tgt=n - 5, stream=["rd", "dma"])] + place(w_dma(c + 3), n - 4, n - 1)
        else:
            w.tgt = 0; b.tgt = 1
            if not kv: seq = rd
            elif c == 6 and cfg.kve == 0: seq = rd[:30] + weave(rd[30:], kv)
            else: seq = weave(rd, kv)
            o = [w, b] + m + place(seq, 2, n - 6) + [waitlg(0, tgt=n - 1, stream="rd")]
        if c <= 2:
            bars = [x for x in o if x.k == "bar"]
            base = {0: 2, 1: 4, 2: 7}[c]
            for k_, x in enumerate(bars[:2 if c == 1 else 1]): o += stampf(base + k_, "p0", x, x.tgt)
            if c < 2: o += stampf(base + len(bars), "p0", m[-1], n - 1)
        V.finish(o, strict=True, lds_lat=3)
        if c == 1 and nq == 3: V.finish([wvm({"clr"})] + register(), sched=False)
        V.finish(stamp(c + 2, "p1") if c < 6 else [], sched=False)
    c7 = chunk_mfma(7, nq, amajor=True)
    g0 = wvm({"K0"}, tgt=cfg.g7, stream=["dma", "rd"]); g1 = barrier(tgt=cfg.g7 + 1, stream=["dma", "rd"])
    if cfg.kve == 0: o = [g0, g1] + c7 + kv_dma_static("K", 2, cfg.g7 + 3, 3) + k_reads(0, cfg.g7 + 4, 1) + group_load(cfg.g7 + 14) + kv_dma_static("V", 1, n - 12, 3)
    elif cfg.kve == 9: o = [g0, g1] + c7 + k_reads(0, cfg.g7 + 4, 1) + group_load(cfg.g7 + 14) + kv_dma_static("K", 2, cfg.g7 + 3, n // 8) + kv_dma_static("V", 1, n - 8, n // 8)
    elif cfg.kve >= 6: o = [g0, g1] + c7 + k_reads(0, cfg.g7 + 4, 1) + group_load(cfg.g7 + 14) + kv_dma_static("V", 1, cfg.g7 + 3, n // 5)
    else: o = [g0, g1] + c7 + kv_dma_static("K", 3, cfg.g7 + 3, 3) + k_reads(0, cfg.g7 + 4, 1) + group_load(cfg.g7 + 14)
    for a in range(nq): o += q_convert(a, 16 * (a + 1) + 3, 0.3)
    o += stampf(2, "main", c7[-1], n - 1)
    V.finish(o + first_tile(nq, n), budget=cfg.mbudget)
    V.finish([label(f"L_{name}_join")] + stamp(3), sched=False)
    ge = group_eval() + p3_srd_w() + (touch_setup3() if cfg.wtouch else []) + (touch_setup4() if cfg.otm else touch_setup2() if nq == 3 and cfg.touch else [])
    for k, x in enumerate(ge): x.tgt = 3 + 2 * k; x.stream = "ge"
    V.finish(sched_iter(0, nq, first=True, extra=ge), sched=False)
    seqs = [V.resolve_vm(sched_iter(T, nq)) for T in range(1, 12)]
    for k, c in enumerate(seqs[0]):
        if c.k == "wait" and c.meta[0] == "vm":
            n_ = min(q[k].meta[1] for q in seqs)
            for q in seqs: q[k] = waitvm(n_, need=q[k].need)
    _, p1 = insert_lgkm(seqs[0], V.pend)
    body, p2 = insert_lgkm(seqs[0], p1)
    body = fix_hazards(body + [nop(15)] * cfg.slow + [raw(f"s_cbranch_scc1 L_{name}_loop", "branch", rd=["scc"])], body)
    if len(V.pend) > len(p1): V.static.append(waitlg(len(p1))); V.trace.append(V.static[-1])
    V.static.append(label(f"L_{name}_loop"))
    V.static += body; V.pend = p2; V.loop_stats = gap_stats(body)
    for cur in seqs:
        new = []; k = 0
        for c in body:
            if k < len(cur) and cur[k].t == c.t: new.append(cur[k]); k += 1
            else: new.append(c)
        assert k == len(cur), ("loop body differs", cur[k].t)
        V.trace += new
    for T in (12, 13, 14): V.finish(sched_iter(T, nq, peeled=True), sched=False)
    V.finish(stamp(4), sched=False)
    if cfg.its:
        V.finish([raw("s_lshl_b32 s4, s2, 10"), raw(f"s_lshl_b32 s5, s{sW}, 8"), raw("s_add_u32 s4, s4, s5"), raw(f"s_add_u32 s4, s4, {STAMP_OFF + 0x100000}"),
                  raw(f"s_add_u32 s4, s{sWS}, s4"), raw(f"s_addc_u32 s5, s{sWS+1}, 0"), raw(f"v_lshlrev_b32 v126, 2, v{vLane}"), raw("global_store_dword v126, v127, s[4:5]"), raw("s_nop 1")], sched=False)
    h2 = 16
    o = v_reads(1, -1, 0.5)
    inv = TMP
    A = o.append
    if cfg.fallback:
        A(salu("s_lshl_b32", s(sT2), s(sW), "2", tgt=12)); A(salu("s_add_u32", s(sT2), s(sT2), str(VOTE), tgt=13))
        A(valu("v_mov_b32", v(TMP + 13), s(sT2), tgt=14)); A(valu("v_mov_b32", v(TMP + 14), str(VOTE), tgt=14))
        A(salu("s_mov_b32", s(sT0), hex(LIMIT), tgt=14)); A(raw("s_mov_b64 s[54:55], 0", "salu", wr=["s54", "s55"], tgt=15))
    smx = sm(1, nq, 0, 1.0)
    def smt(a, t0, t1):
        x = [y for y in smx if (y.rd | y.wr) & set(R("v", S_[1] + 8 * a, 8))]
        for k, y in enumerate(x): y.tgt = int(t0 + (t1 - t0) * k / len(x))
        return x
    k = 0; t = 0
    for a in range(nq):
        o += smt(a, max(-1, t - 14), t + 2 if a else 6)
        p0 = [mfma("a", oacc(a, tt), "a", KF + 4 * tt, "v", P_[0] + 4 * a) for tt in range(8)]
        p1 = [mfma("a", oacc(a, tt), "a", VF + 4 * tt, "v", P_[1] + 4 * a) for tt in range(8)]
        if a in mtiles(nq):
            if a == 0: p0.append(lsum_mfma(0, a)); p1.insert(0, lsum_mfma(1, a))
            else: p0.insert(0, lsum_mfma(0, a)); p1.insert(0, lsum_mfma(1, a))
        o += (p0 + p1) if a == 0 else [y for pr in zip(p0, p1) for y in pr]
        if a not in mtiles(nq): o += xreduce("v_add_f32", LSUM + a, TMP + 8 + a, t + 8, 1)
        A(valu("v_rcp_f32", v(inv + a), v(lsreg(a, nq)), tgt=t + 14))
        if cfg.fallback:
            A(valu("v_cmp_nge_f32", "vcc", s(sT0), v(lsreg(a, nq)), tgt=t + 14))
            A(raw("s_or_b64 s[54:55], s[54:55], vcc", "salu", rd=["vcc", "s54", "s55"], wr=["s54", "s55", "scc"], tgt=t + 15))
        if a < nq - 1: t += len(p0) + len(p1)
        if a == nq - 1:
            tv = t + 15
            if cfg.fallback:
                A(salu("s_cselect_b32", s(sT0), "1", "0", tgt=tv)); A(valu("v_mov_b32", v(TMP + 12), s(sT0), tgt=tv))
                A(I(f"ds_write_b32 v{TMP+13}, v{TMP+12}", "ldsw", rd=[v(TMP + 12), v(TMP + 13)], tgt=tv, stream="rd"))
    epi = []
    for a in range(nq):
        for sg in range(4):
            tb = 16 * (k % 4) if a else 104 + 12 * (k % 2)
            if a == 1: tb = 16 * (k % 2)
            t0 = h2 * (a + 1) + 2 * min(a + 1, len(mtiles(nq))) + 3 + 3 * sg
            blk = [salu("s_mov_b32", s(sT1), str(8192 * sg), stream="st")]
            blk += [valu("v_accvgpr_read_b32", v(tb + r), f"a{oacc(a, 2*sg) + r}") for r in range(8)]
            blk += [valu("v_mul_f32", v(tb + r), v(inv + a), v(tb + r)) for r in range(8)]
            blk += [valu("v_cvt_pk_bf16_f32", v(tb + 8 + r), v(tb + 2 * r), v(tb + 2 * r + 1)) for r in range(4)]
            blk += [bstore("v", tb + 8, v(vOst), SO, s(sT1), 1024 * a, cfg.oflags, stream="st", grp="O")]
            for y in blk: y.tgt = t0
            k += 1
            if a < nq - 1: o += blk
            else: epi += blk
    V.finish(o, budget=cfg.tbudget)
    o = epi[:22] + [waitlg(0), barrier()]
    if cfg.fallback: o.append(ds_b128("v", TMP + 4, v(TMP + 14), 0))
    o += epi[22:]
    V.finish(o, sched=False)
    V.finish(stamp(5), sched=False)
    V.npre = len(V.vm)
    if cfg.fallback:
        o = []; A = o.append
        A(valu("v_or3_b32", v(TMP + 12), v(TMP + 4), v(TMP + 5), v(TMP + 6))); A(valu("v_or_b32", v(TMP + 12), v(TMP + 12), v(TMP + 7)))
        A(valu("v_readfirstlane_b32", s(sT0), v(TMP + 12)))
        A(salu("s_andn2_b32", s(sT0), s(sT0), s(sPASS))); A(raw(f"s_cbranch_scc0 L_{name}_end", "branch", rd=["scc"]))
        A(waitvm(0)); A(barrier())
        A(valu("v_mov_b32", v(vKrd), v(vKrd0))); A(salu("s_mov_b32", s(sKo), "0")); A(salu("s_mov_b32", "m0", s(sG)))
        A(label(f"L_{name}_mx"))
        for m in range(4): A(dma(v(vKV + m), SK, s(sKo), m * PIECE, cfg.kvflags))
        A(waitvm(0)); A(barrier())
        for j in range(2):
            o += k_reads(j) + [waitlg(0)] + qk(0, nq, first=True) + [nop(7)]
            for a in range(nq):
                for r in range(4): A(valu("v_max3_f32", v(MTRUE + a), v(S_[0] + 8 * a + 2 * r), v(S_[0] + 8 * a + 2 * r + 1), v(MTRUE + a)))
        A(barrier())
        A(salu("s_add_u32", s(sKo), s(sKo), "16384")); A(salu("s_cmp_lt_u32", None, s(sKo), "262144")); A(raw(f"s_cbranch_scc1 L_{name}_mx", "branch", rd=["scc"]))
        A(salu("s_mov_b32", s(sPASS), "1"))
        for wh, tl in (("K", 0), ("V", 0), ("K", 1), ("K", 2), ("V", 1)): o += kv_dma_static(wh, tl)
        o += group_load() + [waitvm(0), barrier()] + k_reads(0) + [waitlg(0)]
        V.finish(o, sched=False)
        V.finish(first_tile(nq, 0, redo=True))
        V.finish([waitlg(0), raw(f"s_branch L_{name}_join", "branch")], sched=False)
    if cfg.fused:
        V.finish([label(f"L_{name}_end"), raw("s_branch L_p3", "branch")], sched=False)
    else:
        V.finish([label(f"L_{name}_end")] + stamp(6) + dump_stamps(10, sWS, STAMP_OFF, v(vLane), "L_k1_done") + [raw("s_endpgm")], sched=False)
    return V

XOFF = 0x1000000; FOFF = 0x3000000
S3O, S3W, S3X, S3Out = 8, 12, 16, 40
s3HG, s3RP, s3CQ, s3T, s3U, s3ROT, sUNI, sF1, sF2 = 36, 37, 38, 92, 93, 94, 39, 31, 30
v3Wd = 252; vG = 224
v3Or, v3Rr, v3St, v3L16, v3Wr = 104, 106, 107, 108, 109
NW_ = 9
class _WU:
    def __getitem__(self, k): return ((8, 0, 2, 1, 4, 3, 6, 5, 7) if cfg.dV == 3 else (0, 2, 3, 4, 5, 6, 7, 8, 1))[k]
WU = _WU()
def oset(u, sg, a): return 128 + (u % 8) * 16 + (sg * 2 + a) * 4
def wset3(p, sg, tau): return p * 64 + (sg * 8 + tau) * 4
def one_lane(ins): return [raw("s_mov_b64 exec, 1", "salu"), ins, raw("s_mov_b64 exec, -1", "salu")]
def flag_addrs(t0=None):
    o = []; A = o.append
    A(salu("s_lshr_b32", s(s3HG), s(sH), "3")); A(salu("s_bfe_u32", s(s3RP), s(sH), "0x10002", scc_w=True)); A(salu("s_and_b32", s(s3CQ), s(sH), "3"))
    A(salu("s_lshl_b32", s(sF1), s(sB), "2")); A(salu("s_add_u32", s(sF1), s(sF1), s(s3HG))); A(salu("s_lshl_b32", s(sF1), s(sF1), "7")); A(salu("s_add_u32", s(sF1), s(sF1), hex(FOFF)))
    A(salu("s_lshl_b32", s(sF2), s(sB), "3")); A(salu("s_and_b32", s(s3T), s(sH), "7")); A(salu("s_add_u32", s(sF2), s(sF2), s(s3T))); A(salu("s_lshl_b32", s(sF2), s(sF2), "9")); A(salu("s_add_u32", s(sF2), s(sF2), hex(FOFF + 4096)))
    if t0 is not None:
        for k, x in enumerate(o): x.tgt = t0 + k; x.stream = "p3s"
    return o
def clear_flags():
    o = []; A = o.append
    A(salu("s_lshr_b32", s(54), s(sH), "3")); A(salu("s_and_b32", s(55), s(sH), "7"))
    A(salu("s_lshl_b32", s(sT0), s(sB), "2")); A(salu("s_add_u32", s(sT0), s(sT0), s(54))); A(salu("s_lshl_b32", s(sT0), s(sT0), "5")); A(salu("s_add_u32", s(sT0), s(sT0), s(55)))
    A(salu("s_lshl_b32", s(sT0), s(sT0), "2")); A(salu("s_add_u32", s(sT0), s(sT0), hex(FOFF)))
    A(salu("s_lshl_b32", s(sT1), s(sB), "3")); A(salu("s_add_u32", s(sT1), s(sT1), s(55))); A(salu("s_lshl_b32", s(sT1), s(sT1), "7")); A(salu("s_add_u32", s(sT1), s(sT1), s(54)))
    A(salu("s_lshl_b32", s(sT1), s(sT1), "2")); A(salu("s_add_u32", s(sT1), s(sT1), hex(FOFF + 4096)))
    A(valu("v_mov_b32", "v8", s(sT0))); A(valu("v_lshlrev_b32", "v9", "7", v(vLane))); A(valu("v_add_u32", "v9", s(sT1), "v9")); A(valu("v_mov_b32", "v10", "0"))
    A(raw("s_mov_b64 exec, 1", "salu"))
    A(I(f"global_store_dword v8, v10, s[{sWS}:{sWS+1}] sc1", "vmem", rd=["v8", "v10"], meta="store", grp="clr"))
    A(raw("s_mov_b64 exec, 15", "salu"))
    A(I(f"global_store_dword v9, v10, s[{sWS}:{sWS+1}] sc1", "vmem", rd=["v9", "v10"], meta="store", grp="clr"))
    A(raw("s_mov_b64 exec, -1", "salu"))
    return o
def page_warm():
    o = []; A = o.append; L = v(vLane)
    A(valu("v_and_b32", "v8", "31", L)); A(valu("v_lshlrev_b32", "v8", "20", "v8"))
    A(valu("v_and_b32", "v9", "3", L)); A(valu("v_lshlrev_b32", "v10", "20", "v9")); A(valu("v_mul_u32_u24", "v9", "0x78000", "v9"))
    for a, b in (("v8", f"s[{sWS}:{sWS+1}]"), ("v10", "s[56:57]"), ("v9", "s[58:59]")):
        A(I(f"global_load_dword v231, {a}, {b}", "vmem", rd=[a], meta="load", grp="pw"))
    return o
def xcc_word(dst, tmp):
    o = [raw(f"s_getreg_b32 s{tmp}, hwreg(HW_REG_XCC_ID, 0, 4)", "salu", wr=[s(tmp)])]
    if cfg.forcemix: o.append(salu("s_and_b32", s(tmp), s(sH), "1"))
    o += [salu("s_mul_i32", s(dst), s(tmp), s(tmp)), salu("s_lshl_b32", s(dst), s(dst), "8"), salu("s_add_u32", s(dst), s(dst), s(tmp)),
          salu("s_lshl_b32", s(dst), s(dst), "8"), salu("s_add_u32", s(dst), s(dst), "1")]
    return o
def register():
    o = xcc_word(sT0, sT1); A = o.append
    A(salu("s_lshr_b32", s(sT1), s(sH), "3")); A(salu("s_lshl_b32", s(sT2), s(sB), "2")); A(salu("s_add_u32", s(sT1), s(sT1), s(sT2))); A(salu("s_lshl_b32", s(sT1), s(sT1), "2"))
    A(valu("v_mov_b32", "v228", s(sT1))); A(valu("v_mov_b32", "v229", s(sT0)))
    o += one_lane(I(f"global_atomic_add v228, v229, s[100:101]{GOFF()} sc1", "vmem", rd=["v228", "v229"], meta="store"))
    return o
sRDY = 97
def group_load(t0=None):
    o = [salu("s_lshl_b32", s(sT2), s(sB), "4"), valu("v_mov_b32", v(vG + 4), s(sT2)),
         I(f"global_load_dwordx4 v[{vG}:{vG+3}], v{vG+4}, s[100:101]{GOFF()} sc1", "vmem", rd=[v(vG + 4)], wr=R("v", vG, 4), meta="load", grp="G", stream="dma"),
         salu("s_lshr_b32", s(sRDY), s(sH), "3"), salu("s_lshl_b32", s(sRDY), s(sRDY), "2"), salu("s_add_u32", s(sT2), s(sT2), s(sRDY)), valu("v_mov_b32", v(vG + 4), s(sT2)),
         I(f"global_load_dword v{vG+5}, v{vG+4}, s[100:101]{GOFF()} sc1", "vmem", rd=[v(vG + 4)], wr=[v(vG + 5)], meta="load", grp="G", stream="dma")]
    if t0 is not None:
        for k, x in enumerate(o): x.tgt = t0 + k
    return o
def group_eval():
    o = []; A = o.append
    A(valu("v_and_b32", v(vG), v(vG), v(vG + 1))); A(valu("v_and_b32", v(vG + 2), v(vG + 2), v(vG + 3))); A(valu("v_and_b32", v(vG), v(vG), v(vG + 2)))
    A(valu("v_readfirstlane_b32", s(sRDY), v(vG))); A(valu("v_readfirstlane_b32", s(sUNI), v(vG + 5)))
    A(salu("s_and_b32", s(sRDY), s(sRDY), "8"))
    o += xcc_word(54, 55)
    A(salu("s_lshl_b32", s(54), s(54), "3")); A(salu("s_cmp_eq_u32", None, s(sUNI), s(54))); A(salu("s_cselect_b32", s(sUNI), "1", "0"))
    return o
def p3_srd_w():
    o = flag_addrs(); A = o.append
    A(salu("s_lshl_b32", s(s3ROT), s(s3T), "1"))
    A(salu("s_lshl_b32", s(s3T), s(s3HG), "20")); A(salu("s_lshl_b32", s(s3U), s(s3CQ), "6" if cfg.wil else "8")); A(salu("s_add_u32", s(s3T), s(s3T), s(s3U)))
    A(salu("s_sub_u32", s(s3U), str(1048576 + 128), s(s3U)))
    o += srd(S3W, 56, 57, s3T, 128, s(s3U))
    return o
STC = 92; sTs = 96; STC2 = 4
def touch_setup1a():
    o = []; A = o.append; L = v(vLane)
    A(salu("s_and_b32", s(sT0), s(sW), "1")); A(salu("s_mul_i32", s(sTs), s(sT0), str(524288 - 128))); A(salu("s_add_u32", s(sTs), s(sTs), "128"))
    A(salu("s_cmp_eq_u32", None, s(sT0), "1")); A(raw("s_cselect_b64 vcc, -1, 0", "salu", rd=["scc"], wr=["vcc"]))
    A(valu("v_and_b32", "v8", "31", L)); A(valu("v_min_u32", "v9", "29", "v8"))
    A(salu("s_and_b32", s(sT0), s(sH), "7")); A(salu("s_mul_i32", s(sT0), s(sT0), "30")); A(valu("v_add_u32", "v9", s(sT0), "v9")); A(valu("v_lshlrev_b32", "v9", "10", "v9")); A(valu("v_add_u32", "v9", "128", "v9"))
    A(salu("s_and_b32", s(sT0), s(sB), "3")); A(salu("s_lshl_b32", s(sT0), s(sT0), "5")); A(valu("v_add_u32", "v8", s(sT0), "v8"))
    A(valu("v_lshrrev_b32", "v10", "1", "v8")); A(valu("v_lshlrev_b32", "v10", "13", "v10")); A(valu("v_and_b32", "v8", "1", "v8")); A(valu("v_lshl_add_u32", "v8", "v8", "7", "v10"))
    A(valu("v_cndmask_b32", "v8", "v9", "v8", "vcc"))
    A(valu("v_lshrrev_b32", "v9", "5", L)); A(valu("v_mul_lo_u32", "v9", s(sTs), "v9")); A(valu("v_add_u32", v(vT + 2), "v8", "v9"))
    A(salu("s_lshr_b32", s(sT0), "s2", "3")); A(salu("s_lshl_b32", s(sT0), s(sT0), "15")); A(salu("s_lshr_b32", s(sT1), s(sH), "3")); A(salu("s_lshl_b32", s(sT1), s(sT1), "20"))
    A(salu("s_add_u32", s(sT0), s(sT0), s(sT1))); A(valu("v_lshlrev_b32", v(vT + 3), "7", L)); A(valu("v_add_u32", v(vT + 3), s(sT0), v(vT + 3)))
    return o
def touch_setup1b():
    o = []; A = o.append
    A(salu("s_bitcmp1_b32", None, s(sW), "0", scc_w=True))
    for k in range(3): A(salu("s_cselect_b32", s(STC + k), s(SWQ + k), s(SX + k)))
    A(salu("s_mov_b32", s(STC + 3), "0x20000"))
    A(salu("s_cmp_ge_u32", None, s(sW), "2")); A(salu("s_cselect_b32", s(STC + 2), "0", s(STC + 2)))
    return o
def touch_setup3():
    o = []; A = o.append
    A(salu("s_lshr_b32", s(54), "s2", "3")); A(salu("s_lshl_b32", s(54), s(54), "2")); A(salu("s_add_u32", s(54), s(54), s(sW))); A(salu("s_lshl_b32", s(54), s(54), "13"))
    A(salu("s_lshl_b32", s(55), s(s3HG), "20")); A(salu("s_add_u32", s(54), s(54), s(55)))
    A(valu("v_lshlrev_b32", "v230", "7", v(vLane))); A(valu("v_add_u32", "v230", s(54), "v230"))
    return o
def touch_setup4():
    return [valu("v_lshrrev_b32", "v230", "5", v(vLane)), valu("v_lshlrev_b32", "v230", "13", "v230"), valu("v_and_b32", "v229", "31", v(vLane)), valu("v_lshl_add_u32", "v230", "v229", "7", "v230")]
def touch_setup2():
    o = []; A = o.append
    A(salu("s_lshl_b32", s(54), s(sB), "21")); A(salu("s_lshl_b32", s(55), s(sH), "15")); A(salu("s_add_u32", s(54), s(54), s(55)))
    o += srd(SX, sWS, sWS + 1, 54, 0, str(1048576 + 32768))
    if cfg.wroll:
        assert cfg.dV == 3
        A(salu("s_lshr_b32", s(54), "s2", "3")); A(salu("s_lshl_b32", s(54), s(54), "15")); A(salu("s_lshl_b32", s(55), s(s3HG), "20")); A(salu("s_add_u32", s(54), s(54), s(55)))
        o += srd(STC2, 56, 57, 54, 0, "32768")
    A(salu("s_lshl_b32", s(54), s(s3RP), "20")); A(valu("v_lshlrev_b32", v(vT + 1), "7", v(vLane))); A(valu("v_add_u32", v(vT + 1), s(54), v(vT + 1)))
    A(valu("v_xor_b32", v(vT), "0x100000", v(vT + 1)))
    A(valu("v_add_u32", v(vT + 2), "0x2000", v(vT))); A(valu("v_add_u32", v(vT + 3), "0x2000", v(vT + 1)))
    return o
def p3_wdma(u):
    st = "dma"
    o = [salu("s_add_u32", s(s3U), s(s3ROT), str(u), stream=st), salu("s_and_b32", s(s3U), s(s3U), "15", stream=st), salu("s_lshl_b32", s(s3U), s(s3U), "16", stream=st),
         salu("s_add_u32", "m0", s(sG), str(WU[u % NW_] * UNIT), stream=st)]
    for m in range(4): o.append(dma(v(v3Wd + m), S3W, "0" if cfg.now else s(s3U), m * PIECE, cfg.k2_wflags, grp=f"w{u}", stream=st))
    return o
sXo3 = 48; sXs = 49
OWN = 0
def p3_oload(u, nq):
    st = "dma"
    o = [salu("s_add_u32", s(s3T), s(s3ROT), str(u), stream=st), salu("s_and_b32", s(s3T), s(s3T), "15", stream=st), salu("s_lshl_b32", s(s3T), s(s3T), "14", stream=st)]
    for sg in range(2):
        for a in range(nq): o.append(bload("a", oset(u, sg, a), v(v3Or + sg), S3O, "0" if cfg.noo else s(s3T), a * 1024, cfg.o3flags, grp=f"o{u}", stream=st))
    return o
def p3_reads(u):
    p = u & 1; o = []; sl = WU[u % NW_]
    for tau in range(8):
        for sg in range(2):
            for z in range(2):
                o.append(ds_tr("a", wset3(p, sg, tau) + 2 * z, v(v3Wr + sl // 3), (sl % 3) * UNIT + z * 8 * PIECE + sg * 512 + 32 * tau, stream="rd"))
    return o
def p3_setup2(L):
    o = []; A = o.append
    A(salu("s_lshl_b32", s(sT0), s(sB), "1")); A(salu("s_add_u32", s(sT0), s(sT0), s(s3RP)))
    A(salu("s_lshl_b32", s(sT1), s(sT0), "20")); A(salu("s_lshl_b32", s(sT2), s(s3HG), "18")); A(salu("s_add_u32", s(sT1), s(sT1), s(sT2))); o += srd(S3O, sWS, sWS + 1, sT1, 0, "262144")
    A(salu("s_lshl_b32", s(sT1), s(sT0), "2")); A(salu("s_add_u32", s(sT1), s(sT1), s(s3CQ))); A(salu("s_lshl_b32", s(sT1), s(sT1), "18")); A(salu("s_add_u32", s(sT1), s(sT1), hex(XOFF)))
    o += srd(S3X, sWS, sWS + 1, sT1, 0, "262144")
    A(salu("s_lshl_b32", s(sT1), s(s3RP), "2")); A(salu("s_add_u32", s(sT1), s(sT1), s(s3HG))); A(salu("s_lshl_b32", s(sT1), s(sT1), "15"))
    A(salu("s_lshl_b32", s(sT2), s(s3CQ), "6" if cfg.wil else "8")); A(salu("s_add_u32", s(sT1), s(sT1), s(sT2)))
    A(salu("s_mul_i32", s(sT0), s(sB), "245760")); A(salu("s_add_u32", s(sT0), s(sT0), s(sT1))); A(salu("s_sub_u32", s(sT1), "245760", s(sT1)))
    o += srd(S3Out, 58, 59, sT0, 0, s(sT1))
    A(salu("s_lshl_b32", s(sXo3), s(sW), "12"))
    A(valu("v_lshlrev_b32", v(v3L16), "4", L))
    A(salu("s_lshl_b32", s(sT0), s(sW), "11")); A(valu("v_add_u32", v(v3Or), s(sT0), v(v3L16))); A(valu("v_add_u32", v(v3Or + 1), "0x2000", v(v3Or)))
    A(valu("v_subrev_u32", v(v3Wr), str(UNIT), v(vVrd0))); A(valu("v_add_u32", v(v3Wr + 1), str(3 * UNIT), v(v3Wr))); A(valu("v_add_u32", v(v3Wr + 2), str(6 * UNIT), v(v3Wr)))
    A(valu("v_and_b32", "v97", "15", L)); A(valu("v_lshrrev_b32", "v98", "4", L))
    if cfg.xbf:
        A(valu("v_add_u32", v(v3Rr), s(sXo3), v(v3L16))); A(salu("s_lshl_b32", s(sT0), s(sW), "11")); A(valu("v_add_u32", v(v3Rr + 9), s(sT0), v(v3L16)))
    else:
        A(valu("v_lshlrev_b32", "v101", "9", "v98")); A(valu("v_lshl_add_u32", "v101", "v97", "4", "v101")); A(valu("v_add_u32", v(v3Rr), s(sXo3), "v101"))
        A(valu("v_add_u32", v(v3L16 + 8), "0x2000", v(v3L16)))
    for k in range(1, 4):
        A(salu("s_add_u32", s(sT0), s(s3HG), str(k))); A(salu("s_and_b32", s(sT0), s(sT0), "3")); A(salu("s_lshl_b32", s(sT1), s(s3HG), "2")); A(salu("s_add_u32", s(sT0), s(sT0), s(sT1)))
        A(salu("s_lshl_b32", s(sXs + k - 1), s(sT0), "14"))
    A(valu("v_and_b32", "v101", "3", L)); A(valu("v_max_u32", "v101", "1", "v101")); A(valu("v_add_u32", "v101", s(s3HG), "v101")); A(valu("v_and_b32", "v101", "3", "v101"))
    A(salu("s_lshl_b32", s(sT0), s(s3HG), "7")); A(salu("s_add_u32", s(sT0), s(sT0), s(sF2))); A(valu("v_lshlrev_b32", "v101", "2", "v101")); A(valu("v_add_u32", v(vPl + 2), s(sT0), "v101"))
    A(salu("s_lshr_b32", s(sT0), s(sW), "1")); A(salu("s_lshl_b32", s(sT0), s(sT0), "14")); A(salu("s_and_b32", s(sT1), s(sW), "1")); A(salu("s_lshl_b32", s(sT1), s(sT1), "9" if cfg.wil else "7")); A(salu("s_add_u32", s(sT0), s(sT0), s(sT1)))
    A(valu("v_lshlrev_b32", "v101", "10", "v97")); A(valu("v_lshl_add_u32", "v101", "v98", "3" if cfg.xbf else "4", "v101")); A(valu("v_add_u32", v(v3St), s(sT0), "v101"))
    return o
def poll(lab, base, n):
    o = []; A = o.append
    A(valu("v_lshlrev_b32", "v96", "2", v(vLane))); A(valu("v_add_u32", "v96", s(base), "v96")); A(salu("s_mov_b32", s(sT1), "0"))
    A(raw(f"s_mov_b64 exec, {(1 << n) - 1}", "salu"))
    A(label(lab))
    A(raw(f"global_load_dword v97, v96, s[{sWS}:{sWS+1}] sc1")); A(raw("s_waitcnt vmcnt(0)")); A(raw("v_cmp_ne_u32 vcc, 1, v97"))
    A(raw(f"s_add_u32 s{sT1}, s{sT1}, 1")); A(raw(f"s_cbranch_vccz {lab}_ok"))
    A(raw("s_sleep 1")); A(raw(f"s_cmp_lt_u32 s{sT1}, 0x200000")); A(raw(f"s_cbranch_scc1 {lab}"))
    A(label(f"{lab}_ok")); A(raw("s_mov_b64 exec, -1", "salu"))
    return o
def p3_front(V):
    L = v(vLane); o = []; A = o.append
    A(label("L_p3")); o += p3_setup2(L)
    A(label("L_p3_r")); A(salu("s_cmp_lg_u32", None, s(sRDY), "0")); A(raw("s_cbranch_scc1 L_p3_rok", "branch", rd=["scc"]))
    for x in group_load(): x.grp = None; x.k = "other" if x.k == "vmem" else x.k; A(x)
    A(raw("s_waitcnt vmcnt(0)")); o += group_eval(); A(raw("s_sleep 8")); A(raw("s_branch L_p3_r", "branch"))
    A(label("L_p3_rok"))
    A(salu("s_and_b32", s(sT0), s(sH), "7")); A(salu("s_lshl_b32", s(sT0), s(sT0), "2")); A(salu("s_add_u32", s(sT0), s(sT0), s(sF1)))
    A(valu("v_mov_b32", "v96", s(sT0))); A(valu("v_mov_b32", "v97", "1"))
    A(valu("v_and_b32", v(vPl), "7", L)); A(valu("v_lshlrev_b32", v(vPl), "2", v(vPl))); A(valu("v_add_u32", v(vPl), s(sF1), v(vPl)))
    A(waitvm(0)); A(barrier()); o += stamp(6)
    A(salu("s_cmp_lg_u32", None, s(sW), "0")); A(raw("s_cbranch_scc1 L_p3_a", "branch", rd=["scc"]))
    A(salu("s_cmp_eq_u32", None, s(sUNI), "1")); A(raw("s_cbranch_scc1 L_p3_u", "branch", rd=["scc"]))
    A(raw("buffer_wbl2 sc1")); A(raw("s_waitcnt vmcnt(0)"))
    o += one_lane(raw(f"global_store_dword v96, v97, s[{sWS}:{sWS+1}] sc1"))
    A(raw("s_branch L_p3_a", "branch"))
    A(label("L_p3_u"))
    o += one_lane(raw(f"global_store_dword v96, v97, s[{sWS}:{sWS+1}]"))
    A(label("L_p3_a"))
    A(salu("s_lshl_b32", s(sT0), s(s3RP), "2")); A(salu("s_add_u32", s(sT0), s(sT0), s(sW)))
    A(salu("s_cmp_eq_u32", None, s(sT0), "7")); A(raw("s_cbranch_scc1 L_g1", "branch", rd=["scc"]))
    V.finish(o, sched=False)
vPl = 112
def p3_gemm(nq, name, V0):
    V = Variant(nq, name); V.vm = list(V0.vm); V.trace = list(V0.trace); V.pend = list(V0.pend)
    pollld = lambda: I(f"global_load_dword v{vPl+1}, v{vPl}, s[{sWS}:{sWS+1}] sc1", "vmem", rd=[v(vPl)], wr=[v(vPl + 1)], meta="load", grp="poll", stream="dma")
    r0 = p3_reads(0)
    V.finish([label(f"L_{name}")] + p3_oload(0, nq) + r0[:16] + p3_oload(1, nq) + stamp(7) + stamp(1, "g"), sched=False)
    n = 16 * nq
    no = 2; nw = NW_
    o = r0[16:]
    for k, x in enumerate(o): x.tgt = -1 + k // 2
    prev = None; G = 0; wq = []
    for c in range(16):
        p = c & 1
        m = [mfma("v", a * 32 + 4 * tau, "a", wset3(p, sg, tau), "a", oset(c, sg, a), "0" if (c == 0 and sg == 0) else None) for tau in range(8) for a in range(nq) for sg in range(2)]
        w = wvm({f"o{c}", f"w{c+1}"}, tgt=G - 1, stream=["bar", "dma"])
        if prev: w.after = [prev[-2]]
        m[0].after = [w]
        o += [w]
        b = None
        if 0 < c < 15:
            b = barrier(tgt=G, stream=["bar", "dma"])
            if prev: b.after = [prev[-1]]
            o += [b]
        o += m
        if c < 15:
            d = []
            if c == 0: d += p3_wdma(7) + [pollld()] + p3_wdma(8)
            else:
                for rep in range(3 if c == 1 else 2):
                    if no < 16 and no <= c + cfg.odepth: d += p3_oload(no, nq); no += 1
                k = 0
                while c >= 2 and k < cfg.wrate and (wq or (nw < 16 and nw <= c + NW_ - 1)):
                    if not wq: wq = p3_wdma(nw); nw += 1
                    elif k == 0: d.append(salu("s_add_u32", "m0", s(sG), str(WU[(nw - 1) % NW_] * UNIT), stream="dma"))
                    while wq[0].k != "vmem": d.append(wq.pop(0))
                    d.append(wq.pop(0)); k += 1
            rd = p3_reads(c + 1)
            if b: rd[0].after = [b]
            vm = [x for x in d if x.k == "vmem"]
            vg = [int((k + 0.5) * n / len(vm)) for k in range(len(vm))] if vm else []
            if c == 1: vg = [1 + k * (n - 2) // len(vm) for k in range(len(vm))]
            for k, x in enumerate(vm): x.tgt = G + vg[k]
            lo = 8 * nq // 2 if c == 0 else 1
            free = [g for g in range(lo, n) if g not in vg] if (len(vg) < n - 4 and not cfg.gdl) else list(range(lo, n))
            for k, x in enumerate(rd): x.tgt = G + free[k * len(free) // 32]
            nxt = G + n
            for x in reversed(d):
                if x.k == "vmem": nxt = x.tgt
                else: nxt = x.tgt = max(G, nxt - 1)
            o += rd + d
        if c in (0, 1, 3, 7, 11): o += stampf(2 + (0, 1, 3, 7, 11).index(c), "g", m[-1], G + n - 1)
        prev = m; G += n
        if c == 0:
            V.finish(o, strict=True)
            q = [wvm({"poll"}), label(f"L_{name}_pl"), valu("v_cmp_ne_u32", "vcc", "1", v(vPl + 1)), salu("s_mov_b32", s(sT1), "0"), raw(f"s_cbranch_vccz L_{name}_pok", "branch"),
                 label(f"L_{name}_pl2"), raw("s_sleep 1"), raw(pollld().t), raw("s_waitcnt vmcnt(0)"), raw(f"v_cmp_ne_u32 vcc, 1, v{vPl+1}"), raw(f"s_add_u32 s{sT1}, s{sT1}, 1"),
                 raw(f"s_cbranch_vccz L_{name}_pok"), raw(f"s_cmp_lt_u32 s{sT1}, 0x200000"), raw(f"s_cbranch_scc1 L_{name}_pl2"),
                 label(f"L_{name}_pok"), salu("s_cmp_eq_u32", None, s(sUNI), "1"), raw(f"s_cbranch_scc1 L_{name}_pgo", "branch"),
                 raw("buffer_inv sc1"), raw("s_waitcnt vmcnt(0)"), label(f"L_{name}_pgo")]
            V.finish(q, sched=False)
            o = []; prev = None; G = 0
        if c == 14:
            V.finish(o, strict=True)
            o = []; prev = None; G = 0
    last = o
    V.finish([salu("s_lshl_b32", s(sT0), s(sW), "2"), salu("s_add_u32", s(sT0), s(sT0), s(s3HG)), salu("s_lshl_b32", s(sT0), s(sT0), "14"), salu("s_add_u32", s(sT2), s(sT0), "4096"),
              salu("s_cmp_eq_u32", None, s(sW), s(s3HG)), raw(f"s_cbranch_scc1 L_{name}_own", "branch", rd=["scc"])], sched=False)
    save = (list(V.vm), list(V.trace), list(V.pend))
    import copy
    def clone(seq):
        mp = {x.uid: I(x.t, x.k, x.rd, x.wr, x.crd, x.tgt, x.grp, x.need, x.stream, x.meta) for x in seq}
        for x in seq: mp[x.uid].after = [mp[a_.uid] for a_ in x.after]
        return [mp[x.uid] for x in seq]
    o = clone(last)
    for tau in range(8):
        for a in range(nq):
            t = 2 * nq * tau + 2 * a + 6; r = a * 32 + 4 * tau
            if cfg.xbf:
                d = 64 + a * 16 + 2 * tau
                o += [valu("v_cvt_pk_bf16_f32", v(d), v(r), v(r + 1), tgt=t), valu("v_cvt_pk_bf16_f32", v(d + 1), v(r + 2), v(r + 3), tgt=t)]
                if tau & 1: o.append(bstore("v", d - 2, v(v3L16), S3X, s(sT2 if a else sT0), 1024 * (tau >> 1), cfg.xsc, tgt=t + 1, stream="st"))
            else:
                o.append(bstore("v", r, v(v3L16 + (8 if a else 0)), S3X, s(sT2 if tau >> 2 else sT0), 1024 * (tau & 3), cfg.xsc, tgt=t, stream="st"))
    V.finish(o, strict=True)
    V.finish(stamp(8) + stamp(7, "g") + [barrier(), raw("s_branch L_fin_s", "branch"), label(f"L_{name}_own")], sched=False)
    V.vm, tr, V.pend = list(save[0]), V.trace, list(save[2]); V.trace = list(save[1])
    o = clone(last)
    for tau in range(8):
        for a in range(nq): o.append(ds_w128(v(v3L16), "v", a * 32 + 4 * tau, OWN + (a * 8 + tau) * 1024, tgt=2 * nq * tau + 2 * a + 6, stream="rd"))
    V.finish(o, strict=True)
    V.finish(stamp(8) + stamp(7, "g") + [waitlg(0), barrier(), raw("s_branch L_fin", "branch")], sched=False)
    V.trace2 = tr
    return V
def p3_final():
    V = Variant(4, "fin"); o = []; A = o.append
    A(label("L_fin_s"))
    A(salu("s_lshl_b32", s(sT0), s(sW), "5")); A(salu("s_add_u32", s(sT0), s(sT0), s(s3HG))); A(salu("s_lshl_b32", s(sT0), s(sT0), "2")); A(salu("s_add_u32", s(sT0), s(sT0), s(sF2)))
    A(valu("v_mov_b32", "v96", s(sT0))); A(valu("v_mov_b32", "v97", "1")); A(raw("s_waitcnt vmcnt(0)"))
    o += one_lane(raw(f"global_store_dword v96, v97, s[{sWS}:{sWS+1}] sc1"))
    A(label("L_fin")); o += stamp(8, "g")
    for q in range(4): A(ds_b128("v", 4 * q, v(v3Rr), OWN + (q * 1024 if cfg.xbf else (q >> 1) * 2048 + (q & 1) * 256)))
    A(salu("s_mov_b32", s(sT1), "0"))
    A(label("L_fin_p"))
    A(raw(f"global_load_dword v97, v{vPl+2}, s[{sWS}:{sWS+1}] sc1")); A(raw("s_waitcnt vmcnt(0)")); A(raw("v_cmp_ne_u32 vcc, 1, v97"))
    A(raw(f"s_add_u32 s{sT1}, s{sT1}, 1")); A(raw("s_cbranch_vccz L_fin_ok")); A(raw("s_sleep 1")); A(raw(f"s_cmp_lt_u32 s{sT1}, 0x200000")); A(raw("s_cbranch_scc1 L_fin_p"))
    A(label("L_fin_ok"))
    for k in range(1, 4):
        if cfg.xbf:
            for q in range(2): A(bload("v", 16 + 8 * k + 4 * q, v(v3Rr + 9), S3X, s(sXs + k - 1), q * 1024, "sc1", grp=f"x{k}"))
        else:
            for q in range(4): A(bload("v", 16 * k + 4 * q, v(v3Rr), S3X, s(sXs + k - 1), (q >> 1) * 2048 + (q & 1) * 256, "sc1", grp=f"x{k}"))
    for k in range(1, 4):
        A(wvm({f"x{k}"}))
        if cfg.xbf:
            for r in range(8):
                A(valu("v_lshlrev_b32", v(64 + r), "16", v(16 + 8 * k + r))); A(valu("v_and_b32", v(72 + r), "0xffff0000", v(16 + 8 * k + r)))
            for r in range(8):
                A(valu("v_add_f32", v(2 * r), v(2 * r), v(64 + r))); A(valu("v_add_f32", v(2 * r + 1), v(2 * r + 1), v(72 + r)))
        else:
            for r in range(16): A(valu("v_add_f32", v(r), v(r), v(16 * k + r)))
    for r in range(8): A(valu("v_cvt_pk_bf16_f32", v(16 + r), v(2 * r), v(2 * r + 1)))
    if cfg.xbf:
        for q in range(4): A(bstore("v", 16 + 2 * q, v(v3St), S3Out, "0", (256 * (q >> 1) + 32 * (q & 1)) if cfg.wil else 32 * q, cfg.outflags, n=2))
    else:
        for sg in range(2): A(bstore("v", 16 + 4 * sg, v(v3St), S3Out, "0", (256 if cfg.wil else 64) * sg, cfg.outflags))
    o += stamp(9) + stamp(9, "g") + dump_stamps(10, sWS, STAMP_OFF, v(vLane), "L_k1_done") + [raw("s_endpgm")]
    V.finish(o, sched=False)
    return V

HEAD = """; standalone__mha_block_cached__near_ridge: out = softmax((x wq) K^T / sqrt(128)) V wo
"""
def kd(name, vg, acc_off):
    return f""".amdhsa_kernel {name}
  .amdhsa_next_free_vgpr {vg}
  .amdhsa_next_free_sgpr 102
  .amdhsa_accum_offset {acc_off}
  .amdhsa_group_segment_fixed_size 0
  .amdhsa_kernarg_size 64
  .amdhsa_user_sgpr_count 2
  .amdhsa_user_sgpr_kernarg_segment_ptr 1
  .amdhsa_system_sgpr_workgroup_id_x 1
.end_amdhsa_kernel
"""
def check(pre, V):
    tr = pre + V.trace
    for nm, f in (("hazard", check_hazards), ("lgkm", check_lgkm), ("vm", check_vm)):
        bad = f(tr)
        if bad:
            print(V.name, nm, len(bad), bad[:6], file=sys.stderr); raise SystemExit(1)
def build():
    KN = "standalone__mha_block_cached__near_ridge_kernel"
    out = HEAD
    out += f"; @launch grid=(256,1,1) block=(256,1,1) lds={LDS1 + 64}\n"
    out += '.amdgcn_target "amdgcn-amd-amdhsa--gfx950"\n.text\n'
    out += f".globl {KN}\n.p2align 8\n.type {KN},@function\n{KN}:\n"
    pre = fix_hazards(k1_setup() + [salu("s_cmp_eq_u32", None, s(sW), "3"), raw("s_cbranch_scc1 L_w3", "branch")])
    import core
    def text(seq, _t=core.text):
        if not cfg.align: return _t(seq)
        r = ""; blk = []
        for c in seq + [None]:
            if c is None or (c.k == "label" and blk):
                a, _, miss = align8(blk); r += _t(a); blk = []
                if c is not None: r += "  .p2align 3, , 4\n" if False else "  .p2alignl 3, 0xbf800000\n"
            if c is not None: blk.append(c)
        return r
    out += text(pre)
    for nq, name in ((4, "w012"), (3, "w3")):
        V = k1_variant(nq, name, pre); check(pre, V)
        print(name, "loop (mfma, est cycles):", V.loop_stats, "total est", gap_stats(V.trace), file=sys.stderr)
        out += text(V.static)
    F = Variant(4, "p3"); F.vm = [x for x in V.vm[:V.npre] if x.grp and x.grp[0] == "w"]
    p3_front(F); check([], F)
    out += text(F.static)
    for nq, name in ((2, "g2"), (1, "g1")):
        W = p3_gemm(nq, name, F); check([], W); W.trace = W.trace2; check([], W)
        print(name, "total est", gap_stats(W.static), file=sys.stderr)
        out += text(W.static)
    W = p3_final(); check([], W); out += text(W.static)
    out += "L_k1_done:\n  s_endpgm\n"

    out += '.section .rodata,"a"\n.p2align 6\n' + kd(KN, 512, 256)
    return out
if __name__ == "__main__":
    path = sys.argv[1]
    for kv in sys.argv[2:]:
        k, val = kv.split("=")
        cur = getattr(cfg, k)
        setattr(cfg, k, (val == "1") if isinstance(cur, bool) else type(cur)(val.replace("+", " ")))
    EAGER[0] = cfg.eager
    txt = build()
    if cfg.cpf:
        import subprocess
        open("_p1.s", "w").write(txt.replace("CODE_SHARE", "0x1000").replace("CODE_LAST", "0x10000"))
        subprocess.check_call(["clang", "-x", "assembler", "-target", "amdgcn-amd-amdhsa", "-mcpu=gfx950", "-c", "_p1.s", "-o", "_p1.o"])
        sym = {l.split()[7]: int(l.split()[1], 16) for l in subprocess.check_output(["llvm-readelf", "-s", "_p1.o"], text=True).splitlines() if len(l.split()) == 8 and l.split()[7].startswith("L_")}
        last = sym["L_k1_done"] - sym["L_pc"]; share = ((last - 4096) // 32 + 127) & ~127
        assert share <= 4096
        txt = txt.replace("CODE_SHARE", hex(share)).replace("CODE_LAST", hex(last))
    open(path, "w").write(txt)
```

```python
import sys, math, struct
from core import *

PIECE = 1056; GRP = 4 * PIECE; UNIT = 16 * PIECE; SLOT = 2 * UNIT
X_BASE = 3 * UNIT; W_BASE = X_BASE + 2 * SLOT; LDS1 = W_BASE + 2 * UNIT
VOTE = LDS1
QSCALE = struct.unpack("<I", struct.pack("<f", math.log2(math.e) / math.sqrt(128.0)))[0]
LIMIT = 0x4b800000

class Cfg:
    stamps = False
    kvflags = "nt"
    xflags = ""
    wflags = ""
    oflags = ""
    k2_oflags = ""
    k2_wflags = ""
    fallback = True
    rot = 4
    xtouch = False
    g7 = 10
    order = 0
    nokv1 = False
    cpf = 1
    kv1 = True
    mbudget = 16
    fused = True
    pre = 2
    xsc = 'sc1'
    xbf = True
    wrate = 3
    outflags = ''
    touch = True
    pre2 = 3
    gshift = 1
    odepth = 4
    tbudget = 24
    noo = False
    now = False
    o3flags = ''
    nomf3 = False
    forcemix = False
    kvpace = True
    sset = 'main'
    nomfma1 = False
    nord1 = False
    nodma1 = False
    w3dma = True
    kswap = True
    dK = 5
    frac = 1.0
    fracK = 1.0
    dbgst = False
    its = False
    longloop = 0
    kick = 0
    align = 0
    slow = 0
    wtouch = False
    wil = False
    wlate = False
    wroll = 0
    gdl = False
    msum = 2
    cap3 = 0
    otm = 0
    kve = 1
    dV = 4
    skipk = 0
    stretch = True
    vskip = (2, 3)
    kskip = 0x492
    vpos = 0.03
    kgb = False
    vgb = False
    otd = '044'
    otw = False
    cap0 = 0
    backlog = 3
    mix2 = 1
    pack = True
    eager = 16
    extra = 0
    kdt = 2.5
    kgap = 11
    trot = False
    tsel = '0123'
    pwarm = True
    tflags = ''
    tfrom = 13
    k2map = 1
cfg = Cfg()

sW = 3; SX, SWQ, SK, SV, SO = 8, 12, 16, 20, 24
sB, sH, sROT = 28, 29, 30
sXb, sG = 31, 32
sT0, sT1, sT2 = 33, 34, 35
sXo, sXo2, sWo = 36, 37, 38
sKo, sVo = 46, 47
sS1, sS2, sS3 = 48, 49, 50
sV = (40, 41, 42, 43, 7)
def vslot(tile):
    if cfg.dV == 3: return (tile & 3) * SLOT
    return (0, SLOT, 2 * SLOT, 3 * SLOT, 4 * SLOT - UNIT)[tile % 5]
sT = 51; sPASS = 52; sC = 53; sWS = 44; sS0 = 98
vKrd, vVrd, vKrd0, vVrd0, vXrd, vWrd = 232, 233, 234, 235, 236, 237
vOst = 238; vLane = 239; vT = 220
vKV, vX, vWq = 240, 244, 248
ACC = 0; QF = 128
S_ = (0, 32); P_ = (64, 80); NEGM = 192; LSUM = 208; MTRUE = 212; TMP = 216
KF, VF = 192, 224
def acc(a, tau): return ACC + a * 32 + tau * 4
def qf(a, s): return QF + (a * 4 + s) * 4
def wset(p, s, tau): return p * 96 + (s * 8 + tau) * 4
def xset(p, s, a): return p * 96 + 64 + (s * 4 + a) * 4
def oacc(a, t): return a * 32 + t * 4
v = lambda n: f"v{n}"
s = lambda n: f"s{n}"

STAMP_BASE = 60
def stamp(i, sset="main"):
    if not cfg.stamps or (i > 0 and sset != cfg.sset and sset != "k2"): return []
    return [raw(f"s_memrealtime s[{STAMP_BASE+4*i}:{STAMP_BASE+4*i+1}]"), raw(f"s_memtime s[{STAMP_BASE+4*i+2}:{STAMP_BASE+4*i+3}]"), waitlg(0)]
def GOFF(): return " offset:128" if cfg.dbgst else ""
def stampf(i, sset, after, tgt):
    if not cfg.stamps or sset != cfg.sset: return []
    o = [I(f"s_memrealtime s[{STAMP_BASE+4*i}:{STAMP_BASE+4*i+1}]", "salu", tgt=tgt), I(f"s_memtime s[{STAMP_BASE+4*i+2}:{STAMP_BASE+4*i+3}]", "salu", tgt=tgt)]
    for x in o: x.after = [after]
    return o
def dump_stamps(n, wsreg, off, lane, lab):
    if not cfg.stamps: return []
    o = [raw("s_waitcnt vmcnt(0) lgkmcnt(0)")]
    if cfg.dbgst:
        o += [raw("s_cmp_lg_u32 s2, 100"), raw(f"s_cbranch_scc1 {lab}"), raw(f"s_cmp_lg_u32 s{sW}, 0"), raw(f"s_cbranch_scc1 {lab}"), raw("v_mov_b32 v3, 0"), raw("s_mov_b64 exec, 1")]
        for i in range(1, n):
            o += [raw(f"s_sub_u32 s4, s{STAMP_BASE+4*i}, s{STAMP_BASE}"), raw("v_mov_b32 v4, s4"), raw(f"global_store_dword v3, v4, s[100:101] offset:{4*i}"), raw("s_nop 1")]
        o += [raw(f"s_sub_u32 s4, s{STAMP_BASE+4*n-2}, s{STAMP_BASE+2}"), raw("v_mov_b32 v4, s4"), raw(f"global_store_dword v3, v4, s[100:101] offset:0")]
        return o
    o += [raw(f"s_lshl_b32 s4, s2, 10"), raw(f"s_lshl_b32 s5, s{sW}, 8"), raw("s_add_u32 s4, s4, s5"), raw(f"s_add_u32 s4, s4, {off}"),
          raw(f"s_add_u32 s4, s{wsreg}, s4"), raw(f"s_addc_u32 s5, s{wsreg+1}, 0"),
          raw(f"v_cmp_eq_u32 vcc, 0, {lane}"), raw("s_and_saveexec_b64 s[6:7], vcc"), raw(f"s_cbranch_execz {lab}"), raw("v_mov_b32 v3, 0")]
    for i in range(n):
        o += [raw(f"v_mov_b32 v{4+j}, s{STAMP_BASE+4*i+j}") for j in range(4)]
        o += [raw(f"global_store_dwordx4 v3, v[4:7], s[4:5] offset:{16*i}"), raw("s_nop 1")]
    return o
STAMP_OFF = 0x2000000

def srd(reg, lo, hi, add, sub, nrec):
    o = [salu("s_add_u32", s(reg), s(lo), s(add)), salu("s_addc_u32", s(reg + 1), s(hi), "0")]
    if sub: o += [salu("s_sub_u32", s(reg), s(reg), str(sub)), salu("s_subb_u32", s(reg + 1), s(reg + 1), "0", scc_r=True, scc_w=True)]
    o += [salu("s_mov_b32", s(reg + 2), nrec), salu("s_mov_b32", s(reg + 3), "0x20000")]
    return o

def k1_setup():
    o = []
    A = o.append
    A(raw("s_cmp_ge_u32 s2, 256")); A(raw("s_cbranch_scc1 L_k1_done"))
    o += stamp(0)
    A(raw("s_load_dwordx4 s[4:7], s[0:1], 0"))
    A(raw("s_load_dwordx4 s[40:43], s[0:1], 16"))
    A(raw(f"s_load_dwordx2 s[{sWS}:{sWS+1}], s[0:1], 56"))
    A(raw("s_load_dwordx4 s[56:59], s[0:1], 32"))
    A(raw("s_load_dwordx2 s[100:101], s[0:1], 48"))
    if cfg.cpf:
        A(raw("s_getpc_b64 s[54:55]")); A(label("L_pc"))
        A(raw("v_cmp_gt_u32 vcc, 64, v0")); A(raw("s_and_saveexec_b64 s[34:35], vcc")); A(raw("s_cbranch_execz L_cpf"))
        A(raw("s_lshr_b32 s33, s2, 3")); A(raw("s_mul_i32 s33, s33, CODE_SHARE")); A(raw("v_lshrrev_b32 v2, 5, v0")); A(raw("v_mul_u32_u24 v2, s33, v2"))
        A(raw("v_lshl_add_u32 v1, v0, 7, v2")); A(raw("v_min_u32 v1, CODE_LAST, v1")); A(raw("global_load_dword v231, v1, s[54:55]"))
        A(label("L_cpf")); A(raw("s_mov_b64 exec, s[34:35]"))
    A(valu("v_lshrrev_b32", "v1", "6", "v0")); A(valu("v_and_b32", v(vLane), "63", "v0"))
    A(valu("v_readfirstlane_b32", s(sW), "v1"))
    A(salu("s_and_b32", s(sT0), "s2", "7")); A(salu("s_lshr_b32", s(sT1), "s2", "3"))
    A(salu("s_and_b32", s(sB), s(sT0), "1")); A(salu("s_lshl_b32", s(sB), s(sB), "2")); A(salu("s_and_b32", s(sT2), s(sT1), "3")); A(salu("s_add_u32", s(sB), s(sB), s(sT2)))
    A(salu("s_lshr_b32", s(sH), s(sT0), "1")); A(salu("s_lshl_b32", s(sH), s(sH), "3")); A(salu("s_lshr_b32", s(sT1), s(sT1), "2")); A(salu("s_add_u32", s(sH), s(sH), s(sT1)))
    A(salu("s_lshl_b32", s(sT2), s(sT2), "1")); A(salu("s_add_u32", s(sROT), s(sH), s(sT2)))
    if cfg.rot == 8: A(salu("s_and_b32", s(sROT), s(sROT), "7"))
    elif cfg.rot == 1: A(salu("s_mov_b32", s(sROT), "0"))
    else:
        A(salu("s_lshr_b32", s(sT2), s(sT2), "1")); A(salu("s_add_u32", s(sROT), s(sH), s(sT2)))
        A(salu("s_and_b32", s(sROT), s(sROT), str(cfg.rot - 1))); A(salu("s_mul_i32", s(sROT), s(sROT), str(8 // cfg.rot)))
    A(salu("s_mul_i32", s(sG), s(sW), str(GRP))); A(salu("s_lshl_b32", s(sXb), s(sG), "1")); A(salu("s_add_u32", s(sXb), s(sXb), str(X_BASE)))
    A(salu("s_mov_b32", s(sC), hex(QSCALE))); A(salu("s_mov_b32", s(sPASS), "0"))
    L = v(vLane)
    A(valu("v_and_b32", "v1", "15", L)); A(valu("v_lshrrev_b32", "v2", "4", L))
    A(valu("v_bfe_u32", "v3", L, "2", "2")); A(valu("v_and_b32", "v4", "3", L))
    A(valu("v_lshrrev_b32", "v5", "5", L)); A(valu("v_lshlrev_b32", "v5", "15", "v5"))
    A(valu("v_bfe_u32", "v6", L, "3", "2")); A(valu("v_lshl_add_u32", "v5", "v6", "12", "v5"))
    A(valu("v_and_b32", "v6", "7", L)); A(valu("v_lshl_add_u32", "v5", "v6", "4", "v5"))
    A(salu("s_lshl_b32", s(sT0), s(sW), "16")); A(salu("s_add_u32", s(sT0), s(sT0), "128"))
    A(valu("v_add_u32", v(vX), s(sT0), "v5"))
    for m in range(1, 4): A(valu("v_subrev_u32", v(vX + m), str(32 * m), v(vX)))
    A(salu("s_and_b32", s(sT0), s(sW), "1")); A(salu("s_lshl_b32", s(sT0), s(sT0), "16"))
    A(salu("s_lshr_b32", s(sT1), s(sW), "1")); A(salu("s_lshl_b32", s(sT1), s(sT1), "15")); A(salu("s_add_u32", s(sT0), s(sT0), s(sT1)))
    A(valu("v_lshlrev_b32", "v5", "17", "v2")); A(valu("v_lshl_add_u32", "v5", "v1", "4", "v5"))
    A(valu("v_add_u32", v(vWq), s(sT0), "v5"))
    for m in range(1, 4): A(valu("v_add_u32", v(vWq + m), str(m * (8192 - PIECE)), v(vWq)))
    A(salu("s_lshl_b32", s(sT0), s(sW), "12")); A(salu("s_add_u32", s(sT0), s(sT0), "128"))
    A(valu("v_lshlrev_b32", v(vOst), "4", L)); A(valu("v_add_u32", v(vKV), s(sT0), v(vOst)))
    for m in range(1, 4): A(valu("v_subrev_u32", v(vKV + m), str(32 * m), v(vKV)))
    o += k1_setup2() + (touch_setup1a() if cfg.xtouch else [])
    A(salu("s_mul_i32", s(sT0), s(sB), "245760")); A(salu("s_lshl_b32", s(sT1), s(sH), "8")); A(salu("s_sub_u32", s(sT2), "0x400000", s(sT1)))
    A(raw("s_waitcnt lgkmcnt(0)", "other"))
    o += stamp(1, "st")
    o += srd(SX, 4, 5, sT0, 128, str(245760 + 128)) + srd(SWQ, 42, 43, sT1, 0, s(sT2))
    rest = []; A = rest.append
    A(salu("s_lshl_b32", s(sT0), s(sB), "5")); A(salu("s_add_u32", s(sT0), s(sT0), s(sH))); A(salu("s_lshl_b32", s(sT0), s(sT0), "18"))
    rest += srd(SK, 6, 7, sT0, 128, str(262144 + 128)) + srd(SV, 40, 41, sT0, 128, str(262144 + 128))
    A(salu("s_lshl_b32", s(sT0), s(sB), "21")); A(salu("s_lshr_b32", s(sT1), s(sW), "1")); A(salu("s_lshl_b32", s(sT1), s(sT1), "20")); A(salu("s_add_u32", s(sT0), s(sT0), s(sT1)))
    A(salu("s_lshl_b32", s(sT1), s(sH), "15")); A(salu("s_add_u32", s(sT0), s(sT0), s(sT1)))
    A(salu("s_and_b32", s(sT1), s(sW), "1")); A(salu("s_lshl_b32", s(sT1), s(sT1), "12")); A(salu("s_add_u32", s(sT0), s(sT0), s(sT1)))
    rest += srd(SO, sWS, sWS + 1, sT0, 0, "28672")
    c0 = x_dma(0) + w_dma(0); c1 = x_dma(1) + w_dma(1); t = touch_setup1b() if cfg.xtouch else []
    if cfg.order == 0: o += c0 + stamp(2, "st") + c1 + stamp(3, "st") + t + xw_touch(2) + rest
    if cfg.order == 1: o += t + xw_touch(0) + c0 + stamp(2, "st") + xw_touch(2) + c1 + stamp(3, "st") + rest
    if cfg.order == 2: o += t + xw_touch(0) + xw_touch(2) + c0 + stamp(2, "st") + c1 + stamp(3, "st") + rest
    if cfg.order == 4: o += c0 + stamp(2, "st") + t + xw_touch(2) + c1 + stamp(3, "st") + rest
    return o

def k1_setup2():
    o = []; A = o.append
    A(salu("s_mov_b32", s(sT0), str(PIECE)))
    A(valu("v_and_b32", "v5", "7", "v1")); A(valu("v_mul_u32_u24", "v5", s(sT0), "v5"))
    A(valu("v_lshrrev_b32", "v6", "3", "v1")); A(valu("v_lshl_add_u32", "v5", "v6", "8", "v5")); A(valu("v_lshl_add_u32", v(vKrd0), "v2", "4", "v5"))
    A(valu("v_mov_b32", v(vKrd), v(vKrd0)))
    A(valu("v_and_b32", "v5", "1", "v2")); A(valu("v_lshl_add_u32", "v5", "v5", "2", "v3")); A(valu("v_mul_u32_u24", "v5", s(sT0), "v5"))
    A(valu("v_lshrrev_b32", "v6", "1", "v2")); A(valu("v_lshl_add_u32", "v5", "v6", "8", "v5")); A(valu("v_lshl_add_u32", "v5", "v4", "3", "v5"))
    A(valu("v_add_u32", v(vVrd0), str(UNIT), "v5")); A(valu("v_mov_b32", v(vVrd), v(vVrd0))); A(valu("v_add_u32", v(vWrd), str(W_BASE), "v5"))
    A(valu("v_mul_u32_u24", "v5", s(sT0), "v4")); A(valu("v_lshl_add_u32", "v5", "v3", "7", "v5")); A(valu("v_lshl_add_u32", "v5", "v2", "4", "v5"))
    A(valu("v_add_u32", v(vXrd), s(sXb), "v5"))
    for a in range(4): A(valu("v_mov_b32", v(MTRUE + a), "0xff800000"))
    A(valu("v_lshrrev_b32", "v5", "1", "v2")); A(valu("v_lshlrev_b32", "v5", "15", "v5")); A(valu("v_and_b32", "v6", "1", "v2")); A(valu("v_lshl_add_u32", "v5", "v6", "13", "v5"))
    if cfg.wil: A(valu("v_lshl_add_u32", "v5", "v3", "8", "v5")); A(valu("v_lshl_add_u32", "v5", "v4", "4", "v5"))
    else: A(valu("v_lshl_add_u32", "v5", "v1", "4", "v5"))
    A(salu("s_lshr_b32", s(sT0), s(sW), "1")); A(salu("s_lshl_b32", s(sT0), s(sT0), "14")); A(salu("s_and_b32", s(sT1), s(sW), "1")); A(salu("s_lshl_b32", s(sT1), s(sT1), "12"))
    A(salu("s_add_u32", s(sT0), s(sT0), s(sT1))); A(valu("v_add_u32", "v5", s(sT0), "v5"))
    for m in range(4): A(valu("v_add_u32", v(v3Wd + m), str(128 - 32 * m), "v5"))
    return o

def x_dma(c, t0=None, dt=1, after=None):
    p = c & 1; o = []; g = f"c{c}"; st = "dma"
    def T(k): return None if t0 is None else int(t0 + k * dt)
    def U(k): return None if t0 is None else int(t0 - 7 + k)
    o.append(salu("s_add_u32", s(sT0), s(sROT), str(c), tgt=U(0), stream="xa")); o.append(salu("s_and_b32", s(sT0), s(sT0), "7", tgt=U(1), stream="xa"))
    o.append(salu("s_lshl_b32", s(sXo), s(sT0), "7", tgt=U(2), stream="xa")); o.append(salu("s_lshl_b32", s(sWo), s(sT0), "19", tgt=U(3), stream="xa"))
    o.append(salu("s_add_u32", s(sXo2), s(sXo), "16384", tgt=U(4), stream="xa"))
    k = 0
    for half in range(2):
        o.append(salu("s_add_u32", "m0", s(sXb), str(p * SLOT + half * GRP), tgt=T(k - 1), stream=st))
        for m in range(4):
            d = dma(v(vX + m), SX, s(sXo2 if half else sXo), m * PIECE, cfg.xflags, grp=g, tgt=T(k), stream=st); k += 1
            if after: d.after = list(after)
            o.append(d)
    return o
def w_dma(c, t0=None, dt=1):
    p = c & 1; o = []; g = f"c{c}"; st = "dma"
    def T(k): return None if t0 is None else int(t0 + k * dt)
    o.append(salu("s_add_u32", "m0", s(sG), str(W_BASE + p * UNIT), tgt=T(-1), stream=st))
    for m in range(4): o.append(dma(v(vWq + m), SWQ, s(sWo), m * PIECE, cfg.wflags, grp=g, tgt=T(m), stream=st))
    return o
def kv_dma_static(which, tile, t0=None, dt=1, grp=0, ms=(0, 1, 2, 3)):
    st = "dma"
    def T(k): return None if t0 is None else t0 + k * dt
    o = [salu("s_mov_b32", s(sT1), str(tile * 16384 + grp * 4096), tgt=T(-1), stream=st),
         salu("s_add_u32", "m0", s(sG), str((vslot(tile) + UNIT if which == "V" else (tile & 3) * SLOT) + grp * GRP), tgt=T(-1), stream=st)]
    for k, m in enumerate(ms): o.append(dma(v(vKV + m), SK if which == "K" else SV, s(sT1), m * PIECE, cfg.kvflags, grp=f"{which}{tile}", tgt=T(k), stream=st))
    return o
def chunk_reads(c, nq, t0=None, dt=1):
    p = c & 1; o = []; k = 0
    def T(k): return None if t0 is None else t0 + k * dt
    items = []
    for s_ in range(2):
        for a in range(nq): items.append(("x", s_, a))
    for tau in range(8):
        for s_ in range(2):
            for z in range(2): items.append(("w", s_, tau, z))
    for it in items:
        if it[0] == "x":
            _, s_, a = it
            o.append(ds_b128("a", xset(p, s_, a), v(vXrd), p * SLOT + (a & 1) * GRP + (a >> 1) * 512 + s_ * 64, tgt=T(k), stream="rd"))
        else:
            _, s_, tau, z = it
            o.append(ds_tr("a", wset(p, s_, tau) + 2 * z, v(vWrd), p * UNIT + z * 8 * PIECE + s_ * 512 + 32 * tau, tgt=T(k), stream="rd"))
        k += 1
    return o
def chunk_mfma(c, nq, amajor=False):
    p = c & 1; o = []
    order = [(a, tau) for a in range(nq) for tau in range(8)] if amajor else [(a, tau) for tau in range(8) for a in range(nq)]
    for a, tau in order:
        for s_ in range(2):
            z = (c == 0 and s_ == 0)
            o.append(mfma("v", acc(a, tau), "a", wset(p, s_, tau), "a", xset(p, s_, a), "0" if z else None))
    return o
def q_convert(a, t0, dt):
    o = []; k = 0
    for s_ in range(4):
        d = qf(a, s_)
        for half in range(2):
            b = acc(a, 2 * s_ + half)
            for r in range(4): o.append(valu("v_mul_f32", v(b + r), s(sC), v(b + r), tgt=t0 + k * dt)); k += 1
            for r in range(2): o.append(valu("v_cvt_pk_bf16_f32", v(d + 2 * half + r), v(b + 2 * r), v(b + 2 * r + 1), tgt=t0 + k * dt)); k += 1
        for r in range(2): o.append(swap("v_permlane32_swap_b32", v(d + r), v(d + 2 + r), tgt=t0 + k * dt)); k += 1
        for r in range(2): o.append(swap("v_permlane16_swap_b32", v(d + r), v(d + 2 + r), tgt=t0 + k * dt)); k += 1
    return o
def k_reads(j, t0=None, dt=4, after=None):
    o = []
    for r in range(8):
        kap, s_ = r >> 2, r & 3
        i = ds_b128("a", KF + 4 * r, v(vKrd), j * 8 * PIECE + kap * 512 + s_ * 64, tgt=None if t0 is None else t0 + r * dt, stream="rd")
        if after: i.after = list(after)
        o.append(i)
    return o
def v_reads(j, t0, dt):
    o = []
    for r in range(16):
        t, z = r >> 1, r & 1
        o.append(ds_tr("a", VF + 4 * t + 2 * z, v(vVrd), j * 8 * PIECE + z * 512 + 32 * t, tgt=t0 + r * dt, stream="rd"))
    return o
def qk(j, nq, first=False):
    o = []
    for a in range(nq):
        for kap in range(2):
            d = S_[j] + a * 8 + kap * 4
            for s_ in range(4):
                if s_ == 0: o.append(mfma("v", d, "a", KF + 4 * (kap * 4), "v", qf(a, 0), "0" if first else "v", None if first else NEGM + 4 * a))
                else: o.append(mfma("v", d, "a", KF + 4 * (kap * 4 + s_), "v", qf(a, s_)))
    return o
ONES = 128; LM = 96
def mtiles(nq): return list(range(cfg.msum)) if nq == 4 else []
def lsreg(a, nq): return LM + 4 * a if a in mtiles(nq) else LSUM + a
def lsum_mfma(j, a, first=False): return mfma("v", LM + 4 * a, "a", ONES, "v", P_[j] + 4 * a, "0" if first else None)
def pv(j, nq, first=False):
    o = [mfma("a", oacc(a, t), "a", VF + 4 * t, "v", P_[j] + 4 * a, "0" if first else None) for t in range(8) for a in range(nq)]
    return o + [lsum_mfma(j, a, first) for a in mtiles(nq)]
def sm(j, nq, t0, dt=2.0, mix=False):
    o = []
    order = list(range(8 * nq))
    if mix and len(mtiles(nq)) == 2:
        order = [e_ for k in range(8) for e_ in (2 * k, 2 * k + 1, 16 + 2 * k, 17 + 2 * k)]
        if cfg.mix2 == 0: order = list(range(32))
        if cfg.mix2 == 2: order = [e_ for k in range(4) for e_ in (2 * k, 2 * k + 1, 16 + 2 * k, 17 + 2 * k)] + [e_ for k in range(4) for e_ in (24 + 2 * k, 25 + 2 * k, 8 + 2 * k, 9 + 2 * k)]
    if mix and len(mtiles(nq)) == 1:
        order = [e_ for k in range(4) for e_ in (2 * k, 2 * k + 1, 8 + 2 * k, 9 + 2 * k)] + list(range(16, 32))
    for n_, i in enumerate(order):
        r = S_[j] + i; a = i >> 3
        o.append(valu("v_exp_f32", v(r), v(r), tgt=int(t0 + n_ * dt)))
        if a not in mtiles(nq): o.append(valu("v_add_f32", v(LSUM + a), v(LSUM + a), v(r), tgt=int(t0 + n_ * dt + 1)))
        if i & 1: o.append(valu("v_cvt_pk_bf16_f32", v(P_[j] + (i >> 1)), v(r - 1), v(r), tgt=int(t0 + n_ * dt + 1)))
    return o
def xreduce(op, reg, tmp, t0=None, dt=1):
    def T(k): return None if t0 is None else t0 + k * dt
    return [valu("v_mov_b32", v(tmp), v(reg), tgt=T(0)), swap("v_permlane16_swap_b32", v(reg), v(tmp), tgt=T(1)), valu(op, v(reg), v(reg), v(tmp), tgt=T(2)),
            valu("v_mov_b32", v(tmp), v(reg), tgt=T(3)), swap("v_permlane32_swap_b32", v(reg), v(tmp), tgt=T(4)), valu(op, v(reg), v(reg), v(tmp), tgt=T(5))]
def first_max(a, t0, dt):
    o = []; b = S_[0] + a * 8; m = TMP + 2 * a; k = 0
    o.append(valu("v_max3_f32", v(m), v(b), v(b + 1), v(MTRUE + a), tgt=t0))
    for r in range(1, 4): o.append(valu("v_max3_f32", v(m), v(b + 2 * r), v(b + 2 * r + 1), v(m), tgt=t0 + r * dt))
    o += xreduce("v_max_f32", m, m + 1, t0 + 4 * dt, dt)
    for r in range(4): o.append(valu("v_sub_f32", v(NEGM + 4 * a + r), "0", v(m), tgt=t0 + (10 + r) * dt))
    for r in range(8): o.append(valu("v_sub_f32", v(b + r), v(b + r), v(m), tgt=t0 + (14 + r) * dt))
    o.append(valu("v_mov_b32", v(LSUM + a), "0", tgt=t0))
    return o

class Variant:
    def __init__(s_, nq, name):
        s_.nq, s_.name = nq, name
        s_.static = []
        s_.trace = []
        s_.vm = []
        s_.pend = []
    def finish(s_, seq, sched=True, **kw):
        seq = schedule(seq, **kw) if sched else seq
        seq = s_.resolve_vm(seq)
        seq, s_.pend = insert_lgkm(seq, s_.pend)
        seq = fix_hazards(seq, s_.trace)
        s_.static += seq; s_.trace += seq
        return seq
    def resolve_vm(s_, seq):
        out = []
        for c in seq:
            if c.k == "wait" and c.meta == ("vm", None):
                n = min(vm_count(s_.vm, c.need), 63)
                w = waitvm(n, need=c.need); out.append(w)
            else:
                out.append(c)
                if c.k == "vmem": s_.vm.append(c)
        return out
def wvm(groups, **kw): return I("s_waitcnt vmcnt(?)", "wait", meta=("vm", None), need=set(groups), **kw)

sTo = 49 + 50
sKt = 95
def window(T, nq, part, static):
    n = 8 * nq; st = "dma"
    ps = [((m + 0.5) / 4, "V", 0, m) for m in range(4)]
    if nq == 3: ps += [((k + 0.25) / 16, "K", k >> 2, k & 3) for k in range(16 - cfg.skipk)]
    if cfg.kgb: ps = [(p if w_ == "V" else (g_ + 0.02 + 0.085 * m) / 4, w_, g_, m) for p, w_, g_, m in ps]
    if cfg.vgb: ps = [(p if w_ == "K" else 0.63 + 0.016 * m, w_, g_, m) for p, w_, g_, m in ps]
    if cfg.stretch: ps = [(0.27 + 0.16 * g_ + 0.025 * m if w_ == "K" else 0.03 + 0.02 * m, w_, g_, m) for p, w_, g_, m in ps]
    fv = 0.24 if (cfg.wlate and T == 12) else cfg.frac
    ps = sorted((p * (fv if w_ == 'V' else cfg.fracK), w_, g_, m) for p, w_, g_, m in ps)
    o = []; cur = None
    It = T + part
    for p, w_, g_, m in ps:
        if (p >= 0.25) != bool(part): continue
        tile = T + (cfg.dV if w_ == "V" else cfg.dK) - (1 if (cfg.stretch and T >= 0) else 0)
        if static and tile > 15: continue
        tg = int(3 * n + len(mtiles(nq)) + p * (4 * n - 4)) if part == 0 else int((p - 0.25) * (4 * n - 6)) + 1
        if (w_, g_) != cur:
            cur = (w_, g_)
            if static:
                o.append(salu("s_mov_b32", s(sKt), str(tile * 16384 + ((g_ - 3) * 4096 if w_ == "K" else 0)), tgt=tg - 2, stream=st))
                if w_ == "V": o.append(salu("s_add_u32", "m0", s(sG), str(vslot(tile) + UNIT), tgt=tg - 1, stream=st))
                else: o.append(salu("s_mov_b32", "m0", str((tile & 3) * SLOT + g_ * GRP), tgt=tg - 1, stream=st))
            else:
                sl = sV[tile - It] if (w_ == "V" and cfg.dV == 4) else (sS0, sS1, sS2, sS3)[(tile - It) & 3]
                if w_ == "V":
                    o.append(salu("s_add_u32", s(sT0), s(sl), s(sG), tgt=tg - 2, stream=st)); o.append(salu("s_add_u32", "m0", s(sT0), str(UNIT), tgt=tg - 1, stream=st))
                else:
                    o.append(salu("s_add_u32", s(sKt), s(sKo), str(g_ * 4096), tgt=tg - 2, stream=st)); o.append(salu("s_add_u32", "m0", s(sl), str(g_ * GRP), tgt=tg - 1, stream=st))
        cap = cfg.cap3 if nq == 3 else cfg.cap0
        if cap: o.append(waitvm(cap - 1, tgt=tg - 1, stream=st))
        so = sKt if (static or w_ == "K") else sVo
        o.append(dma(v(vKV + m), SV if w_ == "V" else SK, s(so), m * PIECE, cfg.kvflags, grp=f"{w_}{tile}", tgt=tg, stream=st))
    return o
DUMMY = LDS1 + 64
sVs, sVr, sKq, sSk = 40, 41, 42, 43
def next5(r, t0, stream):
    return [salu("s_add_u32", s(r), s(r), str(SLOT), tgt=t0, stream=stream),
            salu("s_cmp_eq_u32", None, s(r), str(4 * SLOT), tgt=t0 + 1, stream=stream), salu("s_cselect_b32", s(r), str(4 * SLOT - UNIT), s(r), stream=stream),
            salu("s_cmp_eq_u32", None, s(r), str(5 * SLOT - UNIT), tgt=t0 + 2, stream=stream), salu("s_cselect_b32", s(r), "0", s(r), stream=stream)]
def window_dyn(T, nq, part):
    n = 8 * nq; st = "dma"; mx = len(mtiles(nq)); o = []
    w_model = 0 if nq == 4 else 3; tskip = cfg.vskip[0] + cfg.vskip[1] * w_model
    nulls = lambda t: sum(1 for z in range(t) if cfg.kskip >> z & 1)
    def ksite(g_, tg):
        q = 16 + 4 * T + g_ - nulls(T)
        null = part and g_ == 3 and cfg.kskip >> T & 1
        x = [salu("s_and_b32", s(sT0), s(sKq), "3", stream=st), salu("s_mul_i32", s(sT0), s(sT0), str(GRP), stream=st),
             salu("s_bfe_u32", s(sKt), s(sKq), "0x20002", scc_w=True, stream=st), salu("s_mul_i32", s(sKt), s(sKt), str(SLOT), stream=st), salu("s_add_u32", s(sT0), s(sT0), s(sKt), stream=st),
             salu("s_lshl_b32", s(sKt), s(sKq), "12", stream=st), salu("s_sub_u32", s(sKt), s(sKt), "12288", stream=st)]
        if part and g_ == 3:
            x += [salu("s_mov_b32", s(sTo), hex(cfg.kskip), stream=st), salu("s_bitcmp1_b32", None, s(sTo), s(sT), scc_w=True, stream=st), salu("s_cselect_b32", s(sKt), "0x7ff00000", s(sKt), stream=st),
                  salu("s_cselect_b32", "m0", str(DUMMY), s(sT0), stream=st), salu("s_subb_u32", s(sKq), s(sKq), "-1", scc_r=True, scc_w=True, stream=st)]
        else: x += [salu("s_mov_b32", "m0", s(sT0), stream=st), salu("s_add_u32", s(sKq), s(sKq), "1", stream=st)]
        for k, y in enumerate(x): y.tgt = tg - len(x) + k
        return x + [dma(v(vKV + m), SK, s(sKt), m * PIECE, cfg.kvflags, grp="null" if null else f"K{q >> 2}", tgt=int(tg + m * 2.5), stream=st) for m in range(4)]
    if part == 0:
        tg = int(3 * n + mx + cfg.vpos * 4 * n) + 2
        tile = T + 4 if T < tskip else T + 3
        x = [salu("s_add_u32", s(sT0), s(sVs), s(sG), stream=st), salu("s_add_u32", s(sT0), s(sT0), str(UNIT), stream=st),
             salu("s_cmp_eq_u32", None, s(sT), s(sSk), stream=st), salu("s_cselect_b32", s(sT1), "0x7ff00000", s(sVo), stream=st), salu("s_cselect_b32", "m0", str(DUMMY), s(sT0), stream=st),
             salu("s_cselect_b32", s(sT2), "0", "1", stream=st)]
        for k, y in enumerate(x): y.tgt = tg - 4 + k
        o += x + [dma(v(vKV + m), SV, s(sT1), m * PIECE, cfg.kvflags, grp="null" if T == tskip else f"V{tile}", tgt=tg + 2 * m, stream=st) for m in range(4)]
        u = tg + 8
        o += [salu("s_lshl_b32", s(sT0), s(sT2), "14", tgt=u, stream="vadv"), salu("s_add_u32", s(sVo), s(sVo), s(sT0), tgt=u + 1, stream="vadv"), salu("s_mov_b32", s(sT0), s(sVs), tgt=u + 2, stream="vadv")]
        o += next5(sVs, u + 3, "vadv")
        o += [salu("s_cmp_eq_u32", None, s(sT2), "0", tgt=u + 6, stream="vadv"), salu("s_cselect_b32", s(sVs), s(sT0), s(sVs), stream="vadv")]
    elif nq == 3:
        for g_ in range(4): o += ksite(g_, int(9 + g_ * cfg.fracK * (3 * n - 20) / 3.4))
    return o
def iteration(T, nq, first=False, peeled=False):
    n = 8 * nq
    st = "dma"
    o = []
    vdt = 2 if nq == 4 else 1.5
    o += qk(0, nq)
    o += v_reads(0, 1, vdt)
    o += sm(1, nq, 0, mix=True)
    o += k_reads(1, n + 1, (n - 4) / 8)
    o += pv(0, nq, first)
    mx = len(mtiles(nq))
    B = 2 * n + mx
    o += qk(1, nq)
    vr = v_reads(1, B + 1, vdt); o += vr
    o.append(valu("v_add_u32", v(vVrd), str(vslot(T + 1)) if peeled else s(sVr if cfg.stretch else sV[1] if cfg.dV == 4 else sS1), v(vVrd0), tgt=B + n + 2))
    o += sm(0, nq, B - 2, 2.0, mix=True)
    w = wvm({f"K{T+2}", f"V{T+1}"}, tgt=B + n - 3, stream=["rd2", st]); b = barrier(tgt=B + n - 2, stream=["rd2", st])
    w.after = [x for x in o if x.k == "mfma"][B + n - 4:B + n - 3]
    o += [w, b]
    if cfg.its:
        x1 = valu("v_mov_b32", "v126", "s90", tgt=B + n - 1); x1.after = [b]
        x2 = I("s_memrealtime s[90:91]", "salu", tgt=B + n - 1); x2.after = [x1]
        o += [x1, x2, valu("v_cmp_eq_u32", "vcc", "s51", v(vLane), tgt=B + n), valu("v_cndmask_b32", "v127", "v127", "v126", "vcc", tgt=B + n + 2)]
    e = 4 * n + 2 * mx - 1
    t = B + n
    if T >= 12 and peeled:
        eA = []; eB = []
        if T == 12: eA = p3_wdma(0) + p3_wdma(1)
        if T == 13: eA = p3_wdma(2); eB = p3_wdma(3)
        if cfg.dV == 4:
            assert cfg.dK == 5
            eA, eB = {12: (p3_wdma(0), p3_wdma(1)), 13: (p3_wdma(2), p3_wdma(3)), 14: (p3_wdma(4), p3_wdma(5) + p3_wdma(6))}[T]
        if cfg.wlate:
            if T == 12: eA = []
            if T == 13: eA = p3_wdma(0) + p3_wdma(1) + p3_wdma(2)
        if cfg.wtouch and T == 12:
            x = I(f"global_load_dword v231, v230, s[56:57]", "vmem", rd=["v230"], meta="load", grp="touch")
            eA = [x]; eB = p3_wdma(0)
        if cfg.wtouch and T == 13: eA = p3_wdma(1) + p3_wdma(2)
        if T == 14 and cfg.dV == 3: eA = p3_wdma(4); eB = p3_wdma(5) + p3_wdma(6)
        if cfg.touch and cfg.otm == 0 and nq == 3:
            cnt = [int(c_) for c_ in cfg.otd]; k0 = sum(cnt[:T - 12]); tl = []
            for k in range(k0, k0 + cnt[T - 12]):
                tl.append(salu("s_mov_b32", s(sTo), str((k >> 2) * 16384), stream=st))
                tl.append(bload("v", 231, v(vT + (k & 3)), SX, s(sTo), 0, cfg.tflags, n=1, grp="touch", stream=st)); tl[-1].wr = set()
            eA = weave(eA, tl) if (eA and tl and cfg.otw) else eA + tl
        if cfg.touch and cfg.otm:
            def ot(k):
                x = bload("v", 231, "v230", SO, s(sTo), 0, cfg.tflags, n=1, grp="touch", stream=st); x.wr = set()
                return [salu("s_mov_b32", s(sTo), str(k * 16384), stream=st), x]
            where = {1: ((13, "B"), (14, "A")), 2: ((14, "A"), (14, "A")), 3: ((13, "B"), (13, "B")), 4: ((13, "A"), (13, "B")), 5: ((14, "A"), (14, "B"))}[cfg.otm]
            for k, (tt, ab) in reversed(list(enumerate(where))):
                if tt == T and ab == "A": eA = ot(k) + eA
                if tt == T and ab == "B": eB = ot(k) + eB
        for x in eA: x.stream = st
        pre = window(T - 1, nq, 1, True); post = window(T, nq, 0, True)
        if eA: place(eA, 3 if T == 12 else 6, 3 * n - 8)
        if eB: place(eB, t + 2, e - 4)
        def merge(a_, b_):
            items = []
            for z, seq in enumerate((a_, b_)):
                setup = []; m0 = None
                for x in seq:
                    if x.k == "vmem": items.append((x.tgt, len(items), z, setup, m0, x)); setup = []
                    else:
                        setup.append(x)
                        if "m0" in x.wr: m0 = x
            items.sort(key=lambda q_: q_[:2]); res = []; cur = None
            for tg, _, z, setup, m0, x in items:
                if any("m0" in y.wr for y in setup): m0 = next(y for y in setup if "m0" in y.wr)
                elif "m0" in x.rd and cur is not m0: setup = setup + [I(m0.t, m0.k, m0.rd, m0.wr, tgt=tg - 1, stream=m0.stream)]
                if "m0" in x.rd: cur = m0
                res += setup + [x]
            return res
        eA = merge(pre, eA); eB = merge(post, eB)
        k = o.index(w); o[k:k] = eA
        if T < 14:
            o.append(valu("v_add_u32", v(vKrd), str(((T + 2) & 3) * SLOT), v(vKrd0), tgt=B + n - 4))
            o += k_reads(0, B + n + 1, (n - 4) / 8, after=[b])
        else:
            o += [ds_tr("a", KF + 4 * (r >> 1) + 2 * (r & 1), v(vVrd), (r & 1) * 512 + 32 * (r >> 1), tgt=int(B + n + 4 + r * (n - 6) / 16), stream="rd") for r in range(16)]
            for x in o[-16:]: x.after = [b]
        return o + eB + pv(1, nq)
    o.append(valu("v_add_u32", v(vKrd), s(sS2), v(vKrd0), tgt=B + n - 4))
    o += k_reads(0, B + n + 1, (n - 4) / 8, after=[b])
    if cfg.stretch: pre = window_dyn(T, nq, 1)
    else:
        pre = window(T - 1, nq, 1, False)
        pre += [salu("s_add_u32", s(sVo), s(sVo), "16384", tgt=t - 5, stream=st)] + ([salu("s_add_u32", s(sKo), s(sKo), "16384", tgt=t - 4, stream=st)] if nq == 3 else [])
    if cfg.wroll and nq == 3:
        x = bload("v", 231, v(vT), STC2, s(sTo), 0, n=1, grp="touch", tgt=B + 6, stream=st); x.wr = set()
        pre += [salu("s_sub_u32", s(sT2), s(sT), str(cfg.wroll), tgt=B, stream="tch"), salu("s_lshl_b32", s(sTo), s(sT2), "13", tgt=B + 1, stream="tch"), x]
        pre.sort(key=lambda y: 0)
    if cfg.kick and nq == 3:
        kk = [salu("s_cmp_eq_u32", None, s(sT), "5", tgt=B + 2, stream=st), salu("s_cselect_b32", s(sTo), "0", "0x7ff00000", tgt=B + 3, stream=st)]
        for z in range(cfg.kick):
            kk.append(bload("v", 231, v(vT + (z & 1)), SX, s(sTo), 0, "nt", n=1, grp="touch", tgt=B + 4 + z, stream=st)); kk[-1].wr = set()
            kk.append(salu("s_add_u32", s(sTo), s(sTo), "8192" if z & 1 else "0", tgt=B + 4 + z, stream=st))
        pre += kk
    if cfg.extra and nq == 4:
        ex = [salu("s_mul_i32", s(sTo), "s2", "0x40000", tgt=4, stream=st), salu("s_lshl_b32", s(sT2), s(sT), "12", tgt=5, stream=st), salu("s_add_u32", s(sTo), s(sTo), s(sT2), tgt=6, stream=st),
              salu("s_add_u32", s(sTo), s(sTo), "0x4000000", tgt=6, stream=st), salu("s_mul_i32", s(sT2), s(sW), "0x4000000", tgt=6, stream=st), salu("s_add_u32", s(sTo), s(sTo), s(sT2), tgt=6, stream=st),
              valu("v_add_u32", "v125", s(sTo), v(vOst), tgt=7), salu("s_mov_b32", "m0", str(8 * UNIT), tgt=8, stream=st)]
        for z in range(cfg.extra): ex.append(I(f"global_load_lds_dwordx4 v125, s[{sWS}:{sWS+1}] offset:{z*1024} nt", "vmem", rd=["v125", "m0"], meta="dma", grp="ex", tgt=9 + z, stream=st))
        pre = ex + pre
    k = o.index(w); o[k:k] = pre
    o += window_dyn(T, nq, 0) if cfg.stretch else window(T, nq, 0, False)
    r = e - 9
    o += pv(1, nq)
    if cfg.stretch:
        o += next5(sVr, B + n + 6, "vrd")
        o += [salu("s_add_u32", s(sS2), s(sS2), str(SLOT), tgt=r + 2, stream="krd"), salu("s_cmp_eq_u32", None, s(sS2), str(4 * SLOT), tgt=r + 3, stream="krd"), salu("s_cselect_b32", s(sS2), "0", s(sS2), stream="krd")]
    else:
        o.append(salu("s_mov_b32", s(sS0), s(sS1), tgt=r + 1, stream=st))
        if cfg.dV == 4:
            rot = [(sT2, sV[0])] + [(sV[k], sV[k + 1]) for k in range(4)] + [(sV[4], sT2)]
            for k, (d_, s_) in enumerate(rot): o.append(salu("s_mov_b32", s(d_), s(s_), tgt=r - 8 + k, stream="vrot"))
        o.append(salu("s_mov_b32", s(sS1), s(sS2), tgt=r + 2, stream=st)); o.append(salu("s_mov_b32", s(sS2), s(sS3), tgt=r + 3, stream=st))
        o.append(salu("s_add_u32", s(sS3), s(sS3), str(SLOT), tgt=r + 4, stream=st)); o.append(salu("s_cmp_eq_u32", None, s(sS3), str(4 * SLOT), tgt=r + 5, stream=st))
        o.append(salu("s_cselect_b32", s(sS3), "0", s(sS3), tgt=r + 6, stream=st))
    o.append(salu("s_add_u32", s(sT), s(sT), "1", tgt=r + 7, stream=st));
    if cfg.longloop:
        for rg_ in (sKo, sVo):
            o += [salu("s_cmp_ge_u32", None, s(rg_), str(262144 - 16384), tgt=r + 8, stream=st), salu("s_cselect_b32", s(sT0), str(14 * 16384), "0", tgt=r + 8, stream=st), salu("s_sub_u32", s(rg_), s(rg_), s(sT0), tgt=r + 8, stream=st)]
    o.append(salu("s_cmp_lt_u32", None, s(sT), str(cfg.longloop or 12), tgt=r + 8, stream=st))
    return o

def pack_iter(o, nq):
    N = sum(1 for x in o if x.k == "mfma"); H = N // 2
    ex = [x for x in o if x.k == "trans"]; ld = [x for x in o if x.k == "lds"]; vm = [x for x in o if x.k == "vmem"]
    va = [x for x in o if x.k == "valu"]
    for i, x in enumerate(ex): x.tgt = (i // 32) * H + ((i % 32) * H) // 32
    eg = {x.tgt for x in ex}
    expo = {next(iter(x.wr)): x.tgt for x in ex[:32]}; expo2 = {next(iter(x.wr)): x.tgt for x in ex[32:]}
    dg = set()
    for x in vm:
        g = min(x.tgt, N - 1)
        while g in dg or g in eg: g += 1
        x.tgt = g; dg.add(g)
    xg = [g for g in range(N) if g not in dg and g not in eg]
    lg = {}
    for x in ld:
        left = len(ld) - len(lg); last = max(lg, default=-1)
        free = [g for g in xg if g > last]
        if len([g for g in free if g >= x.tgt]) >= left: g = next(g for g in free if g >= x.tgt)
        else: g = max(last + 1, min(int(x.tgt), N - 2 - left)); g += g in dg
        lg[g] = x; x.tgt = g
    rdy = []
    for x in va:
        op = x.t.split()[0]
        if op in ("v_add_f32", "v_cvt_pk_bf16_f32"):
            r = max((expo.get(q, expo2.get(q, -1)) if o.index(x) < o.index(ex[32]) else expo2.get(q, -1)) for q in x.rd) + 1
        else: r = x.tgt
        rdy.append((r, len(rdy), x))
    rdy.sort(key=lambda z: z[:2])
    bonus = set()
    def fill():
        k = 0; back = {}
        for g in xg:
            cap = (1 if g in lg else 2) + (g in bonus); take = 0
            while k < len(rdy) and rdy[k][0] <= g and take < cap: rdy[k][2].tgt = g; k += 1; take += 1
            back[g] = sum(1 for z in rdy[k:] if z[0] <= g)
        return len(rdy) - k, back
    while True:
        left, back = fill()
        worst = max(back.values())
        if left == 0 and worst <= cfg.backlog: break
        cand = [g for g in xg if g not in bonus and back[g] > (cfg.backlog if worst > cfg.backlog else 0)]
        if not cand: break
        bonus.add(cand[0] if worst > cfg.backlog else cand[-1])
    left, back = fill()
    if left:
        for z in rdy[len(rdy) - left:]: z[2].tgt = N - 1
    taken = {x.tgt for x in o if x.k in ("wait", "bar")}
    dl = {}
    for idx in range(len(o) - 1, -1, -1):
        x = o[idx]
        if x.k == "salu":
            nx = next((y for y in o[idx + 1:] if y.k in ("vmem", "salu", "wait") and (y.stream == x.stream or (isinstance(y.stream, list) and x.stream in y.stream))), None)
            if nx is not None and (nx.k != "salu" or id(nx) in dl):
                g = nx.tgt - 1
                while g in taken and g > -1: g -= 1
                x.tgt = g; taken.add(g); dl[id(x)] = g
    last = {}
    for x in o:
        if x.k == "salu" and id(x) not in dl:
            g = max(int(x.tgt), last.get(str(x.stream), -1) + 1)
            while g in taken and g < N - 1: g += 1
            x.tgt = min(g, N - 1); taken.add(g); last[str(x.stream)] = g
    return o
def sched_iter(T, nq, **kw):
    extra = kw.pop("extra", [])
    o = fuse_scc(extra + iteration(T, nq, **kw)); extra = []
    if nq == 4 and cfg.pack: return schedule(pack_iter(extra + o, nq), strict=True)
    return schedule(extra + o)
def place(seq, g0, g1):
    vec = [x for x in seq if x.k in COST]
    for k, x in enumerate(vec): x.tgt = g0 + k * (g1 - g0 + 1) // len(vec)
    nxt = g1
    for x in reversed(seq):
        if x.k in COST: nxt = x.tgt
        else: x.tgt = max(-1, nxt - 1); nxt = x.tgt if x.k == "salu" else nxt
    return seq
def weave(a, b, lead=0):
    grp = []; cur = []
    for x in b:
        cur.append(x)
        if x.k in COST: grp.append(cur); cur = []
    if cur: grp[-1] += cur
    out = list(a[:lead]); rest = a[lead:]; k = 0
    for n_, x in enumerate(rest):
        while k < len(grp) and k * len(rest) <= n_ * len(grp): out += grp[k]; k += 1
        out.append(x)
    for y in grp[k:]: out += y
    return out
def xw_touch(c):
    if not cfg.xtouch: return []
    x = bload("v", 231, v(vT + 2), STC, s(sTo), 0, n=1, grp="touch", stream="dma"); x.wr = set()
    return [salu("s_mul_i32", s(sTo), s(sTs), str(c), stream="dma"), x]
def wo_touch(k):
    x = I(f"global_load_dword v231, v{vT+3}, s[56:57]", "vmem", rd=[v(vT + 3)], meta="load", grp="touch", stream="dma")
    return [x, valu("v_add_u32", v(vT + 3), "0x2000", v(vT + 3), stream="dma")]
def first_tile(nq, G, redo=False):
    h = 8 * nq
    o = qk(0, nq, first=True)
    if cfg.dK == 5 and (cfg.kve == 0 or redo): o += kv_dma_static("K", 3, G + h, 3)
    elif cfg.dK == 5 and cfg.kve == 9: o += kv_dma_static("K", 3, G + h, h // 5)
    elif cfg.dK == 5 and cfg.kve >= 6: o += kv_dma_static("K", 3, G + 4, h // 3)
    if cfg.dV == 4: o += kv_dma_static("V", 2, G + (h + 12 if (cfg.kve in (0, 9) or redo) else 2 * h - 6 - 4 * (h // 4) if cfg.kve >= 6 else 2), h // 4)
    for a in range(nq): o += first_max(a, G + 8 * (a + 1) + 2, 0.5)
    o += k_reads(1, G + h - 6, 1)
    q1 = qk(1, nq); o += q1
    o += sm(0, nq, G + h + 2, 0.9)
    w = wvm({"K1", "V0", "G"}, tgt=G + 2 * h - 3, stream=["dma"]); b = barrier(tgt=G + 2 * h - 2, stream=["dma"])
    w.after = [q1[h - 4]]
    o += [w, b, valu("v_add_u32", v(vKrd), str(SLOT), v(vKrd0), tgt=G + 2 * h - 2)]
    o += k_reads(0, G + 2 * h - 1, 0, after=[b])
    for x in window(-1, nq, 0, True): x.tgt = G + 2 * h - 1; o.append(x)
    for k, (r_, val) in enumerate(((sS0, 0), (sVo, (cfg.dV - 1) * 16384), (sKo, (cfg.dK - 1) * 16384 - 3 * 4096), (sS1, SLOT), (sS2, 2 * SLOT), (sS3, 3 * SLOT), (sT, 0)) + (((sVs, vslot(4)), (sVr, vslot(1)), (sKq, 16), (sVo, 4 * 16384)) if cfg.stretch else tuple((sV[k], vslot(k)) for k in range(5)) if cfg.dV == 4 else ())):
        o.append(salu("s_mov_b32", s(r_), str(val), tgt=G + 10 + k))
    if cfg.stretch: o += [salu("s_mul_i32", s(sSk), s(sW), str(cfg.vskip[1]), tgt=G + 24), salu("s_add_u32", s(sSk), s(sSk), str(cfg.vskip[0]), tgt=G + 25)]
    o.append(valu("v_mov_b32", v(vVrd), v(vVrd0), tgt=G + 8))
    if mtiles(nq):
        o.append(valu("v_mov_b32", v(LM), "0x3f803f80", tgt=G + h))
        for r in range(4): o.append(valu("v_accvgpr_write_b32", f"a{ONES + r}", v(LM), tgt=G + h + 1))
    return o
def k1_variant(nq, name, pre):
    V = Variant(nq, name)
    V.finish([label(f"L_{name}")], sched=False)
    n = 16 * nq; nx = 2 * nq
    r0 = chunk_reads(0, nq)
    V.vm = [x for x in pre if x.k == "vmem"]
    o = (clear_flags() if nq == 3 else []) + stamp(4, "st") + [wvm({"c0"})] + stamp(5, "st") + [barrier()] + stamp(1) + stamp(1, "p1") + stamp(1, "p0") + stamp(6, "st") + r0[:nx + 8]
    V.finish(o, sched=False)
    for c in range(7):
        m = chunk_mfma(c, nq)
        w = wvm({f"c{c+1}"}, stream=["rd", "dma"]); b = barrier(stream=["rd", "dma"])
        rd = chunk_reads(c + 1, nq)
        extra = []
        if c in (0, 2): extra += xw_touch(c + 4)
        plan = {0: {5: [("K", 0, (0, 1, 2, 3)), ("V", 0, (0, 1, 2, 3)), ("K", 1, (0, 1))], 6: [("K", 1, (2, 3))]},
                1: {1: [("K", 0, (0, 1))], 2: [("K", 0, (2, 3))], 3: [("V", 0, (0, 1))], 4: [("V", 0, (2, 3))], 5: [("K", 1, (0, 1, 2, 3))], 6: [("K", 2, (0, 1, 2, 3)), ("V", 1, (0, 1, 2, 3))]},
                2: {2: [("K", 0, (0, 1, 2, 3))], 3: [("V", 0, (0, 1, 2, 3))], 4: [("K", 1, (0, 1, 2, 3))], 6: [("K", 2, (0, 1, 2, 3)), ("V", 1, (0, 1, 2, 3))]},
                3: {2: [("K", 0, (0, 1, 2, 3)), ("V", 0, (0, 1, 2, 3)), ("K", 1, (0, 1, 2, 3))], 6: [("K", 2, (0, 1, 2, 3)), ("V", 1, (0, 1, 2, 3))]},
                4: {4: [("K", 0, (0, 1, 2, 3))], 5: [("V", 0, (0, 1, 2, 3)), ("K", 1, (0, 1, 2, 3))], 6: [("K", 2, (0, 1, 2, 3)), ("V", 1, (0, 1, 2, 3))]},
                6: {1: [("K", 0, (0, 1))], 2: [("K", 0, (2, 3))], 3: [("V", 0, (0, 1))], 4: [("V", 0, (2, 3)), ("K", 1, (0,))], 5: [("K", 1, (1, 2, 3))], 6: [("K", 2, (0, 1, 2, 3))]},
                7: {2: [("K", 0, (0, 1, 2))], 3: [("K", 0, (3,)), ("V", 0, (0, 1))], 4: [("V", 0, (2, 3)), ("K", 1, (0,))], 5: [("K", 1, (1, 2, 3))], 6: [("K", 2, (0, 1, 2, 3))]},
                8: {3: [("K", 0, (0, 1, 2, 3))], 4: [("V", 0, (0, 1, 2, 3))], 5: [("K", 1, (0, 1, 2, 3))], 6: [("K", 2, (0, 1, 2, 3))]},
                9: {4: [("K", 0, (0, 1, 2, 3))], 5: [("V", 0, (0, 1, 2, 3))], 6: [("K", 1, (0, 1, 2, 3))]},
                -1: {1: [("K", 0, (0, 1, 2))], 2: [("K", 0, (3,)), ("V", 0, (0, 1))], 3: [("V", 0, (2, 3)), ("K", 1, (0,))], 4: [("K", 1, (1, 2, 3))], 6: [("K", 2, (0, 1, 2, 3)), ("V", 1, (0, 1, 2, 3))]},
                -2: {0: [("K", 0, (0, 1))], 1: [("K", 0, (2, 3))], 2: [("V", 0, (0, 1))], 3: [("V", 0, (2, 3))], 4: [("K", 1, (0, 1))], 5: [("K", 1, (2, 3))], 6: [("K", 2, (0, 1, 2, 3)), ("V", 1, (0, 1, 2, 3))]},
                5: {5: [("K", 0, (0, 1, 2, 3)), ("V", 0, (0, 1, 2, 3)), ("K", 1, (0, 1, 2, 3))], 6: [("K", 2, (0, 1, 2, 3)), ("V", 1, (0, 1, 2, 3))]}}[cfg.kve]
        kv = [x for wh, tl, ms in plan.get(c, []) for x in kv_dma_static(wh, tl, ms=ms)]
        if c <= 4: extra += kv
        if c == 0:
            g = 14
            o = place(r0[nx + 8:], -1, g - 3) + [waitlg(0, tgt=g - 1, stream="rd"), w, b] + m
            w.tgt = g - 1; b.tgt = g
            o += place(weave(rd[:14], extra + x_dma(2) + w_dma(2)) + rd[14:], g + 1, n - 3) + [waitlg(0, tgt=n - 1, stream="rd")]
        elif c <= 4:
            w.tgt = 0; b.tgt = 1
            early = extra + (x_dma(3) + w_dma(3) if c == 1 else [])
            ne = sum(1 for x in early if x.k == "vmem")
            k0 = max(nx + 4, min(len(rd) - 8, ne))
            seq = weave(rd[:k0], early) + [waitlg(k0 - nx, stream=["rd", "dma"])] + weave(rd[k0:], x_dma(c + 3))
            o = [w, b] + m + place(seq, 2, n - 8)
            o += [waitlg(0, tgt=n - 6, stream="rd"), barrier(tgt=n - 5, stream=["rd", "dma"])] + place(w_dma(c + 3), n - 4, n - 1)
        else:
            w.tgt = 0; b.tgt = 1
            if not kv: seq = rd
            elif c == 6 and cfg.kve == 0: seq = rd[:30] + weave(rd[30:], kv)
            else: seq = weave(rd, kv)
            o = [w, b] + m + place(seq, 2, n - 6) + [waitlg(0, tgt=n - 1, stream="rd")]
        if c <= 2:
            bars = [x for x in o if x.k == "bar"]
            base = {0: 2, 1: 4, 2: 7}[c]
            for k_, x in enumerate(bars[:2 if c == 1 else 1]): o += stampf(base + k_, "p0", x, x.tgt)
            if c < 2: o += stampf(base + len(bars), "p0", m[-1], n - 1)
        V.finish(o, strict=True, lds_lat=3)
        if c == 1 and nq == 3: V.finish([wvm({"clr"})] + register(), sched=False)
        V.finish(stamp(c + 2, "p1") if c < 6 else [], sched=False)
    c7 = chunk_mfma(7, nq, amajor=True)
    g0 = wvm({"K0"}, tgt=cfg.g7, stream=["dma", "rd"]); g1 = barrier(tgt=cfg.g7 + 1, stream=["dma", "rd"])
    if cfg.kve == 0: o = [g0, g1] + c7 + kv_dma_static("K", 2, cfg.g7 + 3, 3) + k_reads(0, cfg.g7 + 4, 1) + group_load(cfg.g7 + 14) + kv_dma_static("V", 1, n - 12, 3)
    elif cfg.kve == 9: o = [g0, g1] + c7 + k_reads(0, cfg.g7 + 4, 1) + group_load(cfg.g7 + 14) + kv_dma_static("K", 2, cfg.g7 + 3, n // 8) + kv_dma_static("V", 1, n - 8, n // 8)
    elif cfg.kve >= 6: o = [g0, g1] + c7 + k_reads(0, cfg.g7 + 4, 1) + group_load(cfg.g7 + 14) + kv_dma_static("V", 1, cfg.g7 + 3, n // 5)
    else: o = [g0, g1] + c7 + kv_dma_static("K", 3, cfg.g7 + 3, 3) + k_reads(0, cfg.g7 + 4, 1) + group_load(cfg.g7 + 14)
    for a in range(nq): o += q_convert(a, 16 * (a + 1) + 3, 0.3)
    o += stampf(2, "main", c7[-1], n - 1)
    V.finish(o + first_tile(nq, n), budget=cfg.mbudget)
    V.finish([label(f"L_{name}_join")] + stamp(3), sched=False)
    ge = group_eval() + p3_srd_w() + (touch_setup3() if cfg.wtouch else []) + (touch_setup4() if cfg.otm else touch_setup2() if nq == 3 and cfg.touch else [])
    for k, x in enumerate(ge): x.tgt = 3 + 2 * k; x.stream = "ge"
    V.finish(sched_iter(0, nq, first=True, extra=ge), sched=False)
    seqs = [V.resolve_vm(sched_iter(T, nq)) for T in range(1, 12)]
    for k, c in enumerate(seqs[0]):
        if c.k == "wait" and c.meta[0] == "vm":
            n_ = min(q[k].meta[1] for q in seqs)
            for q in seqs: q[k] = waitvm(n_, need=q[k].need)
    _, p1 = insert_lgkm(seqs[0], V.pend)
    body, p2 = insert_lgkm(seqs[0], p1)
    body = fix_hazards(body + [nop(15)] * cfg.slow + [raw(f"s_cbranch_scc1 L_{name}_loop", "branch", rd=["scc"])], body)
    if len(V.pend) > len(p1): V.static.append(waitlg(len(p1))); V.trace.append(V.static[-1])
    V.static.append(label(f"L_{name}_loop"))
    V.static += body; V.pend = p2; V.loop_stats = gap_stats(body)
    for cur in seqs:
        new = []; k = 0
        for c in body:
            if k < len(cur) and cur[k].t == c.t: new.append(cur[k]); k += 1
            else: new.append(c)
        assert k == len(cur), ("loop body differs", cur[k].t)
        V.trace += new
    for T in (12, 13, 14): V.finish(sched_iter(T, nq, peeled=True), sched=False)
    V.finish(stamp(4), sched=False)
    if cfg.its:
        V.finish([raw("s_lshl_b32 s4, s2, 10"), raw(f"s_lshl_b32 s5, s{sW}, 8"), raw("s_add_u32 s4, s4, s5"), raw(f"s_add_u32 s4, s4, {STAMP_OFF + 0x100000}"),
                  raw(f"s_add_u32 s4, s{sWS}, s4"), raw(f"s_addc_u32 s5, s{sWS+1}, 0"), raw(f"v_lshlrev_b32 v126, 2, v{vLane}"), raw("global_store_dword v126, v127, s[4:5]"), raw("s_nop 1")], sched=False)
    h2 = 16
    o = v_reads(1, -1, 0.5)
    inv = TMP
    A = o.append
    if cfg.fallback:
        A(salu("s_lshl_b32", s(sT2), s(sW), "2", tgt=12)); A(salu("s_add_u32", s(sT2), s(sT2), str(VOTE), tgt=13))
        A(valu("v_mov_b32", v(TMP + 13), s(sT2), tgt=14)); A(valu("v_mov_b32", v(TMP + 14), str(VOTE), tgt=14))
        A(salu("s_mov_b32", s(sT0), hex(LIMIT), tgt=14)); A(raw("s_mov_b64 s[54:55], 0", "salu", wr=["s54", "s55"], tgt=15))
    smx = sm(1, nq, 0, 1.0)
    def smt(a, t0, t1):
        x = [y for y in smx if (y.rd | y.wr) & set(R("v", S_[1] + 8 * a, 8))]
        for k, y in enumerate(x): y.tgt = int(t0 + (t1 - t0) * k / len(x))
        return x
    k = 0; t = 0
    for a in range(nq):
        o += smt(a, max(-1, t - 14), t + 2 if a else 6)
        p0 = [mfma("a", oacc(a, tt), "a", KF + 4 * tt, "v", P_[0] + 4 * a) for tt in range(8)]
        p1 = [mfma("a", oacc(a, tt), "a", VF + 4 * tt, "v", P_[1] + 4 * a) for tt in range(8)]
        if a in mtiles(nq):
            if a == 0: p0.append(lsum_mfma(0, a)); p1.insert(0, lsum_mfma(1, a))
            else: p0.insert(0, lsum_mfma(0, a)); p1.insert(0, lsum_mfma(1, a))
        o += (p0 + p1) if a == 0 else [y for pr in zip(p0, p1) for y in pr]
        if a not in mtiles(nq): o += xreduce("v_add_f32", LSUM + a, TMP + 8 + a, t + 8, 1)
        A(valu("v_rcp_f32", v(inv + a), v(lsreg(a, nq)), tgt=t + 14))
        if cfg.fallback:
            A(valu("v_cmp_nge_f32", "vcc", s(sT0), v(lsreg(a, nq)), tgt=t + 14))
            A(raw("s_or_b64 s[54:55], s[54:55], vcc", "salu", rd=["vcc", "s54", "s55"], wr=["s54", "s55", "scc"], tgt=t + 15))
        if a < nq - 1: t += len(p0) + len(p1)
        if a == nq - 1:
            tv = t + 15
            if cfg.fallback:
                A(salu("s_cselect_b32", s(sT0), "1", "0", tgt=tv)); A(valu("v_mov_b32", v(TMP + 12), s(sT0), tgt=tv))
                A(I(f"ds_write_b32 v{TMP+13}, v{TMP+12}", "ldsw", rd=[v(TMP + 12), v(TMP + 13)], tgt=tv, stream="rd"))
    epi = []
    for a in range(nq):
        for sg in range(4):
            tb = 16 * (k % 4) if a else 104 + 12 * (k % 2)
            if a == 1: tb = 16 * (k % 2)
            t0 = h2 * (a + 1) + 2 * min(a + 1, len(mtiles(nq))) + 3 + 3 * sg
            blk = [salu("s_mov_b32", s(sT1), str(8192 * sg), stream="st")]
            blk += [valu("v_accvgpr_read_b32", v(tb + r), f"a{oacc(a, 2*sg) + r}") for r in range(8)]
            blk += [valu("v_mul_f32", v(tb + r), v(inv + a), v(tb + r)) for r in range(8)]
            blk += [valu("v_cvt_pk_bf16_f32", v(tb + 8 + r), v(tb + 2 * r), v(tb + 2 * r + 1)) for r in range(4)]
            blk += [bstore("v", tb + 8, v(vOst), SO, s(sT1), 1024 * a, cfg.oflags, stream="st", grp="O")]
            for y in blk: y.tgt = t0
            k += 1
            if a < nq - 1: o += blk
            else: epi += blk
    V.finish(o, budget=cfg.tbudget)
    o = epi[:22] + [waitlg(0), barrier()]
    if cfg.fallback: o.append(ds_b128("v", TMP + 4, v(TMP + 14), 0))
    o += epi[22:]
    V.finish(o, sched=False)
    V.finish(stamp(5), sched=False)
    V.npre = len(V.vm)
    if cfg.fallback:
        o = []; A = o.append
        A(valu("v_or3_b32", v(TMP + 12), v(TMP + 4), v(TMP + 5), v(TMP + 6))); A(valu("v_or_b32", v(TMP + 12), v(TMP + 12), v(TMP + 7)))
        A(valu("v_readfirstlane_b32", s(sT0), v(TMP + 12)))
        A(salu("s_andn2_b32", s(sT0), s(sT0), s(sPASS))); A(raw(f"s_cbranch_scc0 L_{name}_end", "branch", rd=["scc"]))
        A(waitvm(0)); A(barrier())
        A(valu("v_mov_b32", v(vKrd), v(vKrd0))); A(salu("s_mov_b32", s(sKo), "0")); A(salu("s_mov_b32", "m0", s(sG)))
        A(label(f"L_{name}_mx"))
        for m in range(4): A(dma(v(vKV + m), SK, s(sKo), m * PIECE, cfg.kvflags))
        A(waitvm(0)); A(barrier())
        for j in range(2):
            o += k_reads(j) + [waitlg(0)] + qk(0, nq, first=True) + [nop(7)]
            for a in range(nq):
                for r in range(4): A(valu("v_max3_f32", v(MTRUE + a), v(S_[0] + 8 * a + 2 * r), v(S_[0] + 8 * a + 2 * r + 1), v(MTRUE + a)))
        A(barrier())
        A(salu("s_add_u32", s(sKo), s(sKo), "16384")); A(salu("s_cmp_lt_u32", None, s(sKo), "262144")); A(raw(f"s_cbranch_scc1 L_{name}_mx", "branch", rd=["scc"]))
        A(salu("s_mov_b32", s(sPASS), "1"))
        for wh, tl in (("K", 0), ("V", 0), ("K", 1), ("K", 2), ("V", 1)): o += kv_dma_static(wh, tl)
        o += group_load() + [waitvm(0), barrier()] + k_reads(0) + [waitlg(0)]
        V.finish(o, sched=False)
        V.finish(first_tile(nq, 0, redo=True))
        V.finish([waitlg(0), raw(f"s_branch L_{name}_join", "branch")], sched=False)
    if cfg.fused:
        V.finish([label(f"L_{name}_end"), raw("s_branch L_p3", "branch")], sched=False)
    else:
        V.finish([label(f"L_{name}_end")] + stamp(6) + dump_stamps(10, sWS, STAMP_OFF, v(vLane), "L_k1_done") + [raw("s_endpgm")], sched=False)
    return V

XOFF = 0x1000000; FOFF = 0x3000000
S3O, S3W, S3X, S3Out = 8, 12, 16, 40
s3HG, s3RP, s3CQ, s3T, s3U, s3ROT, sUNI, sF1, sF2 = 36, 37, 38, 92, 93, 94, 39, 31, 30
v3Wd = 252; vG = 224
v3Or, v3Rr, v3St, v3L16, v3Wr = 104, 106, 107, 108, 109
NW_ = 9
class _WU:
    def __getitem__(self, k): return ((8, 0, 2, 1, 4, 3, 6, 5, 7) if cfg.dV == 3 else (0, 2, 3, 4, 5, 6, 7, 8, 1))[k]
WU = _WU()
def oset(u, sg, a): return 128 + (u % 8) * 16 + (sg * 2 + a) * 4
def wset3(p, sg, tau): return p * 64 + (sg * 8 + tau) * 4
def one_lane(ins): return [raw("s_mov_b64 exec, 1", "salu"), ins, raw("s_mov_b64 exec, -1", "salu")]
def flag_addrs(t0=None):
    o = []; A = o.append
    A(salu("s_lshr_b32", s(s3HG), s(sH), "3")); A(salu("s_bfe_u32", s(s3RP), s(sH), "0x10002", scc_w=True)); A(salu("s_and_b32", s(s3CQ), s(sH), "3"))
    A(salu("s_lshl_b32", s(sF1), s(sB), "2")); A(salu("s_add_u32", s(sF1), s(sF1), s(s3HG))); A(salu("s_lshl_b32", s(sF1), s(sF1), "7")); A(salu("s_add_u32", s(sF1), s(sF1), hex(FOFF)))
    A(salu("s_lshl_b32", s(sF2), s(sB), "3")); A(salu("s_and_b32", s(s3T), s(sH), "7")); A(salu("s_add_u32", s(sF2), s(sF2), s(s3T))); A(salu("s_lshl_b32", s(sF2), s(sF2), "9")); A(salu("s_add_u32", s(sF2), s(sF2), hex(FOFF + 4096)))
    if t0 is not None:
        for k, x in enumerate(o): x.tgt = t0 + k; x.stream = "p3s"
    return o
def clear_flags():
    o = []; A = o.append
    A(salu("s_lshr_b32", s(54), s(sH), "3")); A(salu("s_and_b32", s(55), s(sH), "7"))
    A(salu("s_lshl_b32", s(sT0), s(sB), "2")); A(salu("s_add_u32", s(sT0), s(sT0), s(54))); A(salu("s_lshl_b32", s(sT0), s(sT0), "5")); A(salu("s_add_u32", s(sT0), s(sT0), s(55)))
    A(salu("s_lshl_b32", s(sT0), s(sT0), "2")); A(salu("s_add_u32", s(sT0), s(sT0), hex(FOFF)))
    A(salu("s_lshl_b32", s(sT1), s(sB), "3")); A(salu("s_add_u32", s(sT1), s(sT1), s(55))); A(salu("s_lshl_b32", s(sT1), s(sT1), "7")); A(salu("s_add_u32", s(sT1), s(sT1), s(54)))
    A(salu("s_lshl_b32", s(sT1), s(sT1), "2")); A(salu("s_add_u32", s(sT1), s(sT1), hex(FOFF + 4096)))
    A(valu("v_mov_b32", "v8", s(sT0))); A(valu("v_lshlrev_b32", "v9", "7", v(vLane))); A(valu("v_add_u32", "v9", s(sT1), "v9")); A(valu("v_mov_b32", "v10", "0"))
    A(raw("s_mov_b64 exec, 1", "salu"))
    A(I(f"global_store_dword v8, v10, s[{sWS}:{sWS+1}] sc1", "vmem", rd=["v8", "v10"], meta="store", grp="clr"))
    A(raw("s_mov_b64 exec, 15", "salu"))
    A(I(f"global_store_dword v9, v10, s[{sWS}:{sWS+1}] sc1", "vmem", rd=["v9", "v10"], meta="store", grp="clr"))
    A(raw("s_mov_b64 exec, -1", "salu"))
    return o
def page_warm():
    o = []; A = o.append; L = v(vLane)
    A(valu("v_and_b32", "v8", "31", L)); A(valu("v_lshlrev_b32", "v8", "20", "v8"))
    A(valu("v_and_b32", "v9", "3", L)); A(valu("v_lshlrev_b32", "v10", "20", "v9")); A(valu("v_mul_u32_u24", "v9", "0x78000", "v9"))
    for a, b in (("v8", f"s[{sWS}:{sWS+1}]"), ("v10", "s[56:57]"), ("v9", "s[58:59]")):
        A(I(f"global_load_dword v231, {a}, {b}", "vmem", rd=[a], meta="load", grp="pw"))
    return o
def xcc_word(dst, tmp):
    o = [raw(f"s_getreg_b32 s{tmp}, hwreg(HW_REG_XCC_ID, 0, 4)", "salu", wr=[s(tmp)])]
    if cfg.forcemix: o.append(salu("s_and_b32", s(tmp), s(sH), "1"))
    o += [salu("s_mul_i32", s(dst), s(tmp), s(tmp)), salu("s_lshl_b32", s(dst), s(dst), "8"), salu("s_add_u32", s(dst), s(dst), s(tmp)),
          salu("s_lshl_b32", s(dst), s(dst), "8"), salu("s_add_u32", s(dst), s(dst), "1")]
    return o
def register():
    o = xcc_word(sT0, sT1); A = o.append
    A(salu("s_lshr_b32", s(sT1), s(sH), "3")); A(salu("s_lshl_b32", s(sT2), s(sB), "2")); A(salu("s_add_u32", s(sT1), s(sT1), s(sT2))); A(salu("s_lshl_b32", s(sT1), s(sT1), "2"))
    A(valu("v_mov_b32", "v228", s(sT1))); A(valu("v_mov_b32", "v229", s(sT0)))
    o += one_lane(I(f"global_atomic_add v228, v229, s[100:101]{GOFF()} sc1", "vmem", rd=["v228", "v229"], meta="store"))
    return o
sRDY = 97
def group_load(t0=None):
    o = [salu("s_lshl_b32", s(sT2), s(sB), "4"), valu("v_mov_b32", v(vG + 4), s(sT2)),
         I(f"global_load_dwordx4 v[{vG}:{vG+3}], v{vG+4}, s[100:101]{GOFF()} sc1", "vmem", rd=[v(vG + 4)], wr=R("v", vG, 4), meta="load", grp="G", stream="dma"),
         salu("s_lshr_b32", s(sRDY), s(sH), "3"), salu("s_lshl_b32", s(sRDY), s(sRDY), "2"), salu("s_add_u32", s(sT2), s(sT2), s(sRDY)), valu("v_mov_b32", v(vG + 4), s(sT2)),
         I(f"global_load_dword v{vG+5}, v{vG+4}, s[100:101]{GOFF()} sc1", "vmem", rd=[v(vG + 4)], wr=[v(vG + 5)], meta="load", grp="G", stream="dma")]
    if t0 is not None:
        for k, x in enumerate(o): x.tgt = t0 + k
    return o
def group_eval():
    o = []; A = o.append
    A(valu("v_and_b32", v(vG), v(vG), v(vG + 1))); A(valu("v_and_b32", v(vG + 2), v(vG + 2), v(vG + 3))); A(valu("v_and_b32", v(vG), v(vG), v(vG + 2)))
    A(valu("v_readfirstlane_b32", s(sRDY), v(vG))); A(valu("v_readfirstlane_b32", s(sUNI), v(vG + 5)))
    A(salu("s_and_b32", s(sRDY), s(sRDY), "8"))
    o += xcc_word(54, 55)
    A(salu("s_lshl_b32", s(54), s(54), "3")); A(salu("s_cmp_eq_u32", None, s(sUNI), s(54))); A(salu("s_cselect_b32", s(sUNI), "1", "0"))
    return o
def p3_srd_w():
    o = flag_addrs(); A = o.append
    A(salu("s_lshl_b32", s(s3ROT), s(s3T), "1"))
    A(salu("s_lshl_b32", s(s3T), s(s3HG), "20")); A(salu("s_lshl_b32", s(s3U), s(s3CQ), "6" if cfg.wil else "8")); A(salu("s_add_u32", s(s3T), s(s3T), s(s3U)))
    A(salu("s_sub_u32", s(s3U), str(1048576 + 128), s(s3U)))
    o += srd(S3W, 56, 57, s3T, 128, s(s3U))
    return o
STC = 92; sTs = 96; STC2 = 4
def touch_setup1a():
    o = []; A = o.append; L = v(vLane)
    A(salu("s_and_b32", s(sT0), s(sW), "1")); A(salu("s_mul_i32", s(sTs), s(sT0), str(524288 - 128))); A(salu("s_add_u32", s(sTs), s(sTs), "128"))
    A(salu("s_cmp_eq_u32", None, s(sT0), "1")); A(raw("s_cselect_b64 vcc, -1, 0", "salu", rd=["scc"], wr=["vcc"]))
    A(valu("v_and_b32", "v8", "31", L)); A(valu("v_min_u32", "v9", "29", "v8"))
    A(salu("s_and_b32", s(sT0), s(sH), "7")); A(salu("s_mul_i32", s(sT0), s(sT0), "30")); A(valu("v_add_u32", "v9", s(sT0), "v9")); A(valu("v_lshlrev_b32", "v9", "10", "v9")); A(valu("v_add_u32", "v9", "128", "v9"))
    A(salu("s_and_b32", s(sT0), s(sB), "3")); A(salu("s_lshl_b32", s(sT0), s(sT0), "5")); A(valu("v_add_u32", "v8", s(sT0), "v8"))
    A(valu("v_lshrrev_b32", "v10", "1", "v8")); A(valu("v_lshlrev_b32", "v10", "13", "v10")); A(valu("v_and_b32", "v8", "1", "v8")); A(valu("v_lshl_add_u32", "v8", "v8", "7", "v10"))
    A(valu("v_cndmask_b32", "v8", "v9", "v8", "vcc"))
    A(valu("v_lshrrev_b32", "v9", "5", L)); A(valu("v_mul_lo_u32", "v9", s(sTs), "v9")); A(valu("v_add_u32", v(vT + 2), "v8", "v9"))
    A(salu("s_lshr_b32", s(sT0), "s2", "3")); A(salu("s_lshl_b32", s(sT0), s(sT0), "15")); A(salu("s_lshr_b32", s(sT1), s(sH), "3")); A(salu("s_lshl_b32", s(sT1), s(sT1), "20"))
    A(salu("s_add_u32", s(sT0), s(sT0), s(sT1))); A(valu("v_lshlrev_b32", v(vT + 3), "7", L)); A(valu("v_add_u32", v(vT + 3), s(sT0), v(vT + 3)))
    return o
def touch_setup1b():
    o = []; A = o.append
    A(salu("s_bitcmp1_b32", None, s(sW), "0", scc_w=True))
    for k in range(3): A(salu("s_cselect_b32", s(STC + k), s(SWQ + k), s(SX + k)))
    A(salu("s_mov_b32", s(STC + 3), "0x20000"))
    A(salu("s_cmp_ge_u32", None, s(sW), "2")); A(salu("s_cselect_b32", s(STC + 2), "0", s(STC + 2)))
    return o
def touch_setup3():
    o = []; A = o.append
    A(salu("s_lshr_b32", s(54), "s2", "3")); A(salu("s_lshl_b32", s(54), s(54), "2")); A(salu("s_add_u32", s(54), s(54), s(sW))); A(salu("s_lshl_b32", s(54), s(54), "13"))
    A(salu("s_lshl_b32", s(55), s(s3HG), "20")); A(salu("s_add_u32", s(54), s(54), s(55)))
    A(valu("v_lshlrev_b32", "v230", "7", v(vLane))); A(valu("v_add_u32", "v230", s(54), "v230"))
    return o
def touch_setup4():
    return [valu("v_lshrrev_b32", "v230", "5", v(vLane)), valu("v_lshlrev_b32", "v230", "13", "v230"), valu("v_and_b32", "v229", "31", v(vLane)), valu("v_lshl_add_u32", "v230", "v229", "7", "v230")]
def touch_setup2():
    o = []; A = o.append
    A(salu("s_lshl_b32", s(54), s(sB), "21")); A(salu("s_lshl_b32", s(55), s(sH), "15")); A(salu("s_add_u32", s(54), s(54), s(55)))
    o += srd(SX, sWS, sWS + 1, 54, 0, str(1048576 + 32768))
    if cfg.wroll:
        assert cfg.dV == 3
        A(salu("s_lshr_b32", s(54), "s2", "3")); A(salu("s_lshl_b32", s(54), s(54), "15")); A(salu("s_lshl_b32", s(55), s(s3HG), "20")); A(salu("s_add_u32", s(54), s(54), s(55)))
        o += srd(STC2, 56, 57, 54, 0, "32768")
    A(salu("s_lshl_b32", s(54), s(s3RP), "20")); A(valu("v_lshlrev_b32", v(vT + 1), "7", v(vLane))); A(valu("v_add_u32", v(vT + 1), s(54), v(vT + 1)))
    A(valu("v_xor_b32", v(vT), "0x100000", v(vT + 1)))
    A(valu("v_add_u32", v(vT + 2), "0x2000", v(vT))); A(valu("v_add_u32", v(vT + 3), "0x2000", v(vT + 1)))
    return o
def p3_wdma(u):
    st = "dma"
    o = [salu("s_add_u32", s(s3U), s(s3ROT), str(u), stream=st), salu("s_and_b32", s(s3U), s(s3U), "15", stream=st), salu("s_lshl_b32", s(s3U), s(s3U), "16", stream=st),
         salu("s_add_u32", "m0", s(sG), str(WU[u % NW_] * UNIT), stream=st)]
    for m in range(4): o.append(dma(v(v3Wd + m), S3W, "0" if cfg.now else s(s3U), m * PIECE, cfg.k2_wflags, grp=f"w{u}", stream=st))
    return o
sXo3 = 48; sXs = 49
OWN = 0
def p3_oload(u, nq):
    st = "dma"
    o = [salu("s_add_u32", s(s3T), s(s3ROT), str(u), stream=st), salu("s_and_b32", s(s3T), s(s3T), "15", stream=st), salu("s_lshl_b32", s(s3T), s(s3T), "14", stream=st)]
    for sg in range(2):
        for a in range(nq): o.append(bload("a", oset(u, sg, a), v(v3Or + sg), S3O, "0" if cfg.noo else s(s3T), a * 1024, cfg.o3flags, grp=f"o{u}", stream=st))
    return o
def p3_reads(u):
    p = u & 1; o = []; sl = WU[u % NW_]
    for tau in range(8):
        for sg in range(2):
            for z in range(2):
                o.append(ds_tr("a", wset3(p, sg, tau) + 2 * z, v(v3Wr + sl // 3), (sl % 3) * UNIT + z * 8 * PIECE + sg * 512 + 32 * tau, stream="rd"))
    return o
def p3_setup2(L):
    o = []; A = o.append
    A(salu("s_lshl_b32", s(sT0), s(sB), "1")); A(salu("s_add_u32", s(sT0), s(sT0), s(s3RP)))
    A(salu("s_lshl_b32", s(sT1), s(sT0), "20")); A(salu("s_lshl_b32", s(sT2), s(s3HG), "18")); A(salu("s_add_u32", s(sT1), s(sT1), s(sT2))); o += srd(S3O, sWS, sWS + 1, sT1, 0, "262144")
    A(salu("s_lshl_b32", s(sT1), s(sT0), "2")); A(salu("s_add_u32", s(sT1), s(sT1), s(s3CQ))); A(salu("s_lshl_b32", s(sT1), s(sT1), "18")); A(salu("s_add_u32", s(sT1), s(sT1), hex(XOFF)))
    o += srd(S3X, sWS, sWS + 1, sT1, 0, "262144")
    A(salu("s_lshl_b32", s(sT1), s(s3RP), "2")); A(salu("s_add_u32", s(sT1), s(sT1), s(s3HG))); A(salu("s_lshl_b32", s(sT1), s(sT1), "15"))
    A(salu("s_lshl_b32", s(sT2), s(s3CQ), "6" if cfg.wil else "8")); A(salu("s_add_u32", s(sT1), s(sT1), s(sT2)))
    A(salu("s_mul_i32", s(sT0), s(sB), "245760")); A(salu("s_add_u32", s(sT0), s(sT0), s(sT1))); A(salu("s_sub_u32", s(sT1), "245760", s(sT1)))
    o += srd(S3Out, 58, 59, sT0, 0, s(sT1))
    A(salu("s_lshl_b32", s(sXo3), s(sW), "12"))
    A(valu("v_lshlrev_b32", v(v3L16), "4", L))
    A(salu("s_lshl_b32", s(sT0), s(sW), "11")); A(valu("v_add_u32", v(v3Or), s(sT0), v(v3L16))); A(valu("v_add_u32", v(v3Or + 1), "0x2000", v(v3Or)))
    A(valu("v_subrev_u32", v(v3Wr), str(UNIT), v(vVrd0))); A(valu("v_add_u32", v(v3Wr + 1), str(3 * UNIT), v(v3Wr))); A(valu("v_add_u32", v(v3Wr + 2), str(6 * UNIT), v(v3Wr)))
    A(valu("v_and_b32", "v97", "15", L)); A(valu("v_lshrrev_b32", "v98", "4", L))
    if cfg.xbf:
        A(valu("v_add_u32", v(v3Rr), s(sXo3), v(v3L16))); A(salu("s_lshl_b32", s(sT0), s(sW), "11")); A(valu("v_add_u32", v(v3Rr + 9), s(sT0), v(v3L16)))
    else:
        A(valu("v_lshlrev_b32", "v101", "9", "v98")); A(valu("v_lshl_add_u32", "v101", "v97", "4", "v101")); A(valu("v_add_u32", v(v3Rr), s(sXo3), "v101"))
        A(valu("v_add_u32", v(v3L16 + 8), "0x2000", v(v3L16)))
    for k in range(1, 4):
        A(salu("s_add_u32", s(sT0), s(s3HG), str(k))); A(salu("s_and_b32", s(sT0), s(sT0), "3")); A(salu("s_lshl_b32", s(sT1), s(s3HG), "2")); A(salu("s_add_u32", s(sT0), s(sT0), s(sT1)))
        A(salu("s_lshl_b32", s(sXs + k - 1), s(sT0), "14"))
    A(valu("v_and_b32", "v101", "3", L)); A(valu("v_max_u32", "v101", "1", "v101")); A(valu("v_add_u32", "v101", s(s3HG), "v101")); A(valu("v_and_b32", "v101", "3", "v101"))
    A(salu("s_lshl_b32", s(sT0), s(s3HG), "7")); A(salu("s_add_u32", s(sT0), s(sT0), s(sF2))); A(valu("v_lshlrev_b32", "v101", "2", "v101")); A(valu("v_add_u32", v(vPl + 2), s(sT0), "v101"))
    A(salu("s_lshr_b32", s(sT0), s(sW), "1")); A(salu("s_lshl_b32", s(sT0), s(sT0), "14")); A(salu("s_and_b32", s(sT1), s(sW), "1")); A(salu("s_lshl_b32", s(sT1), s(sT1), "9" if cfg.wil else "7")); A(salu("s_add_u32", s(sT0), s(sT0), s(sT1)))
    A(valu("v_lshlrev_b32", "v101", "10", "v97")); A(valu("v_lshl_add_u32", "v101", "v98", "3" if cfg.xbf else "4", "v101")); A(valu("v_add_u32", v(v3St), s(sT0), "v101"))
    return o
def poll(lab, base, n):
    o = []; A = o.append
    A(valu("v_lshlrev_b32", "v96", "2", v(vLane))); A(valu("v_add_u32", "v96", s(base), "v96")); A(salu("s_mov_b32", s(sT1), "0"))
    A(raw(f"s_mov_b64 exec, {(1 << n) - 1}", "salu"))
    A(label(lab))
    A(raw(f"global_load_dword v97, v96, s[{sWS}:{sWS+1}] sc1")); A(raw("s_waitcnt vmcnt(0)")); A(raw("v_cmp_ne_u32 vcc, 1, v97"))
    A(raw(f"s_add_u32 s{sT1}, s{sT1}, 1")); A(raw(f"s_cbranch_vccz {lab}_ok"))
    A(raw("s_sleep 1")); A(raw(f"s_cmp_lt_u32 s{sT1}, 0x200000")); A(raw(f"s_cbranch_scc1 {lab}"))
    A(label(f"{lab}_ok")); A(raw("s_mov_b64 exec, -1", "salu"))
    return o
def p3_front(V):
    L = v(vLane); o = []; A = o.append
    A(label("L_p3")); o += p3_setup2(L)
    A(label("L_p3_r")); A(salu("s_cmp_lg_u32", None, s(sRDY), "0")); A(raw("s_cbranch_scc1 L_p3_rok", "branch", rd=["scc"]))
    for x in group_load(): x.grp = None; x.k = "other" if x.k == "vmem" else x.k; A(x)
    A(raw("s_waitcnt vmcnt(0)")); o += group_eval(); A(raw("s_sleep 8")); A(raw("s_branch L_p3_r", "branch"))
    A(label("L_p3_rok"))
    A(salu("s_and_b32", s(sT0), s(sH), "7")); A(salu("s_lshl_b32", s(sT0), s(sT0), "2")); A(salu("s_add_u32", s(sT0), s(sT0), s(sF1)))
    A(valu("v_mov_b32", "v96", s(sT0))); A(valu("v_mov_b32", "v97", "1"))
    A(valu("v_and_b32", v(vPl), "7", L)); A(valu("v_lshlrev_b32", v(vPl), "2", v(vPl))); A(valu("v_add_u32", v(vPl), s(sF1), v(vPl)))
    A(waitvm(0)); A(barrier()); o += stamp(6)
    A(salu("s_cmp_lg_u32", None, s(sW), "0")); A(raw("s_cbranch_scc1 L_p3_a", "branch", rd=["scc"]))
    A(salu("s_cmp_eq_u32", None, s(sUNI), "1")); A(raw("s_cbranch_scc1 L_p3_u", "branch", rd=["scc"]))
    A(raw("buffer_wbl2 sc1")); A(raw("s_waitcnt vmcnt(0)"))
    o += one_lane(raw(f"global_store_dword v96, v97, s[{sWS}:{sWS+1}] sc1"))
    A(raw("s_branch L_p3_a", "branch"))
    A(label("L_p3_u"))
    o += one_lane(raw(f"global_store_dword v96, v97, s[{sWS}:{sWS+1}]"))
    A(label("L_p3_a"))
    A(salu("s_lshl_b32", s(sT0), s(s3RP), "2")); A(salu("s_add_u32", s(sT0), s(sT0), s(sW)))
    A(salu("s_cmp_eq_u32", None, s(sT0), "7")); A(raw("s_cbranch_scc1 L_g1", "branch", rd=["scc"]))
    V.finish(o, sched=False)
vPl = 112
def p3_gemm(nq, name, V0):
    V = Variant(nq, name); V.vm = list(V0.vm); V.trace = list(V0.trace); V.pend = list(V0.pend)
    pollld = lambda: I(f"global_load_dword v{vPl+1}, v{vPl}, s[{sWS}:{sWS+1}] sc1", "vmem", rd=[v(vPl)], wr=[v(vPl + 1)], meta="load", grp="poll", stream="dma")
    r0 = p3_reads(0)
    V.finish([label(f"L_{name}")] + p3_oload(0, nq) + r0[:16] + p3_oload(1, nq) + stamp(7) + stamp(1, "g"), sched=False)
    n = 16 * nq
    no = 2; nw = NW_
    o = r0[16:]
    for k, x in enumerate(o): x.tgt = -1 + k // 2
    prev = None; G = 0; wq = []
    for c in range(16):
        p = c & 1
        m = [mfma("v", a * 32 + 4 * tau, "a", wset3(p, sg, tau), "a", oset(c, sg, a), "0" if (c == 0 and sg == 0) else None) for tau in range(8) for a in range(nq) for sg in range(2)]
        w = wvm({f"o{c}", f"w{c+1}"}, tgt=G - 1, stream=["bar", "dma"])
        if prev: w.after = [prev[-2]]
        m[0].after = [w]
        o += [w]
        b = None
        if 0 < c < 15:
            b = barrier(tgt=G, stream=["bar", "dma"])
            if prev: b.after = [prev[-1]]
            o += [b]
        o += m
        if c < 15:
            d = []
            if c == 0: d += p3_wdma(7) + [pollld()] + p3_wdma(8)
            else:
                for rep in range(3 if c == 1 else 2):
                    if no < 16 and no <= c + cfg.odepth: d += p3_oload(no, nq); no += 1
                k = 0
                while c >= 2 and k < cfg.wrate and (wq or (nw < 16 and nw <= c + NW_ - 1)):
                    if not wq: wq = p3_wdma(nw); nw += 1
                    elif k == 0: d.append(salu("s_add_u32", "m0", s(sG), str(WU[(nw - 1) % NW_] * UNIT), stream="dma"))
                    while wq[0].k != "vmem": d.append(wq.pop(0))
                    d.append(wq.pop(0)); k += 1
            rd = p3_reads(c + 1)
            if b: rd[0].after = [b]
            vm = [x for x in d if x.k == "vmem"]
            vg = [int((k + 0.5) * n / len(vm)) for k in range(len(vm))] if vm else []
            if c == 1: vg = [1 + k * (n - 2) // len(vm) for k in range(len(vm))]
            for k, x in enumerate(vm): x.tgt = G + vg[k]
            lo = 8 * nq // 2 if c == 0 else 1
            free = [g for g in range(lo, n) if g not in vg] if (len(vg) < n - 4 and not cfg.gdl) else list(range(lo, n))
            for k, x in enumerate(rd): x.tgt = G + free[k * len(free) // 32]
            nxt = G + n
            for x in reversed(d):
                if x.k == "vmem": nxt = x.tgt
                else: nxt = x.tgt = max(G, nxt - 1)
            o += rd + d
        if c in (0, 1, 3, 7, 11): o += stampf(2 + (0, 1, 3, 7, 11).index(c), "g", m[-1], G + n - 1)
        prev = m; G += n
        if c == 0:
            V.finish(o, strict=True)
            q = [wvm({"poll"}), label(f"L_{name}_pl"), valu("v_cmp_ne_u32", "vcc", "1", v(vPl + 1)), salu("s_mov_b32", s(sT1), "0"), raw(f"s_cbranch_vccz L_{name}_pok", "branch"),
                 label(f"L_{name}_pl2"), raw("s_sleep 1"), raw(pollld().t), raw("s_waitcnt vmcnt(0)"), raw(f"v_cmp_ne_u32 vcc, 1, v{vPl+1}"), raw(f"s_add_u32 s{sT1}, s{sT1}, 1"),
                 raw(f"s_cbranch_vccz L_{name}_pok"), raw(f"s_cmp_lt_u32 s{sT1}, 0x200000"), raw(f"s_cbranch_scc1 L_{name}_pl2"),
                 label(f"L_{name}_pok"), salu("s_cmp_eq_u32", None, s(sUNI), "1"), raw(f"s_cbranch_scc1 L_{name}_pgo", "branch"),
                 raw("buffer_inv sc1"), raw("s_waitcnt vmcnt(0)"), label(f"L_{name}_pgo")]
            V.finish(q, sched=False)
            o = []; prev = None; G = 0
        if c == 14:
            V.finish(o, strict=True)
            o = []; prev = None; G = 0
    last = o
    V.finish([salu("s_lshl_b32", s(sT0), s(sW), "2"), salu("s_add_u32", s(sT0), s(sT0), s(s3HG)), salu("s_lshl_b32", s(sT0), s(sT0), "14"), salu("s_add_u32", s(sT2), s(sT0), "4096"),
              salu("s_cmp_eq_u32", None, s(sW), s(s3HG)), raw(f"s_cbranch_scc1 L_{name}_own", "branch", rd=["scc"])], sched=False)
    save = (list(V.vm), list(V.trace), list(V.pend))
    import copy
    def clone(seq):
        mp = {x.uid: I(x.t, x.k, x.rd, x.wr, x.crd, x.tgt, x.grp, x.need, x.stream, x.meta) for x in seq}
        for x in seq: mp[x.uid].after = [mp[a_.uid] for a_ in x.after]
        return [mp[x.uid] for x in seq]
    o = clone(last)
    for tau in range(8):
        for a in range(nq):
            t = 2 * nq * tau + 2 * a + 6; r = a * 32 + 4 * tau
            if cfg.xbf:
                d = 64 + a * 16 + 2 * tau
                o += [valu("v_cvt_pk_bf16_f32", v(d), v(r), v(r + 1), tgt=t), valu("v_cvt_pk_bf16_f32", v(d + 1), v(r + 2), v(r + 3), tgt=t)]
                if tau & 1: o.append(bstore("v", d - 2, v(v3L16), S3X, s(sT2 if a else sT0), 1024 * (tau >> 1), cfg.xsc, tgt=t + 1, stream="st"))
            else:
                o.append(bstore("v", r, v(v3L16 + (8 if a else 0)), S3X, s(sT2 if tau >> 2 else sT0), 1024 * (tau & 3), cfg.xsc, tgt=t, stream="st"))
    V.finish(o, strict=True)
    V.finish(stamp(8) + stamp(7, "g") + [barrier(), raw("s_branch L_fin_s", "branch"), label(f"L_{name}_own")], sched=False)
    V.vm, tr, V.pend = list(save[0]), V.trace, list(save[2]); V.trace = list(save[1])
    o = clone(last)
    for tau in range(8):
        for a in range(nq): o.append(ds_w128(v(v3L16), "v", a * 32 + 4 * tau, OWN + (a * 8 + tau) * 1024, tgt=2 * nq * tau + 2 * a + 6, stream="rd"))
    V.finish(o, strict=True)
    V.finish(stamp(8) + stamp(7, "g") + [waitlg(0), barrier(), raw("s_branch L_fin", "branch")], sched=False)
    V.trace2 = tr
    return V
def p3_final():
    V = Variant(4, "fin"); o = []; A = o.append
    A(label("L_fin_s"))
    A(salu("s_lshl_b32", s(sT0), s(sW), "5")); A(salu("s_add_u32", s(sT0), s(sT0), s(s3HG))); A(salu("s_lshl_b32", s(sT0), s(sT0), "2")); A(salu("s_add_u32", s(sT0), s(sT0), s(sF2)))
    A(valu("v_mov_b32", "v96", s(sT0))); A(valu("v_mov_b32", "v97", "1")); A(raw("s_waitcnt vmcnt(0)"))
    o += one_lane(raw(f"global_store_dword v96, v97, s[{sWS}:{sWS+1}] sc1"))
    A(label("L_fin")); o += stamp(8, "g")
    for q in range(4): A(ds_b128("v", 4 * q, v(v3Rr), OWN + (q * 1024 if cfg.xbf else (q >> 1) * 2048 + (q & 1) * 256)))
    A(salu("s_mov_b32", s(sT1), "0"))
    A(label("L_fin_p"))
    A(raw(f"global_load_dword v97, v{vPl+2}, s[{sWS}:{sWS+1}] sc1")); A(raw("s_waitcnt vmcnt(0)")); A(raw("v_cmp_ne_u32 vcc, 1, v97"))
    A(raw(f"s_add_u32 s{sT1}, s{sT1}, 1")); A(raw("s_cbranch_vccz L_fin_ok")); A(raw("s_sleep 1")); A(raw(f"s_cmp_lt_u32 s{sT1}, 0x200000")); A(raw("s_cbranch_scc1 L_fin_p"))
    A(label("L_fin_ok"))
    for k in range(1, 4):
        if cfg.xbf:
            for q in range(2): A(bload("v", 16 + 8 * k + 4 * q, v(v3Rr + 9), S3X, s(sXs + k - 1), q * 1024, "sc1", grp=f"x{k}"))
        else:
            for q in range(4): A(bload("v", 16 * k + 4 * q, v(v3Rr), S3X, s(sXs + k - 1), (q >> 1) * 2048 + (q & 1) * 256, "sc1", grp=f"x{k}"))
    for k in range(1, 4):
        A(wvm({f"x{k}"}))
        if cfg.xbf:
            for r in range(8):
                A(valu("v_lshlrev_b32", v(64 + r), "16", v(16 + 8 * k + r))); A(valu("v_and_b32", v(72 + r), "0xffff0000", v(16 + 8 * k + r)))
            for r in range(8):
                A(valu("v_add_f32", v(2 * r), v(2 * r), v(64 + r))); A(valu("v_add_f32", v(2 * r + 1), v(2 * r + 1), v(72 + r)))
        else:
            for r in range(16): A(valu("v_add_f32", v(r), v(r), v(16 * k + r)))
    for r in range(8): A(valu("v_cvt_pk_bf16_f32", v(16 + r), v(2 * r), v(2 * r + 1)))
    if cfg.xbf:
        for q in range(4): A(bstore("v", 16 + 2 * q, v(v3St), S3Out, "0", (256 * (q >> 1) + 32 * (q & 1)) if cfg.wil else 32 * q, cfg.outflags, n=2))
    else:
        for sg in range(2): A(bstore("v", 16 + 4 * sg, v(v3St), S3Out, "0", (256 if cfg.wil else 64) * sg, cfg.outflags))
    o += stamp(9) + stamp(9, "g") + dump_stamps(10, sWS, STAMP_OFF, v(vLane), "L_k1_done") + [raw("s_endpgm")]
    V.finish(o, sched=False)
    return V

HEAD = """; standalone__mha_block_cached__near_ridge: out = softmax((x wq) K^T / sqrt(128)) V wo
"""
def kd(name, vg, acc_off):
    return f""".amdhsa_kernel {name}
  .amdhsa_next_free_vgpr {vg}
  .amdhsa_next_free_sgpr 102
  .amdhsa_accum_offset {acc_off}
  .amdhsa_group_segment_fixed_size 0
  .amdhsa_kernarg_size 64
  .amdhsa_user_sgpr_count 2
  .amdhsa_user_sgpr_kernarg_segment_ptr 1
  .amdhsa_system_sgpr_workgroup_id_x 1
.end_amdhsa_kernel
"""
def check(pre, V):
    tr = pre + V.trace
    for nm, f in (("hazard", check_hazards), ("lgkm", check_lgkm), ("vm", check_vm)):
        bad = f(tr)
        if bad:
            print(V.name, nm, len(bad), bad[:6], file=sys.stderr); raise SystemExit(1)
def build():
    KN = "standalone__mha_block_cached__near_ridge_kernel"
    out = HEAD
    out += f"; @launch grid=(256,1,1) block=(256,1,1) lds={LDS1 + 64 + GRP}\n"
    out += '.amdgcn_target "amdgcn-amd-amdhsa--gfx950"\n.text\n'
    out += f".globl {KN}\n.p2align 8\n.type {KN},@function\n{KN}:\n"
    pre = fix_hazards(k1_setup() + [salu("s_cmp_eq_u32", None, s(sW), "3"), raw("s_cbranch_scc1 L_w3", "branch")])
    import core
    def text(seq, _t=core.text):
        if not cfg.align: return _t(seq)
        r = ""; blk = []
        for c in seq + [None]:
            if c is None or (c.k == "label" and blk):
                a, _, miss = align8(blk); r += _t(a); blk = []
                if c is not None: r += "  .p2align 3, , 4\n" if False else "  .p2alignl 3, 0xbf800000\n"
            if c is not None: blk.append(c)
        return r
    out += text(pre)
    for nq, name in ((4, "w012"), (3, "w3")):
        V = k1_variant(nq, name, pre); check(pre, V)
        print(name, "loop (mfma, est cycles):", V.loop_stats, "total est", gap_stats(V.trace), file=sys.stderr)
        out += text(V.static)
    F = Variant(4, "p3"); F.vm = [x for x in V.vm[:V.npre] if x.grp and x.grp[0] == "w"]
    p3_front(F); check([], F)
    out += text(F.static)
    for nq, name in ((2, "g2"), (1, "g1")):
        W = p3_gemm(nq, name, F); check([], W); W.trace = W.trace2; check([], W)
        print(name, "total est", gap_stats(W.static), file=sys.stderr)
        out += text(W.static)
    W = p3_final(); check([], W); out += text(W.static)
    out += "L_k1_done:\n  s_endpgm\n"

    out += '.section .rodata,"a"\n.p2align 6\n' + kd(KN, 512, 256)
    return out
if __name__ == "__main__":
    path = sys.argv[1]
    for kv in sys.argv[2:]:
        k, val = kv.split("=")
        cur = getattr(cfg, k)
        setattr(cfg, k, (val == "1") if isinstance(cur, bool) else tuple(int(z) for z in val.split(",")) if isinstance(cur, tuple) else int(val, 0) if isinstance(cur, int) else type(cur)(val.replace("+", " ")))
    EAGER[0] = cfg.eager
    txt = build()
    if cfg.cpf:
        import subprocess
        open("_p1.s", "w").write(txt.replace("CODE_SHARE", "0x1000").replace("CODE_LAST", "0x10000"))
        subprocess.check_call(["clang", "-x", "assembler", "-target", "amdgcn-amd-amdhsa", "-mcpu=gfx950", "-c", "_p1.s", "-o", "_p1.o"])
        sym = {l.split()[7]: int(l.split()[1], 16) for l in subprocess.check_output(["llvm-readelf", "-s", "_p1.o"], text=True).splitlines() if len(l.split()) == 8 and l.split()[7].startswith("L_")}
        last = sym["L_k1_done"] - sym["L_pc"]; share = ((last - 4096) // 32 + 127) & ~127
        assert share <= 4096
        txt = txt.replace("CODE_SHARE", hex(share)).replace("CODE_LAST", hex(last))
    open(path, "w").write(txt)
```

```python
import sys, math, struct
from core import *

PIECE = 1056; GRP = 4 * PIECE; UNIT = 16 * PIECE; SLOT = 2 * UNIT
X_BASE = 3 * UNIT; W_BASE = X_BASE + 2 * SLOT; LDS1 = W_BASE + 2 * UNIT
VOTE = LDS1
QSCALE = struct.unpack("<I", struct.pack("<f", math.log2(math.e) / math.sqrt(128.0)))[0]
LIMIT = 0x4b800000

class Cfg:
    stamps = False
    kvflags = "nt"
    xflags = ""
    wflags = ""
    oflags = ""
    k2_oflags = ""
    k2_wflags = ""
    fallback = True
    rot = 4
    xtouch = False
    g7 = 10
    order = 0
    nokv1 = False
    cpf = 1
    kv1 = True
    mbudget = 16
    fused = True
    pre = 2
    xsc = 'sc1'
    xbf = True
    wrate = 3
    outflags = ''
    touch = True
    pre2 = 3
    gshift = 1
    odepth = 4
    tbudget = 24
    noo = False
    now = False
    o3flags = ''
    nomf3 = False
    forcemix = False
    kvpace = True
    sset = 'main'
    nomfma1 = False
    nord1 = False
    nodma1 = False
    w3dma = True
    kswap = True
    dK = 5
    frac = 1.0
    fracK = 1.0
    dbgst = False
    its = False
    longloop = 0
    kick = 0
    align = 0
    slow = 0
    wtouch = False
    wil = False
    wlate = False
    wroll = 0
    gdl = False
    gbar2 = True
    slowt = False
    c3 = False
    p1w1 = False
    kvshift = 0
    msum = 2
    cap3 = 0
    otm = 0
    kve = -8
    dV = 4
    skipk = 0
    stretch = False
    vskip = (2, 3)
    kskip = 0x492
    vpos = 0.03
    kgb = True
    vgb = True
    otd = '233'
    otw = True
    ppoll = 0
    psleep = 4
    cap0 = 0
    backlog = 3
    mix2 = 1
    pack = True
    eager = 16
    extra = 0
    kdt = 2.5
    kgap = 11
    trot = False
    tsel = '0123'
    pwarm = True
    tflags = ''
    tfrom = 13
    k2map = 1
cfg = Cfg()

sW = 3; SX, SWQ, SK, SV, SO = 8, 12, 16, 20, 24
sB, sH, sROT = 28, 29, 30
sXb, sG = 31, 32
sT0, sT1, sT2 = 33, 34, 35
sXo, sXo2, sWo = 36, 37, 38
sKo, sVo = 46, 47
sS1, sS2, sS3 = 48, 49, 50
sV = (40, 41, 42, 43, 7)
def vslot(tile):
    if cfg.dV == 3: return (tile & 3) * SLOT
    return (0, SLOT, 2 * SLOT, 3 * SLOT, 4 * SLOT - UNIT)[tile % 5]
sStep = 39
sT = 51; sPASS = 52; sC = 53; sWS = 44; sS0 = 98
vKrd, vVrd, vKrd0, vVrd0, vXrd, vWrd = 232, 233, 234, 235, 236, 237
vOst = 238; vLane = 239; vT = 220
vKV, vX, vWq = 240, 244, 248
ACC = 0; QF = 128
S_ = (0, 32); P_ = (64, 80); NEGM = 192; LSUM = 208; MTRUE = 212; TMP = 216
KF, VF = 192, 224
def acc(a, tau): return ACC + a * 32 + tau * 4
def qf(a, s): return QF + (a * 4 + s) * 4
def wset(p, s, tau): return p * 96 + (s * 8 + tau) * 4
def xset(p, s, a): return p * 96 + 64 + (s * 4 + a) * 4
def oacc(a, t): return a * 32 + t * 4
v = lambda n: f"v{n}"
s = lambda n: f"s{n}"

STAMP_BASE = 60
def stamp(i, sset="main"):
    if not cfg.stamps or (i > 0 and sset != cfg.sset and sset != "k2"): return []
    return [raw(f"s_memrealtime s[{STAMP_BASE+4*i}:{STAMP_BASE+4*i+1}]"), raw(f"s_memtime s[{STAMP_BASE+4*i+2}:{STAMP_BASE+4*i+3}]"), waitlg(0)]
def GOFF(): return " offset:128" if cfg.dbgst else ""
def stampf(i, sset, after, tgt):
    if not cfg.stamps or sset != cfg.sset: return []
    o = [I(f"s_memrealtime s[{STAMP_BASE+4*i}:{STAMP_BASE+4*i+1}]", "salu", tgt=tgt), I(f"s_memtime s[{STAMP_BASE+4*i+2}:{STAMP_BASE+4*i+3}]", "salu", tgt=tgt)]
    for x in o: x.after = [after]
    return o
def dump_stamps(n, wsreg, off, lane, lab):
    if not cfg.stamps: return []
    o = [raw("s_waitcnt vmcnt(0) lgkmcnt(0)")]
    if cfg.dbgst:
        o += [raw("s_cmp_lg_u32 s2, 100"), raw(f"s_cbranch_scc1 {lab}"), raw(f"s_cmp_lg_u32 s{sW}, 0"), raw(f"s_cbranch_scc1 {lab}"), raw("v_mov_b32 v3, 0"), raw("s_mov_b64 exec, 1")]
        for i in range(1, n):
            o += [raw(f"s_sub_u32 s4, s{STAMP_BASE+4*i}, s{STAMP_BASE}"), raw("v_mov_b32 v4, s4"), raw(f"global_store_dword v3, v4, s[100:101] offset:{4*i}"), raw("s_nop 1")]
        o += [raw(f"s_sub_u32 s4, s{STAMP_BASE+4*n-2}, s{STAMP_BASE+2}"), raw("v_mov_b32 v4, s4"), raw(f"global_store_dword v3, v4, s[100:101] offset:0")]
        return o
    o += [raw(f"s_lshl_b32 s4, s2, 10"), raw(f"s_lshl_b32 s5, s{sW}, 8"), raw("s_add_u32 s4, s4, s5"), raw(f"s_add_u32 s4, s4, {off}"),
          raw(f"s_add_u32 s4, s{wsreg}, s4"), raw(f"s_addc_u32 s5, s{wsreg+1}, 0"),
          raw(f"v_cmp_eq_u32 vcc, 0, {lane}"), raw("s_and_saveexec_b64 s[6:7], vcc"), raw(f"s_cbranch_execz {lab}"), raw("v_mov_b32 v3, 0")]
    for i in range(n):
        o += [raw(f"v_mov_b32 v{4+j}, s{STAMP_BASE+4*i+j}") for j in range(4)]
        o += [raw(f"global_store_dwordx4 v3, v[4:7], s[4:5] offset:{16*i}"), raw("s_nop 1")]
    return o
STAMP_OFF = 0x2000000

def srd(reg, lo, hi, add, sub, nrec):
    o = [salu("s_add_u32", s(reg), s(lo), s(add)), salu("s_addc_u32", s(reg + 1), s(hi), "0")]
    if sub: o += [salu("s_sub_u32", s(reg), s(reg), str(sub)), salu("s_subb_u32", s(reg + 1), s(reg + 1), "0", scc_r=True, scc_w=True)]
    o += [salu("s_mov_b32", s(reg + 2), nrec), salu("s_mov_b32", s(reg + 3), "0x20000")]
    return o

def k1_setup():
    o = []
    A = o.append
    A(raw("s_cmp_ge_u32 s2, 256")); A(raw("s_cbranch_scc1 L_k1_done"))
    o += stamp(0)
    A(raw("s_load_dwordx4 s[4:7], s[0:1], 0"))
    A(raw("s_load_dwordx4 s[40:43], s[0:1], 16"))
    A(raw(f"s_load_dwordx2 s[{sWS}:{sWS+1}], s[0:1], 56"))
    A(raw("s_load_dwordx4 s[56:59], s[0:1], 32"))
    A(raw("s_load_dwordx2 s[100:101], s[0:1], 48"))
    if cfg.cpf:
        A(raw("s_getpc_b64 s[54:55]")); A(label("L_pc"))
        A(raw("v_cmp_gt_u32 vcc, 64, v0")); A(raw("s_and_saveexec_b64 s[34:35], vcc")); A(raw("s_cbranch_execz L_cpf"))
        A(raw("s_lshr_b32 s33, s2, 3")); A(raw("s_mul_i32 s33, s33, CODE_SHARE")); A(raw("v_lshrrev_b32 v2, 5, v0")); A(raw("v_mul_u32_u24 v2, s33, v2"))
        A(raw("v_lshl_add_u32 v1, v0, 7, v2")); A(raw("v_min_u32 v1, CODE_LAST, v1")); A(raw("global_load_dword v231, v1, s[54:55]"))
        A(label("L_cpf")); A(raw("s_mov_b64 exec, s[34:35]"))
    A(valu("v_lshrrev_b32", "v1", "6", "v0")); A(valu("v_and_b32", v(vLane), "63", "v0"))
    A(valu("v_readfirstlane_b32", s(sW), "v1"))
    A(salu("s_and_b32", s(sT0), "s2", "7")); A(salu("s_lshr_b32", s(sT1), "s2", "3"))
    A(salu("s_and_b32", s(sB), s(sT0), "1")); A(salu("s_lshl_b32", s(sB), s(sB), "2")); A(salu("s_and_b32", s(sT2), s(sT1), "3")); A(salu("s_add_u32", s(sB), s(sB), s(sT2)))
    A(salu("s_lshr_b32", s(sH), s(sT0), "1")); A(salu("s_lshl_b32", s(sH), s(sH), "3")); A(salu("s_lshr_b32", s(sT1), s(sT1), "2")); A(salu("s_add_u32", s(sH), s(sH), s(sT1)))
    A(salu("s_lshl_b32", s(sT2), s(sT2), "1")); A(salu("s_add_u32", s(sROT), s(sH), s(sT2)))
    if cfg.rot == 8: A(salu("s_and_b32", s(sROT), s(sROT), "7"))
    elif cfg.rot == 1: A(salu("s_mov_b32", s(sROT), "0"))
    else:
        A(salu("s_lshr_b32", s(sT2), s(sT2), "1")); A(salu("s_add_u32", s(sROT), s(sH), s(sT2)))
        A(salu("s_and_b32", s(sROT), s(sROT), str(cfg.rot - 1))); A(salu("s_mul_i32", s(sROT), s(sROT), str(8 // cfg.rot)))
    if cfg.c3:
        assert cfg.rot == 4
        A(salu("s_cmp_eq_u32", None, s(sROT), "2")); A(salu("s_cselect_b32", s(sStep), "3", "1"))
    A(salu("s_mul_i32", s(sG), s(sW), str(GRP))); A(salu("s_lshl_b32", s(sXb), s(sG), "1")); A(salu("s_add_u32", s(sXb), s(sXb), str(X_BASE)))
    A(salu("s_mov_b32", s(sC), hex(QSCALE))); A(salu("s_mov_b32", s(sPASS), "0"))
    L = v(vLane)
    A(valu("v_and_b32", "v1", "15", L)); A(valu("v_lshrrev_b32", "v2", "4", L))
    A(valu("v_bfe_u32", "v3", L, "2", "2")); A(valu("v_and_b32", "v4", "3", L))
    A(valu("v_lshrrev_b32", "v5", "5", L)); A(valu("v_lshlrev_b32", "v5", "15", "v5"))
    A(valu("v_bfe_u32", "v6", L, "3", "2")); A(valu("v_lshl_add_u32", "v5", "v6", "12", "v5"))
    A(valu("v_and_b32", "v6", "7", L)); A(valu("v_lshl_add_u32", "v5", "v6", "4", "v5"))
    A(salu("s_lshl_b32", s(sT0), s(sW), "16")); A(salu("s_add_u32", s(sT0), s(sT0), "128"))
    A(valu("v_add_u32", v(vX), s(sT0), "v5"))
    for m in range(1, 4): A(valu("v_subrev_u32", v(vX + m), str(32 * m), v(vX)))
    A(salu("s_and_b32", s(sT0), s(sW), "1")); A(salu("s_lshl_b32", s(sT0), s(sT0), "16"))
    A(salu("s_lshr_b32", s(sT1), s(sW), "1")); A(salu("s_lshl_b32", s(sT1), s(sT1), "15")); A(salu("s_add_u32", s(sT0), s(sT0), s(sT1)))
    A(valu("v_lshlrev_b32", "v5", "17", "v2")); A(valu("v_lshl_add_u32", "v5", "v1", "4", "v5"))
    A(valu("v_add_u32", v(vWq), s(sT0), "v5"))
    for m in range(1, 4): A(valu("v_add_u32", v(vWq + m), str(m * (8192 - PIECE)), v(vWq)))
    A(salu("s_lshl_b32", s(sT0), s(sW), "12")); A(salu("s_add_u32", s(sT0), s(sT0), "128"))
    A(valu("v_lshlrev_b32", v(vOst), "4", L)); A(valu("v_add_u32", v(vKV), s(sT0), v(vOst)))
    for m in range(1, 4): A(valu("v_subrev_u32", v(vKV + m), str(32 * m), v(vKV)))
    o += k1_setup2() + (touch_setup1a() if cfg.xtouch or cfg.c3 else [])
    if cfg.slowt:
        A(salu("s_lshr_b32", s(sT0), "s2", "3")); A(salu("s_lshl_b32", s(sT0), s(sT0), "17")); A(salu("s_lshr_b32", s(sT1), s(sH), "3")); A(salu("s_lshl_b32", s(sT1), s(sT1), "11"))
        A(salu("s_add_u32", s(sT0), s(sT0), s(sT1))); A(salu("s_add_u32", s(sT0), s(sT0), "384"))
        A(valu("v_lshlrev_b32", "v8", "13", "v1")); A(valu("v_and_b32", "v9", "1", "v2")); A(valu("v_lshl_add_u32", "v8", "v9", "10", "v8")); A(valu("v_add_u32", "v8", s(sT0), "v8"))
        A(salu("s_and_b32", s(sT0), s(sH), "7")); A(salu("s_mul_i32", s(sT0), s(sT0), "30720")); A(salu("s_mul_i32", s(sT1), s(sB), "245760")); A(salu("s_add_u32", s(sT0), s(sT0), s(sT1))); A(salu("s_add_u32", s(sT0), s(sT0), "384"))
        A(valu("v_min_u32", "v9", "29", L)); A(valu("v_lshlrev_b32", "v9", "10", "v9")); A(valu("v_add_u32", "v9", s(sT0), "v9"))
    A(salu("s_mul_i32", s(sT0), s(sB), "245760")); A(salu("s_lshl_b32", s(sT1), s(sH), "8")); A(salu("s_sub_u32", s(sT2), "0x400000", s(sT1)))
    A(salu("s_cmp_eq_u32", None, s(sW), "1"))
    A(raw("s_waitcnt lgkmcnt(0)", "other"))
    if cfg.slowt:
        A(raw("s_cbranch_scc0 L_st0", "branch")); A(raw("global_load_dword v231, v9, s[4:5]")); A(label("L_st0"))
        A(salu("s_cmp_eq_u32", None, s(sW), "0")); A(raw("s_cbranch_scc0 L_st1", "branch")); A(raw("global_load_dword v231, v8, s[42:43]")); A(label("L_st1"))
    o += stamp(1, "st")
    o += srd(SX, 4, 5, sT0, 128, str(245760 + 128)) + srd(SWQ, 42, 43, sT1, 0, s(sT2))
    rest = []; A = rest.append
    A(salu("s_lshl_b32", s(sT0), s(sB), "5")); A(salu("s_add_u32", s(sT0), s(sT0), s(sH))); A(salu("s_lshl_b32", s(sT0), s(sT0), "18"))
    if cfg.kvshift: A(salu("s_add_u32", s(sT0), s(sT0), str(cfg.kvshift)))
    rest += srd(SK, 6, 7, sT0, 128, str(262144 + 128 - cfg.kvshift)) + srd(SV, 40, 41, sT0, 128, str(262144 + 128 - cfg.kvshift))
    A(salu("s_lshl_b32", s(sT0), s(sB), "21")); A(salu("s_lshr_b32", s(sT1), s(sW), "1")); A(salu("s_lshl_b32", s(sT1), s(sT1), "20")); A(salu("s_add_u32", s(sT0), s(sT0), s(sT1)))
    A(salu("s_lshl_b32", s(sT1), s(sH), "15")); A(salu("s_add_u32", s(sT0), s(sT0), s(sT1)))
    A(salu("s_and_b32", s(sT1), s(sW), "1")); A(salu("s_lshl_b32", s(sT1), s(sT1), "12")); A(salu("s_add_u32", s(sT0), s(sT0), s(sT1)))
    rest += srd(SO, sWS, sWS + 1, sT0, 0, "28672")
    c0 = x_dma(0) + w_dma(0); c1 = x_dma(1) + w_dma(1); t = touch_setup1b() + (xw_touch(3, True) if cfg.c3 else []) if cfg.xtouch or cfg.c3 else []
    kv0 = {-3: [("K", 0, (0, 1, 2, 3))], -4: [("K", 0, (0, 1, 2, 3)), ("V", 0, (0, 1))], -5: [("K", 0, (0, 1, 2, 3)), ("V", 0, (0, 1, 2, 3))], -6: [("K", 0, (0, 1))]}.get(cfg.kve, [])
    kv0 = [x for wh, tl, ms in kv0 for x in kv_dma_static(wh, tl, ms=ms)]
    if cfg.order == 0: o += c0 + stamp(2, "st") + rest + c1 + stamp(3, "st") + t + xw_touch(2) + kv0
    if cfg.order == 1: o += t + xw_touch(0) + c0 + stamp(2, "st") + xw_touch(2) + c1 + stamp(3, "st") + rest
    if cfg.order == 2: o += t + xw_touch(0) + xw_touch(2) + c0 + stamp(2, "st") + c1 + stamp(3, "st") + rest
    if cfg.order == 4: o += c0 + stamp(2, "st") + t + xw_touch(2) + c1 + stamp(3, "st") + rest
    return o

def k1_setup2():
    o = []; A = o.append
    A(salu("s_mov_b32", s(sT0), str(PIECE)))
    A(valu("v_and_b32", "v5", "7", "v1")); A(valu("v_mul_u32_u24", "v5", s(sT0), "v5"))
    A(valu("v_lshrrev_b32", "v6", "3", "v1")); A(valu("v_lshl_add_u32", "v5", "v6", "8", "v5")); A(valu("v_lshl_add_u32", v(vKrd0), "v2", "4", "v5"))
    A(valu("v_mov_b32", v(vKrd), v(vKrd0)))
    A(valu("v_and_b32", "v5", "1", "v2")); A(valu("v_lshl_add_u32", "v5", "v5", "2", "v3")); A(valu("v_mul_u32_u24", "v5", s(sT0), "v5"))
    A(valu("v_lshrrev_b32", "v6", "1", "v2")); A(valu("v_lshl_add_u32", "v5", "v6", "8", "v5")); A(valu("v_lshl_add_u32", "v5", "v4", "3", "v5"))
    A(valu("v_add_u32", v(vVrd0), str(UNIT), "v5")); A(valu("v_mov_b32", v(vVrd), v(vVrd0))); A(valu("v_add_u32", v(vWrd), str(W_BASE), "v5"))
    A(valu("v_mul_u32_u24", "v5", s(sT0), "v4")); A(valu("v_lshl_add_u32", "v5", "v3", "7", "v5")); A(valu("v_lshl_add_u32", "v5", "v2", "4", "v5"))
    A(valu("v_add_u32", v(vXrd), s(sXb), "v5"))
    for a in range(4): A(valu("v_mov_b32", v(MTRUE + a), "0xff800000"))
    A(valu("v_lshrrev_b32", "v5", "1", "v2")); A(valu("v_lshlrev_b32", "v5", "15", "v5")); A(valu("v_and_b32", "v6", "1", "v2")); A(valu("v_lshl_add_u32", "v5", "v6", "13", "v5"))
    if cfg.wil: A(valu("v_lshl_add_u32", "v5", "v3", "8", "v5")); A(valu("v_lshl_add_u32", "v5", "v4", "4", "v5"))
    else: A(valu("v_lshl_add_u32", "v5", "v1", "4", "v5"))
    A(salu("s_lshr_b32", s(sT0), s(sW), "1")); A(salu("s_lshl_b32", s(sT0), s(sT0), "14")); A(salu("s_and_b32", s(sT1), s(sW), "1")); A(salu("s_lshl_b32", s(sT1), s(sT1), "12"))
    A(salu("s_add_u32", s(sT0), s(sT0), s(sT1))); A(valu("v_add_u32", "v5", s(sT0), "v5"))
    for m in range(4): A(valu("v_add_u32", v(v3Wd + m), str(128 - 32 * m), "v5"))
    return o

def x_dma(c, t0=None, dt=1, after=None):
    p = c & 1; o = []; g = f"c{c}"; st = "dma"
    def T(k): return None if t0 is None else int(t0 + k * dt)
    def U(k): return None if t0 is None else int(t0 - 7 + k)
    if cfg.c3: o.append(salu("s_mul_i32", s(sT0), s(sStep), str(c), tgt=U(-1), stream="xa"))
    o.append(salu("s_add_u32", s(sT0), s(sROT), s(sT0) if cfg.c3 else str(c), tgt=U(0), stream="xa")); o.append(salu("s_and_b32", s(sT0), s(sT0), "7", tgt=U(1), stream="xa"))
    o.append(salu("s_lshl_b32", s(sXo), s(sT0), "7", tgt=U(2), stream="xa")); o.append(salu("s_lshl_b32", s(sWo), s(sT0), "19", tgt=U(3), stream="xa"))
    o.append(salu("s_add_u32", s(sXo2), s(sXo), "16384", tgt=U(4), stream="xa"))
    k = 0
    for half in range(2):
        o.append(salu("s_add_u32", "m0", s(sXb), str(p * SLOT + half * GRP), tgt=T(k - 1), stream=st))
        for m in range(4):
            d = dma(v(vX + m), SX, s(sXo2 if half else sXo), m * PIECE, cfg.xflags, grp=g, tgt=T(k), stream=st); k += 1
            if after: d.after = list(after)
            o.append(d)
    return o
def w_dma(c, t0=None, dt=1):
    p = c & 1; o = []; g = f"c{c}"; st = "dma"
    def T(k): return None if t0 is None else int(t0 + k * dt)
    o.append(salu("s_add_u32", "m0", s(sG), str(W_BASE + p * UNIT), tgt=T(-1), stream=st))
    for m in range(4): o.append(dma(v(vWq + m), SWQ, s(sWo), m * PIECE, cfg.wflags, grp=g, tgt=T(m), stream=st))
    return o
def kv_dma_static(which, tile, t0=None, dt=1, grp=0, ms=(0, 1, 2, 3)):
    st = "dma"
    def T(k): return None if t0 is None else t0 + k * dt
    o = [salu("s_mov_b32", s(sT1), str(tile * 16384 + grp * 4096), tgt=T(-1), stream=st),
         salu("s_add_u32", "m0", s(sG), str((vslot(tile) + UNIT if which == "V" else (tile & 3) * SLOT) + grp * GRP), tgt=T(-1), stream=st)]
    for k, m in enumerate(ms): o.append(dma(v(vKV + m), SK if which == "K" else SV, s(sT1), m * PIECE, cfg.kvflags, grp=f"{which}{tile}", tgt=T(k), stream=st))
    return o
def chunk_reads(c, nq, t0=None, dt=1):
    p = c & 1; o = []; k = 0
    def T(k): return None if t0 is None else t0 + k * dt
    items = []
    for s_ in range(2):
        for a in range(nq): items.append(("x", s_, a))
    for tau in range(8):
        for s_ in range(2):
            for z in range(2): items.append(("w", s_, tau, z))
    for it in items:
        if it[0] == "x":
            _, s_, a = it
            o.append(ds_b128("a", xset(p, s_, a), v(vXrd), p * SLOT + (a & 1) * GRP + (a >> 1) * 512 + s_ * 64, tgt=T(k), stream="rd"))
        else:
            _, s_, tau, z = it
            o.append(ds_tr("a", wset(p, s_, tau) + 2 * z, v(vWrd), p * UNIT + z * 8 * PIECE + s_ * 512 + 32 * tau, tgt=T(k), stream="rd"))
        k += 1
    return o
def chunk_mfma(c, nq, amajor=False):
    p = c & 1; o = []
    order = [(a, tau) for a in range(nq) for tau in range(8)] if amajor else [(a, tau) for tau in range(8) for a in range(nq)]
    for a, tau in order:
        for s_ in range(2):
            z = (c == 0 and s_ == 0)
            o.append(mfma("v", acc(a, tau), "a", wset(p, s_, tau), "a", xset(p, s_, a), "0" if z else None))
    return o
def q_convert(a, t0, dt):
    o = []; k = 0
    for s_ in range(4):
        d = qf(a, s_)
        for half in range(2):
            b = acc(a, 2 * s_ + half)
            for r in range(4): o.append(valu("v_mul_f32", v(b + r), s(sC), v(b + r), tgt=t0 + k * dt)); k += 1
            for r in range(2): o.append(valu("v_cvt_pk_bf16_f32", v(d + 2 * half + r), v(b + 2 * r), v(b + 2 * r + 1), tgt=t0 + k * dt)); k += 1
        for r in range(2): o.append(swap("v_permlane32_swap_b32", v(d + r), v(d + 2 + r), tgt=t0 + k * dt)); k += 1
        for r in range(2): o.append(swap("v_permlane16_swap_b32", v(d + r), v(d + 2 + r), tgt=t0 + k * dt)); k += 1
    return o
def k_reads(j, t0=None, dt=4, after=None):
    o = []
    for r in range(8):
        kap, s_ = r >> 2, r & 3
        i = ds_b128("a", KF + 4 * r, v(vKrd), j * 8 * PIECE + kap * 512 + s_ * 64, tgt=None if t0 is None else t0 + r * dt, stream="rd")
        if after: i.after = list(after)
        o.append(i)
    return o
def v_reads(j, t0, dt):
    o = []
    for r in range(16):
        t, z = r >> 1, r & 1
        o.append(ds_tr("a", VF + 4 * t + 2 * z, v(vVrd), j * 8 * PIECE + z * 512 + 32 * t, tgt=t0 + r * dt, stream="rd"))
    return o
def qk(j, nq, first=False):
    o = []
    for a in range(nq):
        for kap in range(2):
            d = S_[j] + a * 8 + kap * 4
            for s_ in range(4):
                if s_ == 0: o.append(mfma("v", d, "a", KF + 4 * (kap * 4), "v", qf(a, 0), "0" if first else "v", None if first else NEGM + 4 * a))
                else: o.append(mfma("v", d, "a", KF + 4 * (kap * 4 + s_), "v", qf(a, s_)))
    return o
ONES = 128; LM = 96
def mtiles(nq): return list(range(cfg.msum)) if nq == 4 else []
def lsreg(a, nq): return LM + 4 * a if a in mtiles(nq) else LSUM + a
def lsum_mfma(j, a, first=False): return mfma("v", LM + 4 * a, "a", ONES, "v", P_[j] + 4 * a, "0" if first else None)
def pv(j, nq, first=False):
    o = [mfma("a", oacc(a, t), "a", VF + 4 * t, "v", P_[j] + 4 * a, "0" if first else None) for t in range(8) for a in range(nq)]
    return o + [lsum_mfma(j, a, first) for a in mtiles(nq)]
def sm(j, nq, t0, dt=2.0, mix=False):
    o = []
    order = list(range(8 * nq))
    if mix and len(mtiles(nq)) == 2:
        order = [e_ for k in range(8) for e_ in (2 * k, 2 * k + 1, 16 + 2 * k, 17 + 2 * k)]
        if cfg.mix2 == 0: order = list(range(32))
        if cfg.mix2 == 2: order = [e_ for k in range(4) for e_ in (2 * k, 2 * k + 1, 16 + 2 * k, 17 + 2 * k)] + [e_ for k in range(4) for e_ in (24 + 2 * k, 25 + 2 * k, 8 + 2 * k, 9 + 2 * k)]
    if mix and len(mtiles(nq)) == 1:
        order = [e_ for k in range(4) for e_ in (2 * k, 2 * k + 1, 8 + 2 * k, 9 + 2 * k)] + list(range(16, 32))
    for n_, i in enumerate(order):
        r = S_[j] + i; a = i >> 3
        o.append(valu("v_exp_f32", v(r), v(r), tgt=int(t0 + n_ * dt)))
        if a not in mtiles(nq): o.append(valu("v_add_f32", v(LSUM + a), v(LSUM + a), v(r), tgt=int(t0 + n_ * dt + 1)))
        if i & 1: o.append(valu("v_cvt_pk_bf16_f32", v(P_[j] + (i >> 1)), v(r - 1), v(r), tgt=int(t0 + n_ * dt + 1)))
    return o
def xreduce(op, reg, tmp, t0=None, dt=1):
    def T(k): return None if t0 is None else t0 + k * dt
    return [valu("v_mov_b32", v(tmp), v(reg), tgt=T(0)), swap("v_permlane16_swap_b32", v(reg), v(tmp), tgt=T(1)), valu(op, v(reg), v(reg), v(tmp), tgt=T(2)),
            valu("v_mov_b32", v(tmp), v(reg), tgt=T(3)), swap("v_permlane32_swap_b32", v(reg), v(tmp), tgt=T(4)), valu(op, v(reg), v(reg), v(tmp), tgt=T(5))]
def first_max(a, t0, dt):
    o = []; b = S_[0] + a * 8; m = TMP + 2 * a; k = 0
    o.append(valu("v_max3_f32", v(m), v(b), v(b + 1), v(MTRUE + a), tgt=t0))
    for r in range(1, 4): o.append(valu("v_max3_f32", v(m), v(b + 2 * r), v(b + 2 * r + 1), v(m), tgt=t0 + r * dt))
    o += xreduce("v_max_f32", m, m + 1, t0 + 4 * dt, dt)
    for r in range(4): o.append(valu("v_sub_f32", v(NEGM + 4 * a + r), "0", v(m), tgt=t0 + (10 + r) * dt))
    for r in range(8): o.append(valu("v_sub_f32", v(b + r), v(b + r), v(m), tgt=t0 + (14 + r) * dt))
    o.append(valu("v_mov_b32", v(LSUM + a), "0", tgt=t0))
    return o

class Variant:
    def __init__(s_, nq, name):
        s_.nq, s_.name = nq, name
        s_.static = []
        s_.trace = []
        s_.vm = []
        s_.pend = []
    def finish(s_, seq, sched=True, **kw):
        seq = schedule(seq, **kw) if sched else seq
        seq = s_.resolve_vm(seq)
        seq, s_.pend = insert_lgkm(seq, s_.pend)
        seq = fix_hazards(seq, s_.trace)
        s_.static += seq; s_.trace += seq
        return seq
    def resolve_vm(s_, seq):
        out = []
        for c in seq:
            if c.k == "wait" and c.meta == ("vm", None):
                n = min(vm_count(s_.vm, c.need), 63)
                w = waitvm(n, need=c.need); out.append(w)
            else:
                out.append(c)
                if c.k == "vmem": s_.vm.append(c)
        return out
def wvm(groups, **kw): return I("s_waitcnt vmcnt(?)", "wait", meta=("vm", None), need=set(groups), **kw)

sTo = 49 + 50
sKt = 95
def window(T, nq, part, static):
    n = 8 * nq; st = "dma"
    ps = [((m + 0.5) / 4, "V", 0, m) for m in range(4)]
    if nq == 3: ps += [((k + 0.25) / 16, "K", k >> 2, k & 3) for k in range(16 - cfg.skipk)]
    if cfg.kgb: ps = [(p if w_ == "V" else (g_ + 0.02 + 0.085 * m) / 4, w_, g_, m) for p, w_, g_, m in ps]
    if cfg.vgb: ps = [(p if w_ == "K" else 0.63 + 0.016 * m, w_, g_, m) for p, w_, g_, m in ps]
    if cfg.stretch: ps = [(0.27 + 0.16 * g_ + 0.025 * m if w_ == "K" else 0.03 + 0.02 * m, w_, g_, m) for p, w_, g_, m in ps]
    fv = 0.24 if (cfg.wlate and T == 12) else cfg.frac
    ps = sorted((p * (fv if w_ == 'V' else cfg.fracK), w_, g_, m) for p, w_, g_, m in ps)
    o = []; cur = None
    It = T + part
    for p, w_, g_, m in ps:
        if (p >= 0.25) != bool(part): continue
        tile = T + (cfg.dV if w_ == "V" else cfg.dK) - (1 if (cfg.stretch and T >= 0) else 0)
        if static and tile > 15: continue
        tg = int(3 * n + len(mtiles(nq)) + p * (4 * n - 4)) if part == 0 else int((p - 0.25) * (4 * n - 6)) + 1
        if (w_, g_) != cur:
            cur = (w_, g_)
            if static:
                o.append(salu("s_mov_b32", s(sKt), str(tile * 16384 + ((g_ - 3) * 4096 if w_ == "K" else 0)), tgt=tg - 2, stream=st))
                if w_ == "V": o.append(salu("s_add_u32", "m0", s(sG), str(vslot(tile) + UNIT), tgt=tg - 1, stream=st))
                else: o.append(salu("s_mov_b32", "m0", str((tile & 3) * SLOT + g_ * GRP), tgt=tg - 1, stream=st))
            else:
                sl = sV[tile - It] if (w_ == "V" and cfg.dV == 4) else (sS0, sS1, sS2, sS3)[(tile - It) & 3]
                if w_ == "V":
                    o.append(salu("s_add_u32", s(sT0), s(sl), s(sG), tgt=tg - 2, stream=st)); o.append(salu("s_add_u32", "m0", s(sT0), str(UNIT), tgt=tg - 1, stream=st))
                else:
                    o.append(salu("s_add_u32", s(sKt), s(sKo), str(g_ * 4096), tgt=tg - 2, stream=st)); o.append(salu("s_add_u32", "m0", s(sl), str(g_ * GRP), tgt=tg - 1, stream=st))
        cap = cfg.cap3 if nq == 3 else cfg.cap0
        if cap: o.append(waitvm(cap - 1, tgt=tg - 1, stream=st))
        so = sKt if (static or w_ == "K") else sVo
        o.append(dma(v(vKV + m), SV if w_ == "V" else SK, s(so), m * PIECE, cfg.kvflags, grp=f"{w_}{tile}", tgt=tg, stream=st))
    return o
DUMMY = LDS1 + 64
sVs, sVr, sKq, sSk = 40, 41, 42, 43
def next5(r, t0, stream):
    return [salu("s_add_u32", s(r), s(r), str(SLOT), tgt=t0, stream=stream),
            salu("s_cmp_eq_u32", None, s(r), str(4 * SLOT), tgt=t0 + 1, stream=stream), salu("s_cselect_b32", s(r), str(4 * SLOT - UNIT), s(r), stream=stream),
            salu("s_cmp_eq_u32", None, s(r), str(5 * SLOT - UNIT), tgt=t0 + 2, stream=stream), salu("s_cselect_b32", s(r), "0", s(r), stream=stream)]
def window_dyn(T, nq, part):
    n = 8 * nq; st = "dma"; mx = len(mtiles(nq)); o = []
    w_model = 0 if nq == 4 else 3; tskip = cfg.vskip[0] + cfg.vskip[1] * w_model
    nulls = lambda t: sum(1 for z in range(t) if cfg.kskip >> z & 1)
    def ksite(g_, tg):
        q = 16 + 4 * T + g_ - nulls(T)
        null = part and g_ == 3 and cfg.kskip >> T & 1
        x = [salu("s_and_b32", s(sT0), s(sKq), "3", stream=st), salu("s_mul_i32", s(sT0), s(sT0), str(GRP), stream=st),
             salu("s_bfe_u32", s(sKt), s(sKq), "0x20002", scc_w=True, stream=st), salu("s_mul_i32", s(sKt), s(sKt), str(SLOT), stream=st), salu("s_add_u32", s(sT0), s(sT0), s(sKt), stream=st),
             salu("s_lshl_b32", s(sKt), s(sKq), "12", stream=st), salu("s_sub_u32", s(sKt), s(sKt), "12288", stream=st)]
        if part and g_ == 3:
            x += [salu("s_mov_b32", s(sTo), hex(cfg.kskip), stream=st), salu("s_bitcmp1_b32", None, s(sTo), s(sT), scc_w=True, stream=st), salu("s_cselect_b32", s(sKt), "0x7ff00000", s(sKt), stream=st),
                  salu("s_cselect_b32", "m0", str(DUMMY), s(sT0), stream=st), salu("s_subb_u32", s(sKq), s(sKq), "-1", scc_r=True, scc_w=True, stream=st)]
        else: x += [salu("s_mov_b32", "m0", s(sT0), stream=st), salu("s_add_u32", s(sKq), s(sKq), "1", stream=st)]
        for k, y in enumerate(x): y.tgt = tg - len(x) + k
        return x + [dma(v(vKV + m), SK, s(sKt), m * PIECE, cfg.kvflags, grp="null" if null else f"K{q >> 2}", tgt=int(tg + m * 2.5), stream=st) for m in range(4)]
    if part == 0:
        tg = int(3 * n + mx + cfg.vpos * 4 * n) + 2
        tile = T + 4 if T < tskip else T + 3
        x = [salu("s_add_u32", s(sT0), s(sVs), s(sG), stream=st), salu("s_add_u32", s(sT0), s(sT0), str(UNIT), stream=st),
             salu("s_cmp_eq_u32", None, s(sT), s(sSk), stream=st), salu("s_cselect_b32", s(sT1), "0x7ff00000", s(sVo), stream=st), salu("s_cselect_b32", "m0", str(DUMMY), s(sT0), stream=st),
             salu("s_cselect_b32", s(sT2), "0", "1", stream=st)]
        for k, y in enumerate(x): y.tgt = tg - 4 + k
        o += x + [dma(v(vKV + m), SV, s(sT1), m * PIECE, cfg.kvflags, grp="null" if T == tskip else f"V{tile}", tgt=tg + 2 * m, stream=st) for m in range(4)]
        u = tg + 8
        o += [salu("s_lshl_b32", s(sT0), s(sT2), "14", tgt=u, stream="vadv"), salu("s_add_u32", s(sVo), s(sVo), s(sT0), tgt=u + 1, stream="vadv"), salu("s_mov_b32", s(sT0), s(sVs), tgt=u + 2, stream="vadv")]
        o += next5(sVs, u + 3, "vadv")
        o += [salu("s_cmp_eq_u32", None, s(sT2), "0", tgt=u + 6, stream="vadv"), salu("s_cselect_b32", s(sVs), s(sT0), s(sVs), stream="vadv")]
    elif nq == 3:
        for g_ in range(4): o += ksite(g_, int(9 + g_ * cfg.fracK * (3 * n - 20) / 3.4))
    return o
def iteration(T, nq, first=False, peeled=False):
    n = 8 * nq
    st = "dma"
    o = []
    vdt = 2 if nq == 4 else 1.5
    o += qk(0, nq)
    o += v_reads(0, 1, vdt)
    o += sm(1, nq, 0, mix=True)
    o += k_reads(1, n + 1, (n - 4) / 8)
    o += pv(0, nq, first)
    mx = len(mtiles(nq))
    B = 2 * n + mx
    o += qk(1, nq)
    vr = v_reads(1, B + 1, vdt); o += vr
    o.append(valu("v_add_u32", v(vVrd), str(vslot(T + 1)) if peeled else s(sVr if cfg.stretch else sV[1] if cfg.dV == 4 else sS1), v(vVrd0), tgt=B + n + 2))
    o += sm(0, nq, B - 2, 2.0, mix=True)
    w = wvm({f"K{T+2}", f"V{T+1}"}, tgt=B + n - 3, stream=["rd2", st]); b = barrier(tgt=B + n - 2, stream=["rd2", st])
    w.after = [x for x in o if x.k == "mfma"][B + n - 4:B + n - 3]
    o += [w, b]
    if cfg.its:
        x1 = valu("v_mov_b32", "v126", "s90", tgt=B + n - 1); x1.after = [b]
        x2 = I("s_memrealtime s[90:91]", "salu", tgt=B + n - 1); x2.after = [x1]
        o += [x1, x2, valu("v_cmp_eq_u32", "vcc", "s51", v(vLane), tgt=B + n), valu("v_cndmask_b32", "v127", "v127", "v126", "vcc", tgt=B + n + 2)]
    e = 4 * n + 2 * mx - 1
    t = B + n
    if T >= 12 and peeled:
        eA = []; eB = []; tl = []; tlB = []
        if T == 12: eA = p3_wdma(0) + p3_wdma(1)
        if T == 13: eA = p3_wdma(2); eB = p3_wdma(3)
        if cfg.dV == 4:
            assert cfg.dK == 5
            eA, eB = {12: (p3_wdma(0), p3_wdma(1)), 13: (p3_wdma(2), p3_wdma(3)), 14: (p3_wdma(4), p3_wdma(5) + p3_wdma(6))}[T]
        if cfg.wlate:
            if T == 12: eA = []
            if T == 13: eA = p3_wdma(0) + p3_wdma(1) + p3_wdma(2)
        if cfg.wtouch and T == 12:
            x = I(f"global_load_dword v231, v230, s[56:57]", "vmem", rd=["v230"], meta="load", grp="touch")
            eA = [x]; eB = p3_wdma(0)
        if cfg.wtouch and T == 13: eA = p3_wdma(1) + p3_wdma(2)
        if T == 14 and cfg.dV == 3: eA = p3_wdma(4); eB = p3_wdma(5) + p3_wdma(6)
        if cfg.touch and cfg.otm == 0 and nq == 3:
            cnt = [int(c_) for c_ in cfg.otd]; k0 = sum(cnt[:T - 12]); tl = []
            for k in range(k0, k0 + cnt[T - 12]):
                tl.append(salu("s_mov_b32", s(sTo), str((k >> 2) * 16384), stream=st))
                tl.append(bload("v", 231, v(vT + (k & 3)), SX, s(sTo), 0, cfg.tflags, n=1, grp="touch", stream=st)); tl[-1].wr = set()
            if not cfg.otw: eA = eA + tl; tl = []
        if cfg.touch and cfg.otm:
            def ot(k):
                x = bload("v", 231, "v230", SO, s(sTo), 0, cfg.tflags, n=1, grp="touch", stream=st); x.wr = set()
                return [salu("s_mov_b32", s(sTo), str(k * 16384), stream=st), x]
            where = {1: ((13, "B"), (14, "A")), 2: ((14, "A"), (14, "A")), 3: ((13, "B"), (13, "B")), 4: ((13, "A"), (13, "B")), 5: ((14, "A"), (14, "B"))}[cfg.otm]
            for k, (tt, ab) in reversed(list(enumerate(where))):
                if tt == T and ab == "A": eA = ot(k) + eA
                if tt == T and ab == "B": eB = ot(k) + eB
        for x in eA: x.stream = st
        pre = window(T - 1, nq, 1, True); post = window(T, nq, 0, True)
        if eA: place(eA, 3 if T == 12 else 6, 3 * n - 8)
        if eB: place(eB, t + 2, e - 4)
        def merge(a_, b_):
            items = []
            for z, seq in enumerate((a_, b_)):
                setup = []; m0 = None
                for x in seq:
                    if x.k == "vmem": items.append((x.tgt, len(items), z, setup, m0, x)); setup = []
                    else:
                        setup.append(x)
                        if "m0" in x.wr: m0 = x
            items.sort(key=lambda q_: q_[:2]); res = []; cur = None
            for tg, _, z, setup, m0, x in items:
                if any("m0" in y.wr for y in setup): m0 = next(y for y in setup if "m0" in y.wr)
                elif "m0" in x.rd and cur is not m0: setup = setup + [I(m0.t, m0.k, m0.rd, m0.wr, tgt=tg - 1, stream=m0.stream)]
                if "m0" in x.rd: cur = m0
                res += setup + [x]
            return res
        eA = merge(pre, eA); eB = merge(post, eB)
        if tl:
            nt_ = len(tl) // 2
            for k in range(nt_):
                g = int((k + 0.5) * (e + 1) / nt_); tl[2 * k].tgt = g - 1; tl[2 * k + 1].tgt = g
            tlB = [x for x in tl if x.tgt >= t - 4 + (x.k != "salu")]; tl = [x for x in tl if x not in tlB]
            for x in tlB: x.tgt = max(x.tgt, t + 1)
            eA = merge(eA, tl); eB = merge(eB, tlB)
        k = o.index(w); o[k:k] = eA
        if T < 14:
            o.append(valu("v_add_u32", v(vKrd), str(((T + 2) & 3) * SLOT), v(vKrd0), tgt=B + n - 4))
            o += k_reads(0, B + n + 1, (n - 4) / 8, after=[b])
        else:
            o += [ds_tr("a", KF + 4 * (r >> 1) + 2 * (r & 1), v(vVrd), (r & 1) * 512 + 32 * (r >> 1), tgt=int(B + n + 4 + r * (n - 6) / 16), stream="rd") for r in range(16)]
            for x in o[-16:]: x.after = [b]
        return o + eB + pv(1, nq)
    o.append(valu("v_add_u32", v(vKrd), s(sS2), v(vKrd0), tgt=B + n - 4))
    o += k_reads(0, B + n + 1, (n - 4) / 8, after=[b])
    if cfg.stretch: pre = window_dyn(T, nq, 1)
    else:
        pre = window(T - 1, nq, 1, False)
        pre += [salu("s_add_u32", s(sVo), s(sVo), "16384", tgt=t - 5, stream=st)] + ([salu("s_add_u32", s(sKo), s(sKo), "16384", tgt=t - 4, stream=st)] if nq == 3 else [])
    if cfg.wroll and nq == 3:
        x = bload("v", 231, v(vT), STC2, s(sTo), 0, n=1, grp="touch", tgt=B + 6, stream=st); x.wr = set()
        pre += [salu("s_sub_u32", s(sT2), s(sT), str(cfg.wroll), tgt=B, stream="tch"), salu("s_lshl_b32", s(sTo), s(sT2), "13", tgt=B + 1, stream="tch"), x]
        pre.sort(key=lambda y: 0)
    if cfg.kick and nq == 3:
        kk = [salu("s_cmp_eq_u32", None, s(sT), "5", tgt=B + 2, stream=st), salu("s_cselect_b32", s(sTo), "0", "0x7ff00000", tgt=B + 3, stream=st)]
        for z in range(cfg.kick):
            kk.append(bload("v", 231, v(vT + (z & 1)), SX, s(sTo), 0, "nt", n=1, grp="touch", tgt=B + 4 + z, stream=st)); kk[-1].wr = set()
            kk.append(salu("s_add_u32", s(sTo), s(sTo), "8192" if z & 1 else "0", tgt=B + 4 + z, stream=st))
        pre += kk
    if cfg.extra and nq == 4:
        ex = [salu("s_mul_i32", s(sTo), "s2", "0x40000", tgt=4, stream=st), salu("s_lshl_b32", s(sT2), s(sT), "12", tgt=5, stream=st), salu("s_add_u32", s(sTo), s(sTo), s(sT2), tgt=6, stream=st),
              salu("s_add_u32", s(sTo), s(sTo), "0x4000000", tgt=6, stream=st), salu("s_mul_i32", s(sT2), s(sW), "0x4000000", tgt=6, stream=st), salu("s_add_u32", s(sTo), s(sTo), s(sT2), tgt=6, stream=st),
              valu("v_add_u32", "v125", s(sTo), v(vOst), tgt=7), salu("s_mov_b32", "m0", str(8 * UNIT), tgt=8, stream=st)]
        for z in range(cfg.extra): ex.append(I(f"global_load_lds_dwordx4 v125, s[{sWS}:{sWS+1}] offset:{z*1024} nt", "vmem", rd=["v125", "m0"], meta="dma", grp="ex", tgt=9 + z, stream=st))
        pre = ex + pre
    k = o.index(w); o[k:k] = pre
    o += window_dyn(T, nq, 0) if cfg.stretch else window(T, nq, 0, False)
    r = e - 9
    o += pv(1, nq)
    if cfg.stretch:
        o += next5(sVr, B + n + 6, "vrd")
        o += [salu("s_add_u32", s(sS2), s(sS2), str(SLOT), tgt=r + 2, stream="krd"), salu("s_cmp_eq_u32", None, s(sS2), str(4 * SLOT), tgt=r + 3, stream="krd"), salu("s_cselect_b32", s(sS2), "0", s(sS2), stream="krd")]
    else:
        o.append(salu("s_mov_b32", s(sS0), s(sS1), tgt=r + 1, stream=st))
        if cfg.dV == 4:
            rot = [(sT2, sV[0])] + [(sV[k], sV[k + 1]) for k in range(4)] + [(sV[4], sT2)]
            for k, (d_, s_) in enumerate(rot): o.append(salu("s_mov_b32", s(d_), s(s_), tgt=r - 8 + k, stream="vrot"))
        o.append(salu("s_mov_b32", s(sS1), s(sS2), tgt=r + 2, stream=st)); o.append(salu("s_mov_b32", s(sS2), s(sS3), tgt=r + 3, stream=st))
        o.append(salu("s_add_u32", s(sS3), s(sS3), str(SLOT), tgt=r + 4, stream=st)); o.append(salu("s_cmp_eq_u32", None, s(sS3), str(4 * SLOT), tgt=r + 5, stream=st))
        o.append(salu("s_cselect_b32", s(sS3), "0", s(sS3), tgt=r + 6, stream=st))
    o.append(salu("s_add_u32", s(sT), s(sT), "1", tgt=r + 7, stream=st));
    if cfg.longloop:
        for rg_ in (sKo, sVo):
            o += [salu("s_cmp_ge_u32", None, s(rg_), str(262144 - 16384), tgt=r + 8, stream=st), salu("s_cselect_b32", s(sT0), str(14 * 16384), "0", tgt=r + 8, stream=st), salu("s_sub_u32", s(rg_), s(rg_), s(sT0), tgt=r + 8, stream=st)]
    o.append(salu("s_cmp_lt_u32", None, s(sT), str(cfg.longloop or 12), tgt=r + 8, stream=st))
    return o

def pack_iter(o, nq):
    N = sum(1 for x in o if x.k == "mfma"); H = N // 2
    ex = [x for x in o if x.k == "trans"]; ld = [x for x in o if x.k == "lds"]; vm = [x for x in o if x.k == "vmem"]
    va = [x for x in o if x.k == "valu"]
    for i, x in enumerate(ex): x.tgt = (i // 32) * H + ((i % 32) * H) // 32
    eg = {x.tgt for x in ex}
    expo = {next(iter(x.wr)): x.tgt for x in ex[:32]}; expo2 = {next(iter(x.wr)): x.tgt for x in ex[32:]}
    dg = set()
    for x in vm:
        g = min(x.tgt, N - 1)
        while g in dg or g in eg: g += 1
        x.tgt = g; dg.add(g)
    xg = [g for g in range(N) if g not in dg and g not in eg]
    lg = {}
    for x in ld:
        left = len(ld) - len(lg); last = max(lg, default=-1)
        free = [g for g in xg if g > last]
        if len([g for g in free if g >= x.tgt]) >= left: g = next(g for g in free if g >= x.tgt)
        else: g = max(last + 1, min(int(x.tgt), N - 2 - left)); g += g in dg
        lg[g] = x; x.tgt = g
    rdy = []
    for x in va:
        op = x.t.split()[0]
        if op in ("v_add_f32", "v_cvt_pk_bf16_f32"):
            r = max((expo.get(q, expo2.get(q, -1)) if o.index(x) < o.index(ex[32]) else expo2.get(q, -1)) for q in x.rd) + 1
        else: r = x.tgt
        rdy.append((r, len(rdy), x))
    rdy.sort(key=lambda z: z[:2])
    bonus = set()
    def fill():
        k = 0; back = {}
        for g in xg:
            cap = (1 if g in lg else 2) + (g in bonus); take = 0
            while k < len(rdy) and rdy[k][0] <= g and take < cap: rdy[k][2].tgt = g; k += 1; take += 1
            back[g] = sum(1 for z in rdy[k:] if z[0] <= g)
        return len(rdy) - k, back
    while True:
        left, back = fill()
        worst = max(back.values())
        if left == 0 and worst <= cfg.backlog: break
        cand = [g for g in xg if g not in bonus and back[g] > (cfg.backlog if worst > cfg.backlog else 0)]
        if not cand: break
        bonus.add(cand[0] if worst > cfg.backlog else cand[-1])
    left, back = fill()
    if left:
        for z in rdy[len(rdy) - left:]: z[2].tgt = N - 1
    taken = {x.tgt for x in o if x.k in ("wait", "bar")}
    dl = {}
    for idx in range(len(o) - 1, -1, -1):
        x = o[idx]
        if x.k == "salu":
            nx = next((y for y in o[idx + 1:] if y.k in ("vmem", "salu", "wait") and (y.stream == x.stream or (isinstance(y.stream, list) and x.stream in y.stream))), None)
            if nx is not None and (nx.k != "salu" or id(nx) in dl):
                g = nx.tgt - 1
                while g in taken and g > -1: g -= 1
                x.tgt = g; taken.add(g); dl[id(x)] = g
    last = {}
    for x in o:
        if x.k == "salu" and id(x) not in dl:
            g = max(int(x.tgt), last.get(str(x.stream), -1) + 1)
            while g in taken and g < N - 1: g += 1
            x.tgt = min(g, N - 1); taken.add(g); last[str(x.stream)] = g
    return o
def sched_iter(T, nq, **kw):
    extra = kw.pop("extra", [])
    o = fuse_scc(extra + iteration(T, nq, **kw)); extra = []
    if nq == 4 and cfg.pack: return schedule(pack_iter(extra + o, nq), strict=True)
    return schedule(extra + o)
def place(seq, g0, g1):
    vec = [x for x in seq if x.k in COST]
    for k, x in enumerate(vec): x.tgt = g0 + k * (g1 - g0 + 1) // len(vec)
    nxt = g1
    for x in reversed(seq):
        if x.k in COST: nxt = x.tgt
        else: x.tgt = max(-1, nxt - 1); nxt = x.tgt if x.k == "salu" else nxt
    return seq
def weave(a, b, lead=0):
    grp = []; cur = []
    for x in b:
        cur.append(x)
        if x.k in COST: grp.append(cur); cur = []
    if cur: grp[-1] += cur
    out = list(a[:lead]); rest = a[lead:]; k = 0
    for n_, x in enumerate(rest):
        while k < len(grp) and k * len(rest) <= n_ * len(grp): out += grp[k]; k += 1
        out.append(x)
    for y in grp[k:]: out += y
    return out
def xw_touch(c, force=False):
    if not (cfg.xtouch or force): return []
    x = bload("v", 231, v(vT + 2), STC, s(sTo), 0, n=1, grp="touch", stream="dma"); x.wr = set()
    return [salu("s_mul_i32", s(sTo), s(sTs), str(c), stream="dma"), x]
def wo_touch(k):
    x = I(f"global_load_dword v231, v{vT+3}, s[56:57]", "vmem", rd=[v(vT + 3)], meta="load", grp="touch", stream="dma")
    return [x, valu("v_add_u32", v(vT + 3), "0x2000", v(vT + 3), stream="dma")]
def first_tile(nq, G, redo=False):
    h = 8 * nq
    o = qk(0, nq, first=True)
    if cfg.dK == 5 and (cfg.kve == 0 or redo): o += kv_dma_static("K", 3, G + h, 3)
    elif cfg.dK == 5 and cfg.kve == 9: o += kv_dma_static("K", 3, G + h, h // 5)
    elif cfg.dK == 5 and cfg.kve >= 6: o += kv_dma_static("K", 3, G + 4, h // 3)
    if cfg.dV == 4: o += kv_dma_static("V", 2, G + (h + 12 if (cfg.kve in (0, 9) or redo) else 2 * h - 6 - 4 * (h // 4) if cfg.kve >= 6 else 2), h // 4)
    for a in range(nq): o += first_max(a, G + 8 * (a + 1) + 2, 0.5)
    o += k_reads(1, G + h - 6, 1)
    q1 = qk(1, nq); o += q1
    o += sm(0, nq, G + h + 2, 0.9)
    w = wvm({"K1", "V0", "G"}, tgt=G + 2 * h - 3, stream=["dma"]); b = barrier(tgt=G + 2 * h - 2, stream=["dma"])
    w.after = [q1[h - 4]]
    o += [w, b, valu("v_add_u32", v(vKrd), str(SLOT), v(vKrd0), tgt=G + 2 * h - 2)]
    o += k_reads(0, G + 2 * h - 1, 0, after=[b])
    for x in window(-1, nq, 0, True): x.tgt = G + 2 * h - 1; o.append(x)
    for k, (r_, val) in enumerate(((sS0, 0), (sVo, (cfg.dV - 1) * 16384), (sKo, (cfg.dK - 1) * 16384 - 3 * 4096), (sS1, SLOT), (sS2, 2 * SLOT), (sS3, 3 * SLOT), (sT, 0)) + (((sVs, vslot(4)), (sVr, vslot(1)), (sKq, 16), (sVo, 4 * 16384)) if cfg.stretch else tuple((sV[k], vslot(k)) for k in range(5)) if cfg.dV == 4 else ())):
        o.append(salu("s_mov_b32", s(r_), str(val), tgt=G + 10 + k))
    if cfg.stretch: o += [salu("s_mul_i32", s(sSk), s(sW), str(cfg.vskip[1]), tgt=G + 24), salu("s_add_u32", s(sSk), s(sSk), str(cfg.vskip[0]), tgt=G + 25)]
    o.append(valu("v_mov_b32", v(vVrd), v(vVrd0), tgt=G + 8))
    if mtiles(nq):
        o.append(valu("v_mov_b32", v(LM), "0x3f803f80", tgt=G + h))
        for r in range(4): o.append(valu("v_accvgpr_write_b32", f"a{ONES + r}", v(LM), tgt=G + h + 1))
    return o
def k1_variant(nq, name, pre):
    V = Variant(nq, name)
    V.finish([label(f"L_{name}")], sched=False)
    n = 16 * nq; nx = 2 * nq
    r0 = chunk_reads(0, nq)
    V.vm = [x for x in pre if x.k == "vmem"]
    o = (clear_flags() if nq == 3 else []) + stamp(4, "st") + [wvm({"c0"})] + stamp(5, "st") + [barrier()] + stamp(1) + stamp(1, "p1") + stamp(1, "p0") + stamp(6, "st") + r0[:nx + 8]
    V.finish(o, sched=False)
    for c in range(7):
        m = chunk_mfma(c, nq)
        w = wvm({f"c{c+1}"}, stream=["rd", "dma"]); b = barrier(stream=["rd", "dma"])
        rd = chunk_reads(c + 1, nq)
        extra = []
        if c in (0, 2): extra += xw_touch(c + 4)
        plan = {0: {5: [("K", 0, (0, 1, 2, 3)), ("V", 0, (0, 1, 2, 3)), ("K", 1, (0, 1))], 6: [("K", 1, (2, 3))]},
                1: {1: [("K", 0, (0, 1))], 2: [("K", 0, (2, 3))], 3: [("V", 0, (0, 1))], 4: [("V", 0, (2, 3))], 5: [("K", 1, (0, 1, 2, 3))], 6: [("K", 2, (0, 1, 2, 3)), ("V", 1, (0, 1, 2, 3))]},
                2: {2: [("K", 0, (0, 1, 2, 3))], 3: [("V", 0, (0, 1, 2, 3))], 4: [("K", 1, (0, 1, 2, 3))], 6: [("K", 2, (0, 1, 2, 3)), ("V", 1, (0, 1, 2, 3))]},
                3: {2: [("K", 0, (0, 1, 2, 3)), ("V", 0, (0, 1, 2, 3)), ("K", 1, (0, 1, 2, 3))], 6: [("K", 2, (0, 1, 2, 3)), ("V", 1, (0, 1, 2, 3))]},
                4: {4: [("K", 0, (0, 1, 2, 3))], 5: [("V", 0, (0, 1, 2, 3)), ("K", 1, (0, 1, 2, 3))], 6: [("K", 2, (0, 1, 2, 3)), ("V", 1, (0, 1, 2, 3))]},
                6: {1: [("K", 0, (0, 1))], 2: [("K", 0, (2, 3))], 3: [("V", 0, (0, 1))], 4: [("V", 0, (2, 3)), ("K", 1, (0,))], 5: [("K", 1, (1, 2, 3))], 6: [("K", 2, (0, 1, 2, 3))]},
                7: {2: [("K", 0, (0, 1, 2))], 3: [("K", 0, (3,)), ("V", 0, (0, 1))], 4: [("V", 0, (2, 3)), ("K", 1, (0,))], 5: [("K", 1, (1, 2, 3))], 6: [("K", 2, (0, 1, 2, 3))]},
                8: {3: [("K", 0, (0, 1, 2, 3))], 4: [("V", 0, (0, 1, 2, 3))], 5: [("K", 1, (0, 1, 2, 3))], 6: [("K", 2, (0, 1, 2, 3))]},
                9: {4: [("K", 0, (0, 1, 2, 3))], 5: [("V", 0, (0, 1, 2, 3))], 6: [("K", 1, (0, 1, 2, 3))]},
                -1: {1: [("K", 0, (0, 1, 2))], 2: [("K", 0, (3,)), ("V", 0, (0, 1))], 3: [("V", 0, (2, 3)), ("K", 1, (0,))], 4: [("K", 1, (1, 2, 3))], 6: [("K", 2, (0, 1, 2, 3)), ("V", 1, (0, 1, 2, 3))]},
                -2: {0: [("K", 0, (0, 1))], 1: [("K", 0, (2, 3))], 2: [("V", 0, (0, 1))], 3: [("V", 0, (2, 3))], 4: [("K", 1, (0, 1))], 5: [("K", 1, (2, 3))], 6: [("K", 2, (0, 1, 2, 3)), ("V", 1, (0, 1, 2, 3))]},
                -3: {3: [("V", 0, (0, 1))], 4: [("V", 0, (2, 3))], 5: [("K", 1, (0, 1, 2, 3))], 6: [("K", 2, (0, 1, 2, 3)), ("V", 1, (0, 1, 2, 3))]},
                -4: {4: [("V", 0, (2, 3))], 5: [("K", 1, (0, 1, 2, 3))], 6: [("K", 2, (0, 1, 2, 3)), ("V", 1, (0, 1, 2, 3))]},
                -5: {5: [("K", 1, (0, 1, 2, 3))], 6: [("K", 2, (0, 1, 2, 3)), ("V", 1, (0, 1, 2, 3))]},
                -6: {2: [("K", 0, (2, 3))], 3: [("V", 0, (0, 1))], 4: [("V", 0, (2, 3))], 5: [("K", 1, (0, 1, 2, 3))], 6: [("K", 2, (0, 1, 2, 3)), ("V", 1, (0, 1, 2, 3))]},
                -7: {4: [("K", 0, (0, 1, 2, 3)), ("V", 0, (0, 1, 2, 3))], 5: [("K", 1, (0, 1, 2, 3))], 6: [("K", 2, (0, 1, 2, 3)), ("V", 1, (0, 1, 2, 3))]},
                -8: {"e": [("K", 0, (0, 1))], 2: [("K", 0, (2, 3))], 3: [("V", 0, (0, 1))], 4: [("V", 0, (2, 3))], 5: [("K", 1, (0, 1, 2, 3))], 6: [("K", 2, (0, 1, 2, 3)), ("V", 1, (0, 1, 2, 3))]},
                -9: {"e": [("K", 0, (0, 1, 2, 3))], 3: [("V", 0, (0, 1))], 4: [("V", 0, (2, 3))], 5: [("K", 1, (0, 1, 2, 3))], 6: [("K", 2, (0, 1, 2, 3)), ("V", 1, (0, 1, 2, 3))]},
                -10: {"e": [("K", 0, (0, 1, 2, 3))], 4: [("V", 0, (0, 1, 2, 3))], 5: [("K", 1, (0, 1, 2, 3))], 6: [("K", 2, (0, 1, 2, 3)), ("V", 1, (0, 1, 2, 3))]},
                -11: {"e": [("K", 0, (0, 1, 2, 3)), ("V", 0, (0, 1))], 4: [("V", 0, (2, 3))], 5: [("K", 1, (0, 1, 2, 3))], 6: [("K", 2, (0, 1, 2, 3)), ("V", 1, (0, 1, 2, 3))]},
                -12: {"e": [("K", 0, (0, 1, 2, 3))], 5: [("V", 0, (0, 1, 2, 3)), ("K", 1, (0, 1, 2, 3))], 6: [("K", 2, (0, 1, 2, 3)), ("V", 1, (0, 1, 2, 3))]},
                5: {5: [("K", 0, (0, 1, 2, 3)), ("V", 0, (0, 1, 2, 3)), ("K", 1, (0, 1, 2, 3))], 6: [("K", 2, (0, 1, 2, 3)), ("V", 1, (0, 1, 2, 3))]}}[cfg.kve]
        kv = [x for wh, tl, ms in plan.get(c, []) for x in kv_dma_static(wh, tl, ms=ms)]
        if c <= 4: extra += kv
        if c == 0:
            g = 14
            kve_ = [x for wh, tl, ms in plan.get("e", []) for x in kv_dma_static(wh, tl, ms=ms)]
            if kve_: place(kve_, g - 1 - sum(1 for x in kve_ if x.k == "vmem"), g - 2)
            o = place(r0[nx + 8:], -1, g - 3) + kve_ + [waitlg(0, tgt=g - 1, stream="rd"), w, b] + m
            w.tgt = g - 1; b.tgt = g
            o += place(weave(rd[:14], extra + x_dma(2) + w_dma(2)) + rd[14:], g + 1, n - 3) + [waitlg(0, tgt=n - 1, stream="rd")]
        elif c <= 4:
            w.tgt = 0; b.tgt = 1
            early = extra + (x_dma(3) + w_dma(3) if c == 1 else [])
            if cfg.p1w1 and c > 1: early = w_dma(c + 2) + early
            ne = sum(1 for x in early if x.k == "vmem")
            k0 = max(nx + 4, min(len(rd) - 8, ne))
            seq = weave(rd[:k0], early) + [waitlg(k0 - nx, stream=["rd", "dma"])] + weave(rd[k0:], x_dma(c + 3))
            if cfg.p1w1: o = [w, b] + m + place(seq, 2, n - 4) + [waitlg(0, tgt=n - 1, stream="rd")]
            else:
                o = [w, b] + m + place(seq, 2, n - 8)
                o += [waitlg(0, tgt=n - 6, stream="rd"), barrier(tgt=n - 5, stream=["rd", "dma"])] + place(w_dma(c + 3), n - 4, n - 1)
        else:
            w.tgt = 0; b.tgt = 1
            if cfg.p1w1 and c == 5: kv = w_dma(7) + kv
            if not kv: seq = rd
            elif c == 6 and cfg.kve == 0: seq = rd[:30] + weave(rd[30:], kv)
            else: seq = weave(rd, kv)
            o = [w, b] + m + place(seq, 2, n - 6) + [waitlg(0, tgt=n - 1, stream="rd")]
        if c <= 2:
            bars = [x for x in o if x.k == "bar"]
            base = {0: 2, 1: 4, 2: 7}[c]
            for k_, x in enumerate(bars[:2 if c == 1 else 1]): o += stampf(base + k_, "p0", x, x.tgt)
            if c < 2: o += stampf(base + len(bars), "p0", m[-1], n - 1)
        V.finish(o, strict=True, lds_lat=3)
        if c == 1 and nq == 3: V.finish([wvm({"clr"})] + register(), sched=False)
        V.finish(stamp(c + 2, "p1") if c < 6 else [], sched=False)
    c7 = chunk_mfma(7, nq, amajor=True)
    g0 = wvm({"K0"}, tgt=cfg.g7, stream=["dma", "rd"]); g1 = barrier(tgt=cfg.g7 + 1, stream=["dma", "rd"])
    if cfg.kve == 0: o = [g0, g1] + c7 + kv_dma_static("K", 2, cfg.g7 + 3, 3) + k_reads(0, cfg.g7 + 4, 1) + group_load(cfg.g7 + 14) + kv_dma_static("V", 1, n - 12, 3)
    elif cfg.kve == 9: o = [g0, g1] + c7 + k_reads(0, cfg.g7 + 4, 1) + group_load(cfg.g7 + 14) + kv_dma_static("K", 2, cfg.g7 + 3, n // 8) + kv_dma_static("V", 1, n - 8, n // 8)
    elif cfg.kve >= 6: o = [g0, g1] + c7 + k_reads(0, cfg.g7 + 4, 1) + group_load(cfg.g7 + 14) + kv_dma_static("V", 1, cfg.g7 + 3, n // 5)
    else: o = [g0, g1] + c7 + kv_dma_static("K", 3, cfg.g7 + 3, 3) + k_reads(0, cfg.g7 + 4, 1) + group_load(cfg.g7 + 14)
    for a in range(nq): o += q_convert(a, 16 * (a + 1) + 3, 0.3)
    o += stampf(2, "main", c7[-1], n - 1)
    V.finish(o + first_tile(nq, n), budget=cfg.mbudget)
    V.finish([label(f"L_{name}_join")] + stamp(3), sched=False)
    ge = group_eval() + p3_srd_w() + (touch_setup3() if cfg.wtouch else []) + (touch_setup4() if cfg.otm else touch_setup2() if nq == 3 and cfg.touch else [])
    for k, x in enumerate(ge): x.tgt = 3 + 2 * k; x.stream = "ge"
    V.finish(sched_iter(0, nq, first=True, extra=ge), sched=False)
    seqs = [V.resolve_vm(sched_iter(T, nq)) for T in range(1, 12)]
    for k, c in enumerate(seqs[0]):
        if c.k == "wait" and c.meta[0] == "vm":
            n_ = min(q[k].meta[1] for q in seqs)
            for q in seqs: q[k] = waitvm(n_, need=q[k].need)
    _, p1 = insert_lgkm(seqs[0], V.pend)
    body, p2 = insert_lgkm(seqs[0], p1)
    body = fix_hazards(body + [nop(15)] * cfg.slow + [raw(f"s_cbranch_scc1 L_{name}_loop", "branch", rd=["scc"])], body)
    if len(V.pend) > len(p1): V.static.append(waitlg(len(p1))); V.trace.append(V.static[-1])
    V.static.append(label(f"L_{name}_loop"))
    V.static += body; V.pend = p2; V.loop_stats = gap_stats(body)
    for cur in seqs:
        new = []; k = 0
        for c in body:
            if k < len(cur) and cur[k].t == c.t: new.append(cur[k]); k += 1
            else: new.append(c)
        assert k == len(cur), ("loop body differs", cur[k].t)
        V.trace += new
    for T in (12, 13, 14): V.finish(sched_iter(T, nq, peeled=True), sched=False)
    V.finish(stamp(4), sched=False)
    if cfg.its:
        V.finish([raw("s_lshl_b32 s4, s2, 10"), raw(f"s_lshl_b32 s5, s{sW}, 8"), raw("s_add_u32 s4, s4, s5"), raw(f"s_add_u32 s4, s4, {STAMP_OFF + 0x100000}"),
                  raw(f"s_add_u32 s4, s{sWS}, s4"), raw(f"s_addc_u32 s5, s{sWS+1}, 0"), raw(f"v_lshlrev_b32 v126, 2, v{vLane}"), raw("global_store_dword v126, v127, s[4:5]"), raw("s_nop 1")], sched=False)
    h2 = 16
    o = v_reads(1, -1, 0.5)
    inv = TMP
    A = o.append
    if cfg.fallback:
        A(salu("s_lshl_b32", s(sT2), s(sW), "2", tgt=12)); A(salu("s_add_u32", s(sT2), s(sT2), str(VOTE), tgt=13))
        A(valu("v_mov_b32", v(TMP + 13), s(sT2), tgt=14)); A(valu("v_mov_b32", v(TMP + 14), str(VOTE), tgt=14))
        A(salu("s_mov_b32", s(sT0), hex(LIMIT), tgt=14)); A(raw("s_mov_b64 s[54:55], 0", "salu", wr=["s54", "s55"], tgt=15))
    smx = sm(1, nq, 0, 1.0)
    def smt(a, t0, t1):
        x = [y for y in smx if (y.rd | y.wr) & set(R("v", S_[1] + 8 * a, 8))]
        for k, y in enumerate(x): y.tgt = int(t0 + (t1 - t0) * k / len(x))
        return x
    k = 0; t = 0
    for a in range(nq):
        o += smt(a, max(-1, t - 14), t + 2 if a else 6)
        p0 = [mfma("a", oacc(a, tt), "a", KF + 4 * tt, "v", P_[0] + 4 * a) for tt in range(8)]
        p1 = [mfma("a", oacc(a, tt), "a", VF + 4 * tt, "v", P_[1] + 4 * a) for tt in range(8)]
        if a in mtiles(nq):
            if a == 0: p0.append(lsum_mfma(0, a)); p1.insert(0, lsum_mfma(1, a))
            else: p0.insert(0, lsum_mfma(0, a)); p1.insert(0, lsum_mfma(1, a))
        o += (p0 + p1) if a == 0 else [y for pr in zip(p0, p1) for y in pr]
        if a not in mtiles(nq): o += xreduce("v_add_f32", LSUM + a, TMP + 8 + a, t + 8, 1)
        A(valu("v_rcp_f32", v(inv + a), v(lsreg(a, nq)), tgt=t + 14))
        if cfg.fallback:
            A(valu("v_cmp_nge_f32", "vcc", s(sT0), v(lsreg(a, nq)), tgt=t + 14))
            A(raw("s_or_b64 s[54:55], s[54:55], vcc", "salu", rd=["vcc", "s54", "s55"], wr=["s54", "s55", "scc"], tgt=t + 15))
        if a < nq - 1: t += len(p0) + len(p1)
        if a == nq - 1:
            tv = t + 15
            if cfg.fallback:
                A(salu("s_cselect_b32", s(sT0), "1", "0", tgt=tv)); A(valu("v_mov_b32", v(TMP + 12), s(sT0), tgt=tv))
                A(I(f"ds_write_b32 v{TMP+13}, v{TMP+12}", "ldsw", rd=[v(TMP + 12), v(TMP + 13)], tgt=tv, stream="rd"))
    epi = []
    for a in range(nq):
        for sg in range(4):
            tb = 16 * (k % 4) if a else 104 + 12 * (k % 2)
            if a == 1: tb = 16 * (k % 2)
            t0 = h2 * (a + 1) + 2 * min(a + 1, len(mtiles(nq))) + 3 + 3 * sg
            blk = [salu("s_mov_b32", s(sT1), str(8192 * sg), stream="st")]
            blk += [valu("v_accvgpr_read_b32", v(tb + r), f"a{oacc(a, 2*sg) + r}") for r in range(8)]
            blk += [valu("v_mul_f32", v(tb + r), v(inv + a), v(tb + r)) for r in range(8)]
            blk += [valu("v_cvt_pk_bf16_f32", v(tb + 8 + r), v(tb + 2 * r), v(tb + 2 * r + 1)) for r in range(4)]
            blk += [bstore("v", tb + 8, v(vOst), SO, s(sT1), 1024 * a, cfg.oflags, stream="st", grp="O")]
            for y in blk: y.tgt = t0
            k += 1
            if a < nq - 1: o += blk
            else: epi += blk
    V.finish(o, budget=cfg.tbudget)
    o = epi[:22] + [waitlg(0), barrier()]
    if cfg.fallback: o.append(ds_b128("v", TMP + 4, v(TMP + 14), 0))
    o += epi[22:]
    V.finish(o, sched=False)
    V.finish(stamp(5), sched=False)
    V.npre = len(V.vm)
    if cfg.fallback:
        o = []; A = o.append
        A(valu("v_or3_b32", v(TMP + 12), v(TMP + 4), v(TMP + 5), v(TMP + 6))); A(valu("v_or_b32", v(TMP + 12), v(TMP + 12), v(TMP + 7)))
        A(valu("v_readfirstlane_b32", s(sT0), v(TMP + 12)))
        A(salu("s_andn2_b32", s(sT0), s(sT0), s(sPASS))); A(raw(f"s_cbranch_scc0 L_{name}_end", "branch", rd=["scc"]))
        A(waitvm(0)); A(barrier())
        A(valu("v_mov_b32", v(vKrd), v(vKrd0))); A(salu("s_mov_b32", s(sKo), "0")); A(salu("s_mov_b32", "m0", s(sG)))
        A(label(f"L_{name}_mx"))
        for m in range(4): A(dma(v(vKV + m), SK, s(sKo), m * PIECE, cfg.kvflags))
        A(waitvm(0)); A(barrier())
        for j in range(2):
            o += k_reads(j) + [waitlg(0)] + qk(0, nq, first=True) + [nop(7)]
            for a in range(nq):
                for r in range(4): A(valu("v_max3_f32", v(MTRUE + a), v(S_[0] + 8 * a + 2 * r), v(S_[0] + 8 * a + 2 * r + 1), v(MTRUE + a)))
        A(barrier())
        A(salu("s_add_u32", s(sKo), s(sKo), "16384")); A(salu("s_cmp_lt_u32", None, s(sKo), "262144")); A(raw(f"s_cbranch_scc1 L_{name}_mx", "branch", rd=["scc"]))
        A(salu("s_mov_b32", s(sPASS), "1"))
        for wh, tl in (("K", 0), ("V", 0), ("K", 1), ("K", 2), ("V", 1)): o += kv_dma_static(wh, tl)
        o += group_load() + [waitvm(0), barrier()] + k_reads(0) + [waitlg(0)]
        V.finish(o, sched=False)
        V.finish(first_tile(nq, 0, redo=True))
        V.finish([waitlg(0), raw(f"s_branch L_{name}_join", "branch")], sched=False)
    if cfg.fused:
        V.finish([label(f"L_{name}_end"), raw("s_branch L_p3", "branch")], sched=False)
    else:
        V.finish([label(f"L_{name}_end")] + stamp(6) + dump_stamps(10, sWS, STAMP_OFF, v(vLane), "L_k1_done") + [raw("s_endpgm")], sched=False)
    return V

XOFF = 0x1000000; FOFF = 0x3000000
S3O, S3W, S3X, S3Out = 8, 12, 16, 40
s3HG, s3RP, s3CQ, s3T, s3U, s3ROT, sUNI, sF1, sF2 = 36, 37, 38, 92, 93, 94, 39, 31, 30
v3Wd = 252; vG = 224
v3Or, v3Rr, v3St, v3L16, v3Wr = 104, 106, 107, 108, 109
NW_ = 9
class _WU:
    def __getitem__(self, k): return ((8, 0, 2, 1, 4, 3, 6, 5, 7) if cfg.dV == 3 else (0, 2, 3, 4, 5, 6, 7, 8, 1))[k]
WU = _WU()
def oset(u, sg, a): return 128 + (u % 8) * 16 + (sg * 2 + a) * 4
def wset3(p, sg, tau): return p * 64 + (sg * 8 + tau) * 4
def one_lane(ins): return [raw("s_mov_b64 exec, 1", "salu"), ins, raw("s_mov_b64 exec, -1", "salu")]
def flag_addrs(t0=None):
    o = []; A = o.append
    A(salu("s_lshr_b32", s(s3HG), s(sH), "3")); A(salu("s_bfe_u32", s(s3RP), s(sH), "0x10002", scc_w=True)); A(salu("s_and_b32", s(s3CQ), s(sH), "3"))
    A(salu("s_lshl_b32", s(sF1), s(sB), "2")); A(salu("s_add_u32", s(sF1), s(sF1), s(s3HG))); A(salu("s_lshl_b32", s(sF1), s(sF1), "7")); A(salu("s_add_u32", s(sF1), s(sF1), hex(FOFF)))
    A(salu("s_lshl_b32", s(sF2), s(sB), "3")); A(salu("s_and_b32", s(s3T), s(sH), "7")); A(salu("s_add_u32", s(sF2), s(sF2), s(s3T))); A(salu("s_lshl_b32", s(sF2), s(sF2), "9")); A(salu("s_add_u32", s(sF2), s(sF2), hex(FOFF + 4096)))
    if t0 is not None:
        for k, x in enumerate(o): x.tgt = t0 + k; x.stream = "p3s"
    return o
def clear_flags():
    o = []; A = o.append
    A(salu("s_lshr_b32", s(54), s(sH), "3")); A(salu("s_and_b32", s(55), s(sH), "7"))
    A(salu("s_lshl_b32", s(sT0), s(sB), "2")); A(salu("s_add_u32", s(sT0), s(sT0), s(54))); A(salu("s_lshl_b32", s(sT0), s(sT0), "5")); A(salu("s_add_u32", s(sT0), s(sT0), s(55)))
    A(salu("s_lshl_b32", s(sT0), s(sT0), "2")); A(salu("s_add_u32", s(sT0), s(sT0), hex(FOFF)))
    A(salu("s_lshl_b32", s(sT1), s(sB), "3")); A(salu("s_add_u32", s(sT1), s(sT1), s(55))); A(salu("s_lshl_b32", s(sT1), s(sT1), "7")); A(salu("s_add_u32", s(sT1), s(sT1), s(54)))
    A(salu("s_lshl_b32", s(sT1), s(sT1), "2")); A(salu("s_add_u32", s(sT1), s(sT1), hex(FOFF + 4096)))
    A(valu("v_mov_b32", "v8", s(sT0))); A(valu("v_lshlrev_b32", "v9", "7", v(vLane))); A(valu("v_add_u32", "v9", s(sT1), "v9")); A(valu("v_mov_b32", "v10", "0"))
    A(raw("s_mov_b64 exec, 1", "salu"))
    A(I(f"global_store_dword v8, v10, s[{sWS}:{sWS+1}] sc1", "vmem", rd=["v8", "v10"], meta="store", grp="clr"))
    A(raw("s_mov_b64 exec, 15", "salu"))
    A(I(f"global_store_dword v9, v10, s[{sWS}:{sWS+1}] sc1", "vmem", rd=["v9", "v10"], meta="store", grp="clr"))
    A(raw("s_mov_b64 exec, -1", "salu"))
    return o
def page_warm():
    o = []; A = o.append; L = v(vLane)
    A(valu("v_and_b32", "v8", "31", L)); A(valu("v_lshlrev_b32", "v8", "20", "v8"))
    A(valu("v_and_b32", "v9", "3", L)); A(valu("v_lshlrev_b32", "v10", "20", "v9")); A(valu("v_mul_u32_u24", "v9", "0x78000", "v9"))
    for a, b in (("v8", f"s[{sWS}:{sWS+1}]"), ("v10", "s[56:57]"), ("v9", "s[58:59]")):
        A(I(f"global_load_dword v231, {a}, {b}", "vmem", rd=[a], meta="load", grp="pw"))
    return o
def xcc_word(dst, tmp):
    o = [raw(f"s_getreg_b32 s{tmp}, hwreg(HW_REG_XCC_ID, 0, 4)", "salu", wr=[s(tmp)])]
    if cfg.forcemix: o.append(salu("s_and_b32", s(tmp), s(sH), "1"))
    o += [salu("s_mul_i32", s(dst), s(tmp), s(tmp)), salu("s_lshl_b32", s(dst), s(dst), "8"), salu("s_add_u32", s(dst), s(dst), s(tmp)),
          salu("s_lshl_b32", s(dst), s(dst), "8"), salu("s_add_u32", s(dst), s(dst), "1")]
    return o
def register():
    o = xcc_word(sT0, sT1); A = o.append
    A(salu("s_lshr_b32", s(sT1), s(sH), "3")); A(salu("s_lshl_b32", s(sT2), s(sB), "2")); A(salu("s_add_u32", s(sT1), s(sT1), s(sT2))); A(salu("s_lshl_b32", s(sT1), s(sT1), "2"))
    A(valu("v_mov_b32", "v228", s(sT1))); A(valu("v_mov_b32", "v229", s(sT0)))
    o += one_lane(I(f"global_atomic_add v228, v229, s[100:101]{GOFF()} sc1", "vmem", rd=["v228", "v229"], meta="store"))
    return o
sRDY = 97
def group_load(t0=None):
    o = [salu("s_lshl_b32", s(sT2), s(sB), "4"), valu("v_mov_b32", v(vG + 4), s(sT2)),
         I(f"global_load_dwordx4 v[{vG}:{vG+3}], v{vG+4}, s[100:101]{GOFF()} sc1", "vmem", rd=[v(vG + 4)], wr=R("v", vG, 4), meta="load", grp="G", stream="dma"),
         salu("s_lshr_b32", s(sRDY), s(sH), "3"), salu("s_lshl_b32", s(sRDY), s(sRDY), "2"), salu("s_add_u32", s(sT2), s(sT2), s(sRDY)), valu("v_mov_b32", v(vG + 4), s(sT2)),
         I(f"global_load_dword v{vG+5}, v{vG+4}, s[100:101]{GOFF()} sc1", "vmem", rd=[v(vG + 4)], wr=[v(vG + 5)], meta="load", grp="G", stream="dma")]
    if t0 is not None:
        for k, x in enumerate(o): x.tgt = t0 + k
    return o
def group_eval():
    o = []; A = o.append
    A(valu("v_and_b32", v(vG), v(vG), v(vG + 1))); A(valu("v_and_b32", v(vG + 2), v(vG + 2), v(vG + 3))); A(valu("v_and_b32", v(vG), v(vG), v(vG + 2)))
    A(valu("v_readfirstlane_b32", s(sRDY), v(vG))); A(valu("v_readfirstlane_b32", s(sUNI), v(vG + 5)))
    A(salu("s_and_b32", s(sRDY), s(sRDY), "8"))
    o += xcc_word(54, 55)
    A(salu("s_lshl_b32", s(54), s(54), "3")); A(salu("s_cmp_eq_u32", None, s(sUNI), s(54))); A(salu("s_cselect_b32", s(sUNI), "1", "0"))
    return o
def p3_srd_w():
    o = flag_addrs(); A = o.append
    A(salu("s_lshl_b32", s(s3ROT), s(s3T), "1"))
    A(salu("s_lshl_b32", s(s3T), s(s3HG), "20")); A(salu("s_lshl_b32", s(s3U), s(s3CQ), "6" if cfg.wil else "8")); A(salu("s_add_u32", s(s3T), s(s3T), s(s3U)))
    A(salu("s_sub_u32", s(s3U), str(1048576 + 128), s(s3U)))
    o += srd(S3W, 56, 57, s3T, 128, s(s3U))
    return o
STC = 92; sTs = 96; STC2 = 4
def touch_setup1a():
    o = []; A = o.append; L = v(vLane)
    A(salu("s_and_b32", s(sT0), s(sW), "1")); A(salu("s_mul_i32", s(sTs), s(sT0), str(524288 - 128))); A(salu("s_add_u32", s(sTs), s(sTs), "128"))
    A(salu("s_cmp_eq_u32", None, s(sT0), "1")); A(raw("s_cselect_b64 vcc, -1, 0", "salu", rd=["scc"], wr=["vcc"]))
    A(valu("v_and_b32", "v8", "31", L)); A(valu("v_min_u32", "v9", "29", "v8"))
    A(salu("s_and_b32", s(sT0), s(sH), "7")); A(salu("s_mul_i32", s(sT0), s(sT0), "30")); A(valu("v_add_u32", "v9", s(sT0), "v9")); A(valu("v_lshlrev_b32", "v9", "10", "v9")); A(valu("v_add_u32", "v9", "128", "v9"))
    A(salu("s_and_b32", s(sT0), s(sB), "3")); A(salu("s_lshl_b32", s(sT0), s(sT0), "5")); A(valu("v_add_u32", "v8", s(sT0), "v8"))
    A(valu("v_lshrrev_b32", "v10", "1", "v8")); A(valu("v_lshlrev_b32", "v10", "13", "v10")); A(valu("v_and_b32", "v8", "1", "v8")); A(valu("v_lshl_add_u32", "v8", "v8", "7", "v10"))
    A(valu("v_cndmask_b32", "v8", "v9", "v8", "vcc"))
    if cfg.c3: A(valu("v_mov_b32", v(vT + 2), "v8")); return o
    A(valu("v_lshrrev_b32", "v9", "5", L)); A(valu("v_mul_lo_u32", "v9", s(sTs), "v9")); A(valu("v_add_u32", v(vT + 2), "v8", "v9"))
    A(salu("s_lshr_b32", s(sT0), "s2", "3")); A(salu("s_lshl_b32", s(sT0), s(sT0), "15")); A(salu("s_lshr_b32", s(sT1), s(sH), "3")); A(salu("s_lshl_b32", s(sT1), s(sT1), "20"))
    A(salu("s_add_u32", s(sT0), s(sT0), s(sT1))); A(valu("v_lshlrev_b32", v(vT + 3), "7", L)); A(valu("v_add_u32", v(vT + 3), s(sT0), v(vT + 3)))
    return o
def touch_setup1b():
    o = []; A = o.append
    A(salu("s_bitcmp1_b32", None, s(sW), "0", scc_w=True))
    for k in range(3): A(salu("s_cselect_b32", s(STC + k), s(SWQ + k), s(SX + k)))
    A(salu("s_mov_b32", s(STC + 3), "0x20000"))
    A(salu("s_cmp_ge_u32", None, s(sW), "2")); A(salu("s_cselect_b32", s(STC + 2), "0", s(STC + 2)))
    return o
def touch_setup3():
    o = []; A = o.append
    A(salu("s_lshr_b32", s(54), "s2", "3")); A(salu("s_lshl_b32", s(54), s(54), "2")); A(salu("s_add_u32", s(54), s(54), s(sW))); A(salu("s_lshl_b32", s(54), s(54), "13"))
    A(salu("s_lshl_b32", s(55), s(s3HG), "20")); A(salu("s_add_u32", s(54), s(54), s(55)))
    A(valu("v_lshlrev_b32", "v230", "7", v(vLane))); A(valu("v_add_u32", "v230", s(54), "v230"))
    return o
def touch_setup4():
    return [valu("v_lshrrev_b32", "v230", "5", v(vLane)), valu("v_lshlrev_b32", "v230", "13", "v230"), valu("v_and_b32", "v229", "31", v(vLane)), valu("v_lshl_add_u32", "v230", "v229", "7", "v230")]
def touch_setup2():
    o = []; A = o.append
    A(salu("s_lshl_b32", s(54), s(sB), "21")); A(salu("s_lshl_b32", s(55), s(sH), "15")); A(salu("s_add_u32", s(54), s(54), s(55)))
    o += srd(SX, sWS, sWS + 1, 54, 0, str(1048576 + 32768))
    if cfg.wroll:
        assert cfg.dV == 3
        A(salu("s_lshr_b32", s(54), "s2", "3")); A(salu("s_lshl_b32", s(54), s(54), "15")); A(salu("s_lshl_b32", s(55), s(s3HG), "20")); A(salu("s_add_u32", s(54), s(54), s(55)))
        o += srd(STC2, 56, 57, 54, 0, "32768")
    A(salu("s_lshl_b32", s(54), s(s3RP), "20")); A(valu("v_lshlrev_b32", v(vT + 1), "7", v(vLane))); A(valu("v_add_u32", v(vT + 1), s(54), v(vT + 1)))
    A(valu("v_xor_b32", v(vT), "0x100000", v(vT + 1)))
    A(valu("v_add_u32", v(vT + 2), "0x2000", v(vT))); A(valu("v_add_u32", v(vT + 3), "0x2000", v(vT + 1)))
    return o
def p3_wdma(u):
    st = "dma"
    o = [salu("s_add_u32", s(s3U), s(s3ROT), str(u), stream=st), salu("s_and_b32", s(s3U), s(s3U), "15", stream=st), salu("s_lshl_b32", s(s3U), s(s3U), "16", stream=st),
         salu("s_add_u32", "m0", s(sG), str(WU[u % NW_] * UNIT), stream=st)]
    for m in range(4): o.append(dma(v(v3Wd + m), S3W, "0" if cfg.now else s(s3U), m * PIECE, cfg.k2_wflags, grp=f"w{u}", stream=st))
    return o
sXo3 = 48; sXs = 49
OWN = 0
def p3_oload(u, nq):
    st = "dma"
    o = [salu("s_add_u32", s(s3T), s(s3ROT), str(u), stream=st), salu("s_and_b32", s(s3T), s(s3T), "15", stream=st), salu("s_lshl_b32", s(s3T), s(s3T), "14", stream=st)]
    for sg in range(2):
        for a in range(nq): o.append(bload("a", oset(u, sg, a), v(v3Or + sg), S3O, "0" if cfg.noo else s(s3T), a * 1024, cfg.o3flags, grp=f"o{u}", stream=st))
    return o
def p3_reads(u):
    p = u & 1; o = []; sl = WU[u % NW_]
    for tau in range(8):
        for sg in range(2):
            for z in range(2):
                o.append(ds_tr("a", wset3(p, sg, tau) + 2 * z, v(v3Wr + sl // 3), (sl % 3) * UNIT + z * 8 * PIECE + sg * 512 + 32 * tau, stream="rd"))
    return o
def p3_setup2(L):
    o = []; A = o.append
    A(salu("s_lshl_b32", s(sT0), s(sB), "1")); A(salu("s_add_u32", s(sT0), s(sT0), s(s3RP)))
    A(salu("s_lshl_b32", s(sT1), s(sT0), "20")); A(salu("s_lshl_b32", s(sT2), s(s3HG), "18")); A(salu("s_add_u32", s(sT1), s(sT1), s(sT2))); o += srd(S3O, sWS, sWS + 1, sT1, 0, "262144")
    A(salu("s_lshl_b32", s(sT1), s(sT0), "2")); A(salu("s_add_u32", s(sT1), s(sT1), s(s3CQ))); A(salu("s_lshl_b32", s(sT1), s(sT1), "18")); A(salu("s_add_u32", s(sT1), s(sT1), hex(XOFF)))
    o += srd(S3X, sWS, sWS + 1, sT1, 0, "262144")
    A(salu("s_lshl_b32", s(sT1), s(s3RP), "2")); A(salu("s_add_u32", s(sT1), s(sT1), s(s3HG))); A(salu("s_lshl_b32", s(sT1), s(sT1), "15"))
    A(salu("s_lshl_b32", s(sT2), s(s3CQ), "6" if cfg.wil else "8")); A(salu("s_add_u32", s(sT1), s(sT1), s(sT2)))
    A(salu("s_mul_i32", s(sT0), s(sB), "245760")); A(salu("s_add_u32", s(sT0), s(sT0), s(sT1))); A(salu("s_sub_u32", s(sT1), "245760", s(sT1)))
    o += srd(S3Out, 58, 59, sT0, 0, s(sT1))
    A(salu("s_lshl_b32", s(sXo3), s(sW), "12"))
    A(valu("v_lshlrev_b32", v(v3L16), "4", L))
    A(salu("s_lshl_b32", s(sT0), s(sW), "11")); A(valu("v_add_u32", v(v3Or), s(sT0), v(v3L16))); A(valu("v_add_u32", v(v3Or + 1), "0x2000", v(v3Or)))
    A(valu("v_subrev_u32", v(v3Wr), str(UNIT), v(vVrd0))); A(valu("v_add_u32", v(v3Wr + 1), str(3 * UNIT), v(v3Wr))); A(valu("v_add_u32", v(v3Wr + 2), str(6 * UNIT), v(v3Wr)))
    A(valu("v_and_b32", "v97", "15", L)); A(valu("v_lshrrev_b32", "v98", "4", L))
    if cfg.xbf:
        A(valu("v_add_u32", v(v3Rr), s(sXo3), v(v3L16))); A(salu("s_lshl_b32", s(sT0), s(sW), "11")); A(valu("v_add_u32", v(v3Rr + 9), s(sT0), v(v3L16)))
    else:
        A(valu("v_lshlrev_b32", "v101", "9", "v98")); A(valu("v_lshl_add_u32", "v101", "v97", "4", "v101")); A(valu("v_add_u32", v(v3Rr), s(sXo3), "v101"))
        A(valu("v_add_u32", v(v3L16 + 8), "0x2000", v(v3L16)))
    for k in range(1, 4):
        A(salu("s_add_u32", s(sT0), s(s3HG), str(k))); A(salu("s_and_b32", s(sT0), s(sT0), "3")); A(salu("s_lshl_b32", s(sT1), s(s3HG), "2")); A(salu("s_add_u32", s(sT0), s(sT0), s(sT1)))
        A(salu("s_lshl_b32", s(sXs + k - 1), s(sT0), "14"))
    A(valu("v_and_b32", "v101", "3", L)); A(valu("v_max_u32", "v101", "1", "v101")); A(valu("v_add_u32", "v101", s(s3HG), "v101")); A(valu("v_and_b32", "v101", "3", "v101"))
    A(salu("s_lshl_b32", s(sT0), s(s3HG), "7")); A(salu("s_add_u32", s(sT0), s(sT0), s(sF2))); A(valu("v_lshlrev_b32", "v101", "2", "v101")); A(valu("v_add_u32", v(vPl + 2), s(sT0), "v101"))
    A(salu("s_lshr_b32", s(sT0), s(sW), "1")); A(salu("s_lshl_b32", s(sT0), s(sT0), "14")); A(salu("s_and_b32", s(sT1), s(sW), "1")); A(salu("s_lshl_b32", s(sT1), s(sT1), "9" if cfg.wil else "7")); A(salu("s_add_u32", s(sT0), s(sT0), s(sT1)))
    A(valu("v_lshlrev_b32", "v101", "10", "v97")); A(valu("v_lshl_add_u32", "v101", "v98", "3" if cfg.xbf else "4", "v101")); A(valu("v_add_u32", v(v3St), s(sT0), "v101"))
    return o
def poll(lab, base, n):
    o = []; A = o.append
    A(valu("v_lshlrev_b32", "v96", "2", v(vLane))); A(valu("v_add_u32", "v96", s(base), "v96")); A(salu("s_mov_b32", s(sT1), "0"))
    A(raw(f"s_mov_b64 exec, {(1 << n) - 1}", "salu"))
    A(label(lab))
    A(raw(f"global_load_dword v97, v96, s[{sWS}:{sWS+1}] sc1")); A(raw("s_waitcnt vmcnt(0)")); A(raw("v_cmp_ne_u32 vcc, 1, v97"))
    A(raw(f"s_add_u32 s{sT1}, s{sT1}, 1")); A(raw(f"s_cbranch_vccz {lab}_ok"))
    A(raw("s_sleep 1")); A(raw(f"s_cmp_lt_u32 s{sT1}, 0x200000")); A(raw(f"s_cbranch_scc1 {lab}"))
    A(label(f"{lab}_ok")); A(raw("s_mov_b64 exec, -1", "salu"))
    return o
def p3_front(V):
    L = v(vLane); o = []; A = o.append
    A(label("L_p3")); o += p3_setup2(L)
    A(salu("s_mov_b32", s(sTo), "0"))
    A(label("L_p3_r")); A(salu("s_cmp_lg_u32", None, s(sRDY), "0")); A(raw("s_cbranch_scc1 L_p3_rok", "branch", rd=["scc"]))
    A(salu("s_add_u32", s(sTo), s(sTo), "1")); A(salu("s_cmp_gt_u32", None, s(sTo), "0x100000")); A(raw("s_cbranch_scc1 L_p3_rok", "branch", rd=["scc"]))
    for x in group_load(): x.grp = None; x.k = "other" if x.k == "vmem" else x.k; A(x)
    A(raw("s_waitcnt vmcnt(0)")); o += group_eval(); A(raw("s_sleep 8")); A(raw("s_branch L_p3_r", "branch"))
    A(label("L_p3_rok"))
    A(salu("s_and_b32", s(sT0), s(sH), "7")); A(salu("s_lshl_b32", s(sT0), s(sT0), "2")); A(salu("s_add_u32", s(sT0), s(sT0), s(sF1)))
    A(valu("v_mov_b32", "v96", s(sT0))); A(valu("v_mov_b32", "v97", "1"))
    A(valu("v_and_b32", v(vPl), "7", L)); A(valu("v_lshlrev_b32", v(vPl), "2", v(vPl))); A(valu("v_add_u32", v(vPl), s(sF1), v(vPl)))
    A(waitvm(0)); A(barrier()); o += stamp(6)
    A(salu("s_cmp_lg_u32", None, s(sW), "0")); A(raw("s_cbranch_scc1 L_p3_a", "branch", rd=["scc"]))
    A(salu("s_cmp_eq_u32", None, s(sUNI), "1")); A(raw("s_cbranch_scc1 L_p3_u", "branch", rd=["scc"]))
    A(raw("buffer_wbl2 sc1")); A(raw("s_waitcnt vmcnt(0)"))
    o += one_lane(raw(f"global_store_dword v96, v97, s[{sWS}:{sWS+1}] sc1"))
    A(raw("s_branch L_p3_a", "branch"))
    A(label("L_p3_u"))
    o += one_lane(raw(f"global_store_dword v96, v97, s[{sWS}:{sWS+1}]"))
    A(label("L_p3_a"))
    A(salu("s_lshl_b32", s(sT0), s(s3RP), "2")); A(salu("s_add_u32", s(sT0), s(sT0), s(sW)))
    A(salu("s_cmp_eq_u32", None, s(sT0), "7")); A(raw("s_cbranch_scc1 L_g1", "branch", rd=["scc"]))
    V.finish(o, sched=False)
vPl = 112
def p3_gemm(nq, name, V0):
    V = Variant(nq, name); V.vm = list(V0.vm); V.trace = list(V0.trace); V.pend = list(V0.pend)
    pollld = lambda: I(f"global_load_dword v{vPl+1}, v{vPl}, s[{sWS}:{sWS+1}] sc1", "vmem", rd=[v(vPl)], wr=[v(vPl + 1)], meta="load", grp="poll", stream="dma")
    r0 = p3_reads(0)
    V.finish([label(f"L_{name}")] + p3_oload(0, nq) + r0[:16] + p3_oload(1, nq) + stamp(7) + stamp(1, "g"), sched=False)
    n = 16 * nq
    no = 2; nw = NW_
    o = r0[16:]
    for k, x in enumerate(o): x.tgt = -1 + k // 2
    prev = None; G = 0; wq = []
    for c in range(16):
        p = c & 1
        m = [mfma("v", a * 32 + 4 * tau, "a", wset3(p, sg, tau), "a", oset(c, sg, a), "0" if (c == 0 and sg == 0) else None) for tau in range(8) for a in range(nq) for sg in range(2)]
        w = wvm({f"o{c}", f"w{c+1}"} | ({f"w{c+2}"} if cfg.gbar2 and c % 2 == 0 and c >= 6 else set()), tgt=G - 1, stream=["bar", "dma"])
        if prev: w.after = [prev[-2]]
        m[0].after = [w]
        o += [w]
        b = None
        if 0 < c < 15 and (c % 2 == 0 or not cfg.gbar2):
            b = barrier(tgt=G, stream=["bar", "dma"])
            if prev: b.after = [prev[-1]]
            o += [b]
        o += m
        if c < 15:
            d = []
            if c == 0: d += p3_wdma(7) + [pollld()] + p3_wdma(8)
            else:
                for rep in range(3 if c == 1 else 2):
                    if no < 16 and no <= c + cfg.odepth: d += p3_oload(no, nq); no += 1
                k = 0
                while c >= 2 and k < cfg.wrate and (wq or (nw < 16 and nw <= (c & ~1 if cfg.gbar2 else c) + NW_ - 1)):
                    if not wq: wq = p3_wdma(nw); nw += 1
                    elif k == 0: d.append(salu("s_add_u32", "m0", s(sG), str(WU[(nw - 1) % NW_] * UNIT), stream="dma"))
                    while wq[0].k != "vmem": d.append(wq.pop(0))
                    d.append(wq.pop(0)); k += 1
            rd = p3_reads(c + 1)
            if b: rd[0].after = [b]
            vm = [x for x in d if x.k == "vmem"]
            vg = [int((k + 0.5) * n / len(vm)) for k in range(len(vm))] if vm else []
            if c == 1: vg = [1 + k * (n - 2) // len(vm) for k in range(len(vm))]
            for k, x in enumerate(vm): x.tgt = G + vg[k]
            lo = 8 * nq // 2 if c == 0 else 1
            free = [g for g in range(lo, n) if g not in vg] if (len(vg) < n - 4 and not cfg.gdl) else list(range(lo, n))
            for k, x in enumerate(rd): x.tgt = G + free[k * len(free) // 32]
            nxt = G + n
            for x in reversed(d):
                if x.k == "vmem": nxt = x.tgt
                else: nxt = x.tgt = max(G, nxt - 1)
            o += rd + d
        if c in (0, 1, 3, 7, 11): o += stampf(2 + (0, 1, 3, 7, 11).index(c), "g", m[-1], G + n - 1)
        prev = m; G += n
        if c == 0:
            V.finish(o, strict=True)
            q = [wvm({"poll"}), label(f"L_{name}_pl"), valu("v_cmp_ne_u32", "vcc", "1", v(vPl + 1)), salu("s_mov_b32", s(sT1), "0"), raw(f"s_cbranch_vccz L_{name}_pok", "branch"),
                 label(f"L_{name}_pl2"), raw("s_sleep 1"), raw(pollld().t), raw("s_waitcnt vmcnt(0)"), raw(f"v_cmp_ne_u32 vcc, 1, v{vPl+1}"), raw(f"s_add_u32 s{sT1}, s{sT1}, 1"),
                 raw(f"s_cbranch_vccz L_{name}_pok"), raw(f"s_cmp_lt_u32 s{sT1}, 0x200000"), raw(f"s_cbranch_scc1 L_{name}_pl2"),
                 label(f"L_{name}_pok"), salu("s_cmp_eq_u32", None, s(sUNI), "1"), raw(f"s_cbranch_scc1 L_{name}_pgo", "branch"),
                 raw("buffer_inv sc1"), raw("s_waitcnt vmcnt(0)"), label(f"L_{name}_pgo")]
            V.finish(q, sched=False)
            o = []; prev = None; G = 0
        if c == 14:
            V.finish(o, strict=True)
            o = []; prev = None; G = 0
    last = o
    V.finish([salu("s_lshl_b32", s(sT0), s(sW), "2"), salu("s_add_u32", s(sT0), s(sT0), s(s3HG)), salu("s_lshl_b32", s(sT0), s(sT0), "14"), salu("s_add_u32", s(sT2), s(sT0), "4096"),
              salu("s_cmp_eq_u32", None, s(sW), s(s3HG)), raw(f"s_cbranch_scc1 L_{name}_own", "branch", rd=["scc"])], sched=False)
    save = (list(V.vm), list(V.trace), list(V.pend))
    import copy
    def clone(seq):
        mp = {x.uid: I(x.t, x.k, x.rd, x.wr, x.crd, x.tgt, x.grp, x.need, x.stream, x.meta) for x in seq}
        for x in seq: mp[x.uid].after = [mp[a_.uid] for a_ in x.after]
        return [mp[x.uid] for x in seq]
    o = clone(last)
    for tau in range(8):
        for a in range(nq):
            t = 2 * nq * tau + 2 * a + 6; r = a * 32 + 4 * tau
            if cfg.xbf:
                d = 64 + a * 16 + 2 * tau
                o += [valu("v_cvt_pk_bf16_f32", v(d), v(r), v(r + 1), tgt=t), valu("v_cvt_pk_bf16_f32", v(d + 1), v(r + 2), v(r + 3), tgt=t)]
                if tau & 1: o.append(bstore("v", d - 2, v(v3L16), S3X, s(sT2 if a else sT0), 1024 * (tau >> 1), cfg.xsc, tgt=t + 1, stream="st"))
            else:
                o.append(bstore("v", r, v(v3L16 + (8 if a else 0)), S3X, s(sT2 if tau >> 2 else sT0), 1024 * (tau & 3), cfg.xsc, tgt=t, stream="st"))
    V.finish(o, strict=True)
    V.finish(stamp(8) + stamp(7, "g") + [barrier(), raw("s_branch L_fin_s", "branch"), label(f"L_{name}_own")], sched=False)
    V.vm, tr, V.pend = list(save[0]), V.trace, list(save[2]); V.trace = list(save[1])
    o = clone(last)
    for tau in range(8):
        for a in range(nq): o.append(ds_w128(v(v3L16), "v", a * 32 + 4 * tau, OWN + (a * 8 + tau) * 1024, tgt=2 * nq * tau + 2 * a + 6, stream="rd"))
    V.finish(o, strict=True)
    V.finish(stamp(8) + stamp(7, "g") + [waitlg(0), barrier(), raw("s_branch L_fin", "branch")], sched=False)
    V.trace2 = tr
    return V
def p3_final():
    V = Variant(4, "fin"); o = []; A = o.append
    A(label("L_fin_s"))
    A(salu("s_lshl_b32", s(sT0), s(sW), "5")); A(salu("s_add_u32", s(sT0), s(sT0), s(s3HG))); A(salu("s_lshl_b32", s(sT0), s(sT0), "2")); A(salu("s_add_u32", s(sT0), s(sT0), s(sF2)))
    A(valu("v_mov_b32", "v96", s(sT0))); A(valu("v_mov_b32", "v97", "1")); A(raw("s_waitcnt vmcnt(0)"))
    o += one_lane(raw(f"global_store_dword v96, v97, s[{sWS}:{sWS+1}] sc1"))
    A(label("L_fin")); o += stamp(8, "g")
    for q in range(4): A(ds_b128("v", 4 * q, v(v3Rr), OWN + (q * 1024 if cfg.xbf else (q >> 1) * 2048 + (q & 1) * 256)))
    A(salu("s_mov_b32", s(sT1), "0"))
    if cfg.ppoll:
        P = cfg.ppoll; ld = lambda k: raw(f"global_load_dword v{98+k}, v{vPl+2}, s[{sWS}:{sWS+1}] sc1")
        for k in range(P - 1): A(ld(k)); A(raw(f"s_sleep {cfg.psleep}"))
        A(label("L_fin_p"))
        for k in range(P):
            A(ld((k + P - 1) % P)); A(raw(f"s_waitcnt vmcnt({P-1})")); A(raw(f"v_cmp_ne_u32 vcc, 1, v{98+k}"))
            A(raw(f"s_add_u32 s{sT1}, s{sT1}, 1")); A(raw("s_cbranch_vccz L_fin_ok")); A(raw(f"s_sleep {cfg.psleep}"))
        A(raw(f"s_cmp_lt_u32 s{sT1}, 0x400000")); A(raw("s_cbranch_scc1 L_fin_p"))
    else:
        A(label("L_fin_p"))
        A(raw(f"global_load_dword v97, v{vPl+2}, s[{sWS}:{sWS+1}] sc1")); A(raw("s_waitcnt vmcnt(0)")); A(raw("v_cmp_ne_u32 vcc, 1, v97"))
        A(raw(f"s_add_u32 s{sT1}, s{sT1}, 1")); A(raw("s_cbranch_vccz L_fin_ok")); A(raw("s_sleep 1")); A(raw(f"s_cmp_lt_u32 s{sT1}, 0x200000")); A(raw("s_cbranch_scc1 L_fin_p"))
    A(label("L_fin_ok"))
    for k in range(1, 4):
        if cfg.xbf:
            for q in range(2): A(bload("v", 16 + 8 * k + 4 * q, v(v3Rr + 9), S3X, s(sXs + k - 1), q * 1024, "sc1", grp=f"x{k}"))
        else:
            for q in range(4): A(bload("v", 16 * k + 4 * q, v(v3Rr), S3X, s(sXs + k - 1), (q >> 1) * 2048 + (q & 1) * 256, "sc1", grp=f"x{k}"))
    for k in range(1, 4):
        A(wvm({f"x{k}"}))
        if cfg.xbf:
            for r in range(8):
                A(valu("v_lshlrev_b32", v(64 + r), "16", v(16 + 8 * k + r))); A(valu("v_and_b32", v(72 + r), "0xffff0000", v(16 + 8 * k + r)))
            for r in range(8):
                A(valu("v_add_f32", v(2 * r), v(2 * r), v(64 + r))); A(valu("v_add_f32", v(2 * r + 1), v(2 * r + 1), v(72 + r)))
        else:
            for r in range(16): A(valu("v_add_f32", v(r), v(r), v(16 * k + r)))
    for r in range(8): A(valu("v_cvt_pk_bf16_f32", v(16 + r), v(2 * r), v(2 * r + 1)))
    if cfg.xbf:
        for q in range(4): A(bstore("v", 16 + 2 * q, v(v3St), S3Out, "0", (256 * (q >> 1) + 32 * (q & 1)) if cfg.wil else 32 * q, cfg.outflags, n=2))
    else:
        for sg in range(2): A(bstore("v", 16 + 4 * sg, v(v3St), S3Out, "0", (256 if cfg.wil else 64) * sg, cfg.outflags))
    o += stamp(9) + stamp(9, "g") + dump_stamps(10, sWS, STAMP_OFF, v(vLane), "L_k1_done") + [raw("s_endpgm")]
    V.finish(o, sched=False)
    return V

HEAD = """; standalone__mha_block_cached__near_ridge: out = softmax((x wq) K^T / sqrt(128)) V wo
"""
def kd(name, vg, acc_off):
    return f""".amdhsa_kernel {name}
  .amdhsa_next_free_vgpr {vg}
  .amdhsa_next_free_sgpr 102
  .amdhsa_accum_offset {acc_off}
  .amdhsa_group_segment_fixed_size 0
  .amdhsa_kernarg_size 64
  .amdhsa_user_sgpr_count 2
  .amdhsa_user_sgpr_kernarg_segment_ptr 1
  .amdhsa_system_sgpr_workgroup_id_x 1
.end_amdhsa_kernel
"""
def check(pre, V):
    tr = pre + V.trace
    for nm, f in (("hazard", check_hazards), ("lgkm", check_lgkm), ("vm", check_vm)):
        bad = f(tr)
        if bad:
            print(V.name, nm, len(bad), bad[:6], file=sys.stderr); raise SystemExit(1)
def build():
    KN = "standalone__mha_block_cached__near_ridge_kernel"
    out = HEAD
    out += f"; @launch grid=(256,1,1) block=(256,1,1) lds={LDS1 + 64 + GRP}\n"
    out += '.amdgcn_target "amdgcn-amd-amdhsa--gfx950"\n.text\n'
    out += f".globl {KN}\n.p2align 8\n.type {KN},@function\n{KN}:\n"
    pre = fix_hazards(k1_setup() + [salu("s_cmp_eq_u32", None, s(sW), "3"), raw("s_cbranch_scc1 L_w3", "branch")])
    import core
    def text(seq, _t=core.text):
        if not cfg.align: return _t(seq)
        r = ""; blk = []
        for c in seq + [None]:
            if c is None or (c.k == "label" and blk):
                a, _, miss = align8(blk, pad=cfg.align > 1); r += _t(a); blk = []
                if c is not None: r += "  .p2align 3, , 4\n" if False else "  .p2alignl 3, 0xbf800000\n"
            if c is not None: blk.append(c)
        return r
    out += text(pre)
    for nq, name in ((4, "w012"), (3, "w3")):
        V = k1_variant(nq, name, pre); check(pre, V)
        print(name, "loop (mfma, est cycles):", V.loop_stats, "total est", gap_stats(V.trace), file=sys.stderr)
        out += text(V.static)
    F = Variant(4, "p3"); F.vm = [x for x in V.vm[:V.npre] if x.grp and x.grp[0] == "w"]
    p3_front(F); check([], F)
    out += text(F.static)
    for nq, name in ((2, "g2"), (1, "g1")):
        W = p3_gemm(nq, name, F); check([], W); W.trace = W.trace2; check([], W)
        print(name, "total est", gap_stats(W.static), file=sys.stderr)
        out += text(W.static)
    W = p3_final(); check([], W); out += text(W.static)
    out += "L_k1_done:\n  s_endpgm\n"

    out += '.section .rodata,"a"\n.p2align 6\n' + kd(KN, 512, 256)
    return out
if __name__ == "__main__":
    path = sys.argv[1]
    for kv in sys.argv[2:]:
        k, val = kv.split("=")
        cur = getattr(cfg, k)
        setattr(cfg, k, (val == "1") if isinstance(cur, bool) else tuple(int(z) for z in val.split(",")) if isinstance(cur, tuple) else int(val, 0) if isinstance(cur, int) else type(cur)(val.replace("+", " ")))
    EAGER[0] = cfg.eager
    txt = build()
    if cfg.cpf:
        import subprocess
        open("_p1.s", "w").write(txt.replace("CODE_SHARE", "0x1000").replace("CODE_LAST", "0x10000"))
        subprocess.check_call(["clang", "-x", "assembler", "-target", "amdgcn-amd-amdhsa", "-mcpu=gfx950", "-c", "_p1.s", "-o", "_p1.o"])
        sym = {l.split()[7]: int(l.split()[1], 16) for l in subprocess.check_output(["llvm-readelf", "-s", "_p1.o"], text=True).splitlines() if len(l.split()) == 8 and l.split()[7].startswith("L_")}
        last = sym["L_k1_done"] - sym["L_pc"]; share = ((last - 4096) // 32 + 127) & ~127
        assert share <= 4096
        txt = txt.replace("CODE_SHARE", hex(share)).replace("CODE_LAST", hex(last))
    open(path, "w").write(txt)
```

```python
import sys, math, struct
from core import *

PIECE = 1056; GRP = 4 * PIECE; UNIT = 16 * PIECE; SLOT = 2 * UNIT
X_BASE = 3 * UNIT; W_BASE = X_BASE + 2 * SLOT; LDS1 = W_BASE + 2 * UNIT
VOTE = LDS1
QSCALE = struct.unpack("<I", struct.pack("<f", math.log2(math.e) / math.sqrt(128.0)))[0]
LIMIT = 0x4b800000

class Cfg:
    stamps = False
    kvflags = "nt"
    xflags = ""
    wflags = ""
    oflags = ""
    k2_oflags = ""
    k2_wflags = ""
    fallback = True
    rot = 4
    xtouch = False
    g7 = 10
    order = 0
    nokv1 = False
    cpf = 1
    kv1 = True
    mbudget = 16
    fused = True
    pre = 2
    xsc = 'sc1'
    xbf = True
    wrate = 3
    outflags = ''
    touch = True
    pre2 = 3
    gshift = 1
    odepth = 4
    tbudget = 24
    noo = False
    now = False
    o3flags = ''
    nomf3 = False
    forcemix = False
    kvpace = True
    sset = 'main'
    nomfma1 = False
    nord1 = False
    nodma1 = False
    w3dma = True
    kswap = True
    dK = 5
    frac = 1.0
    fracK = 1.0
    dbgst = False
    its = False
    longloop = 0
    kick = 0
    align = 0
    slow = 0
    wtouch = False
    wil = False
    wlate = False
    wroll = 0
    gdl = False
    gbar2 = True
    slowt = False
    c3 = False
    p1w1 = False
    fast0 = True
    p3early = False
    tlbw = 0
    tlbx = False
    pollfirst = False
    kvshift = 0
    msum = 1
    cap3 = 0
    otm = 0
    kve = -8
    dV = 4
    skipk = 0
    stretch = False
    vskip = (2, 3)
    kskip = 0x492
    vpos = 0.03
    kgb = True
    vgb = True
    otd = '233'
    otw = True
    ppoll = 0
    psleep = 4
    cap0 = 0
    backlog = 3
    mix2 = 1
    pack = True
    eager = 16
    extra = 0
    kdt = 2.5
    kgap = 11
    trot = 0
    tsel = '0123'
    pwarm = True
    tflags = ''
    tfrom = 13
    k2map = 1
cfg = Cfg()

sW = 3; SX, SWQ, SK, SV, SO = 8, 12, 16, 20, 24
sB, sH, sROT = 28, 29, 30
sXb, sG = 31, 32
sT0, sT1, sT2 = 33, 34, 35
sXo, sXo2, sWo = 36, 37, 38
sKo, sVo = 46, 47
sS1, sS2, sS3 = 48, 49, 50
sV = (40, 41, 42, 43, 7)
def vslot(tile):
    if cfg.dV == 3: return (tile & 3) * SLOT
    return (0, SLOT, 2 * SLOT, 3 * SLOT, 4 * SLOT - UNIT)[tile % 5]
sStep = 39
sRho = 6; vKK = 176
def tile_off(dst, tile, add, **kw):
    if not cfg.trot: return [salu("s_mov_b32", s(dst), str(tile * 16384 + add), **kw)]
    o = [salu("s_add_u32", s(dst), s(sRho), str(tile * 16384), **kw), salu("s_and_b32", s(dst), s(dst), "0x3ffff", **kw)]
    return o + ([salu("s_add_u32", s(dst), s(dst), str(add), **kw)] if add else [])
sT = 51; sPASS = 52; sC = 53; sWS = 44; sS0 = 98
vKrd, vVrd, vKrd0, vVrd0, vXrd, vWrd = 232, 233, 234, 235, 236, 237
vOst = 238; vLane = 239; vT = 220
vKV, vX, vWq = 240, 244, 248
ACC = 0; QF = 128
S_ = (0, 32); P_ = (64, 80); NEGM = 192; LSUM = 208; MTRUE = 212; TMP = 216
KF, VF = 192, 224
def acc(a, tau): return ACC + a * 32 + tau * 4
def qf(a, s): return QF + (a * 4 + s) * 4
def wset(p, s, tau): return p * 96 + (s * 8 + tau) * 4
def xset(p, s, a): return p * 96 + 64 + (s * 4 + a) * 4
def oacc(a, t): return a * 32 + t * 4
v = lambda n: f"v{n}"
s = lambda n: f"s{n}"

STAMP_BASE = 60
def stamp(i, sset="main"):
    if not cfg.stamps or (i > 0 and sset != cfg.sset and sset != "k2"): return []
    return [raw(f"s_memrealtime s[{STAMP_BASE+4*i}:{STAMP_BASE+4*i+1}]"), raw(f"s_memtime s[{STAMP_BASE+4*i+2}:{STAMP_BASE+4*i+3}]"), waitlg(0)]
def GOFF(): return " offset:128" if cfg.dbgst else ""
def stampf(i, sset, after, tgt):
    if not cfg.stamps or sset != cfg.sset: return []
    o = [I(f"s_memrealtime s[{STAMP_BASE+4*i}:{STAMP_BASE+4*i+1}]", "salu", tgt=tgt), I(f"s_memtime s[{STAMP_BASE+4*i+2}:{STAMP_BASE+4*i+3}]", "salu", tgt=tgt)]
    for x in o: x.after = [after]
    return o
def dump_stamps(n, wsreg, off, lane, lab):
    if not cfg.stamps: return []
    o = [raw("s_waitcnt vmcnt(0) lgkmcnt(0)")]
    if cfg.dbgst:
        o += [raw("s_cmp_lg_u32 s2, 100"), raw(f"s_cbranch_scc1 {lab}"), raw(f"s_cmp_lg_u32 s{sW}, 0"), raw(f"s_cbranch_scc1 {lab}"), raw("v_mov_b32 v3, 0"), raw("s_mov_b64 exec, 1")]
        for i in range(1, n):
            o += [raw(f"s_sub_u32 s4, s{STAMP_BASE+4*i}, s{STAMP_BASE}"), raw("v_mov_b32 v4, s4"), raw(f"global_store_dword v3, v4, s[100:101] offset:{4*i}"), raw("s_nop 1")]
        o += [raw(f"s_sub_u32 s4, s{STAMP_BASE+4*n-2}, s{STAMP_BASE+2}"), raw("v_mov_b32 v4, s4"), raw(f"global_store_dword v3, v4, s[100:101] offset:0")]
        return o
    o += [raw(f"s_lshl_b32 s4, s2, 10"), raw(f"s_lshl_b32 s5, s{sW}, 8"), raw("s_add_u32 s4, s4, s5"), raw(f"s_add_u32 s4, s4, {off}"),
          raw(f"s_add_u32 s4, s{wsreg}, s4"), raw(f"s_addc_u32 s5, s{wsreg+1}, 0"),
          raw(f"v_cmp_eq_u32 vcc, 0, {lane}"), raw("s_and_saveexec_b64 s[6:7], vcc"), raw(f"s_cbranch_execz {lab}"), raw("v_mov_b32 v3, 0")]
    for i in range(n):
        o += [raw(f"v_mov_b32 v{4+j}, s{STAMP_BASE+4*i+j}") for j in range(4)]
        o += [raw(f"global_store_dwordx4 v3, v[4:7], s[4:5] offset:{16*i}"), raw("s_nop 1")]
    return o
STAMP_OFF = 0x2000000

def srd(reg, lo, hi, add, sub, nrec):
    o = [salu("s_add_u32", s(reg), s(lo), s(add)), salu("s_addc_u32", s(reg + 1), s(hi), "0")]
    if sub: o += [salu("s_sub_u32", s(reg), s(reg), str(sub)), salu("s_subb_u32", s(reg + 1), s(reg + 1), "0", scc_r=True, scc_w=True)]
    o += [salu("s_mov_b32", s(reg + 2), nrec), salu("s_mov_b32", s(reg + 3), "0x20000")]
    return o

def k1_setup():
    o = []
    A = o.append
    A(raw("s_cmp_ge_u32 s2, 256")); A(raw("s_cbranch_scc1 L_k1_done"))
    o += stamp(0)
    A(raw("s_load_dwordx4 s[4:7], s[0:1], 0"))
    A(raw("s_load_dwordx4 s[40:43], s[0:1], 16"))
    A(raw(f"s_load_dwordx2 s[{sWS}:{sWS+1}], s[0:1], 56"))
    A(raw("s_load_dwordx4 s[56:59], s[0:1], 32"))
    A(raw("s_load_dwordx2 s[100:101], s[0:1], 48"))
    if cfg.cpf:
        A(raw("s_getpc_b64 s[54:55]")); A(label("L_pc"))
        A(raw("v_cmp_gt_u32 vcc, 64, v0")); A(raw("s_and_saveexec_b64 s[34:35], vcc")); A(raw("s_cbranch_execz L_cpf"))
        A(raw("s_lshr_b32 s33, s2, 3")); A(raw("s_mul_i32 s33, s33, CODE_SHARE")); A(raw("v_lshrrev_b32 v2, 5, v0")); A(raw("v_mul_u32_u24 v2, s33, v2"))
        A(raw("v_lshl_add_u32 v1, v0, 7, v2")); A(raw("v_min_u32 v1, CODE_LAST, v1")); A(raw("global_load_dword v231, v1, s[54:55]"))
        A(label("L_cpf")); A(raw("s_mov_b64 exec, s[34:35]"))
    A(valu("v_lshrrev_b32", "v1", "6", "v0")); A(valu("v_and_b32", v(vLane), "63", "v0"))
    A(valu("v_readfirstlane_b32", s(sW), "v1"))
    A(salu("s_and_b32", s(sT0), "s2", "7")); A(salu("s_lshr_b32", s(sT1), "s2", "3"))
    A(salu("s_and_b32", s(sB), s(sT0), "1")); A(salu("s_lshl_b32", s(sB), s(sB), "2")); A(salu("s_and_b32", s(sT2), s(sT1), "3")); A(salu("s_add_u32", s(sB), s(sB), s(sT2)))
    A(salu("s_lshr_b32", s(sH), s(sT0), "1")); A(salu("s_lshl_b32", s(sH), s(sH), "3")); A(salu("s_lshr_b32", s(sT1), s(sT1), "2")); A(salu("s_add_u32", s(sH), s(sH), s(sT1)))
    A(salu("s_lshl_b32", s(sT2), s(sT2), "1")); A(salu("s_add_u32", s(sROT), s(sH), s(sT2)))
    if cfg.rot == 8: A(salu("s_and_b32", s(sROT), s(sROT), "7"))
    elif cfg.rot == 1: A(salu("s_mov_b32", s(sROT), "0"))
    else:
        A(salu("s_lshr_b32", s(sT2), s(sT2), "1")); A(salu("s_add_u32", s(sROT), s(sH), s(sT2)))
        A(salu("s_and_b32", s(sROT), s(sROT), str(cfg.rot - 1))); A(salu("s_mul_i32", s(sROT), s(sROT), str(8 // cfg.rot)))
    if cfg.c3:
        assert cfg.rot == 4
        A(salu("s_cmp_eq_u32", None, s(sROT), "2")); A(salu("s_cselect_b32", s(sStep), "3", "1"))
    A(salu("s_mul_i32", s(sG), s(sW), str(GRP))); A(salu("s_lshl_b32", s(sXb), s(sG), "1")); A(salu("s_add_u32", s(sXb), s(sXb), str(X_BASE)))
    L = v(vLane)
    A(valu("v_and_b32", "v1", "15", L)); A(valu("v_lshrrev_b32", "v2", "4", L))
    A(valu("v_bfe_u32", "v3", L, "2", "2")); A(valu("v_and_b32", "v4", "3", L))
    A(valu("v_lshrrev_b32", "v5", "5", L)); A(valu("v_lshlrev_b32", "v5", "15", "v5"))
    A(valu("v_bfe_u32", "v6", L, "3", "2")); A(valu("v_lshl_add_u32", "v5", "v6", "12", "v5"))
    A(valu("v_and_b32", "v6", "7", L)); A(valu("v_lshl_add_u32", "v5", "v6", "4", "v5"))
    A(salu("s_lshl_b32", s(sT0), s(sW), "16")); A(salu("s_add_u32", s(sT0), s(sT0), "128"))
    A(valu("v_add_u32", v(vX), s(sT0), "v5"))
    for m in range(1, 4): A(valu("v_subrev_u32", v(vX + m), str(32 * m), v(vX)))
    A(salu("s_and_b32", s(sT0), s(sW), "1")); A(salu("s_lshl_b32", s(sT0), s(sT0), "16"))
    A(salu("s_lshr_b32", s(sT1), s(sW), "1")); A(salu("s_lshl_b32", s(sT1), s(sT1), "15")); A(salu("s_add_u32", s(sT0), s(sT0), s(sT1)))
    A(valu("v_lshlrev_b32", "v5", "17", "v2")); A(valu("v_lshl_add_u32", "v5", "v1", "4", "v5"))
    A(valu("v_add_u32", v(vWq), s(sT0), "v5"))
    for m in range(1, 4): A(valu("v_add_u32", v(vWq + m), str(m * (8192 - PIECE)), v(vWq)))
    late = []; A0 = A; A = late.append; o0 = o; o = late
    A(salu("s_mov_b32", s(sC), hex(QSCALE))); A(salu("s_mov_b32", s(sPASS), "0"))
    A(salu("s_lshl_b32", s(sT0), s(sW), "12")); A(salu("s_add_u32", s(sT0), s(sT0), "128"))
    A(valu("v_lshlrev_b32", v(vOst), "4", L)); A(valu("v_add_u32", v(vKV), s(sT0), v(vOst)))
    for m in range(1, 4): A(valu("v_subrev_u32", v(vKV + m), str(32 * m), v(vKV)))
    o += k1_setup2() + (touch_setup1a() if cfg.xtouch or cfg.c3 else [])
    o = o0; A = A0
    if not cfg.fast0: o += late; late = []
    if cfg.slowt:
        A(salu("s_lshr_b32", s(sT0), "s2", "3")); A(salu("s_lshl_b32", s(sT0), s(sT0), "17")); A(salu("s_lshr_b32", s(sT1), s(sH), "3")); A(salu("s_lshl_b32", s(sT1), s(sT1), "11"))
        A(salu("s_add_u32", s(sT0), s(sT0), s(sT1))); A(salu("s_add_u32", s(sT0), s(sT0), "384"))
        A(valu("v_lshlrev_b32", "v8", "13", "v1")); A(valu("v_and_b32", "v9", "1", "v2")); A(valu("v_lshl_add_u32", "v8", "v9", "10", "v8")); A(valu("v_add_u32", "v8", s(sT0), "v8"))
        A(salu("s_and_b32", s(sT0), s(sH), "7")); A(salu("s_mul_i32", s(sT0), s(sT0), "30720")); A(salu("s_mul_i32", s(sT1), s(sB), "245760")); A(salu("s_add_u32", s(sT0), s(sT0), s(sT1))); A(salu("s_add_u32", s(sT0), s(sT0), "384"))
        A(valu("v_min_u32", "v9", "29", L)); A(valu("v_lshlrev_b32", "v9", "10", "v9")); A(valu("v_add_u32", "v9", s(sT0), "v9"))
    A(salu("s_mul_i32", s(sT0), s(sB), "245760")); A(salu("s_lshl_b32", s(sT1), s(sH), "8")); A(salu("s_sub_u32", s(sT2), "0x400000", s(sT1)))
    A(salu("s_cmp_eq_u32", None, s(sW), "1"))
    A(raw("s_waitcnt lgkmcnt(0)", "other"))
    if cfg.slowt:
        A(raw("s_cbranch_scc0 L_st0", "branch")); A(raw("global_load_dword v231, v9, s[4:5]")); A(label("L_st0"))
        A(salu("s_cmp_eq_u32", None, s(sW), "0")); A(raw("s_cbranch_scc0 L_st1", "branch")); A(raw("global_load_dword v231, v8, s[42:43]")); A(label("L_st1"))
    o += stamp(1, "st")
    o += srd(SX, 4, 5, sT0, 128, str(245760 + 128)) + srd(SWQ, 42, 43, sT1, 0, s(sT2))
    rest = []; A = rest.append
    A(salu("s_lshl_b32", s(sT0), s(sB), "5")); A(salu("s_add_u32", s(sT0), s(sT0), s(sH))); A(salu("s_lshl_b32", s(sT0), s(sT0), "18"))
    if cfg.kvshift: A(salu("s_add_u32", s(sT0), s(sT0), str(cfg.kvshift)))
    rest += srd(SK, 6, 7, sT0, 128, str(262144 + 128 - cfg.kvshift)) + srd(SV, 40, 41, sT0, 128, str(262144 + 128 - cfg.kvshift))
    if cfg.trot == 1: A(salu("s_mul_i32", s(sRho), "s2", "0x9E3779B1")); A(salu("s_lshr_b32", s(sRho), s(sRho), "28")); A(salu("s_lshl_b32", s(sRho), s(sRho), "14"))
    if cfg.trot == 2: A(salu("s_and_b32", s(sRho), "s2", "7")); A(salu("s_lshl_b32", s(sRho), s(sRho), "15"))
    if cfg.trot == 3: A(salu("s_lshr_b32", s(sRho), "s2", "4")); A(salu("s_lshl_b32", s(sRho), s(sRho), "14"))
    if cfg.trot:
        for m in range(4): A(valu("v_subrev_u32", v(vKK + m), "12288", v(vKV + m)))
    A(salu("s_lshl_b32", s(sT0), s(sB), "21")); A(salu("s_lshr_b32", s(sT1), s(sW), "1")); A(salu("s_lshl_b32", s(sT1), s(sT1), "20")); A(salu("s_add_u32", s(sT0), s(sT0), s(sT1)))
    A(salu("s_lshl_b32", s(sT1), s(sH), "15")); A(salu("s_add_u32", s(sT0), s(sT0), s(sT1)))
    A(salu("s_and_b32", s(sT1), s(sW), "1")); A(salu("s_lshl_b32", s(sT1), s(sT1), "12")); A(salu("s_add_u32", s(sT0), s(sT0), s(sT1)))
    rest += srd(SO, sWS, sWS + 1, sT0, 0, "28672")
    c0 = x_dma(0) + w_dma(0); c1 = x_dma(1) + w_dma(1); t = touch_setup1b() + (xw_touch(3, True) if cfg.c3 else []) if cfg.xtouch or cfg.c3 else []
    kv0 = {-3: [("K", 0, (0, 1, 2, 3))], -4: [("K", 0, (0, 1, 2, 3)), ("V", 0, (0, 1))], -5: [("K", 0, (0, 1, 2, 3)), ("V", 0, (0, 1, 2, 3))], -6: [("K", 0, (0, 1))]}.get(cfg.kve, [])
    kv0 = [x for wh, tl, ms in kv0 for x in kv_dma_static(wh, tl, ms=ms)]
    if cfg.order == 0: o += c0 + stamp(2, "st") + late + rest + c1 + stamp(3, "st") + t + xw_touch(2) + kv0
    if cfg.order == 1: o += t + xw_touch(0) + c0 + stamp(2, "st") + xw_touch(2) + c1 + stamp(3, "st") + rest
    if cfg.order == 2: o += t + xw_touch(0) + xw_touch(2) + c0 + stamp(2, "st") + c1 + stamp(3, "st") + rest
    if cfg.order == 4: o += c0 + stamp(2, "st") + t + xw_touch(2) + c1 + stamp(3, "st") + rest
    return o

def k1_setup2():
    o = []; A = o.append
    A(salu("s_mov_b32", s(sT0), str(PIECE)))
    A(valu("v_and_b32", "v5", "7", "v1")); A(valu("v_mul_u32_u24", "v5", s(sT0), "v5"))
    A(valu("v_lshrrev_b32", "v6", "3", "v1")); A(valu("v_lshl_add_u32", "v5", "v6", "8", "v5")); A(valu("v_lshl_add_u32", v(vKrd0), "v2", "4", "v5"))
    A(valu("v_mov_b32", v(vKrd), v(vKrd0)))
    A(valu("v_and_b32", "v5", "1", "v2")); A(valu("v_lshl_add_u32", "v5", "v5", "2", "v3")); A(valu("v_mul_u32_u24", "v5", s(sT0), "v5"))
    A(valu("v_lshrrev_b32", "v6", "1", "v2")); A(valu("v_lshl_add_u32", "v5", "v6", "8", "v5")); A(valu("v_lshl_add_u32", "v5", "v4", "3", "v5"))
    A(valu("v_add_u32", v(vVrd0), str(UNIT), "v5")); A(valu("v_mov_b32", v(vVrd), v(vVrd0))); A(valu("v_add_u32", v(vWrd), str(W_BASE), "v5"))
    A(valu("v_mul_u32_u24", "v5", s(sT0), "v4")); A(valu("v_lshl_add_u32", "v5", "v3", "7", "v5")); A(valu("v_lshl_add_u32", "v5", "v2", "4", "v5"))
    A(valu("v_add_u32", v(vXrd), s(sXb), "v5"))
    for a in range(4): A(valu("v_mov_b32", v(MTRUE + a), "0xff800000"))
    A(valu("v_lshrrev_b32", "v5", "1", "v2")); A(valu("v_lshlrev_b32", "v5", "15", "v5")); A(valu("v_and_b32", "v6", "1", "v2")); A(valu("v_lshl_add_u32", "v5", "v6", "13", "v5"))
    if cfg.wil: A(valu("v_lshl_add_u32", "v5", "v3", "8", "v5")); A(valu("v_lshl_add_u32", "v5", "v4", "4", "v5"))
    else: A(valu("v_lshl_add_u32", "v5", "v1", "4", "v5"))
    A(salu("s_lshr_b32", s(sT0), s(sW), "1")); A(salu("s_lshl_b32", s(sT0), s(sT0), "14")); A(salu("s_and_b32", s(sT1), s(sW), "1")); A(salu("s_lshl_b32", s(sT1), s(sT1), "12"))
    A(salu("s_add_u32", s(sT0), s(sT0), s(sT1))); A(valu("v_add_u32", "v5", s(sT0), "v5"))
    for m in range(4): A(valu("v_add_u32", v(v3Wd + m), str(128 - 32 * m), "v5"))
    return o

def x_dma(c, t0=None, dt=1, after=None):
    p = c & 1; o = []; g = f"c{c}"; st = "dma"
    def T(k): return None if t0 is None else int(t0 + k * dt)
    def U(k): return None if t0 is None else int(t0 - 7 + k)
    if cfg.c3: o.append(salu("s_mul_i32", s(sT0), s(sStep), str(c), tgt=U(-1), stream="xa"))
    o.append(salu("s_add_u32", s(sT0), s(sROT), s(sT0) if cfg.c3 else str(c), tgt=U(0), stream="xa")); o.append(salu("s_and_b32", s(sT0), s(sT0), "7", tgt=U(1), stream="xa"))
    o.append(salu("s_lshl_b32", s(sXo), s(sT0), "7", tgt=U(2), stream="xa")); o.append(salu("s_lshl_b32", s(sWo), s(sT0), "19", tgt=U(3), stream="xa"))
    o.append(salu("s_add_u32", s(sXo2), s(sXo), "16384", tgt=U(4), stream="xa"))
    k = 0
    for half in range(2):
        o.append(salu("s_add_u32", "m0", s(sXb), str(p * SLOT + half * GRP), tgt=T(k - 1), stream=st))
        for m in range(4):
            d = dma(v(vX + m), SX, s(sXo2 if half else sXo), m * PIECE, cfg.xflags, grp=g, tgt=T(k), stream=st); k += 1
            if after: d.after = list(after)
            o.append(d)
    return o
def w_dma(c, t0=None, dt=1):
    p = c & 1; o = []; g = f"c{c}"; st = "dma"
    def T(k): return None if t0 is None else int(t0 + k * dt)
    o.append(salu("s_add_u32", "m0", s(sG), str(W_BASE + p * UNIT), tgt=T(-1), stream=st))
    for m in range(4): o.append(dma(v(vWq + m), SWQ, s(sWo), m * PIECE, cfg.wflags, grp=g, tgt=T(m), stream=st))
    return o
def kv_dma_static(which, tile, t0=None, dt=1, grp=0, ms=(0, 1, 2, 3)):
    st = "dma"
    def T(k): return None if t0 is None else t0 + k * dt
    o = tile_off(sT1, tile, grp * 4096, tgt=T(-1), stream=st) + [
         salu("s_add_u32", "m0", s(sG), str((vslot(tile) + UNIT if which == "V" else (tile & 3) * SLOT) + grp * GRP), tgt=T(-1), stream=st)]
    for k, m in enumerate(ms): o.append(dma(v(vKV + m), SK if which == "K" else SV, s(sT1), m * PIECE, cfg.kvflags, grp=f"{which}{tile}", tgt=T(k), stream=st))
    return o
def chunk_reads(c, nq, t0=None, dt=1):
    p = c & 1; o = []; k = 0
    def T(k): return None if t0 is None else t0 + k * dt
    items = []
    for s_ in range(2):
        for a in range(nq): items.append(("x", s_, a))
    for tau in range(8):
        for s_ in range(2):
            for z in range(2): items.append(("w", s_, tau, z))
    for it in items:
        if it[0] == "x":
            _, s_, a = it
            o.append(ds_b128("a", xset(p, s_, a), v(vXrd), p * SLOT + (a & 1) * GRP + (a >> 1) * 512 + s_ * 64, tgt=T(k), stream="rd"))
        else:
            _, s_, tau, z = it
            o.append(ds_tr("a", wset(p, s_, tau) + 2 * z, v(vWrd), p * UNIT + z * 8 * PIECE + s_ * 512 + 32 * tau, tgt=T(k), stream="rd"))
        k += 1
    return o
def chunk_mfma(c, nq, amajor=False):
    p = c & 1; o = []
    order = [(a, tau) for a in range(nq) for tau in range(8)] if amajor else [(a, tau) for tau in range(8) for a in range(nq)]
    for a, tau in order:
        for s_ in range(2):
            z = (c == 0 and s_ == 0)
            o.append(mfma("v", acc(a, tau), "a", wset(p, s_, tau), "a", xset(p, s_, a), "0" if z else None))
    return o
def q_convert(a, t0, dt):
    o = []; k = 0
    for s_ in range(4):
        d = qf(a, s_)
        for half in range(2):
            b = acc(a, 2 * s_ + half)
            for r in range(4): o.append(valu("v_mul_f32", v(b + r), s(sC), v(b + r), tgt=t0 + k * dt)); k += 1
            for r in range(2): o.append(valu("v_cvt_pk_bf16_f32", v(d + 2 * half + r), v(b + 2 * r), v(b + 2 * r + 1), tgt=t0 + k * dt)); k += 1
        for r in range(2): o.append(swap("v_permlane32_swap_b32", v(d + r), v(d + 2 + r), tgt=t0 + k * dt)); k += 1
        for r in range(2): o.append(swap("v_permlane16_swap_b32", v(d + r), v(d + 2 + r), tgt=t0 + k * dt)); k += 1
    return o
def k_reads(j, t0=None, dt=4, after=None):
    o = []
    for r in range(8):
        kap, s_ = r >> 2, r & 3
        i = ds_b128("a", KF + 4 * r, v(vKrd), j * 8 * PIECE + kap * 512 + s_ * 64, tgt=None if t0 is None else t0 + r * dt, stream="rd")
        if after: i.after = list(after)
        o.append(i)
    return o
def v_reads(j, t0, dt):
    o = []
    for r in range(16):
        t, z = r >> 1, r & 1
        o.append(ds_tr("a", VF + 4 * t + 2 * z, v(vVrd), j * 8 * PIECE + z * 512 + 32 * t, tgt=t0 + r * dt, stream="rd"))
    return o
def qk(j, nq, first=False):
    o = []
    for a in range(nq):
        for kap in range(2):
            d = S_[j] + a * 8 + kap * 4
            for s_ in range(4):
                if s_ == 0: o.append(mfma("v", d, "a", KF + 4 * (kap * 4), "v", qf(a, 0), "0" if first else "v", None if first else NEGM + 4 * a))
                else: o.append(mfma("v", d, "a", KF + 4 * (kap * 4 + s_), "v", qf(a, s_)))
    return o
ONES = 128; LM = 96
def mtiles(nq): return list(range(cfg.msum)) if nq == 4 else []
def lsreg(a, nq): return LM + 4 * a if a in mtiles(nq) else LSUM + a
def lsum_mfma(j, a, first=False): return mfma("v", LM + 4 * a, "a", ONES, "v", P_[j] + 4 * a, "0" if first else None)
def pv(j, nq, first=False):
    o = [mfma("a", oacc(a, t), "a", VF + 4 * t, "v", P_[j] + 4 * a, "0" if first else None) for t in range(8) for a in range(nq)]
    return o + [lsum_mfma(j, a, first) for a in mtiles(nq)]
def sm(j, nq, t0, dt=2.0, mix=False):
    o = []
    order = list(range(8 * nq))
    if mix and len(mtiles(nq)) == 2:
        order = [e_ for k in range(8) for e_ in (2 * k, 2 * k + 1, 16 + 2 * k, 17 + 2 * k)]
        if cfg.mix2 == 0: order = list(range(32))
        if cfg.mix2 == 2: order = [e_ for k in range(4) for e_ in (2 * k, 2 * k + 1, 16 + 2 * k, 17 + 2 * k)] + [e_ for k in range(4) for e_ in (24 + 2 * k, 25 + 2 * k, 8 + 2 * k, 9 + 2 * k)]
    if mix and len(mtiles(nq)) == 1:
        order = [e_ for k in range(4) for e_ in (2 * k, 2 * k + 1, 8 + 2 * k, 9 + 2 * k)] + list(range(16, 32))
    for n_, i in enumerate(order):
        r = S_[j] + i; a = i >> 3
        o.append(valu("v_exp_f32", v(r), v(r), tgt=int(t0 + n_ * dt)))
        if a not in mtiles(nq): o.append(valu("v_add_f32", v(LSUM + a), v(LSUM + a), v(r), tgt=int(t0 + n_ * dt + 1)))
        if i & 1: o.append(valu("v_cvt_pk_bf16_f32", v(P_[j] + (i >> 1)), v(r - 1), v(r), tgt=int(t0 + n_ * dt + 1)))
    return o
def xreduce(op, reg, tmp, t0=None, dt=1):
    def T(k): return None if t0 is None else t0 + k * dt
    return [valu("v_mov_b32", v(tmp), v(reg), tgt=T(0)), swap("v_permlane16_swap_b32", v(reg), v(tmp), tgt=T(1)), valu(op, v(reg), v(reg), v(tmp), tgt=T(2)),
            valu("v_mov_b32", v(tmp), v(reg), tgt=T(3)), swap("v_permlane32_swap_b32", v(reg), v(tmp), tgt=T(4)), valu(op, v(reg), v(reg), v(tmp), tgt=T(5))]
def first_max(a, t0, dt):
    o = []; b = S_[0] + a * 8; m = TMP + 2 * a; k = 0
    o.append(valu("v_max3_f32", v(m), v(b), v(b + 1), v(MTRUE + a), tgt=t0))
    for r in range(1, 4): o.append(valu("v_max3_f32", v(m), v(b + 2 * r), v(b + 2 * r + 1), v(m), tgt=t0 + r * dt))
    o += xreduce("v_max_f32", m, m + 1, t0 + 4 * dt, dt)
    for r in range(4): o.append(valu("v_sub_f32", v(NEGM + 4 * a + r), "0", v(m), tgt=t0 + (10 + r) * dt))
    for r in range(8): o.append(valu("v_sub_f32", v(b + r), v(b + r), v(m), tgt=t0 + (14 + r) * dt))
    o.append(valu("v_mov_b32", v(LSUM + a), "0", tgt=t0))
    return o

class Variant:
    def __init__(s_, nq, name):
        s_.nq, s_.name = nq, name
        s_.static = []
        s_.trace = []
        s_.vm = []
        s_.pend = []
    def finish(s_, seq, sched=True, **kw):
        seq = schedule(seq, **kw) if sched else seq
        seq = s_.resolve_vm(seq)
        seq, s_.pend = insert_lgkm(seq, s_.pend)
        seq = fix_hazards(seq, s_.trace)
        s_.static += seq; s_.trace += seq
        return seq
    def resolve_vm(s_, seq):
        out = []
        for c in seq:
            if c.k == "wait" and c.meta == ("vm", None):
                n = min(vm_count(s_.vm, c.need), 63)
                w = waitvm(n, need=c.need); out.append(w)
            else:
                out.append(c)
                if c.k == "vmem": s_.vm.append(c)
        return out
def wvm(groups, **kw): return I("s_waitcnt vmcnt(?)", "wait", meta=("vm", None), need=set(groups), **kw)

sTo = 49 + 50
sKt = 95
def window(T, nq, part, static):
    n = 8 * nq; st = "dma"
    ps = [((m + 0.5) / 4, "V", 0, m) for m in range(4)]
    if nq == 3: ps += [((k + 0.25) / 16, "K", k >> 2, k & 3) for k in range(16 - cfg.skipk)]
    if cfg.kgb: ps = [(p if w_ == "V" else (g_ + 0.02 + 0.085 * m) / 4, w_, g_, m) for p, w_, g_, m in ps]
    if cfg.vgb: ps = [(p if w_ == "K" else 0.63 + 0.016 * m, w_, g_, m) for p, w_, g_, m in ps]
    if cfg.stretch: ps = [(0.27 + 0.16 * g_ + 0.025 * m if w_ == "K" else 0.03 + 0.02 * m, w_, g_, m) for p, w_, g_, m in ps]
    fv = 0.24 if (cfg.wlate and T == 12) else cfg.frac
    ps = sorted((p * (fv if w_ == 'V' else cfg.fracK), w_, g_, m) for p, w_, g_, m in ps)
    o = []; cur = None
    It = T + part
    for p, w_, g_, m in ps:
        if (p >= 0.25) != bool(part): continue
        tile = T + (cfg.dV if w_ == "V" else cfg.dK) - (1 if (cfg.stretch and T >= 0 and (cfg.vskip[0] < 12 if w_ == "V" else cfg.kskip)) else 0)
        if static and tile > 15: continue
        tg = int(3 * n + len(mtiles(nq)) + p * (4 * n - 4)) if part == 0 else int((p - 0.25) * (4 * n - 6)) + 1
        if (w_, g_) != cur:
            cur = (w_, g_)
            if static:
                o += tile_off(sKt, tile, (g_ - (0 if cfg.trot else 3)) * 4096 if w_ == "K" else 0, tgt=tg - 2, stream=st)
                if w_ == "V": o.append(salu("s_add_u32", "m0", s(sG), str(vslot(tile) + UNIT), tgt=tg - 1, stream=st))
                else: o.append(salu("s_mov_b32", "m0", str((tile & 3) * SLOT + g_ * GRP), tgt=tg - 1, stream=st))
            else:
                sl = sV[tile - It] if (w_ == "V" and cfg.dV == 4) else (sS0, sS1, sS2, sS3)[(tile - It) & 3]
                if w_ == "V":
                    o.append(salu("s_add_u32", s(sT0), s(sl), s(sG), tgt=tg - 2, stream=st)); o.append(salu("s_add_u32", "m0", s(sT0), str(UNIT), tgt=tg - 1, stream=st))
                else:
                    o.append(salu("s_add_u32", s(sKt), s(sKo), str(g_ * 4096), tgt=tg - 2, stream=st)); o.append(salu("s_add_u32", "m0", s(sl), str(g_ * GRP), tgt=tg - 1, stream=st))
        cap = cfg.cap3 if nq == 3 else cfg.cap0
        if cap: o.append(waitvm(cap - 1, tgt=tg - 1, stream=st))
        so = sKt if (static or w_ == "K") else sVo
        o.append(dma(v((vKK if (cfg.trot and w_ == "K") else vKV) + m), SV if w_ == "V" else SK, s(so), m * PIECE, cfg.kvflags, grp=f"{w_}{tile}", tgt=tg, stream=st))
    return o
DUMMY = LDS1 + 64
sVs, sVr, sKq, sSk = 40, 41, 42, 43
def next5(r, t0, stream):
    return [salu("s_add_u32", s(r), s(r), str(SLOT), tgt=t0, stream=stream),
            salu("s_cmp_eq_u32", None, s(r), str(4 * SLOT), tgt=t0 + 1, stream=stream), salu("s_cselect_b32", s(r), str(4 * SLOT - UNIT), s(r), stream=stream),
            salu("s_cmp_eq_u32", None, s(r), str(5 * SLOT - UNIT), tgt=t0 + 2, stream=stream), salu("s_cselect_b32", s(r), "0", s(r), stream=stream)]
def window_dyn(T, nq, part):
    n = 8 * nq; st = "dma"; mx = len(mtiles(nq)); o = []
    w_model = 0 if nq == 4 else 3; tskip = cfg.vskip[0] + cfg.vskip[1] * w_model
    nulls = lambda t: sum(1 for z in range(t) if cfg.kskip >> z & 1)
    def ksite(g_, tg):
        q = 16 + 4 * T + g_ - nulls(T)
        null = part and g_ == 3 and cfg.kskip >> T & 1
        x = [salu("s_and_b32", s(sT0), s(sKq), "3", stream=st), salu("s_mul_i32", s(sT0), s(sT0), str(GRP), stream=st),
             salu("s_bfe_u32", s(sKt), s(sKq), "0x20002", scc_w=True, stream=st), salu("s_mul_i32", s(sKt), s(sKt), str(SLOT), stream=st), salu("s_add_u32", s(sT0), s(sT0), s(sKt), stream=st),
             salu("s_lshl_b32", s(sKt), s(sKq), "12", stream=st), salu("s_sub_u32", s(sKt), s(sKt), "12288", stream=st)]
        if part and g_ == 3:
            x += [salu("s_mov_b32", s(sTo), hex(cfg.kskip), stream=st), salu("s_bitcmp1_b32", None, s(sTo), s(sT), scc_w=True, stream=st), salu("s_cselect_b32", s(sKt), "0x7ff00000", s(sKt), stream=st),
                  salu("s_cselect_b32", "m0", str(DUMMY), s(sT0), stream=st), salu("s_subb_u32", s(sKq), s(sKq), "-1", scc_r=True, scc_w=True, stream=st)]
        else: x += [salu("s_mov_b32", "m0", s(sT0), stream=st), salu("s_add_u32", s(sKq), s(sKq), "1", stream=st)]
        for k, y in enumerate(x): y.tgt = tg - len(x) + k
        return x + [dma(v(vKV + m), SK, s(sKt), m * PIECE, cfg.kvflags, grp="null" if null else f"K{q >> 2}", tgt=int(tg + m * 2.5), stream=st) for m in range(4)]
    if part == 0:
        tg = int(3 * n + mx + cfg.vpos * 4 * n) + 2
        tile = T + 4 if T < tskip else T + 3
        x = [salu("s_add_u32", s(sT0), s(sVs), s(sG), stream=st), salu("s_add_u32", s(sT0), s(sT0), str(UNIT), stream=st),
             salu("s_cmp_eq_u32", None, s(sT), s(sSk), stream=st), salu("s_cselect_b32", s(sT1), "0x7ff00000", s(sVo), stream=st), salu("s_cselect_b32", "m0", str(DUMMY), s(sT0), stream=st),
             salu("s_cselect_b32", s(sT2), "0", "1", stream=st)]
        for k, y in enumerate(x): y.tgt = tg - 4 + k
        o += x + [dma(v(vKV + m), SV, s(sT1), m * PIECE, cfg.kvflags, grp="null" if T == tskip else f"V{tile}", tgt=tg + 2 * m, stream=st) for m in range(4)]
        u = tg + 8
        o += [salu("s_lshl_b32", s(sT0), s(sT2), "14", tgt=u, stream="vadv"), salu("s_add_u32", s(sVo), s(sVo), s(sT0), tgt=u + 1, stream="vadv"), salu("s_mov_b32", s(sT0), s(sVs), tgt=u + 2, stream="vadv")]
        o += next5(sVs, u + 3, "vadv")
        o += [salu("s_cmp_eq_u32", None, s(sT2), "0", tgt=u + 6, stream="vadv"), salu("s_cselect_b32", s(sVs), s(sT0), s(sVs), stream="vadv")]
    elif nq == 3:
        for g_ in range(4): o += ksite(g_, int(9 + g_ * cfg.fracK * (3 * n - 20) / 3.4))
    return o
def iteration(T, nq, first=False, peeled=False):
    n = 8 * nq
    st = "dma"
    o = []
    vdt = 2 if nq == 4 else 1.5
    o += qk(0, nq)
    o += v_reads(0, 1, vdt)
    o += sm(1, nq, 0, mix=True)
    o += k_reads(1, n + 1, (n - 4) / 8)
    o += pv(0, nq, first)
    mx = len(mtiles(nq))
    B = 2 * n + mx
    o += qk(1, nq)
    vr = v_reads(1, B + 1, vdt); o += vr
    o.append(valu("v_add_u32", v(vVrd), str(vslot(T + 1)) if peeled else s(sVr if cfg.stretch else sV[1] if cfg.dV == 4 else sS1), v(vVrd0), tgt=B + n + 2))
    o += sm(0, nq, B - 2, 2.0, mix=True)
    w = wvm({f"K{T+2}", f"V{T+1}"} | ({"w0", "w1"} if (T == 14 and cfg.p3early) else set()), tgt=B + n - 3, stream=["rd2", st]); b = barrier(tgt=B + n - 2, stream=["rd2", st])
    w.after = [x for x in o if x.k == "mfma"][B + n - 4:B + n - 3]
    o += [w, b]
    if cfg.its:
        x1 = valu("v_mov_b32", "v126", "s90", tgt=B + n - 1); x1.after = [b]
        x2 = I("s_memrealtime s[90:91]", "salu", tgt=B + n - 1); x2.after = [x1]
        o += [x1, x2, valu("v_cmp_eq_u32", "vcc", "s51", v(vLane), tgt=B + n), valu("v_cndmask_b32", "v127", "v127", "v126", "vcc", tgt=B + n + 2)]
    e = 4 * n + 2 * mx - 1
    t = B + n
    if T >= 12 and peeled:
        eA = []; eB = []; tl = []; tlB = []
        if T == 12: eA = p3_wdma(0) + p3_wdma(1)
        if T == 13: eA = p3_wdma(2); eB = p3_wdma(3)
        if cfg.dV == 4:
            assert cfg.dK == 5
            eA, eB = {12: (p3_wdma(0), p3_wdma(1)), 13: (p3_wdma(2), p3_wdma(3)), 14: (p3_wdma(4), p3_wdma(5) + p3_wdma(6))}[T]
        if cfg.wlate:
            if T == 12: eA = []
            if T == 13: eA = p3_wdma(0) + p3_wdma(1) + p3_wdma(2)
        if cfg.wtouch and T == 12:
            x = I(f"global_load_dword v231, v230, s[56:57]", "vmem", rd=["v230"], meta="load", grp="touch")
            eA = [x]; eB = p3_wdma(0)
        if cfg.wtouch and T == 13: eA = p3_wdma(1) + p3_wdma(2)
        if T == 14 and cfg.dV == 3: eA = p3_wdma(4); eB = p3_wdma(5) + p3_wdma(6)
        if cfg.touch and cfg.otm == 0 and nq == 3:
            cnt = [int(c_) for c_ in cfg.otd]; k0 = sum(cnt[:T - 12]); tl = []
            for k in range(k0, k0 + cnt[T - 12]):
                tl.append(salu("s_mov_b32", s(sTo), str((k >> 2) * 16384), stream=st))
                tl.append(bload("v", 231, v(vT + (k & 3)), SX, s(sTo), 0, cfg.tflags, n=1, grp="touch", stream=st)); tl[-1].wr = set()
            if not cfg.otw: eA = eA + tl; tl = []
        if cfg.touch and cfg.otm:
            def ot(k):
                x = bload("v", 231, "v230", SO, s(sTo), 0, cfg.tflags, n=1, grp="touch", stream=st); x.wr = set()
                return [salu("s_mov_b32", s(sTo), str(k * 16384), stream=st), x]
            where = {1: ((13, "B"), (14, "A")), 2: ((14, "A"), (14, "A")), 3: ((13, "B"), (13, "B")), 4: ((13, "A"), (13, "B")), 5: ((14, "A"), (14, "B"))}[cfg.otm]
            for k, (tt, ab) in reversed(list(enumerate(where))):
                if tt == T and ab == "A": eA = ot(k) + eA
                if tt == T and ab == "B": eB = ot(k) + eB
        for x in eA: x.stream = st
        pre = window(T - 1, nq, 1, True); post = window(T, nq, 0, True)
        if eA: place(eA, 3 if T == 12 else 6, 3 * n - 8)
        if eB: place(eB, t + 2, e - 4)
        def merge(a_, b_):
            items = []
            for z, seq in enumerate((a_, b_)):
                setup = []; m0 = None
                for x in seq:
                    if x.k == "vmem": items.append((x.tgt, len(items), z, setup, m0, x)); setup = []
                    else:
                        setup.append(x)
                        if "m0" in x.wr: m0 = x
            items.sort(key=lambda q_: q_[:2]); res = []; cur = None
            for tg, _, z, setup, m0, x in items:
                if any("m0" in y.wr for y in setup): m0 = next(y for y in setup if "m0" in y.wr)
                elif "m0" in x.rd and cur is not m0: setup = setup + [I(m0.t, m0.k, m0.rd, m0.wr, tgt=tg - 1, stream=m0.stream)]
                if "m0" in x.rd: cur = m0
                res += setup + [x]
            return res
        eA = merge(pre, eA); eB = merge(post, eB)
        if tl:
            nt_ = len(tl) // 2
            for k in range(nt_):
                g = int((k + 0.5) * (e + 1) / nt_); tl[2 * k].tgt = g - 1; tl[2 * k + 1].tgt = g
            tlB = [x for x in tl if x.tgt >= t - 4 + (x.k != "salu")]; tl = [x for x in tl if x not in tlB]
            for x in tlB: x.tgt = max(x.tgt, t + 1)
            eA = merge(eA, tl); eB = merge(eB, tlB)
        k = o.index(w); o[k:k] = eA
        if T < 14:
            o.append(valu("v_add_u32", v(vKrd), str(((T + 2) & 3) * SLOT), v(vKrd0), tgt=B + n - 4))
            o += k_reads(0, B + n + 1, (n - 4) / 8, after=[b])
        else:
            o += [ds_tr("a", KF + 4 * (r >> 1) + 2 * (r & 1), v(vVrd), (r & 1) * 512 + 32 * (r >> 1), tgt=int(B + n + 4 + r * (n - 6) / 16), stream="rd") for r in range(16)]
            for x in o[-16:]: x.after = [b]
        return o + eB + pv(1, nq)
    o.append(valu("v_add_u32", v(vKrd), s(sS2), v(vKrd0), tgt=B + n - 4))
    o += k_reads(0, B + n + 1, (n - 4) / 8, after=[b])
    if cfg.stretch: pre = window_dyn(T, nq, 1)
    else:
        pre = window(T - 1, nq, 1, False)
        for r_ in (sVo, sKo)[:2 if nq == 3 else 1]:
            pre += [salu("s_add_u32", s(r_), s(r_), "16384", tgt=t - 6, stream=st)] + ([salu("s_and_b32", s(r_), s(r_), "0x3ffff", tgt=t - 5, stream=st)] if cfg.trot else [])
    if cfg.wroll and nq == 3:
        x = bload("v", 231, v(vT), STC2, s(sTo), 0, n=1, grp="touch", tgt=B + 6, stream=st); x.wr = set()
        pre += [salu("s_sub_u32", s(sT2), s(sT), str(cfg.wroll), tgt=B, stream="tch"), salu("s_lshl_b32", s(sTo), s(sT2), "13", tgt=B + 1, stream="tch"), x]
        pre.sort(key=lambda y: 0)
    if cfg.kick and nq == 3:
        kk = [salu("s_cmp_eq_u32", None, s(sT), "5", tgt=B + 2, stream=st), salu("s_cselect_b32", s(sTo), "0", "0x7ff00000", tgt=B + 3, stream=st)]
        for z in range(cfg.kick):
            kk.append(bload("v", 231, v(vT + (z & 1)), SX, s(sTo), 0, "nt", n=1, grp="touch", tgt=B + 4 + z, stream=st)); kk[-1].wr = set()
            kk.append(salu("s_add_u32", s(sTo), s(sTo), "8192" if z & 1 else "0", tgt=B + 4 + z, stream=st))
        pre += kk
    if cfg.extra and nq == 4:
        ex = [salu("s_mul_i32", s(sTo), "s2", "0x40000", tgt=4, stream=st), salu("s_lshl_b32", s(sT2), s(sT), "12", tgt=5, stream=st), salu("s_add_u32", s(sTo), s(sTo), s(sT2), tgt=6, stream=st),
              salu("s_add_u32", s(sTo), s(sTo), "0x4000000", tgt=6, stream=st), salu("s_mul_i32", s(sT2), s(sW), "0x4000000", tgt=6, stream=st), salu("s_add_u32", s(sTo), s(sTo), s(sT2), tgt=6, stream=st),
              valu("v_add_u32", "v125", s(sTo), v(vOst), tgt=7), salu("s_mov_b32", "m0", str(8 * UNIT), tgt=8, stream=st)]
        for z in range(cfg.extra): ex.append(I(f"global_load_lds_dwordx4 v125, s[{sWS}:{sWS+1}] offset:{z*1024} nt", "vmem", rd=["v125", "m0"], meta="dma", grp="ex", tgt=9 + z, stream=st))
        pre = ex + pre
    k = o.index(w); o[k:k] = pre
    o += window_dyn(T, nq, 0) if cfg.stretch else window(T, nq, 0, False)
    r = e - 9
    o += pv(1, nq)
    if cfg.stretch:
        o += next5(sVr, B + n + 6, "vrd")
        o += [salu("s_add_u32", s(sS2), s(sS2), str(SLOT), tgt=r + 2, stream="krd"), salu("s_cmp_eq_u32", None, s(sS2), str(4 * SLOT), tgt=r + 3, stream="krd"), salu("s_cselect_b32", s(sS2), "0", s(sS2), stream="krd")]
    else:
        o.append(salu("s_mov_b32", s(sS0), s(sS1), tgt=r + 1, stream=st))
        if cfg.dV == 4:
            rot = [(sT2, sV[0])] + [(sV[k], sV[k + 1]) for k in range(4)] + [(sV[4], sT2)]
            for k, (d_, s_) in enumerate(rot): o.append(salu("s_mov_b32", s(d_), s(s_), tgt=r - 8 + k, stream="vrot"))
        o.append(salu("s_mov_b32", s(sS1), s(sS2), tgt=r + 2, stream=st)); o.append(salu("s_mov_b32", s(sS2), s(sS3), tgt=r + 3, stream=st))
        o.append(salu("s_add_u32", s(sS3), s(sS3), str(SLOT), tgt=r + 4, stream=st)); o.append(salu("s_cmp_eq_u32", None, s(sS3), str(4 * SLOT), tgt=r + 5, stream=st))
        o.append(salu("s_cselect_b32", s(sS3), "0", s(sS3), tgt=r + 6, stream=st))
    o.append(salu("s_add_u32", s(sT), s(sT), "1", tgt=r + 7, stream=st));
    if cfg.longloop:
        for rg_ in (sKo, sVo):
            o += [salu("s_cmp_ge_u32", None, s(rg_), str(262144 - 16384), tgt=r + 8, stream=st), salu("s_cselect_b32", s(sT0), str(14 * 16384), "0", tgt=r + 8, stream=st), salu("s_sub_u32", s(rg_), s(rg_), s(sT0), tgt=r + 8, stream=st)]
    o.append(salu("s_cmp_lt_u32", None, s(sT), str(cfg.longloop or 12), tgt=r + 8, stream=st))
    return o

def pack_iter(o, nq):
    N = sum(1 for x in o if x.k == "mfma"); H = N // 2
    ex = [x for x in o if x.k == "trans"]; ld = [x for x in o if x.k == "lds"]; vm = [x for x in o if x.k == "vmem"]
    va = [x for x in o if x.k == "valu"]
    for i, x in enumerate(ex): x.tgt = (i // 32) * H + ((i % 32) * H) // 32
    eg = {x.tgt for x in ex}
    expo = {next(iter(x.wr)): x.tgt for x in ex[:32]}; expo2 = {next(iter(x.wr)): x.tgt for x in ex[32:]}
    dg = set()
    for x in vm:
        g = min(x.tgt, N - 1)
        while g in dg or g in eg: g += 1
        x.tgt = g; dg.add(g)
    xg = [g for g in range(N) if g not in dg and g not in eg]
    lg = {}
    for x in ld:
        left = len(ld) - len(lg); last = max(lg, default=-1)
        free = [g for g in xg if g > last]
        if len([g for g in free if g >= x.tgt]) >= left: g = next(g for g in free if g >= x.tgt)
        else: g = max(last + 1, min(int(x.tgt), N - 2 - left)); g += g in dg
        lg[g] = x; x.tgt = g
    rdy = []
    for x in va:
        op = x.t.split()[0]
        if op in ("v_add_f32", "v_cvt_pk_bf16_f32"):
            r = max((expo.get(q, expo2.get(q, -1)) if o.index(x) < o.index(ex[32]) else expo2.get(q, -1)) for q in x.rd) + 1
        else: r = x.tgt
        rdy.append((r, len(rdy), x))
    rdy.sort(key=lambda z: z[:2])
    bonus = set()
    def fill():
        k = 0; back = {}
        for g in xg:
            cap = (1 if g in lg else 2) + (g in bonus); take = 0
            while k < len(rdy) and rdy[k][0] <= g and take < cap: rdy[k][2].tgt = g; k += 1; take += 1
            back[g] = sum(1 for z in rdy[k:] if z[0] <= g)
        return len(rdy) - k, back
    while True:
        left, back = fill()
        worst = max(back.values())
        if left == 0 and worst <= cfg.backlog: break
        cand = [g for g in xg if g not in bonus and back[g] > (cfg.backlog if worst > cfg.backlog else 0)]
        if not cand: break
        bonus.add(cand[0] if worst > cfg.backlog else cand[-1])
    left, back = fill()
    if left:
        for z in rdy[len(rdy) - left:]: z[2].tgt = N - 1
    taken = {x.tgt for x in o if x.k in ("wait", "bar")}
    dl = {}
    for idx in range(len(o) - 1, -1, -1):
        x = o[idx]
        if x.k == "salu":
            nx = next((y for y in o[idx + 1:] if y.k in ("vmem", "salu", "wait") and (y.stream == x.stream or (isinstance(y.stream, list) and x.stream in y.stream))), None)
            if nx is not None and (nx.k != "salu" or id(nx) in dl):
                g = nx.tgt - 1
                while g in taken and g > -1: g -= 1
                x.tgt = g; taken.add(g); dl[id(x)] = g
    last = {}
    for x in o:
        if x.k == "salu" and id(x) not in dl:
            g = max(int(x.tgt), last.get(str(x.stream), -1) + 1)
            while g in taken and g < N - 1: g += 1
            x.tgt = min(g, N - 1); taken.add(g); last[str(x.stream)] = g
    return o
def sched_iter(T, nq, **kw):
    extra = kw.pop("extra", [])
    o = fuse_scc(extra + iteration(T, nq, **kw)); extra = []
    if nq == 4 and cfg.pack: return schedule(pack_iter(extra + o, nq), strict=True)
    return schedule(extra + o)
def place(seq, g0, g1):
    vec = [x for x in seq if x.k in COST]
    for k, x in enumerate(vec): x.tgt = g0 + k * (g1 - g0 + 1) // len(vec)
    nxt = g1
    for x in reversed(seq):
        if x.k in COST: nxt = x.tgt
        else: x.tgt = max(-1, nxt - 1); nxt = x.tgt if x.k == "salu" else nxt
    return seq
def weave(a, b, lead=0):
    grp = []; cur = []
    for x in b:
        cur.append(x)
        if x.k in COST: grp.append(cur); cur = []
    if cur: grp[-1] += cur
    out = list(a[:lead]); rest = a[lead:]; k = 0
    for n_, x in enumerate(rest):
        while k < len(grp) and k * len(rest) <= n_ * len(grp): out += grp[k]; k += 1
        out.append(x)
    for y in grp[k:]: out += y
    return out
def xw_touch(c, force=False):
    if not (cfg.xtouch or force): return []
    x = bload("v", 231, v(vT + 2), STC, s(sTo), 0, n=1, grp="touch", stream="dma"); x.wr = set()
    return [salu("s_mul_i32", s(sTo), s(sTs), str(c), stream="dma"), x]
def wo_touch(k):
    x = I(f"global_load_dword v231, v{vT+3}, s[56:57]", "vmem", rd=[v(vT + 3)], meta="load", grp="touch", stream="dma")
    return [x, valu("v_add_u32", v(vT + 3), "0x2000", v(vT + 3), stream="dma")]
def first_tile(nq, G, redo=False):
    h = 8 * nq
    o = qk(0, nq, first=True)
    if cfg.dK == 5 and (cfg.kve == 0 or redo): o += kv_dma_static("K", 3, G + h, 3)
    elif cfg.dK == 5 and cfg.kve == 9: o += kv_dma_static("K", 3, G + h, h // 5)
    elif cfg.dK == 5 and cfg.kve >= 6: o += kv_dma_static("K", 3, G + 4, h // 3)
    if cfg.dV == 4: o += kv_dma_static("V", 2, G + (h + 12 if (cfg.kve in (0, 9) or redo) else 2 * h - 6 - 4 * (h // 4) if cfg.kve >= 6 else 2), h // 4)
    for a in range(nq): o += first_max(a, G + 8 * (a + 1) + 2, 0.5)
    o += k_reads(1, G + h - 6, 1)
    q1 = qk(1, nq); o += q1
    o += sm(0, nq, G + h + 2, 0.9)
    w = wvm({"K1", "V0", "G"}, tgt=G + 2 * h - 3, stream=["dma"]); b = barrier(tgt=G + 2 * h - 2, stream=["dma"])
    w.after = [q1[h - 4]]
    o += [w, b, valu("v_add_u32", v(vKrd), str(SLOT), v(vKrd0), tgt=G + 2 * h - 2)]
    o += k_reads(0, G + 2 * h - 1, 0, after=[b])
    for x in window(-1, nq, 0, True): x.tgt = G + 2 * h - 1; o.append(x)
    for k, (r_, val) in enumerate(((sS0, 0), (sVo, (cfg.dV - 1) * 16384), (sKo, (cfg.dK - 1) * 16384 - 3 * 4096), (sS1, SLOT), (sS2, 2 * SLOT), (sS3, 3 * SLOT), (sT, 0)) + (((sVs, vslot(4)), (sVr, vslot(1)), (sKq, 16), (sVo, 4 * 16384)) if cfg.stretch else tuple((sV[k], vslot(k)) for k in range(5)) if cfg.dV == 4 else ())):
        if cfg.trot and r_ in (sVo, sKo): o += tile_off(r_, (cfg.dV if r_ == sVo else cfg.dK) - 1, 0, tgt=G + 10 + k)
        else: o.append(salu("s_mov_b32", s(r_), str(val), tgt=G + 10 + k))
    if cfg.stretch: o += [salu("s_mul_i32", s(sSk), s(sW), str(cfg.vskip[1]), tgt=G + 24), salu("s_add_u32", s(sSk), s(sSk), str(cfg.vskip[0]), tgt=G + 25)]
    o.append(valu("v_mov_b32", v(vVrd), v(vVrd0), tgt=G + 8))
    if mtiles(nq):
        o.append(valu("v_mov_b32", v(LM), "0x3f803f80", tgt=G + h))
        for r in range(4): o.append(valu("v_accvgpr_write_b32", f"a{ONES + r}", v(LM), tgt=G + h + 1))
    return o
def k1_variant(nq, name, pre):
    V = Variant(nq, name)
    V.finish([label(f"L_{name}")], sched=False)
    n = 16 * nq; nx = 2 * nq
    r0 = chunk_reads(0, nq)
    V.vm = [x for x in pre if x.k == "vmem"]
    o = (clear_flags() if nq == 3 else []) + stamp(4, "st") + [wvm({"c0"})] + stamp(5, "st") + [barrier()] + stamp(1) + stamp(1, "p1") + stamp(1, "p0") + stamp(6, "st") + r0[:nx + 8]
    V.finish(o, sched=False)
    for c in range(7):
        m = chunk_mfma(c, nq)
        w = wvm({f"c{c+1}"}, stream=["rd", "dma"]); b = barrier(stream=["rd", "dma"])
        rd = chunk_reads(c + 1, nq)
        extra = []
        if c in (0, 2): extra += xw_touch(c + 4)
        plan = {0: {5: [("K", 0, (0, 1, 2, 3)), ("V", 0, (0, 1, 2, 3)), ("K", 1, (0, 1))], 6: [("K", 1, (2, 3))]},
                1: {1: [("K", 0, (0, 1))], 2: [("K", 0, (2, 3))], 3: [("V", 0, (0, 1))], 4: [("V", 0, (2, 3))], 5: [("K", 1, (0, 1, 2, 3))], 6: [("K", 2, (0, 1, 2, 3)), ("V", 1, (0, 1, 2, 3))]},
                2: {2: [("K", 0, (0, 1, 2, 3))], 3: [("V", 0, (0, 1, 2, 3))], 4: [("K", 1, (0, 1, 2, 3))], 6: [("K", 2, (0, 1, 2, 3)), ("V", 1, (0, 1, 2, 3))]},
                3: {2: [("K", 0, (0, 1, 2, 3)), ("V", 0, (0, 1, 2, 3)), ("K", 1, (0, 1, 2, 3))], 6: [("K", 2, (0, 1, 2, 3)), ("V", 1, (0, 1, 2, 3))]},
                4: {4: [("K", 0, (0, 1, 2, 3))], 5: [("V", 0, (0, 1, 2, 3)), ("K", 1, (0, 1, 2, 3))], 6: [("K", 2, (0, 1, 2, 3)), ("V", 1, (0, 1, 2, 3))]},
                6: {1: [("K", 0, (0, 1))], 2: [("K", 0, (2, 3))], 3: [("V", 0, (0, 1))], 4: [("V", 0, (2, 3)), ("K", 1, (0,))], 5: [("K", 1, (1, 2, 3))], 6: [("K", 2, (0, 1, 2, 3))]},
                7: {2: [("K", 0, (0, 1, 2))], 3: [("K", 0, (3,)), ("V", 0, (0, 1))], 4: [("V", 0, (2, 3)), ("K", 1, (0,))], 5: [("K", 1, (1, 2, 3))], 6: [("K", 2, (0, 1, 2, 3))]},
                8: {3: [("K", 0, (0, 1, 2, 3))], 4: [("V", 0, (0, 1, 2, 3))], 5: [("K", 1, (0, 1, 2, 3))], 6: [("K", 2, (0, 1, 2, 3))]},
                9: {4: [("K", 0, (0, 1, 2, 3))], 5: [("V", 0, (0, 1, 2, 3))], 6: [("K", 1, (0, 1, 2, 3))]},
                -1: {1: [("K", 0, (0, 1, 2))], 2: [("K", 0, (3,)), ("V", 0, (0, 1))], 3: [("V", 0, (2, 3)), ("K", 1, (0,))], 4: [("K", 1, (1, 2, 3))], 6: [("K", 2, (0, 1, 2, 3)), ("V", 1, (0, 1, 2, 3))]},
                -2: {0: [("K", 0, (0, 1))], 1: [("K", 0, (2, 3))], 2: [("V", 0, (0, 1))], 3: [("V", 0, (2, 3))], 4: [("K", 1, (0, 1))], 5: [("K", 1, (2, 3))], 6: [("K", 2, (0, 1, 2, 3)), ("V", 1, (0, 1, 2, 3))]},
                -3: {3: [("V", 0, (0, 1))], 4: [("V", 0, (2, 3))], 5: [("K", 1, (0, 1, 2, 3))], 6: [("K", 2, (0, 1, 2, 3)), ("V", 1, (0, 1, 2, 3))]},
                -4: {4: [("V", 0, (2, 3))], 5: [("K", 1, (0, 1, 2, 3))], 6: [("K", 2, (0, 1, 2, 3)), ("V", 1, (0, 1, 2, 3))]},
                -5: {5: [("K", 1, (0, 1, 2, 3))], 6: [("K", 2, (0, 1, 2, 3)), ("V", 1, (0, 1, 2, 3))]},
                -6: {2: [("K", 0, (2, 3))], 3: [("V", 0, (0, 1))], 4: [("V", 0, (2, 3))], 5: [("K", 1, (0, 1, 2, 3))], 6: [("K", 2, (0, 1, 2, 3)), ("V", 1, (0, 1, 2, 3))]},
                -7: {4: [("K", 0, (0, 1, 2, 3)), ("V", 0, (0, 1, 2, 3))], 5: [("K", 1, (0, 1, 2, 3))], 6: [("K", 2, (0, 1, 2, 3)), ("V", 1, (0, 1, 2, 3))]},
                -8: {"e": [("K", 0, (0, 1))], 2: [("K", 0, (2, 3))], 3: [("V", 0, (0, 1))], 4: [("V", 0, (2, 3))], 5: [("K", 1, (0, 1, 2, 3))], 6: [("K", 2, (0, 1, 2, 3)), ("V", 1, (0, 1, 2, 3))]},
                -9: {"e": [("K", 0, (0, 1, 2, 3))], 3: [("V", 0, (0, 1))], 4: [("V", 0, (2, 3))], 5: [("K", 1, (0, 1, 2, 3))], 6: [("K", 2, (0, 1, 2, 3)), ("V", 1, (0, 1, 2, 3))]},
                -10: {"e": [("K", 0, (0, 1, 2, 3))], 4: [("V", 0, (0, 1, 2, 3))], 5: [("K", 1, (0, 1, 2, 3))], 6: [("K", 2, (0, 1, 2, 3)), ("V", 1, (0, 1, 2, 3))]},
                -11: {"e": [("K", 0, (0, 1, 2, 3)), ("V", 0, (0, 1))], 4: [("V", 0, (2, 3))], 5: [("K", 1, (0, 1, 2, 3))], 6: [("K", 2, (0, 1, 2, 3)), ("V", 1, (0, 1, 2, 3))]},
                -12: {"e": [("K", 0, (0, 1, 2, 3))], 5: [("V", 0, (0, 1, 2, 3)), ("K", 1, (0, 1, 2, 3))], 6: [("K", 2, (0, 1, 2, 3)), ("V", 1, (0, 1, 2, 3))]},
                5: {5: [("K", 0, (0, 1, 2, 3)), ("V", 0, (0, 1, 2, 3)), ("K", 1, (0, 1, 2, 3))], 6: [("K", 2, (0, 1, 2, 3)), ("V", 1, (0, 1, 2, 3))]}}[cfg.kve]
        kv = [x for wh, tl, ms in plan.get(c, []) for x in kv_dma_static(wh, tl, ms=ms)]
        if cfg.tlbw == c + 1 and nq == 3: kv = tlb_warm() + kv
        if c <= 4: extra += kv
        if c == 0:
            g = 14
            kve_ = [x for wh, tl, ms in plan.get("e", []) for x in kv_dma_static(wh, tl, ms=ms)]
            if kve_: place(kve_, g - 1 - sum(1 for x in kve_ if x.k == "vmem"), g - 2)
            o = place(r0[nx + 8:], -1, g - 3) + kve_ + [waitlg(0, tgt=g - 1, stream="rd"), w, b] + m
            w.tgt = g - 1; b.tgt = g
            o += place(weave(rd[:14], extra + x_dma(2) + w_dma(2)) + rd[14:], g + 1, n - 3) + [waitlg(0, tgt=n - 1, stream="rd")]
        elif c <= 4:
            w.tgt = 0; b.tgt = 1
            early = extra + (x_dma(3) + w_dma(3) if c == 1 else [])
            if cfg.p1w1 and c > 1: early = w_dma(c + 2) + early
            ne = sum(1 for x in early if x.k == "vmem")
            k0 = max(nx + 4, min(len(rd) - 8, ne))
            seq = weave(rd[:k0], early) + [waitlg(k0 - nx, stream=["rd", "dma"])] + weave(rd[k0:], x_dma(c + 3))
            if cfg.p1w1: o = [w, b] + m + place(seq, 2, n - 4) + [waitlg(0, tgt=n - 1, stream="rd")]
            else:
                o = [w, b] + m + place(seq, 2, n - 8)
                o += [waitlg(0, tgt=n - 6, stream="rd"), barrier(tgt=n - 5, stream=["rd", "dma"])] + place(w_dma(c + 3), n - 4, n - 1)
        else:
            w.tgt = 0; b.tgt = 1
            if cfg.p1w1 and c == 5: kv = w_dma(7) + kv
            if not kv: seq = rd
            elif c == 6 and cfg.kve == 0: seq = rd[:30] + weave(rd[30:], kv)
            else: seq = weave(rd, kv)
            o = [w, b] + m + place(seq, 2, n - 6) + [waitlg(0, tgt=n - 1, stream="rd")]
        if c <= 2:
            bars = [x for x in o if x.k == "bar"]
            base = {0: 2, 1: 4, 2: 7}[c]
            for k_, x in enumerate(bars[:2 if c == 1 else 1]): o += stampf(base + k_, "p0", x, x.tgt)
            if c < 2: o += stampf(base + len(bars), "p0", m[-1], n - 1)
        V.finish(o, strict=True, lds_lat=3)
        if c == 1 and nq == 3: V.finish([wvm({"clr"})] + register(), sched=False)
        V.finish(stamp(c + 2, "p1") if c < 6 else [], sched=False)
    c7 = chunk_mfma(7, nq, amajor=True)
    g0 = wvm({"K0"}, tgt=cfg.g7, stream=["dma", "rd"]); g1 = barrier(tgt=cfg.g7 + 1, stream=["dma", "rd"])
    if cfg.kve == 0: o = [g0, g1] + c7 + kv_dma_static("K", 2, cfg.g7 + 3, 3) + k_reads(0, cfg.g7 + 4, 1) + group_load(cfg.g7 + 14) + kv_dma_static("V", 1, n - 12, 3)
    elif cfg.kve == 9: o = [g0, g1] + c7 + k_reads(0, cfg.g7 + 4, 1) + group_load(cfg.g7 + 14) + kv_dma_static("K", 2, cfg.g7 + 3, n // 8) + kv_dma_static("V", 1, n - 8, n // 8)
    elif cfg.kve >= 6: o = [g0, g1] + c7 + k_reads(0, cfg.g7 + 4, 1) + group_load(cfg.g7 + 14) + kv_dma_static("V", 1, cfg.g7 + 3, n // 5)
    else: o = [g0, g1] + c7 + kv_dma_static("K", 3, cfg.g7 + 3, 3) + k_reads(0, cfg.g7 + 4, 1) + group_load(cfg.g7 + 14)
    for a in range(nq): o += q_convert(a, 16 * (a + 1) + 3, 0.3)
    o += stampf(2, "main", c7[-1], n - 1)
    V.finish(o + first_tile(nq, n), budget=cfg.mbudget)
    V.finish([label(f"L_{name}_join")] + stamp(3), sched=False)
    ge = group_eval() + p3_srd_w() + (touch_setup3() if cfg.wtouch else []) + (touch_setup4() if cfg.otm else touch_setup2() if nq == 3 and cfg.touch else [])
    for k, x in enumerate(ge): x.tgt = 3 + 2 * k; x.stream = "ge"
    V.finish(sched_iter(0, nq, first=True, extra=ge), sched=False)
    seqs = [V.resolve_vm(sched_iter(T, nq)) for T in range(1, 12)]
    for k, c in enumerate(seqs[0]):
        if c.k == "wait" and c.meta[0] == "vm":
            n_ = min(q[k].meta[1] for q in seqs)
            for q in seqs: q[k] = waitvm(n_, need=q[k].need)
    _, p1 = insert_lgkm(seqs[0], V.pend)
    body, p2 = insert_lgkm(seqs[0], p1)
    body = fix_hazards(body + [nop(15)] * cfg.slow + [raw(f"s_cbranch_scc1 L_{name}_loop", "branch", rd=["scc"])], body)
    if len(V.pend) > len(p1): V.static.append(waitlg(len(p1))); V.trace.append(V.static[-1])
    V.static.append(label(f"L_{name}_loop"))
    V.static += body; V.pend = p2; V.loop_stats = gap_stats(body)
    for cur in seqs:
        new = []; k = 0
        for c in body:
            if k < len(cur) and cur[k].t == c.t: new.append(cur[k]); k += 1
            else: new.append(c)
        assert k == len(cur), ("loop body differs", cur[k].t)
        V.trace += new
    for T in (12, 13, 14): V.finish(sched_iter(T, nq, peeled=True), sched=False)
    V.finish(stamp(4), sched=False)
    if cfg.its:
        V.finish([raw("s_lshl_b32 s4, s2, 10"), raw(f"s_lshl_b32 s5, s{sW}, 8"), raw("s_add_u32 s4, s4, s5"), raw(f"s_add_u32 s4, s4, {STAMP_OFF + 0x100000}"),
                  raw(f"s_add_u32 s4, s{sWS}, s4"), raw(f"s_addc_u32 s5, s{sWS+1}, 0"), raw(f"v_lshlrev_b32 v126, 2, v{vLane}"), raw("global_store_dword v126, v127, s[4:5]"), raw("s_nop 1")], sched=False)
    h2 = 16
    o = v_reads(1, -1, 0.5)
    inv = TMP
    A = o.append
    if cfg.fallback:
        A(salu("s_lshl_b32", s(sT2), s(sW), "2", tgt=12)); A(salu("s_add_u32", s(sT2), s(sT2), str(VOTE), tgt=13))
        A(valu("v_mov_b32", v(TMP + 13), s(sT2), tgt=14)); A(valu("v_mov_b32", v(TMP + 14), str(VOTE), tgt=14))
        A(salu("s_mov_b32", s(sT0), hex(LIMIT), tgt=14)); A(raw("s_mov_b64 s[54:55], 0", "salu", wr=["s54", "s55"], tgt=15))
    smx = sm(1, nq, 0, 1.0)
    def smt(a, t0, t1):
        x = [y for y in smx if (y.rd | y.wr) & set(R("v", S_[1] + 8 * a, 8))]
        for k, y in enumerate(x): y.tgt = int(t0 + (t1 - t0) * k / len(x))
        return x
    k = 0; t = 0
    for a in range(nq):
        o += smt(a, max(-1, t - 14), t + 2 if a else 6)
        p0 = [mfma("a", oacc(a, tt), "a", KF + 4 * tt, "v", P_[0] + 4 * a) for tt in range(8)]
        p1 = [mfma("a", oacc(a, tt), "a", VF + 4 * tt, "v", P_[1] + 4 * a) for tt in range(8)]
        if a in mtiles(nq):
            if a == 0: p0.append(lsum_mfma(0, a)); p1.insert(0, lsum_mfma(1, a))
            else: p0.insert(0, lsum_mfma(0, a)); p1.insert(0, lsum_mfma(1, a))
        o += (p0 + p1) if a == 0 else [y for pr in zip(p0, p1) for y in pr]
        if a not in mtiles(nq): o += xreduce("v_add_f32", LSUM + a, TMP + 8 + a, t + 8, 1)
        A(valu("v_rcp_f32", v(inv + a), v(lsreg(a, nq)), tgt=t + 14))
        if cfg.fallback:
            A(valu("v_cmp_nge_f32", "vcc", s(sT0), v(lsreg(a, nq)), tgt=t + 14))
            A(raw("s_or_b64 s[54:55], s[54:55], vcc", "salu", rd=["vcc", "s54", "s55"], wr=["s54", "s55", "scc"], tgt=t + 15))
        if a < nq - 1: t += len(p0) + len(p1)
        if a == nq - 1:
            tv = t + 15
            if cfg.fallback:
                A(salu("s_cselect_b32", s(sT0), "1", "0", tgt=tv)); A(valu("v_mov_b32", v(TMP + 12), s(sT0), tgt=tv))
                A(I(f"ds_write_b32 v{TMP+13}, v{TMP+12}", "ldsw", rd=[v(TMP + 12), v(TMP + 13)], tgt=tv, stream="rd"))
    epi = []
    for a in range(nq):
        for sg in range(4):
            tb = 16 * (k % 4) if a else 104 + 12 * (k % 2)
            if a == 1: tb = 16 * (k % 2)
            t0 = h2 * (a + 1) + 2 * min(a + 1, len(mtiles(nq))) + 3 + 3 * sg
            blk = [salu("s_mov_b32", s(sT1), str(8192 * sg), stream="st")]
            blk += [valu("v_accvgpr_read_b32", v(tb + r), f"a{oacc(a, 2*sg) + r}") for r in range(8)]
            blk += [valu("v_mul_f32", v(tb + r), v(inv + a), v(tb + r)) for r in range(8)]
            blk += [valu("v_cvt_pk_bf16_f32", v(tb + 8 + r), v(tb + 2 * r), v(tb + 2 * r + 1)) for r in range(4)]
            blk += [bstore("v", tb + 8, v(vOst), SO, s(sT1), 1024 * a, cfg.oflags, stream="st", grp="O")]
            for y in blk: y.tgt = t0
            k += 1
            if a < nq - 1: o += blk
            else: epi += blk
    V.finish(o, budget=cfg.tbudget)
    o = epi[:22] + [waitlg(0), barrier()]
    if cfg.fallback: o.append(ds_b128("v", TMP + 4, v(TMP + 14), 0))
    o += epi[22:]
    V.finish(o, sched=False)
    V.finish(stamp(5), sched=False)
    V.npre = len(V.vm)
    if cfg.fallback:
        o = []; A = o.append
        A(valu("v_or3_b32", v(TMP + 12), v(TMP + 4), v(TMP + 5), v(TMP + 6))); A(valu("v_or_b32", v(TMP + 12), v(TMP + 12), v(TMP + 7)))
        A(valu("v_readfirstlane_b32", s(sT0), v(TMP + 12)))
        A(salu("s_andn2_b32", s(sT0), s(sT0), s(sPASS))); A(raw(f"s_cbranch_scc0 L_{name}_end", "branch", rd=["scc"]))
        A(waitvm(0)); A(barrier())
        A(valu("v_mov_b32", v(vKrd), v(vKrd0))); A(salu("s_mov_b32", s(sKo), "0")); A(salu("s_mov_b32", "m0", s(sG)))
        A(label(f"L_{name}_mx"))
        for m in range(4): A(dma(v(vKV + m), SK, s(sKo), m * PIECE, cfg.kvflags))
        A(waitvm(0)); A(barrier())
        for j in range(2):
            o += k_reads(j) + [waitlg(0)] + qk(0, nq, first=True) + [nop(7)]
            for a in range(nq):
                for r in range(4): A(valu("v_max3_f32", v(MTRUE + a), v(S_[0] + 8 * a + 2 * r), v(S_[0] + 8 * a + 2 * r + 1), v(MTRUE + a)))
        A(barrier())
        A(salu("s_add_u32", s(sKo), s(sKo), "16384")); A(salu("s_cmp_lt_u32", None, s(sKo), "262144")); A(raw(f"s_cbranch_scc1 L_{name}_mx", "branch", rd=["scc"]))
        A(salu("s_mov_b32", s(sPASS), "1"))
        for wh, tl in (("K", 0), ("V", 0), ("K", 1), ("K", 2), ("V", 1)): o += kv_dma_static(wh, tl)
        o += group_load() + [waitvm(0), barrier()] + k_reads(0) + [waitlg(0)]
        V.finish(o, sched=False)
        V.finish(first_tile(nq, 0, redo=True))
        V.finish([waitlg(0), raw(f"s_branch L_{name}_join", "branch")], sched=False)
    if cfg.fused:
        V.finish([label(f"L_{name}_end"), raw("s_branch L_p3", "branch")], sched=False)
    else:
        V.finish([label(f"L_{name}_end")] + stamp(6) + dump_stamps(10, sWS, STAMP_OFF, v(vLane), "L_k1_done") + [raw("s_endpgm")], sched=False)
    return V

XOFF = 0x1000000; FOFF = 0x3000000
S3O, S3W, S3X, S3Out = 8, 12, 16, 40
s3HG, s3RP, s3CQ, s3T, s3U, s3ROT, sUNI, sF1, sF2 = 36, 37, 38, 92, 93, 94, 39, 31, 30
v3Wd = 252; vG = 224
v3Or, v3Rr, v3St, v3L16, v3Wr = 104, 106, 107, 108, 109
NW_ = 9
class _WU:
    def __getitem__(self, k): return ((8, 0, 2, 1, 4, 3, 6, 5, 7) if cfg.dV == 3 else (0, 2, 3, 4, 5, 6, 7, 8, 1))[k]
WU = _WU()
def oset(u, sg, a): return 128 + (u % 8) * 16 + (sg * 2 + a) * 4
def wset3(p, sg, tau): return p * 64 + (sg * 8 + tau) * 4
def one_lane(ins): return [raw("s_mov_b64 exec, 1", "salu"), ins, raw("s_mov_b64 exec, -1", "salu")]
def flag_addrs(t0=None):
    o = []; A = o.append
    A(salu("s_lshr_b32", s(s3HG), s(sH), "3")); A(salu("s_bfe_u32", s(s3RP), s(sH), "0x10002", scc_w=True)); A(salu("s_and_b32", s(s3CQ), s(sH), "3"))
    A(salu("s_lshl_b32", s(sF1), s(sB), "2")); A(salu("s_add_u32", s(sF1), s(sF1), s(s3HG))); A(salu("s_lshl_b32", s(sF1), s(sF1), "7")); A(salu("s_add_u32", s(sF1), s(sF1), hex(FOFF)))
    A(salu("s_lshl_b32", s(sF2), s(sB), "3")); A(salu("s_and_b32", s(s3T), s(sH), "7")); A(salu("s_add_u32", s(sF2), s(sF2), s(s3T))); A(salu("s_lshl_b32", s(sF2), s(sF2), "9")); A(salu("s_add_u32", s(sF2), s(sF2), hex(FOFF + 4096)))
    if t0 is not None:
        for k, x in enumerate(o): x.tgt = t0 + k; x.stream = "p3s"
    return o
def clear_flags():
    o = []; A = o.append
    A(salu("s_lshr_b32", s(54), s(sH), "3")); A(salu("s_and_b32", s(55), s(sH), "7"))
    A(salu("s_lshl_b32", s(sT0), s(sB), "2")); A(salu("s_add_u32", s(sT0), s(sT0), s(54))); A(salu("s_lshl_b32", s(sT0), s(sT0), "5")); A(salu("s_add_u32", s(sT0), s(sT0), s(55)))
    A(salu("s_lshl_b32", s(sT0), s(sT0), "2")); A(salu("s_add_u32", s(sT0), s(sT0), hex(FOFF)))
    A(salu("s_lshl_b32", s(sT1), s(sB), "3")); A(salu("s_add_u32", s(sT1), s(sT1), s(55))); A(salu("s_lshl_b32", s(sT1), s(sT1), "7")); A(salu("s_add_u32", s(sT1), s(sT1), s(54)))
    A(salu("s_lshl_b32", s(sT1), s(sT1), "2")); A(salu("s_add_u32", s(sT1), s(sT1), hex(FOFF + 4096)))
    A(valu("v_mov_b32", "v8", s(sT0))); A(valu("v_lshlrev_b32", "v9", "7", v(vLane))); A(valu("v_add_u32", "v9", s(sT1), "v9")); A(valu("v_mov_b32", "v10", "0"))
    A(raw("s_mov_b64 exec, 1", "salu"))
    A(I(f"global_store_dword v8, v10, s[{sWS}:{sWS+1}] sc1", "vmem", rd=["v8", "v10"], meta="store", grp="clr"))
    A(raw("s_mov_b64 exec, 15", "salu"))
    A(I(f"global_store_dword v9, v10, s[{sWS}:{sWS+1}] sc1", "vmem", rd=["v9", "v10"], meta="store", grp="clr"))
    A(raw("s_mov_b64 exec, -1", "salu"))
    return o
def page_warm():
    o = []; A = o.append; L = v(vLane)
    A(valu("v_and_b32", "v8", "31", L)); A(valu("v_lshlrev_b32", "v8", "20", "v8"))
    A(valu("v_and_b32", "v9", "3", L)); A(valu("v_lshlrev_b32", "v10", "20", "v9")); A(valu("v_mul_u32_u24", "v9", "0x78000", "v9"))
    for a, b in (("v8", f"s[{sWS}:{sWS+1}]"), ("v10", "s[56:57]"), ("v9", "s[58:59]")):
        A(I(f"global_load_dword v231, {a}, {b}", "vmem", rd=[a], meta="load", grp="pw"))
    return o
def tlb_warm():
    o = [valu("v_and_b32", "v228", "15", v(vLane)), valu("v_lshlrev_b32", "v228", "14", "v228"), valu("v_add_u32", "v228", "128", "v228")]
    for sr in (SK, SV):
        x = bload("v", 231, "v228", sr, "0", 0, "nt", n=1, grp="touch", stream="dma"); x.wr = set(); o.append(x)
    if cfg.tlbx:
        A = o.append; L = v(vLane)
        gl = lambda a, b: I(f"global_load_dword v231, {a}, {b} nt", "vmem", rd=[a], meta="load", grp="touch", stream="dma")
        A(salu("s_lshr_b32", s(54), s(sH), "3")); A(salu("s_lshl_b32", s(54), s(54), "20")); A(valu("v_lshlrev_b32", "v228", "14", L)); A(valu("v_add_u32", "v228", s(54), "v228")); A(gl("v228", "s[56:57]"))
        A(salu("s_lshl_b32", s(54), s(sB), "3")); A(salu("s_and_b32", s(55), s(sH), "7")); A(salu("s_add_u32", s(54), s(54), s(55))); A(salu("s_lshl_b32", s(54), s(54), "18")); A(salu("s_add_u32", s(54), s(54), hex(XOFF + 8192)))
        A(valu("v_and_b32", "v228", "15", L)); A(valu("v_lshlrev_b32", "v228", "14", "v228")); A(valu("v_add_u32", "v228", s(54), "v228"))
        A(salu("s_lshl_b32", s(54), s(sB), "21")); A(salu("s_lshl_b32", s(55), s(sH), "15")); A(salu("s_add_u32", s(54), s(54), s(55)))
        A(valu("v_and_b32", "v229", "1", L)); A(valu("v_lshlrev_b32", "v229", "14", "v229")); A(valu("v_bfe_u32", "v230", L, "1", "1")); A(valu("v_lshl_add_u32", "v229", "v230", "20", "v229")); A(valu("v_add_u32", "v229", s(54), "v229"))
        A(valu("v_cmp_gt_u32", "vcc", "16", L)); A(valu("v_cndmask_b32", "v228", "v229", "v228", "vcc")); A(gl("v228", f"s[{sWS}:{sWS+1}]"))
        A(salu("s_mul_i32", s(54), s(sB), "245760")); A(valu("v_min_u32", "v228", "14", L)); A(valu("v_lshlrev_b32", "v228", "14", "v228")); A(valu("v_add_u32", "v228", s(54), "v228")); A(gl("v228", "s[58:59]"))
    for x in o: x.stream = "dma"
    return o
def xcc_word(dst, tmp):
    o = [raw(f"s_getreg_b32 s{tmp}, hwreg(HW_REG_XCC_ID, 0, 4)", "salu", wr=[s(tmp)])]
    if cfg.forcemix: o.append(salu("s_and_b32", s(tmp), s(sH), "1"))
    o += [salu("s_mul_i32", s(dst), s(tmp), s(tmp)), salu("s_lshl_b32", s(dst), s(dst), "8"), salu("s_add_u32", s(dst), s(dst), s(tmp)),
          salu("s_lshl_b32", s(dst), s(dst), "8"), salu("s_add_u32", s(dst), s(dst), "1")]
    return o
def register():
    o = xcc_word(sT0, sT1); A = o.append
    A(salu("s_lshr_b32", s(sT1), s(sH), "3")); A(salu("s_lshl_b32", s(sT2), s(sB), "2")); A(salu("s_add_u32", s(sT1), s(sT1), s(sT2))); A(salu("s_lshl_b32", s(sT1), s(sT1), "2"))
    A(valu("v_mov_b32", "v228", s(sT1))); A(valu("v_mov_b32", "v229", s(sT0)))
    o += one_lane(I(f"global_atomic_add v228, v229, s[100:101]{GOFF()} sc1", "vmem", rd=["v228", "v229"], meta="store"))
    return o
sRDY = 97
def group_load(t0=None):
    o = [salu("s_lshl_b32", s(sT2), s(sB), "4"), valu("v_mov_b32", v(vG + 4), s(sT2)),
         I(f"global_load_dwordx4 v[{vG}:{vG+3}], v{vG+4}, s[100:101]{GOFF()} sc1", "vmem", rd=[v(vG + 4)], wr=R("v", vG, 4), meta="load", grp="G", stream="dma"),
         salu("s_lshr_b32", s(sRDY), s(sH), "3"), salu("s_lshl_b32", s(sRDY), s(sRDY), "2"), salu("s_add_u32", s(sT2), s(sT2), s(sRDY)), valu("v_mov_b32", v(vG + 4), s(sT2)),
         I(f"global_load_dword v{vG+5}, v{vG+4}, s[100:101]{GOFF()} sc1", "vmem", rd=[v(vG + 4)], wr=[v(vG + 5)], meta="load", grp="G", stream="dma")]
    if t0 is not None:
        for k, x in enumerate(o): x.tgt = t0 + k
    return o
def group_eval():
    o = []; A = o.append
    A(valu("v_and_b32", v(vG), v(vG), v(vG + 1))); A(valu("v_and_b32", v(vG + 2), v(vG + 2), v(vG + 3))); A(valu("v_and_b32", v(vG), v(vG), v(vG + 2)))
    A(valu("v_readfirstlane_b32", s(sRDY), v(vG))); A(valu("v_readfirstlane_b32", s(sUNI), v(vG + 5)))
    A(salu("s_and_b32", s(sRDY), s(sRDY), "8"))
    o += xcc_word(54, 55)
    A(salu("s_lshl_b32", s(54), s(54), "3")); A(salu("s_cmp_eq_u32", None, s(sUNI), s(54))); A(salu("s_cselect_b32", s(sUNI), "1", "0"))
    return o
def p3_srd_w():
    o = flag_addrs(); A = o.append
    A(salu("s_lshl_b32", s(s3ROT), s(s3T), "1"))
    A(salu("s_lshl_b32", s(s3T), s(s3HG), "20")); A(salu("s_lshl_b32", s(s3U), s(s3CQ), "6" if cfg.wil else "8")); A(salu("s_add_u32", s(s3T), s(s3T), s(s3U)))
    A(salu("s_sub_u32", s(s3U), str(1048576 + 128), s(s3U)))
    o += srd(S3W, 56, 57, s3T, 128, s(s3U))
    return o
STC = 92; sTs = 96; STC2 = 4
def touch_setup1a():
    o = []; A = o.append; L = v(vLane)
    A(salu("s_and_b32", s(sT0), s(sW), "1")); A(salu("s_mul_i32", s(sTs), s(sT0), str(524288 - 128))); A(salu("s_add_u32", s(sTs), s(sTs), "128"))
    A(salu("s_cmp_eq_u32", None, s(sT0), "1")); A(raw("s_cselect_b64 vcc, -1, 0", "salu", rd=["scc"], wr=["vcc"]))
    A(valu("v_and_b32", "v8", "31", L)); A(valu("v_min_u32", "v9", "29", "v8"))
    A(salu("s_and_b32", s(sT0), s(sH), "7")); A(salu("s_mul_i32", s(sT0), s(sT0), "30")); A(valu("v_add_u32", "v9", s(sT0), "v9")); A(valu("v_lshlrev_b32", "v9", "10", "v9")); A(valu("v_add_u32", "v9", "128", "v9"))
    A(salu("s_and_b32", s(sT0), s(sB), "3")); A(salu("s_lshl_b32", s(sT0), s(sT0), "5")); A(valu("v_add_u32", "v8", s(sT0), "v8"))
    A(valu("v_lshrrev_b32", "v10", "1", "v8")); A(valu("v_lshlrev_b32", "v10", "13", "v10")); A(valu("v_and_b32", "v8", "1", "v8")); A(valu("v_lshl_add_u32", "v8", "v8", "7", "v10"))
    A(valu("v_cndmask_b32", "v8", "v9", "v8", "vcc"))
    if cfg.c3: A(valu("v_mov_b32", v(vT + 2), "v8")); return o
    A(valu("v_lshrrev_b32", "v9", "5", L)); A(valu("v_mul_lo_u32", "v9", s(sTs), "v9")); A(valu("v_add_u32", v(vT + 2), "v8", "v9"))
    A(salu("s_lshr_b32", s(sT0), "s2", "3")); A(salu("s_lshl_b32", s(sT0), s(sT0), "15")); A(salu("s_lshr_b32", s(sT1), s(sH), "3")); A(salu("s_lshl_b32", s(sT1), s(sT1), "20"))
    A(salu("s_add_u32", s(sT0), s(sT0), s(sT1))); A(valu("v_lshlrev_b32", v(vT + 3), "7", L)); A(valu("v_add_u32", v(vT + 3), s(sT0), v(vT + 3)))
    return o
def touch_setup1b():
    o = []; A = o.append
    A(salu("s_bitcmp1_b32", None, s(sW), "0", scc_w=True))
    for k in range(3): A(salu("s_cselect_b32", s(STC + k), s(SWQ + k), s(SX + k)))
    A(salu("s_mov_b32", s(STC + 3), "0x20000"))
    A(salu("s_cmp_ge_u32", None, s(sW), "2")); A(salu("s_cselect_b32", s(STC + 2), "0", s(STC + 2)))
    return o
def touch_setup3():
    o = []; A = o.append
    A(salu("s_lshr_b32", s(54), "s2", "3")); A(salu("s_lshl_b32", s(54), s(54), "2")); A(salu("s_add_u32", s(54), s(54), s(sW))); A(salu("s_lshl_b32", s(54), s(54), "13"))
    A(salu("s_lshl_b32", s(55), s(s3HG), "20")); A(salu("s_add_u32", s(54), s(54), s(55)))
    A(valu("v_lshlrev_b32", "v230", "7", v(vLane))); A(valu("v_add_u32", "v230", s(54), "v230"))
    return o
def touch_setup4():
    return [valu("v_lshrrev_b32", "v230", "5", v(vLane)), valu("v_lshlrev_b32", "v230", "13", "v230"), valu("v_and_b32", "v229", "31", v(vLane)), valu("v_lshl_add_u32", "v230", "v229", "7", "v230")]
def touch_setup2():
    o = []; A = o.append
    A(salu("s_lshl_b32", s(54), s(sB), "21")); A(salu("s_lshl_b32", s(55), s(sH), "15")); A(salu("s_add_u32", s(54), s(54), s(55)))
    o += srd(SX, sWS, sWS + 1, 54, 0, str(1048576 + 32768))
    if cfg.wroll:
        assert cfg.dV == 3
        A(salu("s_lshr_b32", s(54), "s2", "3")); A(salu("s_lshl_b32", s(54), s(54), "15")); A(salu("s_lshl_b32", s(55), s(s3HG), "20")); A(salu("s_add_u32", s(54), s(54), s(55)))
        o += srd(STC2, 56, 57, 54, 0, "32768")
    A(salu("s_lshl_b32", s(54), s(s3RP), "20")); A(valu("v_lshlrev_b32", v(vT + 1), "7", v(vLane))); A(valu("v_add_u32", v(vT + 1), s(54), v(vT + 1)))
    A(valu("v_xor_b32", v(vT), "0x100000", v(vT + 1)))
    A(valu("v_add_u32", v(vT + 2), "0x2000", v(vT))); A(valu("v_add_u32", v(vT + 3), "0x2000", v(vT + 1)))
    return o
def p3_wdma(u):
    st = "dma"
    o = [salu("s_add_u32", s(s3U), s(s3ROT), str(u), stream=st), salu("s_and_b32", s(s3U), s(s3U), "15", stream=st), salu("s_lshl_b32", s(s3U), s(s3U), "16", stream=st),
         salu("s_add_u32", "m0", s(sG), str(WU[u % NW_] * UNIT), stream=st)]
    for m in range(4): o.append(dma(v(v3Wd + m), S3W, "0" if cfg.now else s(s3U), m * PIECE, cfg.k2_wflags, grp=f"w{u}", stream=st))
    return o
sXo3 = 48; sXs = 49
OWN = 0
def p3_oload(u, nq):
    st = "dma"
    o = [salu("s_add_u32", s(s3T), s(s3ROT), str(u), stream=st), salu("s_and_b32", s(s3T), s(s3T), "15", stream=st), salu("s_lshl_b32", s(s3T), s(s3T), "14", stream=st)]
    for sg in range(2):
        for a in range(nq): o.append(bload("a", oset(u, sg, a), v(v3Or + sg), S3O, "0" if cfg.noo else s(s3T), a * 1024, cfg.o3flags, grp=f"o{u}", stream=st))
    return o
def p3_reads(u):
    p = u & 1; o = []; sl = WU[u % NW_]
    for tau in range(8):
        for sg in range(2):
            for z in range(2):
                o.append(ds_tr("a", wset3(p, sg, tau) + 2 * z, v(v3Wr + sl // 3), (sl % 3) * UNIT + z * 8 * PIECE + sg * 512 + 32 * tau, stream="rd"))
    return o
def p3_setup2(L):
    o = []; A = o.append
    A(salu("s_lshl_b32", s(sT0), s(sB), "1")); A(salu("s_add_u32", s(sT0), s(sT0), s(s3RP)))
    A(salu("s_lshl_b32", s(sT1), s(sT0), "20")); A(salu("s_lshl_b32", s(sT2), s(s3HG), "18")); A(salu("s_add_u32", s(sT1), s(sT1), s(sT2))); o += srd(S3O, sWS, sWS + 1, sT1, 0, "262144")
    A(salu("s_lshl_b32", s(sT1), s(sT0), "2")); A(salu("s_add_u32", s(sT1), s(sT1), s(s3CQ))); A(salu("s_lshl_b32", s(sT1), s(sT1), "18")); A(salu("s_add_u32", s(sT1), s(sT1), hex(XOFF)))
    o += srd(S3X, sWS, sWS + 1, sT1, 0, "262144")
    A(salu("s_lshl_b32", s(sT1), s(s3RP), "2")); A(salu("s_add_u32", s(sT1), s(sT1), s(s3HG))); A(salu("s_lshl_b32", s(sT1), s(sT1), "15"))
    A(salu("s_lshl_b32", s(sT2), s(s3CQ), "6" if cfg.wil else "8")); A(salu("s_add_u32", s(sT1), s(sT1), s(sT2)))
    A(salu("s_mul_i32", s(sT0), s(sB), "245760")); A(salu("s_add_u32", s(sT0), s(sT0), s(sT1))); A(salu("s_sub_u32", s(sT1), "245760", s(sT1)))
    o += srd(S3Out, 58, 59, sT0, 0, s(sT1))
    A(salu("s_lshl_b32", s(sXo3), s(sW), "12"))
    A(valu("v_lshlrev_b32", v(v3L16), "4", L))
    A(salu("s_lshl_b32", s(sT0), s(sW), "11")); A(valu("v_add_u32", v(v3Or), s(sT0), v(v3L16))); A(valu("v_add_u32", v(v3Or + 1), "0x2000", v(v3Or)))
    A(valu("v_subrev_u32", v(v3Wr), str(UNIT), v(vVrd0))); A(valu("v_add_u32", v(v3Wr + 1), str(3 * UNIT), v(v3Wr))); A(valu("v_add_u32", v(v3Wr + 2), str(6 * UNIT), v(v3Wr)))
    A(valu("v_and_b32", "v97", "15", L)); A(valu("v_lshrrev_b32", "v98", "4", L))
    if cfg.xbf:
        A(valu("v_add_u32", v(v3Rr), s(sXo3), v(v3L16))); A(salu("s_lshl_b32", s(sT0), s(sW), "11")); A(valu("v_add_u32", v(v3Rr + 9), s(sT0), v(v3L16)))
    else:
        A(valu("v_lshlrev_b32", "v101", "9", "v98")); A(valu("v_lshl_add_u32", "v101", "v97", "4", "v101")); A(valu("v_add_u32", v(v3Rr), s(sXo3), "v101"))
        A(valu("v_add_u32", v(v3L16 + 8), "0x2000", v(v3L16)))
    for k in range(1, 4):
        A(salu("s_add_u32", s(sT0), s(s3HG), str(k))); A(salu("s_and_b32", s(sT0), s(sT0), "3")); A(salu("s_lshl_b32", s(sT1), s(s3HG), "2")); A(salu("s_add_u32", s(sT0), s(sT0), s(sT1)))
        A(salu("s_lshl_b32", s(sXs + k - 1), s(sT0), "14"))
    A(valu("v_and_b32", "v101", "3", L)); A(valu("v_max_u32", "v101", "1", "v101")); A(valu("v_add_u32", "v101", s(s3HG), "v101")); A(valu("v_and_b32", "v101", "3", "v101"))
    A(salu("s_lshl_b32", s(sT0), s(s3HG), "7")); A(salu("s_add_u32", s(sT0), s(sT0), s(sF2))); A(valu("v_lshlrev_b32", "v101", "2", "v101")); A(valu("v_add_u32", v(vPl + 2), s(sT0), "v101"))
    A(salu("s_lshr_b32", s(sT0), s(sW), "1")); A(salu("s_lshl_b32", s(sT0), s(sT0), "14")); A(salu("s_and_b32", s(sT1), s(sW), "1")); A(salu("s_lshl_b32", s(sT1), s(sT1), "9" if cfg.wil else "7")); A(salu("s_add_u32", s(sT0), s(sT0), s(sT1)))
    A(valu("v_lshlrev_b32", "v101", "10", "v97")); A(valu("v_lshl_add_u32", "v101", "v98", "3" if cfg.xbf else "4", "v101")); A(valu("v_add_u32", v(v3St), s(sT0), "v101"))
    return o
def poll(lab, base, n):
    o = []; A = o.append
    A(valu("v_lshlrev_b32", "v96", "2", v(vLane))); A(valu("v_add_u32", "v96", s(base), "v96")); A(salu("s_mov_b32", s(sT1), "0"))
    A(raw(f"s_mov_b64 exec, {(1 << n) - 1}", "salu"))
    A(label(lab))
    A(raw(f"global_load_dword v97, v96, s[{sWS}:{sWS+1}] sc1")); A(raw("s_waitcnt vmcnt(0)")); A(raw("v_cmp_ne_u32 vcc, 1, v97"))
    A(raw(f"s_add_u32 s{sT1}, s{sT1}, 1")); A(raw(f"s_cbranch_vccz {lab}_ok"))
    A(raw("s_sleep 1")); A(raw(f"s_cmp_lt_u32 s{sT1}, 0x200000")); A(raw(f"s_cbranch_scc1 {lab}"))
    A(label(f"{lab}_ok")); A(raw("s_mov_b64 exec, -1", "salu"))
    return o
def publish(nm, nlate):
    o = []; A = o.append
    A(waitvm(nlate)); A(barrier()); o += stamp(6)
    A(salu("s_cmp_lg_u32", None, s(sW), "0")); A(raw(f"s_cbranch_scc1 L_{nm}_a", "branch", rd=["scc"]))
    A(salu("s_cmp_eq_u32", None, s(sUNI), "1")); A(raw(f"s_cbranch_scc1 L_{nm}_u", "branch", rd=["scc"]))
    A(raw("buffer_wbl2 sc1")); A(raw("s_waitcnt vmcnt(0)"))
    o += one_lane(raw(f"global_store_dword v96, v97, s[{sWS}:{sWS+1}] sc1"))
    A(raw(f"s_branch L_{nm}_a", "branch"))
    A(label(f"L_{nm}_u"))
    o += one_lane(raw(f"global_store_dword v96, v97, s[{sWS}:{sWS+1}]"))
    A(label(f"L_{nm}_a"))
    return o
def p3_front(V):
    L = v(vLane); o = []; A = o.append
    A(label("L_p3")); o += p3_setup2(L)
    A(salu("s_mov_b32", s(sTo), "0"))
    A(label("L_p3_r")); A(salu("s_cmp_lg_u32", None, s(sRDY), "0")); A(raw("s_cbranch_scc1 L_p3_rok", "branch", rd=["scc"]))
    A(salu("s_add_u32", s(sTo), s(sTo), "1")); A(salu("s_cmp_gt_u32", None, s(sTo), "0x100000")); A(raw("s_cbranch_scc1 L_p3_rok", "branch", rd=["scc"]))
    for x in group_load(): x.grp = None; x.k = "other" if x.k == "vmem" else x.k; A(x)
    A(raw("s_waitcnt vmcnt(0)")); o += group_eval(); A(raw("s_sleep 8")); A(raw("s_branch L_p3_r", "branch"))
    A(label("L_p3_rok"))
    A(salu("s_and_b32", s(sT0), s(sH), "7")); A(salu("s_lshl_b32", s(sT0), s(sT0), "2")); A(salu("s_add_u32", s(sT0), s(sT0), s(sF1)))
    A(valu("v_mov_b32", "v96", s(sT0))); A(valu("v_mov_b32", "v97", "1"))
    A(valu("v_and_b32", v(vPl), "7", L)); A(valu("v_lshlrev_b32", v(vPl), "2", v(vPl))); A(valu("v_add_u32", v(vPl), s(sF1), v(vPl)))
    if not cfg.p3early: o += publish("p3", 0)
    A(salu("s_lshl_b32", s(sT0), s(s3RP), "2")); A(salu("s_add_u32", s(sT0), s(sT0), s(sW)))
    A(salu("s_cmp_eq_u32", None, s(sT0), "7")); A(raw("s_cbranch_scc1 L_g1", "branch", rd=["scc"]))
    V.finish(o, sched=False)
vPl = 112
def p3_gemm(nq, name, V0):
    V = Variant(nq, name); V.vm = list(V0.vm); V.trace = list(V0.trace); V.pend = list(V0.pend)
    pollld = lambda: I(f"global_load_dword v{vPl+1}, v{vPl}, s[{sWS}:{sWS+1}] sc1", "vmem", rd=[v(vPl)], wr=[v(vPl + 1)], meta="load", grp="poll", stream="dma")
    r0 = p3_reads(0)
    if cfg.p3early:
        o0 = p3_oload(0, nq)
        V.finish([label(f"L_{name}")] + r0 + p3_reads(1) + o0[:3] + publish(name, 0) + o0[3:] + p3_oload(1, nq) + stamp(7) + stamp(1, "g"), sched=False)
        r0 = r0[:16]
    else: V.finish([label(f"L_{name}")] + p3_oload(0, nq) + r0[:16] + p3_oload(1, nq) + stamp(7) + stamp(1, "g"), sched=False)
    n = 16 * nq
    no = 2; nw = NW_
    o = r0[16:]
    for k, x in enumerate(o): x.tgt = -1 + k // 2
    prev = None; G = 0; wq = []
    for c in range(16):
        p = c & 1
        m = [mfma("v", a * 32 + 4 * tau, "a", wset3(p, sg, tau), "a", oset(c, sg, a), "0" if (c == 0 and sg == 0) else None) for tau in range(8) for a in range(nq) for sg in range(2)]
        w = wvm({f"o{c}", f"w{c+1}"} | ({f"w{c+2}"} if cfg.gbar2 and c % 2 == 0 and c >= 6 else set()), tgt=G - 1, stream=["bar", "dma"])
        if prev: w.after = [prev[-2]]
        m[0].after = [w]
        o += [w]
        b = None
        if 0 < c < 15 and (c % 2 == 0 or not cfg.gbar2):
            b = barrier(tgt=G, stream=["bar", "dma"])
            if prev: b.after = [prev[-1]]
            o += [b]
        o += m
        if c < 15:
            d = []
            if c == 0: d += ([pollld()] + p3_wdma(7) + p3_wdma(8)) if cfg.pollfirst else p3_wdma(7) + [pollld()] + p3_wdma(8)
            else:
                for rep in range(3 if c == 1 else 2):
                    if no < 16 and no <= c + cfg.odepth: d += p3_oload(no, nq); no += 1
                k = 0
                while c >= 2 and k < cfg.wrate and (wq or (nw < 16 and nw <= (c & ~1 if cfg.gbar2 else c) + NW_ - 1)):
                    if not wq: wq = p3_wdma(nw); nw += 1
                    elif k == 0: d.append(salu("s_add_u32", "m0", s(sG), str(WU[(nw - 1) % NW_] * UNIT), stream="dma"))
                    while wq[0].k != "vmem": d.append(wq.pop(0))
                    d.append(wq.pop(0)); k += 1
            rd = [] if (c == 0 and cfg.p3early) else p3_reads(c + 1)
            if b: rd[0].after = [b]
            vm = [x for x in d if x.k == "vmem"]
            vg = [int((k + 0.5) * n / len(vm)) for k in range(len(vm))] if vm else []
            if c == 1: vg = [1 + k * (n - 2) // len(vm) for k in range(len(vm))]
            for k, x in enumerate(vm): x.tgt = G + vg[k]
            lo = 8 * nq // 2 if c == 0 else 1
            free = [g for g in range(lo, n) if g not in vg] if (len(vg) < n - 4 and not cfg.gdl) else list(range(lo, n))
            for k, x in enumerate(rd): x.tgt = G + free[k * len(free) // 32]
            nxt = G + n
            for x in reversed(d):
                if x.k == "vmem": nxt = x.tgt
                else: nxt = x.tgt = max(G, nxt - 1)
            o += rd + d
        if c in (0, 1, 3, 7, 11): o += stampf(2 + (0, 1, 3, 7, 11).index(c), "g", m[-1], G + n - 1)
        prev = m; G += n
        if c == 0:
            V.finish(o, strict=True)
            q = [wvm({"poll"}), label(f"L_{name}_pl"), valu("v_cmp_ne_u32", "vcc", "1", v(vPl + 1)), salu("s_mov_b32", s(sT1), "0"), raw(f"s_cbranch_vccz L_{name}_pok", "branch"),
                 label(f"L_{name}_pl2"), raw("s_sleep 1"), raw(pollld().t), raw("s_waitcnt vmcnt(0)"), raw(f"v_cmp_ne_u32 vcc, 1, v{vPl+1}"), raw(f"s_add_u32 s{sT1}, s{sT1}, 1"),
                 raw(f"s_cbranch_vccz L_{name}_pok"), raw(f"s_cmp_lt_u32 s{sT1}, 0x200000"), raw(f"s_cbranch_scc1 L_{name}_pl2"),
                 label(f"L_{name}_pok"), salu("s_cmp_eq_u32", None, s(sUNI), "1"), raw(f"s_cbranch_scc1 L_{name}_pgo", "branch"),
                 raw("buffer_inv sc1"), raw("s_waitcnt vmcnt(0)"), label(f"L_{name}_pgo")]
            V.finish(q, sched=False)
            o = []; prev = None; G = 0
        if c == 14:
            V.finish(o, strict=True)
            o = []; prev = None; G = 0
    last = o
    V.finish([salu("s_lshl_b32", s(sT0), s(sW), "2"), salu("s_add_u32", s(sT0), s(sT0), s(s3HG)), salu("s_lshl_b32", s(sT0), s(sT0), "14"), salu("s_add_u32", s(sT2), s(sT0), "4096"),
              salu("s_cmp_eq_u32", None, s(sW), s(s3HG)), raw(f"s_cbranch_scc1 L_{name}_own", "branch", rd=["scc"])], sched=False)
    save = (list(V.vm), list(V.trace), list(V.pend))
    import copy
    def clone(seq):
        mp = {x.uid: I(x.t, x.k, x.rd, x.wr, x.crd, x.tgt, x.grp, x.need, x.stream, x.meta) for x in seq}
        for x in seq: mp[x.uid].after = [mp[a_.uid] for a_ in x.after]
        return [mp[x.uid] for x in seq]
    o = clone(last)
    for tau in range(8):
        for a in range(nq):
            t = 2 * nq * tau + 2 * a + 6; r = a * 32 + 4 * tau
            if cfg.xbf:
                d = 64 + a * 16 + 2 * tau
                o += [valu("v_cvt_pk_bf16_f32", v(d), v(r), v(r + 1), tgt=t), valu("v_cvt_pk_bf16_f32", v(d + 1), v(r + 2), v(r + 3), tgt=t)]
                if tau & 1: o.append(bstore("v", d - 2, v(v3L16), S3X, s(sT2 if a else sT0), 1024 * (tau >> 1), cfg.xsc, tgt=t + 1, stream="st"))
            else:
                o.append(bstore("v", r, v(v3L16 + (8 if a else 0)), S3X, s(sT2 if tau >> 2 else sT0), 1024 * (tau & 3), cfg.xsc, tgt=t, stream="st"))
    V.finish(o, strict=True)
    V.finish(stamp(8) + stamp(7, "g") + [barrier(), raw("s_branch L_fin_s", "branch"), label(f"L_{name}_own")], sched=False)
    V.vm, tr, V.pend = list(save[0]), V.trace, list(save[2]); V.trace = list(save[1])
    o = clone(last)
    for tau in range(8):
        for a in range(nq): o.append(ds_w128(v(v3L16), "v", a * 32 + 4 * tau, OWN + (a * 8 + tau) * 1024, tgt=2 * nq * tau + 2 * a + 6, stream="rd"))
    V.finish(o, strict=True)
    V.finish(stamp(8) + stamp(7, "g") + [waitlg(0), barrier(), raw("s_branch L_fin", "branch")], sched=False)
    V.trace2 = tr
    return V
def p3_final():
    V = Variant(4, "fin"); o = []; A = o.append
    A(label("L_fin_s"))
    A(salu("s_lshl_b32", s(sT0), s(sW), "5")); A(salu("s_add_u32", s(sT0), s(sT0), s(s3HG))); A(salu("s_lshl_b32", s(sT0), s(sT0), "2")); A(salu("s_add_u32", s(sT0), s(sT0), s(sF2)))
    A(valu("v_mov_b32", "v96", s(sT0))); A(valu("v_mov_b32", "v97", "1")); A(raw("s_waitcnt vmcnt(0)"))
    o += one_lane(raw(f"global_store_dword v96, v97, s[{sWS}:{sWS+1}] sc1"))
    A(label("L_fin")); o += stamp(8, "g")
    for q in range(4): A(ds_b128("v", 4 * q, v(v3Rr), OWN + (q * 1024 if cfg.xbf else (q >> 1) * 2048 + (q & 1) * 256)))
    A(salu("s_mov_b32", s(sT1), "0"))
    if cfg.ppoll:
        P = cfg.ppoll; ld = lambda k: raw(f"global_load_dword v{98+k}, v{vPl+2}, s[{sWS}:{sWS+1}] sc1")
        for k in range(P - 1): A(ld(k)); A(raw(f"s_sleep {cfg.psleep}"))
        A(label("L_fin_p"))
        for k in range(P):
            A(ld((k + P - 1) % P)); A(raw(f"s_waitcnt vmcnt({P-1})")); A(raw(f"v_cmp_ne_u32 vcc, 1, v{98+k}"))
            A(raw(f"s_add_u32 s{sT1}, s{sT1}, 1")); A(raw("s_cbranch_vccz L_fin_ok")); A(raw(f"s_sleep {cfg.psleep}"))
        A(raw(f"s_cmp_lt_u32 s{sT1}, 0x400000")); A(raw("s_cbranch_scc1 L_fin_p"))
    else:
        A(label("L_fin_p"))
        A(raw(f"global_load_dword v97, v{vPl+2}, s[{sWS}:{sWS+1}] sc1")); A(raw("s_waitcnt vmcnt(0)")); A(raw("v_cmp_ne_u32 vcc, 1, v97"))
        A(raw(f"s_add_u32 s{sT1}, s{sT1}, 1")); A(raw("s_cbranch_vccz L_fin_ok")); A(raw("s_sleep 1")); A(raw(f"s_cmp_lt_u32 s{sT1}, 0x200000")); A(raw("s_cbranch_scc1 L_fin_p"))
    A(label("L_fin_ok"))
    for k in range(1, 4):
        if cfg.xbf:
            for q in range(2): A(bload("v", 16 + 8 * k + 4 * q, v(v3Rr + 9), S3X, s(sXs + k - 1), q * 1024, "sc1", grp=f"x{k}"))
        else:
            for q in range(4): A(bload("v", 16 * k + 4 * q, v(v3Rr), S3X, s(sXs + k - 1), (q >> 1) * 2048 + (q & 1) * 256, "sc1", grp=f"x{k}"))
    for k in range(1, 4):
        A(wvm({f"x{k}"}))
        if cfg.xbf:
            for r in range(8):
                A(valu("v_lshlrev_b32", v(64 + r), "16", v(16 + 8 * k + r))); A(valu("v_and_b32", v(72 + r), "0xffff0000", v(16 + 8 * k + r)))
            for r in range(8):
                A(valu("v_add_f32", v(2 * r), v(2 * r), v(64 + r))); A(valu("v_add_f32", v(2 * r + 1), v(2 * r + 1), v(72 + r)))
        else:
            for r in range(16): A(valu("v_add_f32", v(r), v(r), v(16 * k + r)))
    for r in range(8): A(valu("v_cvt_pk_bf16_f32", v(16 + r), v(2 * r), v(2 * r + 1)))
    if cfg.xbf:
        for q in range(4): A(bstore("v", 16 + 2 * q, v(v3St), S3Out, "0", (256 * (q >> 1) + 32 * (q & 1)) if cfg.wil else 32 * q, cfg.outflags, n=2))
    else:
        for sg in range(2): A(bstore("v", 16 + 4 * sg, v(v3St), S3Out, "0", (256 if cfg.wil else 64) * sg, cfg.outflags))
    o += stamp(9) + stamp(9, "g") + dump_stamps(10, sWS, STAMP_OFF, v(vLane), "L_k1_done") + [raw("s_endpgm")]
    V.finish(o, sched=False)
    return V

HEAD = """; standalone__mha_block_cached__near_ridge: out = softmax((x wq) K^T / sqrt(128)) V wo
"""
def kd(name, vg, acc_off):
    return f""".amdhsa_kernel {name}
  .amdhsa_next_free_vgpr {vg}
  .amdhsa_next_free_sgpr 102
  .amdhsa_accum_offset {acc_off}
  .amdhsa_group_segment_fixed_size 0
  .amdhsa_kernarg_size 64
  .amdhsa_user_sgpr_count 2
  .amdhsa_user_sgpr_kernarg_segment_ptr 1
  .amdhsa_system_sgpr_workgroup_id_x 1
.end_amdhsa_kernel
"""
def check(pre, V):
    tr = pre + V.trace
    for nm, f in (("hazard", check_hazards), ("lgkm", check_lgkm), ("vm", check_vm)):
        bad = f(tr)
        if bad:
            print(V.name, nm, len(bad), bad[:6], file=sys.stderr); raise SystemExit(1)
def build():
    KN = "standalone__mha_block_cached__near_ridge_kernel"
    out = HEAD
    out += f"; @launch grid=(256,1,1) block=(256,1,1) lds={LDS1 + 64 + GRP}\n"
    out += '.amdgcn_target "amdgcn-amd-amdhsa--gfx950"\n.text\n'
    out += f".globl {KN}\n.p2align 8\n.type {KN},@function\n{KN}:\n"
    pre = fix_hazards(k1_setup() + [salu("s_cmp_eq_u32", None, s(sW), "3"), raw("s_cbranch_scc1 L_w3", "branch")])
    import core
    def text(seq, _t=core.text):
        if not cfg.align: return _t(seq)
        r = ""; blk = []
        for c in seq + [None]:
            if c is None or (c.k == "label" and blk):
                a, _, miss = align8(blk, pad=cfg.align > 1); r += _t(a); blk = []
                if c is not None: r += "  .p2align 3, , 4\n" if False else "  .p2alignl 3, 0xbf800000\n"
            if c is not None: blk.append(c)
        return r
    out += text(pre)
    for nq, name in ((4, "w012"), (3, "w3")):
        V = k1_variant(nq, name, pre); check(pre, V)
        print(name, "loop (mfma, est cycles):", V.loop_stats, "total est", gap_stats(V.trace), file=sys.stderr)
        out += text(V.static)
    F = Variant(4, "p3"); F.vm = [x for x in V.vm[:V.npre] if x.grp and x.grp[0] == "w"]
    p3_front(F); check([], F)
    out += text(F.static)
    for nq, name in ((2, "g2"), (1, "g1")):
        W = p3_gemm(nq, name, F); check([], W); W.trace = W.trace2; check([], W)
        print(name, "total est", gap_stats(W.static), file=sys.stderr)
        out += text(W.static)
    W = p3_final(); check([], W); out += text(W.static)
    out += "L_k1_done:\n  s_endpgm\n"

    out += '.section .rodata,"a"\n.p2align 6\n' + kd(KN, 512, 256)
    return out
if __name__ == "__main__":
    path = sys.argv[1]
    for kv in sys.argv[2:]:
        k, val = kv.split("=")
        cur = getattr(cfg, k)
        setattr(cfg, k, (val == "1") if isinstance(cur, bool) else tuple(int(z) for z in val.split(",")) if isinstance(cur, tuple) else int(val, 0) if isinstance(cur, int) else type(cur)(val.replace("+", " ")))
    EAGER[0] = cfg.eager
    txt = build()
    if cfg.cpf:
        import subprocess
        open("_p1.s", "w").write(txt.replace("CODE_SHARE", "0x1000").replace("CODE_LAST", "0x10000"))
        subprocess.check_call(["clang", "-x", "assembler", "-target", "amdgcn-amd-amdhsa", "-mcpu=gfx950", "-c", "_p1.s", "-o", "_p1.o"])
        sym = {l.split()[7]: int(l.split()[1], 16) for l in subprocess.check_output(["llvm-readelf", "-s", "_p1.o"], text=True).splitlines() if len(l.split()) == 8 and l.split()[7].startswith("L_")}
        last = sym["L_k1_done"] - sym["L_pc"]; share = ((last - 4096) // 32 + 127) & ~127
        assert share <= 4096
        txt = txt.replace("CODE_SHARE", hex(share)).replace("CODE_LAST", hex(last))
    open(path, "w").write(txt)
```

```python
import sys, math, struct
from core import *

PIECE = 1056; GRP = 4 * PIECE; UNIT = 16 * PIECE; SLOT = 2 * UNIT
X_BASE = 3 * UNIT; W_BASE = X_BASE + 2 * SLOT; LDS1 = W_BASE + 2 * UNIT
VOTE = LDS1
QSCALE = struct.unpack("<I", struct.pack("<f", math.log2(math.e) / math.sqrt(128.0)))[0]
LIMIT = 0x4b800000

class Cfg:
    stamps = False
    kvflags = "nt"
    xflags = ""
    wflags = ""
    oflags = ""
    k2_oflags = ""
    k2_wflags = ""
    fallback = True
    rot = 4
    xtouch = False
    g7 = 10
    order = 0
    nokv1 = False
    cpf = 1
    kv1 = True
    mbudget = 16
    fused = True
    pre = 2
    xsc = 'sc1'
    xbf = True
    wrate = 3
    outflags = ''
    touch = True
    pre2 = 3
    gshift = 1
    odepth = 4
    tbudget = 24
    noo = False
    now = False
    o3flags = ''
    nomf3 = False
    forcemix = False
    kvpace = True
    sset = 'main'
    nomfma1 = False
    nord1 = False
    nodma1 = False
    w3dma = True
    kswap = True
    dK = 5
    frac = 1.0
    fracK = 1.0
    dbgst = False
    its = False
    longloop = 0
    kick = 0
    align = 0
    slow = 0
    wtouch = False
    wil = False
    wlate = False
    wroll = 0
    gdl = False
    gbar2 = True
    slowt = False
    c3 = False
    p1w1 = False
    fast0 = True
    p3early = False
    tlbw = 0
    qdt = 0.3
    mdt = 0.5
    sdt = 0.9
    soff = 2
    mlag = 3
    mlook = 2
    tlag = 3
    tlook = 2
    tsm = 14
    tepi = 3
    prew = 0
    prewf = ''
    tlbx = False
    pollfirst = False
    kvshift = 0
    msum = 1
    cap3 = 0
    otm = 0
    kve = -8
    dV = 4
    skipk = 0
    stretch = False
    vskip = (2, 3)
    kskip = 0x492
    vpos = 0.03
    kgb = True
    vgb = True
    otd = '233'
    otw = True
    ppoll = 0
    psleep = 4
    cap0 = 0
    backlog = 3
    mix2 = 1
    pack = True
    eager = 16
    extra = 0
    kdt = 2.5
    kgap = 11
    trot = 0
    tsel = '0123'
    pwarm = True
    tflags = 'sc1'
    tfrom = 13
    k2map = 1
cfg = Cfg()

sW = 3; SX, SWQ, SK, SV, SO = 8, 12, 16, 20, 24
sB, sH, sROT = 28, 29, 30
sXb, sG = 31, 32
sT0, sT1, sT2 = 33, 34, 35
sXo, sXo2, sWo = 36, 37, 38
sKo, sVo = 46, 47
sS1, sS2, sS3 = 48, 49, 50
sV = (40, 41, 42, 43, 7)
def vslot(tile):
    if cfg.dV == 3: return (tile & 3) * SLOT
    return (0, SLOT, 2 * SLOT, 3 * SLOT, 4 * SLOT - UNIT)[tile % 5]
sStep = 39; vPW = 180
sRho = 6; vKK = 176
def tile_off(dst, tile, add, **kw):
    if not cfg.trot: return [salu("s_mov_b32", s(dst), str(tile * 16384 + add), **kw)]
    o = [salu("s_add_u32", s(dst), s(sRho), str(tile * 16384), **kw), salu("s_and_b32", s(dst), s(dst), "0x3ffff", **kw)]
    return o + ([salu("s_add_u32", s(dst), s(dst), str(add), **kw)] if add else [])
sT = 51; sPASS = 52; sC = 53; sWS = 44; sS0 = 98
vKrd, vVrd, vKrd0, vVrd0, vXrd, vWrd = 232, 233, 234, 235, 236, 237
vOst = 238; vLane = 239; vT = 220
vKV, vX, vWq = 240, 244, 248
ACC = 0; QF = 128
S_ = (0, 32); P_ = (64, 80); NEGM = 192; LSUM = 208; MTRUE = 212; TMP = 216
KF, VF = 192, 224
def acc(a, tau): return ACC + a * 32 + tau * 4
def qf(a, s): return QF + (a * 4 + s) * 4
def wset(p, s, tau): return p * 96 + (s * 8 + tau) * 4
def xset(p, s, a): return p * 96 + 64 + (s * 4 + a) * 4
def oacc(a, t): return a * 32 + t * 4
v = lambda n: f"v{n}"
s = lambda n: f"s{n}"

STAMP_BASE = 60
def stamp(i, sset="main"):
    if not cfg.stamps or (i > 0 and sset != cfg.sset and sset != "k2"): return []
    return [raw(f"s_memrealtime s[{STAMP_BASE+4*i}:{STAMP_BASE+4*i+1}]"), raw(f"s_memtime s[{STAMP_BASE+4*i+2}:{STAMP_BASE+4*i+3}]"), waitlg(0)]
def GOFF(): return " offset:128" if cfg.dbgst else ""
def stampf(i, sset, after, tgt):
    if not cfg.stamps or sset != cfg.sset: return []
    o = [I(f"s_memrealtime s[{STAMP_BASE+4*i}:{STAMP_BASE+4*i+1}]", "salu", tgt=tgt), I(f"s_memtime s[{STAMP_BASE+4*i+2}:{STAMP_BASE+4*i+3}]", "salu", tgt=tgt)]
    for x in o: x.after = [after]
    return o
def dump_stamps(n, wsreg, off, lane, lab):
    if not cfg.stamps: return []
    o = [raw("s_waitcnt vmcnt(0) lgkmcnt(0)")]
    if cfg.dbgst:
        o += [raw("s_cmp_lg_u32 s2, 100"), raw(f"s_cbranch_scc1 {lab}"), raw(f"s_cmp_lg_u32 s{sW}, 0"), raw(f"s_cbranch_scc1 {lab}"), raw("v_mov_b32 v3, 0"), raw("s_mov_b64 exec, 1")]
        for i in range(1, n):
            o += [raw(f"s_sub_u32 s4, s{STAMP_BASE+4*i}, s{STAMP_BASE}"), raw("v_mov_b32 v4, s4"), raw(f"global_store_dword v3, v4, s[100:101] offset:{4*i}"), raw("s_nop 1")]
        o += [raw(f"s_sub_u32 s4, s{STAMP_BASE+4*n-2}, s{STAMP_BASE+2}"), raw("v_mov_b32 v4, s4"), raw(f"global_store_dword v3, v4, s[100:101] offset:0")]
        return o
    o += [raw(f"s_lshl_b32 s4, s2, 10"), raw(f"s_lshl_b32 s5, s{sW}, 8"), raw("s_add_u32 s4, s4, s5"), raw(f"s_add_u32 s4, s4, {off}"),
          raw(f"s_add_u32 s4, s{wsreg}, s4"), raw(f"s_addc_u32 s5, s{wsreg+1}, 0"),
          raw(f"v_cmp_eq_u32 vcc, 0, {lane}"), raw("s_and_saveexec_b64 s[6:7], vcc"), raw(f"s_cbranch_execz {lab}"), raw("v_mov_b32 v3, 0")]
    for i in range(n):
        o += [raw(f"v_mov_b32 v{4+j}, s{STAMP_BASE+4*i+j}") for j in range(4)]
        o += [raw(f"global_store_dwordx4 v3, v[4:7], s[4:5] offset:{16*i}"), raw("s_nop 1")]
    return o
STAMP_OFF = 0x2000000

def srd(reg, lo, hi, add, sub, nrec):
    o = [salu("s_add_u32", s(reg), s(lo), s(add)), salu("s_addc_u32", s(reg + 1), s(hi), "0")]
    if sub: o += [salu("s_sub_u32", s(reg), s(reg), str(sub)), salu("s_subb_u32", s(reg + 1), s(reg + 1), "0", scc_r=True, scc_w=True)]
    o += [salu("s_mov_b32", s(reg + 2), nrec), salu("s_mov_b32", s(reg + 3), "0x20000")]
    return o

def k1_setup():
    o = []
    A = o.append
    A(raw("s_cmp_ge_u32 s2, 256")); A(raw("s_cbranch_scc1 L_k1_done"))
    o += stamp(0)
    A(raw("s_load_dwordx4 s[4:7], s[0:1], 0"))
    A(raw("s_load_dwordx4 s[40:43], s[0:1], 16"))
    A(raw(f"s_load_dwordx2 s[{sWS}:{sWS+1}], s[0:1], 56"))
    A(raw("s_load_dwordx4 s[56:59], s[0:1], 32"))
    A(raw("s_load_dwordx2 s[100:101], s[0:1], 48"))
    if cfg.cpf:
        A(raw("s_getpc_b64 s[54:55]")); A(label("L_pc"))
        A(raw("v_cmp_gt_u32 vcc, 64, v0")); A(raw("s_and_saveexec_b64 s[34:35], vcc")); A(raw("s_cbranch_execz L_cpf"))
        A(raw("s_lshr_b32 s33, s2, 3")); A(raw("s_mul_i32 s33, s33, CODE_SHARE")); A(raw("v_lshrrev_b32 v2, 5, v0")); A(raw("v_mul_u32_u24 v2, s33, v2"))
        A(raw("v_lshl_add_u32 v1, v0, 7, v2")); A(raw("v_min_u32 v1, CODE_LAST, v1")); A(raw("global_load_dword v231, v1, s[54:55]"))
        A(label("L_cpf")); A(raw("s_mov_b64 exec, s[34:35]"))
    A(valu("v_lshrrev_b32", "v1", "6", "v0")); A(valu("v_and_b32", v(vLane), "63", "v0"))
    A(valu("v_readfirstlane_b32", s(sW), "v1"))
    A(salu("s_and_b32", s(sT0), "s2", "7")); A(salu("s_lshr_b32", s(sT1), "s2", "3"))
    A(salu("s_and_b32", s(sB), s(sT0), "1")); A(salu("s_lshl_b32", s(sB), s(sB), "2")); A(salu("s_and_b32", s(sT2), s(sT1), "3")); A(salu("s_add_u32", s(sB), s(sB), s(sT2)))
    A(salu("s_lshr_b32", s(sH), s(sT0), "1")); A(salu("s_lshl_b32", s(sH), s(sH), "3")); A(salu("s_lshr_b32", s(sT1), s(sT1), "2")); A(salu("s_add_u32", s(sH), s(sH), s(sT1)))
    A(salu("s_lshl_b32", s(sT2), s(sT2), "1")); A(salu("s_add_u32", s(sROT), s(sH), s(sT2)))
    if cfg.rot == 8: A(salu("s_and_b32", s(sROT), s(sROT), "7"))
    elif cfg.rot == 1: A(salu("s_mov_b32", s(sROT), "0"))
    else:
        A(salu("s_lshr_b32", s(sT2), s(sT2), "1")); A(salu("s_add_u32", s(sROT), s(sH), s(sT2)))
        A(salu("s_and_b32", s(sROT), s(sROT), str(cfg.rot - 1))); A(salu("s_mul_i32", s(sROT), s(sROT), str(8 // cfg.rot)))
    if cfg.c3:
        assert cfg.rot == 4
        A(salu("s_cmp_eq_u32", None, s(sROT), "2")); A(salu("s_cselect_b32", s(sStep), "3", "1"))
    A(salu("s_mul_i32", s(sG), s(sW), str(GRP))); A(salu("s_lshl_b32", s(sXb), s(sG), "1")); A(salu("s_add_u32", s(sXb), s(sXb), str(X_BASE)))
    L = v(vLane)
    A(valu("v_and_b32", "v1", "15", L)); A(valu("v_lshrrev_b32", "v2", "4", L))
    A(valu("v_bfe_u32", "v3", L, "2", "2")); A(valu("v_and_b32", "v4", "3", L))
    A(valu("v_lshrrev_b32", "v5", "5", L)); A(valu("v_lshlrev_b32", "v5", "15", "v5"))
    A(valu("v_bfe_u32", "v6", L, "3", "2")); A(valu("v_lshl_add_u32", "v5", "v6", "12", "v5"))
    A(valu("v_and_b32", "v6", "7", L)); A(valu("v_lshl_add_u32", "v5", "v6", "4", "v5"))
    A(salu("s_lshl_b32", s(sT0), s(sW), "16")); A(salu("s_add_u32", s(sT0), s(sT0), "128"))
    A(valu("v_add_u32", v(vX), s(sT0), "v5"))
    for m in range(1, 4): A(valu("v_subrev_u32", v(vX + m), str(32 * m), v(vX)))
    A(salu("s_and_b32", s(sT0), s(sW), "1")); A(salu("s_lshl_b32", s(sT0), s(sT0), "16"))
    A(salu("s_lshr_b32", s(sT1), s(sW), "1")); A(salu("s_lshl_b32", s(sT1), s(sT1), "15")); A(salu("s_add_u32", s(sT0), s(sT0), s(sT1)))
    A(valu("v_lshlrev_b32", "v5", "17", "v2")); A(valu("v_lshl_add_u32", "v5", "v1", "4", "v5"))
    A(valu("v_add_u32", v(vWq), s(sT0), "v5"))
    for m in range(1, 4): A(valu("v_add_u32", v(vWq + m), str(m * (8192 - PIECE)), v(vWq)))
    late = []; A0 = A; A = late.append; o0 = o; o = late
    A(salu("s_mov_b32", s(sC), hex(QSCALE))); A(salu("s_mov_b32", s(sPASS), "0"))
    A(salu("s_lshl_b32", s(sT0), s(sW), "12")); A(salu("s_add_u32", s(sT0), s(sT0), "128"))
    A(valu("v_lshlrev_b32", v(vOst), "4", L)); A(valu("v_add_u32", v(vKV), s(sT0), v(vOst)))
    for m in range(1, 4): A(valu("v_subrev_u32", v(vKV + m), str(32 * m), v(vKV)))
    o += k1_setup2() + (touch_setup1a() if cfg.xtouch or cfg.c3 else [])
    o = o0; A = A0
    if not cfg.fast0: o += late; late = []
    if cfg.slowt:
        A(salu("s_lshr_b32", s(sT0), "s2", "3")); A(salu("s_lshl_b32", s(sT0), s(sT0), "17")); A(salu("s_lshr_b32", s(sT1), s(sH), "3")); A(salu("s_lshl_b32", s(sT1), s(sT1), "11"))
        A(salu("s_add_u32", s(sT0), s(sT0), s(sT1))); A(salu("s_add_u32", s(sT0), s(sT0), "384"))
        A(valu("v_lshlrev_b32", "v8", "13", "v1")); A(valu("v_and_b32", "v9", "1", "v2")); A(valu("v_lshl_add_u32", "v8", "v9", "10", "v8")); A(valu("v_add_u32", "v8", s(sT0), "v8"))
        A(salu("s_and_b32", s(sT0), s(sH), "7")); A(salu("s_mul_i32", s(sT0), s(sT0), "30720")); A(salu("s_mul_i32", s(sT1), s(sB), "245760")); A(salu("s_add_u32", s(sT0), s(sT0), s(sT1))); A(salu("s_add_u32", s(sT0), s(sT0), "384"))
        A(valu("v_min_u32", "v9", "29", L)); A(valu("v_lshlrev_b32", "v9", "10", "v9")); A(valu("v_add_u32", "v9", s(sT0), "v9"))
    A(salu("s_mul_i32", s(sT0), s(sB), "245760")); A(salu("s_lshl_b32", s(sT1), s(sH), "8")); A(salu("s_sub_u32", s(sT2), "0x400000", s(sT1)))
    if cfg.slowt: A(salu("s_cmp_eq_u32", None, s(sW), "1"))
    A(raw("s_waitcnt lgkmcnt(0)", "other"))
    if cfg.slowt:
        A(raw("s_cbranch_scc0 L_st0", "branch")); A(raw("global_load_dword v231, v9, s[4:5]")); A(label("L_st0"))
        A(salu("s_cmp_eq_u32", None, s(sW), "0")); A(raw("s_cbranch_scc0 L_st1", "branch")); A(raw("global_load_dword v231, v8, s[42:43]")); A(label("L_st1"))
    o += stamp(1, "st")
    o += srd(SX, 4, 5, sT0, 128, str(245760 + 128)) + srd(SWQ, 42, 43, sT1, 0, s(sT2))
    rest = []; A = rest.append
    A(salu("s_lshl_b32", s(sT0), s(sB), "5")); A(salu("s_add_u32", s(sT0), s(sT0), s(sH))); A(salu("s_lshl_b32", s(sT0), s(sT0), "18"))
    if cfg.kvshift: A(salu("s_add_u32", s(sT0), s(sT0), str(cfg.kvshift)))
    rest += srd(SK, 6, 7, sT0, 128, str(262144 + 128 - cfg.kvshift)) + srd(SV, 40, 41, sT0, 128, str(262144 + 128 - cfg.kvshift))
    if cfg.trot == 1: A(salu("s_mul_i32", s(sRho), "s2", "0x9E3779B1")); A(salu("s_lshr_b32", s(sRho), s(sRho), "28")); A(salu("s_lshl_b32", s(sRho), s(sRho), "14"))
    if cfg.trot == 2: A(salu("s_and_b32", s(sRho), "s2", "7")); A(salu("s_lshl_b32", s(sRho), s(sRho), "15"))
    if cfg.trot == 3: A(salu("s_lshr_b32", s(sRho), "s2", "4")); A(salu("s_lshl_b32", s(sRho), s(sRho), "14"))
    if cfg.trot:
        for m in range(4): A(valu("v_subrev_u32", v(vKK + m), "12288", v(vKV + m)))
    A(salu("s_lshl_b32", s(sT0), s(sB), "21")); A(salu("s_lshr_b32", s(sT1), s(sW), "1")); A(salu("s_lshl_b32", s(sT1), s(sT1), "20")); A(salu("s_add_u32", s(sT0), s(sT0), s(sT1)))
    A(salu("s_lshl_b32", s(sT1), s(sH), "15")); A(salu("s_add_u32", s(sT0), s(sT0), s(sT1)))
    A(salu("s_and_b32", s(sT1), s(sW), "1")); A(salu("s_lshl_b32", s(sT1), s(sT1), "12")); A(salu("s_add_u32", s(sT0), s(sT0), s(sT1)))
    rest += srd(SO, sWS, sWS + 1, sT0, 0, "28672")
    c0 = x_dma(0) + w_dma(0); c1 = x_dma(1) + w_dma(1); t = touch_setup1b() + (xw_touch(3, True) if cfg.c3 else []) if cfg.xtouch or cfg.c3 else []
    kv0 = {-3: [("K", 0, (0, 1, 2, 3))], -4: [("K", 0, (0, 1, 2, 3)), ("V", 0, (0, 1))], -5: [("K", 0, (0, 1, 2, 3)), ("V", 0, (0, 1, 2, 3))], -6: [("K", 0, (0, 1))]}.get(cfg.kve, [])
    kv0 = [x for wh, tl, ms in kv0 for x in kv_dma_static(wh, tl, ms=ms)]
    if cfg.order == 0: o += c0 + stamp(2, "st") + late + rest + c1 + stamp(3, "st") + t + xw_touch(2) + kv0
    if cfg.order == 1: o += t + xw_touch(0) + c0 + stamp(2, "st") + xw_touch(2) + c1 + stamp(3, "st") + rest
    if cfg.order == 2: o += t + xw_touch(0) + xw_touch(2) + c0 + stamp(2, "st") + c1 + stamp(3, "st") + rest
    if cfg.order == 4: o += c0 + stamp(2, "st") + t + xw_touch(2) + c1 + stamp(3, "st") + rest
    return o

def k1_setup2():
    o = []; A = o.append
    A(salu("s_mov_b32", s(sT0), str(PIECE)))
    A(valu("v_and_b32", "v5", "7", "v1")); A(valu("v_mul_u32_u24", "v5", s(sT0), "v5"))
    A(valu("v_lshrrev_b32", "v6", "3", "v1")); A(valu("v_lshl_add_u32", "v5", "v6", "8", "v5")); A(valu("v_lshl_add_u32", v(vKrd0), "v2", "4", "v5"))
    A(valu("v_mov_b32", v(vKrd), v(vKrd0)))
    A(valu("v_and_b32", "v5", "1", "v2")); A(valu("v_lshl_add_u32", "v5", "v5", "2", "v3")); A(valu("v_mul_u32_u24", "v5", s(sT0), "v5"))
    A(valu("v_lshrrev_b32", "v6", "1", "v2")); A(valu("v_lshl_add_u32", "v5", "v6", "8", "v5")); A(valu("v_lshl_add_u32", "v5", "v4", "3", "v5"))
    A(valu("v_add_u32", v(vVrd0), str(UNIT), "v5")); A(valu("v_mov_b32", v(vVrd), v(vVrd0))); A(valu("v_add_u32", v(vWrd), str(W_BASE), "v5"))
    A(valu("v_mul_u32_u24", "v5", s(sT0), "v4")); A(valu("v_lshl_add_u32", "v5", "v3", "7", "v5")); A(valu("v_lshl_add_u32", "v5", "v2", "4", "v5"))
    A(valu("v_add_u32", v(vXrd), s(sXb), "v5"))
    for a in range(4): A(valu("v_mov_b32", v(MTRUE + a), "0xff800000"))
    A(valu("v_lshrrev_b32", "v5", "1", "v2")); A(valu("v_lshlrev_b32", "v5", "15", "v5")); A(valu("v_and_b32", "v6", "1", "v2")); A(valu("v_lshl_add_u32", "v5", "v6", "13", "v5"))
    if cfg.wil: A(valu("v_lshl_add_u32", "v5", "v3", "8", "v5")); A(valu("v_lshl_add_u32", "v5", "v4", "4", "v5"))
    else: A(valu("v_lshl_add_u32", "v5", "v1", "4", "v5"))
    A(salu("s_lshr_b32", s(sT0), s(sW), "1")); A(salu("s_lshl_b32", s(sT0), s(sT0), "14")); A(salu("s_and_b32", s(sT1), s(sW), "1")); A(salu("s_lshl_b32", s(sT1), s(sT1), "12"))
    A(salu("s_add_u32", s(sT0), s(sT0), s(sT1))); A(valu("v_add_u32", "v5", s(sT0), "v5"))
    for m in range(4): A(valu("v_add_u32", v(v3Wd + m), str(128 - 32 * m), "v5"))
    return o

def x_dma(c, t0=None, dt=1, after=None):
    p = c & 1; o = []; g = f"c{c}"; st = "dma"
    def T(k): return None if t0 is None else int(t0 + k * dt)
    def U(k): return None if t0 is None else int(t0 - 7 + k)
    if cfg.c3: o.append(salu("s_mul_i32", s(sT0), s(sStep), str(c), tgt=U(-1), stream="xa"))
    o.append(salu("s_add_u32", s(sT0), s(sROT), s(sT0) if cfg.c3 else str(c), tgt=U(0), stream="xa")); o.append(salu("s_and_b32", s(sT0), s(sT0), "7", tgt=U(1), stream="xa"))
    o.append(salu("s_lshl_b32", s(sXo), s(sT0), "7", tgt=U(2), stream="xa")); o.append(salu("s_lshl_b32", s(sWo), s(sT0), "19", tgt=U(3), stream="xa"))
    o.append(salu("s_add_u32", s(sXo2), s(sXo), "16384", tgt=U(4), stream="xa"))
    k = 0
    for half in range(2):
        o.append(salu("s_add_u32", "m0", s(sXb), str(p * SLOT + half * GRP), tgt=T(k - 1), stream=st))
        for m in range(4):
            d = dma(v(vX + m), SX, s(sXo2 if half else sXo), m * PIECE, cfg.xflags, grp=g, tgt=T(k), stream=st); k += 1
            if after: d.after = list(after)
            o.append(d)
    return o
def w_dma(c, t0=None, dt=1):
    p = c & 1; o = []; g = f"c{c}"; st = "dma"
    def T(k): return None if t0 is None else int(t0 + k * dt)
    o.append(salu("s_add_u32", "m0", s(sG), str(W_BASE + p * UNIT), tgt=T(-1), stream=st))
    for m in range(4): o.append(dma(v(vWq + m), SWQ, s(sWo), m * PIECE, cfg.wflags, grp=g, tgt=T(m), stream=st))
    return o
def kv_dma_static(which, tile, t0=None, dt=1, grp=0, ms=(0, 1, 2, 3)):
    st = "dma"
    def T(k): return None if t0 is None else t0 + k * dt
    o = tile_off(sT1, tile, grp * 4096, tgt=T(-1), stream=st) + [
         salu("s_add_u32", "m0", s(sG), str((vslot(tile) + UNIT if which == "V" else (tile & 3) * SLOT) + grp * GRP), tgt=T(-1), stream=st)]
    for k, m in enumerate(ms): o.append(dma(v(vKV + m), SK if which == "K" else SV, s(sT1), m * PIECE, cfg.kvflags, grp=f"{which}{tile}", tgt=T(k), stream=st))
    return o
def chunk_reads(c, nq, t0=None, dt=1):
    p = c & 1; o = []; k = 0
    def T(k): return None if t0 is None else t0 + k * dt
    items = []
    for s_ in range(2):
        for a in range(nq): items.append(("x", s_, a))
    for tau in range(8):
        for s_ in range(2):
            for z in range(2): items.append(("w", s_, tau, z))
    for it in items:
        if it[0] == "x":
            _, s_, a = it
            o.append(ds_b128("a", xset(p, s_, a), v(vXrd), p * SLOT + (a & 1) * GRP + (a >> 1) * 512 + s_ * 64, tgt=T(k), stream="rd"))
        else:
            _, s_, tau, z = it
            o.append(ds_tr("a", wset(p, s_, tau) + 2 * z, v(vWrd), p * UNIT + z * 8 * PIECE + s_ * 512 + 32 * tau, tgt=T(k), stream="rd"))
        k += 1
    return o
def chunk_mfma(c, nq, amajor=False):
    p = c & 1; o = []
    order = [(a, tau) for a in range(nq) for tau in range(8)] if amajor else [(a, tau) for tau in range(8) for a in range(nq)]
    for a, tau in order:
        for s_ in range(2):
            z = (c == 0 and s_ == 0)
            o.append(mfma("v", acc(a, tau), "a", wset(p, s_, tau), "a", xset(p, s_, a), "0" if z else None))
    return o
def q_convert(a, t0, dt):
    o = []; k = 0
    for s_ in range(4):
        d = qf(a, s_)
        for half in range(2):
            b = acc(a, 2 * s_ + half)
            for r in range(4): o.append(valu("v_mul_f32", v(b + r), s(sC), v(b + r), tgt=t0 + k * dt)); k += 1
            for r in range(2): o.append(valu("v_cvt_pk_bf16_f32", v(d + 2 * half + r), v(b + 2 * r), v(b + 2 * r + 1), tgt=t0 + k * dt)); k += 1
        for r in range(2): o.append(swap("v_permlane32_swap_b32", v(d + r), v(d + 2 + r), tgt=t0 + k * dt)); k += 1
        for r in range(2): o.append(swap("v_permlane16_swap_b32", v(d + r), v(d + 2 + r), tgt=t0 + k * dt)); k += 1
    return o
def k_reads(j, t0=None, dt=4, after=None):
    o = []
    for r in range(8):
        kap, s_ = r >> 2, r & 3
        i = ds_b128("a", KF + 4 * r, v(vKrd), j * 8 * PIECE + kap * 512 + s_ * 64, tgt=None if t0 is None else t0 + r * dt, stream="rd")
        if after: i.after = list(after)
        o.append(i)
    return o
def v_reads(j, t0, dt):
    o = []
    for r in range(16):
        t, z = r >> 1, r & 1
        o.append(ds_tr("a", VF + 4 * t + 2 * z, v(vVrd), j * 8 * PIECE + z * 512 + 32 * t, tgt=t0 + r * dt, stream="rd"))
    return o
def qk(j, nq, first=False):
    o = []
    for a in range(nq):
        for kap in range(2):
            d = S_[j] + a * 8 + kap * 4
            for s_ in range(4):
                if s_ == 0: o.append(mfma("v", d, "a", KF + 4 * (kap * 4), "v", qf(a, 0), "0" if first else "v", None if first else NEGM + 4 * a))
                else: o.append(mfma("v", d, "a", KF + 4 * (kap * 4 + s_), "v", qf(a, s_)))
    return o
ONES = 128; LM = 96
def mtiles(nq): return list(range(cfg.msum)) if nq == 4 else []
def lsreg(a, nq): return LM + 4 * a if a in mtiles(nq) else LSUM + a
def lsum_mfma(j, a, first=False): return mfma("v", LM + 4 * a, "a", ONES, "v", P_[j] + 4 * a, "0" if first else None)
def pv(j, nq, first=False):
    o = [mfma("a", oacc(a, t), "a", VF + 4 * t, "v", P_[j] + 4 * a, "0" if first else None) for t in range(8) for a in range(nq)]
    return o + [lsum_mfma(j, a, first) for a in mtiles(nq)]
def sm(j, nq, t0, dt=2.0, mix=False):
    o = []
    order = list(range(8 * nq))
    if mix and len(mtiles(nq)) == 2:
        order = [e_ for k in range(8) for e_ in (2 * k, 2 * k + 1, 16 + 2 * k, 17 + 2 * k)]
        if cfg.mix2 == 0: order = list(range(32))
        if cfg.mix2 == 2: order = [e_ for k in range(4) for e_ in (2 * k, 2 * k + 1, 16 + 2 * k, 17 + 2 * k)] + [e_ for k in range(4) for e_ in (24 + 2 * k, 25 + 2 * k, 8 + 2 * k, 9 + 2 * k)]
    if mix and len(mtiles(nq)) == 1:
        order = [e_ for k in range(4) for e_ in (2 * k, 2 * k + 1, 8 + 2 * k, 9 + 2 * k)] + list(range(16, 32))
    for n_, i in enumerate(order):
        r = S_[j] + i; a = i >> 3
        o.append(valu("v_exp_f32", v(r), v(r), tgt=int(t0 + n_ * dt)))
        if a not in mtiles(nq): o.append(valu("v_add_f32", v(LSUM + a), v(LSUM + a), v(r), tgt=int(t0 + n_ * dt + 1)))
        if i & 1: o.append(valu("v_cvt_pk_bf16_f32", v(P_[j] + (i >> 1)), v(r - 1), v(r), tgt=int(t0 + n_ * dt + 1)))
    return o
def xreduce(op, reg, tmp, t0=None, dt=1):
    def T(k): return None if t0 is None else t0 + k * dt
    return [valu("v_mov_b32", v(tmp), v(reg), tgt=T(0)), swap("v_permlane16_swap_b32", v(reg), v(tmp), tgt=T(1)), valu(op, v(reg), v(reg), v(tmp), tgt=T(2)),
            valu("v_mov_b32", v(tmp), v(reg), tgt=T(3)), swap("v_permlane32_swap_b32", v(reg), v(tmp), tgt=T(4)), valu(op, v(reg), v(reg), v(tmp), tgt=T(5))]
def first_max(a, t0, dt):
    o = []; b = S_[0] + a * 8; m = TMP + 2 * a; k = 0
    o.append(valu("v_max3_f32", v(m), v(b), v(b + 1), v(MTRUE + a), tgt=t0))
    for r in range(1, 4): o.append(valu("v_max3_f32", v(m), v(b + 2 * r), v(b + 2 * r + 1), v(m), tgt=t0 + r * dt))
    o += xreduce("v_max_f32", m, m + 1, t0 + 4 * dt, dt)
    for r in range(4): o.append(valu("v_sub_f32", v(NEGM + 4 * a + r), "0", v(m), tgt=t0 + (10 + r) * dt))
    for r in range(8): o.append(valu("v_sub_f32", v(b + r), v(b + r), v(m), tgt=t0 + (14 + r) * dt))
    o.append(valu("v_mov_b32", v(LSUM + a), "0", tgt=t0))
    return o

class Variant:
    def __init__(s_, nq, name):
        s_.nq, s_.name = nq, name
        s_.static = []
        s_.trace = []
        s_.vm = []
        s_.pend = []
    def finish(s_, seq, sched=True, **kw):
        seq = schedule(seq, **kw) if sched else seq
        seq = s_.resolve_vm(seq)
        seq, s_.pend = insert_lgkm(seq, s_.pend)
        seq = fix_hazards(seq, s_.trace)
        s_.static += seq; s_.trace += seq
        return seq
    def resolve_vm(s_, seq):
        out = []
        for c in seq:
            if c.k == "wait" and c.meta == ("vm", None):
                n = min(vm_count(s_.vm, c.need), 63)
                w = waitvm(n, need=c.need); out.append(w)
            else:
                out.append(c)
                if c.k == "vmem": s_.vm.append(c)
        return out
def wvm(groups, **kw): return I("s_waitcnt vmcnt(?)", "wait", meta=("vm", None), need=set(groups), **kw)

sTo = 49 + 50
sKt = 95
def window(T, nq, part, static):
    n = 8 * nq; st = "dma"
    ps = [((m + 0.5) / 4, "V", 0, m) for m in range(4)]
    if nq == 3: ps += [((k + 0.25) / 16, "K", k >> 2, k & 3) for k in range(16 - cfg.skipk)]
    if cfg.kgb: ps = [(p if w_ == "V" else (g_ + 0.02 + 0.085 * m) / 4, w_, g_, m) for p, w_, g_, m in ps]
    if cfg.vgb: ps = [(p if w_ == "K" else 0.63 + 0.016 * m, w_, g_, m) for p, w_, g_, m in ps]
    if cfg.stretch: ps = [(0.27 + 0.16 * g_ + 0.025 * m if w_ == "K" else 0.03 + 0.02 * m, w_, g_, m) for p, w_, g_, m in ps]
    fv = 0.24 if (cfg.wlate and T == 12) else cfg.frac
    ps = sorted((p * (fv if w_ == 'V' else cfg.fracK), w_, g_, m) for p, w_, g_, m in ps)
    o = []; cur = None
    It = T + part
    for p, w_, g_, m in ps:
        if (p >= 0.25) != bool(part): continue
        tile = T + (cfg.dV if w_ == "V" else cfg.dK) - (1 if (cfg.stretch and T >= 0 and (cfg.vskip[0] < 12 if w_ == "V" else cfg.kskip)) else 0)
        if static and tile > 15: continue
        tg = int(3 * n + len(mtiles(nq)) + p * (4 * n - 4)) if part == 0 else int((p - 0.25) * (4 * n - 6)) + 1
        if (w_, g_) != cur:
            cur = (w_, g_)
            if static:
                o += tile_off(sKt, tile, (g_ - (0 if cfg.trot else 3)) * 4096 if w_ == "K" else 0, tgt=tg - 2, stream=st)
                if w_ == "V": o.append(salu("s_add_u32", "m0", s(sG), str(vslot(tile) + UNIT), tgt=tg - 1, stream=st))
                else: o.append(salu("s_mov_b32", "m0", str((tile & 3) * SLOT + g_ * GRP), tgt=tg - 1, stream=st))
            else:
                sl = sV[tile - It] if (w_ == "V" and cfg.dV == 4) else (sS0, sS1, sS2, sS3)[(tile - It) & 3]
                if w_ == "V":
                    o.append(salu("s_add_u32", s(sT0), s(sl), s(sG), tgt=tg - 2, stream=st)); o.append(salu("s_add_u32", "m0", s(sT0), str(UNIT), tgt=tg - 1, stream=st))
                else:
                    o.append(salu("s_add_u32", s(sKt), s(sKo), str(g_ * 4096), tgt=tg - 2, stream=st)); o.append(salu("s_add_u32", "m0", s(sl), str(g_ * GRP), tgt=tg - 1, stream=st))
        cap = cfg.cap3 if nq == 3 else cfg.cap0
        if cap: o.append(waitvm(cap - 1, tgt=tg - 1, stream=st))
        so = sKt if (static or w_ == "K") else sVo
        o.append(dma(v((vKK if (cfg.trot and w_ == "K") else vKV) + m), SV if w_ == "V" else SK, s(so), m * PIECE, cfg.kvflags, grp=f"{w_}{tile}", tgt=tg, stream=st))
    return o
DUMMY = LDS1 + 64
sVs, sVr, sKq, sSk = 40, 41, 42, 43
def next5(r, t0, stream):
    return [salu("s_add_u32", s(r), s(r), str(SLOT), tgt=t0, stream=stream),
            salu("s_cmp_eq_u32", None, s(r), str(4 * SLOT), tgt=t0 + 1, stream=stream), salu("s_cselect_b32", s(r), str(4 * SLOT - UNIT), s(r), stream=stream),
            salu("s_cmp_eq_u32", None, s(r), str(5 * SLOT - UNIT), tgt=t0 + 2, stream=stream), salu("s_cselect_b32", s(r), "0", s(r), stream=stream)]
def window_dyn(T, nq, part):
    n = 8 * nq; st = "dma"; mx = len(mtiles(nq)); o = []
    w_model = 0 if nq == 4 else 3; tskip = cfg.vskip[0] + cfg.vskip[1] * w_model
    nulls = lambda t: sum(1 for z in range(t) if cfg.kskip >> z & 1)
    def ksite(g_, tg):
        q = 16 + 4 * T + g_ - nulls(T)
        null = part and g_ == 3 and cfg.kskip >> T & 1
        x = [salu("s_and_b32", s(sT0), s(sKq), "3", stream=st), salu("s_mul_i32", s(sT0), s(sT0), str(GRP), stream=st),
             salu("s_bfe_u32", s(sKt), s(sKq), "0x20002", scc_w=True, stream=st), salu("s_mul_i32", s(sKt), s(sKt), str(SLOT), stream=st), salu("s_add_u32", s(sT0), s(sT0), s(sKt), stream=st),
             salu("s_lshl_b32", s(sKt), s(sKq), "12", stream=st), salu("s_sub_u32", s(sKt), s(sKt), "12288", stream=st)]
        if part and g_ == 3:
            x += [salu("s_mov_b32", s(sTo), hex(cfg.kskip), stream=st), salu("s_bitcmp1_b32", None, s(sTo), s(sT), scc_w=True, stream=st), salu("s_cselect_b32", s(sKt), "0x7ff00000", s(sKt), stream=st),
                  salu("s_cselect_b32", "m0", str(DUMMY), s(sT0), stream=st), salu("s_subb_u32", s(sKq), s(sKq), "-1", scc_r=True, scc_w=True, stream=st)]
        else: x += [salu("s_mov_b32", "m0", s(sT0), stream=st), salu("s_add_u32", s(sKq), s(sKq), "1", stream=st)]
        for k, y in enumerate(x): y.tgt = tg - len(x) + k
        return x + [dma(v(vKV + m), SK, s(sKt), m * PIECE, cfg.kvflags, grp="null" if null else f"K{q >> 2}", tgt=int(tg + m * 2.5), stream=st) for m in range(4)]
    if part == 0:
        tg = int(3 * n + mx + cfg.vpos * 4 * n) + 2
        tile = T + 4 if T < tskip else T + 3
        x = [salu("s_add_u32", s(sT0), s(sVs), s(sG), stream=st), salu("s_add_u32", s(sT0), s(sT0), str(UNIT), stream=st),
             salu("s_cmp_eq_u32", None, s(sT), s(sSk), stream=st), salu("s_cselect_b32", s(sT1), "0x7ff00000", s(sVo), stream=st), salu("s_cselect_b32", "m0", str(DUMMY), s(sT0), stream=st),
             salu("s_cselect_b32", s(sT2), "0", "1", stream=st)]
        for k, y in enumerate(x): y.tgt = tg - 4 + k
        o += x + [dma(v(vKV + m), SV, s(sT1), m * PIECE, cfg.kvflags, grp="null" if T == tskip else f"V{tile}", tgt=tg + 2 * m, stream=st) for m in range(4)]
        u = tg + 8
        o += [salu("s_lshl_b32", s(sT0), s(sT2), "14", tgt=u, stream="vadv"), salu("s_add_u32", s(sVo), s(sVo), s(sT0), tgt=u + 1, stream="vadv"), salu("s_mov_b32", s(sT0), s(sVs), tgt=u + 2, stream="vadv")]
        o += next5(sVs, u + 3, "vadv")
        o += [salu("s_cmp_eq_u32", None, s(sT2), "0", tgt=u + 6, stream="vadv"), salu("s_cselect_b32", s(sVs), s(sT0), s(sVs), stream="vadv")]
    elif nq == 3:
        for g_ in range(4): o += ksite(g_, int(9 + g_ * cfg.fracK * (3 * n - 20) / 3.4))
    return o
def iteration(T, nq, first=False, peeled=False):
    n = 8 * nq
    st = "dma"
    o = []
    vdt = 2 if nq == 4 else 1.5
    o += qk(0, nq)
    o += v_reads(0, 1, vdt)
    o += sm(1, nq, 0, mix=True)
    o += k_reads(1, n + 1, (n - 4) / 8)
    o += pv(0, nq, first)
    mx = len(mtiles(nq))
    B = 2 * n + mx
    o += qk(1, nq)
    vr = v_reads(1, B + 1, vdt); o += vr
    o.append(valu("v_add_u32", v(vVrd), str(vslot(T + 1)) if peeled else s(sVr if cfg.stretch else sV[1] if cfg.dV == 4 else sS1), v(vVrd0), tgt=B + n + 2))
    o += sm(0, nq, B - 2, 2.0, mix=True)
    w = wvm({f"K{T+2}", f"V{T+1}"} | ({"w0", "w1"} if (T == 14 and cfg.p3early) else set()), tgt=B + n - 3, stream=["rd2", st]); b = barrier(tgt=B + n - 2, stream=["rd2", st])
    w.after = [x for x in o if x.k == "mfma"][B + n - 4:B + n - 3]
    o += [w, b]
    if cfg.its:
        x1 = valu("v_mov_b32", "v126", "s90", tgt=B + n - 1); x1.after = [b]
        x2 = I("s_memrealtime s[90:91]", "salu", tgt=B + n - 1); x2.after = [x1]
        o += [x1, x2, valu("v_cmp_eq_u32", "vcc", "s51", v(vLane), tgt=B + n), valu("v_cndmask_b32", "v127", "v127", "v126", "vcc", tgt=B + n + 2)]
    e = 4 * n + 2 * mx - 1
    t = B + n
    if T >= 12 and peeled:
        eA = []; eB = []; tl = []; tlB = []
        if T == 12: eA = p3_wdma(0) + p3_wdma(1)
        if T == 13: eA = p3_wdma(2); eB = p3_wdma(3)
        if cfg.dV == 4:
            assert cfg.dK == 5
            eA, eB = {12: (p3_wdma(0), p3_wdma(1)), 13: (p3_wdma(2), p3_wdma(3)), 14: (p3_wdma(4), p3_wdma(5) + p3_wdma(6))}[T]
        if cfg.wlate:
            if T == 12: eA = []
            if T == 13: eA = p3_wdma(0) + p3_wdma(1) + p3_wdma(2)
        if cfg.wtouch and T == 12:
            x = I(f"global_load_dword v231, v230, s[56:57]", "vmem", rd=["v230"], meta="load", grp="touch")
            eA = [x]; eB = p3_wdma(0)
        if cfg.wtouch and T == 13: eA = p3_wdma(1) + p3_wdma(2)
        if T == 14 and cfg.dV == 3: eA = p3_wdma(4); eB = p3_wdma(5) + p3_wdma(6)
        if cfg.touch and cfg.otm == 0 and nq == 3:
            cnt = [int(c_) for c_ in cfg.otd]; k0 = sum(cnt[:T - 12]); tl = []
            for k in range(k0, k0 + cnt[T - 12]):
                tl.append(salu("s_mov_b32", s(sTo), str((k >> 2) * 16384), stream=st))
                tl.append(bload("v", 231, v(vT + (k & 3)), SX, s(sTo), 0, cfg.tflags, n=1, grp="touch", stream=st)); tl[-1].wr = set()
            if not cfg.otw: eA = eA + tl; tl = []
        if cfg.touch and cfg.otm:
            def ot(k):
                x = bload("v", 231, "v230", SO, s(sTo), 0, cfg.tflags, n=1, grp="touch", stream=st); x.wr = set()
                return [salu("s_mov_b32", s(sTo), str(k * 16384), stream=st), x]
            where = {1: ((13, "B"), (14, "A")), 2: ((14, "A"), (14, "A")), 3: ((13, "B"), (13, "B")), 4: ((13, "A"), (13, "B")), 5: ((14, "A"), (14, "B"))}[cfg.otm]
            for k, (tt, ab) in reversed(list(enumerate(where))):
                if tt == T and ab == "A": eA = ot(k) + eA
                if tt == T and ab == "B": eB = ot(k) + eB
        for x in eA: x.stream = st
        pre = window(T - 1, nq, 1, True); post = window(T, nq, 0, True)
        if eA: place(eA, 3 if T == 12 else 6, 3 * n - 8)
        if eB: place(eB, t + 2, e - 4)
        def merge(a_, b_):
            items = []
            for z, seq in enumerate((a_, b_)):
                setup = []; m0 = None
                for x in seq:
                    if x.k == "vmem": items.append((x.tgt, len(items), z, setup, m0, x)); setup = []
                    else:
                        setup.append(x)
                        if "m0" in x.wr: m0 = x
            items.sort(key=lambda q_: q_[:2]); res = []; cur = None
            for tg, _, z, setup, m0, x in items:
                if any("m0" in y.wr for y in setup): m0 = next(y for y in setup if "m0" in y.wr)
                elif "m0" in x.rd and cur is not m0: setup = setup + [I(m0.t, m0.k, m0.rd, m0.wr, tgt=tg - 1, stream=m0.stream)]
                if "m0" in x.rd: cur = m0
                res += setup + [x]
            return res
        eA = merge(pre, eA); eB = merge(post, eB)
        if tl:
            nt_ = len(tl) // 2
            for k in range(nt_):
                g = int((k + 0.5) * (e + 1) / nt_); tl[2 * k].tgt = g - 1; tl[2 * k + 1].tgt = g
            tlB = [x for x in tl if x.tgt >= t - 4 + (x.k != "salu")]; tl = [x for x in tl if x not in tlB]
            for x in tlB: x.tgt = max(x.tgt, t + 1)
            eA = merge(eA, tl); eB = merge(eB, tlB)
        k = o.index(w); o[k:k] = eA
        if T < 14:
            o.append(valu("v_add_u32", v(vKrd), str(((T + 2) & 3) * SLOT), v(vKrd0), tgt=B + n - 4))
            o += k_reads(0, B + n + 1, (n - 4) / 8, after=[b])
        else:
            o += [ds_tr("a", KF + 4 * (r >> 1) + 2 * (r & 1), v(vVrd), (r & 1) * 512 + 32 * (r >> 1), tgt=int(B + n + 4 + r * (n - 6) / 16), stream="rd") for r in range(16)]
            for x in o[-16:]: x.after = [b]
        return o + eB + pv(1, nq)
    o.append(valu("v_add_u32", v(vKrd), s(sS2), v(vKrd0), tgt=B + n - 4))
    o += k_reads(0, B + n + 1, (n - 4) / 8, after=[b])
    if cfg.stretch: pre = window_dyn(T, nq, 1)
    else:
        pre = window(T - 1, nq, 1, False)
        for r_ in (sVo, sKo)[:2 if nq == 3 else 1]:
            pre += [salu("s_add_u32", s(r_), s(r_), "16384", tgt=t - 6, stream=st)] + ([salu("s_and_b32", s(r_), s(r_), "0x3ffff", tgt=t - 5, stream=st)] if cfg.trot else [])
    if cfg.prew and nq == 3:
        P_n = cfg.prew
        pw = [salu("s_mul_i32", s(sTo), s(sT), str(P_n * 1024), tgt=2, stream=st), salu("s_cmp_ge_u32", None, s(sTo), "32768", tgt=3, stream=st), salu("s_cselect_b32", s(sTo), "0x7ff00000", s(sTo), stream=st)]
        for z in range(2 * P_n):
            pw.append(bstore("v", NEGM, v(vPW + (z & 1)), SX, s(sTo), 1024 * (z >> 1), cfg.prewf, tgt=int(6 + z * (3 * n - 14) / (2 * P_n)), stream=st, grp="pw"))
        items = sorted([(x.tgt if x.k == "vmem" else None, k, x) for k, x in enumerate(pre)], key=lambda q_: q_[1])
        res = pw[:3]; q_ = pw[3:]
        for _, _, x in items:
            while q_ and x.k == "salu" and (not res or res[-1].k == "vmem") and q_[0].tgt <= x.tgt: res.append(q_.pop(0))
            res.append(x)
        pre = res[:-2] + q_ + res[-2:]
    if cfg.wroll and nq == 3:
        x = bload("v", 231, v(vT), STC2, s(sTo), 0, n=1, grp="touch", tgt=B + 6, stream=st); x.wr = set()
        pre += [salu("s_sub_u32", s(sT2), s(sT), str(cfg.wroll), tgt=B, stream="tch"), salu("s_lshl_b32", s(sTo), s(sT2), "13", tgt=B + 1, stream="tch"), x]
        pre.sort(key=lambda y: 0)
    if cfg.kick and nq == 3:
        kk = [salu("s_cmp_eq_u32", None, s(sT), "5", tgt=B + 2, stream=st), salu("s_cselect_b32", s(sTo), "0", "0x7ff00000", tgt=B + 3, stream=st)]
        for z in range(cfg.kick):
            kk.append(bload("v", 231, v(vT + (z & 1)), SX, s(sTo), 0, "nt", n=1, grp="touch", tgt=B + 4 + z, stream=st)); kk[-1].wr = set()
            kk.append(salu("s_add_u32", s(sTo), s(sTo), "8192" if z & 1 else "0", tgt=B + 4 + z, stream=st))
        pre += kk
    if cfg.extra and nq == 4:
        ex = [salu("s_mul_i32", s(sTo), "s2", "0x40000", tgt=4, stream=st), salu("s_lshl_b32", s(sT2), s(sT), "12", tgt=5, stream=st), salu("s_add_u32", s(sTo), s(sTo), s(sT2), tgt=6, stream=st),
              salu("s_add_u32", s(sTo), s(sTo), "0x4000000", tgt=6, stream=st), salu("s_mul_i32", s(sT2), s(sW), "0x4000000", tgt=6, stream=st), salu("s_add_u32", s(sTo), s(sTo), s(sT2), tgt=6, stream=st),
              valu("v_add_u32", "v125", s(sTo), v(vOst), tgt=7), salu("s_mov_b32", "m0", str(8 * UNIT), tgt=8, stream=st)]
        for z in range(cfg.extra): ex.append(I(f"global_load_lds_dwordx4 v125, s[{sWS}:{sWS+1}] offset:{z*1024} nt", "vmem", rd=["v125", "m0"], meta="dma", grp="ex", tgt=9 + z, stream=st))
        pre = ex + pre
    k = o.index(w); o[k:k] = pre
    o += window_dyn(T, nq, 0) if cfg.stretch else window(T, nq, 0, False)
    r = e - 9
    o += pv(1, nq)
    if cfg.stretch:
        o += next5(sVr, B + n + 6, "vrd")
        o += [salu("s_add_u32", s(sS2), s(sS2), str(SLOT), tgt=r + 2, stream="krd"), salu("s_cmp_eq_u32", None, s(sS2), str(4 * SLOT), tgt=r + 3, stream="krd"), salu("s_cselect_b32", s(sS2), "0", s(sS2), stream="krd")]
    else:
        o.append(salu("s_mov_b32", s(sS0), s(sS1), tgt=r + 1, stream=st))
        if cfg.dV == 4:
            rot = [(sT2, sV[0])] + [(sV[k], sV[k + 1]) for k in range(4)] + [(sV[4], sT2)]
            for k, (d_, s_) in enumerate(rot): o.append(salu("s_mov_b32", s(d_), s(s_), tgt=r - 8 + k, stream="vrot"))
        o.append(salu("s_mov_b32", s(sS1), s(sS2), tgt=r + 2, stream=st)); o.append(salu("s_mov_b32", s(sS2), s(sS3), tgt=r + 3, stream=st))
        o.append(salu("s_add_u32", s(sS3), s(sS3), str(SLOT), tgt=r + 4, stream=st)); o.append(salu("s_cmp_eq_u32", None, s(sS3), str(4 * SLOT), tgt=r + 5, stream=st))
        o.append(salu("s_cselect_b32", s(sS3), "0", s(sS3), tgt=r + 6, stream=st))
    o.append(salu("s_add_u32", s(sT), s(sT), "1", tgt=r + 7, stream=st));
    if cfg.longloop:
        for rg_ in (sKo, sVo):
            o += [salu("s_cmp_ge_u32", None, s(rg_), str(262144 - 16384), tgt=r + 8, stream=st), salu("s_cselect_b32", s(sT0), str(14 * 16384), "0", tgt=r + 8, stream=st), salu("s_sub_u32", s(rg_), s(rg_), s(sT0), tgt=r + 8, stream=st)]
    o.append(salu("s_cmp_lt_u32", None, s(sT), str(cfg.longloop or 12), tgt=r + 8, stream=st))
    return o

def pack_iter(o, nq):
    N = sum(1 for x in o if x.k == "mfma"); H = N // 2
    ex = [x for x in o if x.k == "trans"]; ld = [x for x in o if x.k == "lds"]; vm = [x for x in o if x.k == "vmem"]
    va = [x for x in o if x.k == "valu"]
    for i, x in enumerate(ex): x.tgt = (i // 32) * H + ((i % 32) * H) // 32
    eg = {x.tgt for x in ex}
    expo = {next(iter(x.wr)): x.tgt for x in ex[:32]}; expo2 = {next(iter(x.wr)): x.tgt for x in ex[32:]}
    dg = set()
    for x in vm:
        g = min(x.tgt, N - 1)
        while g in dg or g in eg: g += 1
        x.tgt = g; dg.add(g)
    xg = [g for g in range(N) if g not in dg and g not in eg]
    lg = {}
    for x in ld:
        left = len(ld) - len(lg); last = max(lg, default=-1)
        free = [g for g in xg if g > last]
        if len([g for g in free if g >= x.tgt]) >= left: g = next(g for g in free if g >= x.tgt)
        else: g = max(last + 1, min(int(x.tgt), N - 2 - left)); g += g in dg
        lg[g] = x; x.tgt = g
    rdy = []
    for x in va:
        op = x.t.split()[0]
        if op in ("v_add_f32", "v_cvt_pk_bf16_f32"):
            r = max((expo.get(q, expo2.get(q, -1)) if o.index(x) < o.index(ex[32]) else expo2.get(q, -1)) for q in x.rd) + 1
        else: r = x.tgt
        rdy.append((r, len(rdy), x))
    rdy.sort(key=lambda z: z[:2])
    bonus = set()
    def fill():
        k = 0; back = {}
        for g in xg:
            cap = (1 if g in lg else 2) + (g in bonus); take = 0
            while k < len(rdy) and rdy[k][0] <= g and take < cap: rdy[k][2].tgt = g; k += 1; take += 1
            back[g] = sum(1 for z in rdy[k:] if z[0] <= g)
        return len(rdy) - k, back
    while True:
        left, back = fill()
        worst = max(back.values())
        if left == 0 and worst <= cfg.backlog: break
        cand = [g for g in xg if g not in bonus and back[g] > (cfg.backlog if worst > cfg.backlog else 0)]
        if not cand: break
        bonus.add(cand[0] if worst > cfg.backlog else cand[-1])
    left, back = fill()
    if left:
        for z in rdy[len(rdy) - left:]: z[2].tgt = N - 1
    taken = {x.tgt for x in o if x.k in ("wait", "bar")}
    dl = {}
    for idx in range(len(o) - 1, -1, -1):
        x = o[idx]
        if x.k == "salu":
            nx = next((y for y in o[idx + 1:] if y.k in ("vmem", "salu", "wait") and (y.stream == x.stream or (isinstance(y.stream, list) and x.stream in y.stream))), None)
            if nx is not None and (nx.k != "salu" or id(nx) in dl):
                g = nx.tgt - 1
                while g in taken and g > -1: g -= 1
                x.tgt = g; taken.add(g); dl[id(x)] = g
    last = {}
    for x in o:
        if x.k == "salu" and id(x) not in dl:
            g = max(int(x.tgt), last.get(str(x.stream), -1) + 1)
            while g in taken and g < N - 1: g += 1
            x.tgt = min(g, N - 1); taken.add(g); last[str(x.stream)] = g
    return o
def sched_iter(T, nq, **kw):
    extra = kw.pop("extra", [])
    o = fuse_scc(extra + iteration(T, nq, **kw)); extra = []
    if nq == 4 and cfg.pack: return schedule(pack_iter(extra + o, nq), strict=True)
    return schedule(extra + o)
def place(seq, g0, g1):
    vec = [x for x in seq if x.k in COST]
    for k, x in enumerate(vec): x.tgt = g0 + k * (g1 - g0 + 1) // len(vec)
    nxt = g1
    for x in reversed(seq):
        if x.k in COST: nxt = x.tgt
        else: x.tgt = max(-1, nxt - 1); nxt = x.tgt if x.k == "salu" else nxt
    return seq
def weave(a, b, lead=0):
    grp = []; cur = []
    for x in b:
        cur.append(x)
        if x.k in COST: grp.append(cur); cur = []
    if cur: grp[-1] += cur
    out = list(a[:lead]); rest = a[lead:]; k = 0
    for n_, x in enumerate(rest):
        while k < len(grp) and k * len(rest) <= n_ * len(grp): out += grp[k]; k += 1
        out.append(x)
    for y in grp[k:]: out += y
    return out
def xw_touch(c, force=False):
    if not (cfg.xtouch or force): return []
    x = bload("v", 231, v(vT + 2), STC, s(sTo), 0, n=1, grp="touch", stream="dma"); x.wr = set()
    return [salu("s_mul_i32", s(sTo), s(sTs), str(c), stream="dma"), x]
def wo_touch(k):
    x = I(f"global_load_dword v231, v{vT+3}, s[56:57]", "vmem", rd=[v(vT + 3)], meta="load", grp="touch", stream="dma")
    return [x, valu("v_add_u32", v(vT + 3), "0x2000", v(vT + 3), stream="dma")]
def first_tile(nq, G, redo=False):
    h = 8 * nq
    o = qk(0, nq, first=True)
    if cfg.dK == 5 and (cfg.kve == 0 or redo): o += kv_dma_static("K", 3, G + h, 3)
    elif cfg.dK == 5 and cfg.kve == 9: o += kv_dma_static("K", 3, G + h, h // 5)
    elif cfg.dK == 5 and cfg.kve >= 6: o += kv_dma_static("K", 3, G + 4, h // 3)
    if cfg.dV == 4: o += kv_dma_static("V", 2, G + (h + 12 if (cfg.kve in (0, 9) or redo) else 2 * h - 6 - 4 * (h // 4) if cfg.kve >= 6 else 2), h // 4)
    for a in range(nq): o += first_max(a, G + 8 * (a + 1) + 2, cfg.mdt)
    o += k_reads(1, G + h - 6, 1)
    q1 = qk(1, nq); o += q1
    o += sm(0, nq, G + h + cfg.soff, cfg.sdt)
    w = wvm({"K1", "V0", "G"}, tgt=G + 2 * h - 3, stream=["dma"]); b = barrier(tgt=G + 2 * h - 2, stream=["dma"])
    w.after = [q1[h - 4]]
    o += [w, b, valu("v_add_u32", v(vKrd), str(SLOT), v(vKrd0), tgt=G + 2 * h - 2)]
    o += k_reads(0, G + 2 * h - 1, 0, after=[b])
    for x in window(-1, nq, 0, True): x.tgt = G + 2 * h - 1; o.append(x)
    for k, (r_, val) in enumerate(((sS0, 0), (sVo, (cfg.dV - 1) * 16384), (sKo, (cfg.dK - 1) * 16384 - 3 * 4096), (sS1, SLOT), (sS2, 2 * SLOT), (sS3, 3 * SLOT), (sT, 0)) + (((sVs, vslot(4)), (sVr, vslot(1)), (sKq, 16), (sVo, 4 * 16384)) if cfg.stretch else tuple((sV[k], vslot(k)) for k in range(5)) if cfg.dV == 4 else ())):
        if cfg.trot and r_ in (sVo, sKo): o += tile_off(r_, (cfg.dV if r_ == sVo else cfg.dK) - 1, 0, tgt=G + 10 + k)
        else: o.append(salu("s_mov_b32", s(r_), str(val), tgt=G + 10 + k))
    if cfg.stretch: o += [salu("s_mul_i32", s(sSk), s(sW), str(cfg.vskip[1]), tgt=G + 24), salu("s_add_u32", s(sSk), s(sSk), str(cfg.vskip[0]), tgt=G + 25)]
    o.append(valu("v_mov_b32", v(vVrd), v(vVrd0), tgt=G + 8))
    if mtiles(nq):
        o.append(valu("v_mov_b32", v(LM), "0x3f803f80", tgt=G + h))
        for r in range(4): o.append(valu("v_accvgpr_write_b32", f"a{ONES + r}", v(LM), tgt=G + h + 1))
    return o
def k1_variant(nq, name, pre):
    V = Variant(nq, name)
    V.finish([label(f"L_{name}")], sched=False)
    n = 16 * nq; nx = 2 * nq
    r0 = chunk_reads(0, nq)
    V.vm = [x for x in pre if x.k == "vmem"]
    o = (clear_flags() if nq == 3 else []) + stamp(4, "st") + [wvm({"c0"})] + stamp(5, "st") + [barrier()] + stamp(1) + stamp(1, "p1") + stamp(1, "p0") + stamp(6, "st") + r0[:nx + 8]
    V.finish(o, sched=False)
    for c in range(7):
        m = chunk_mfma(c, nq)
        w = wvm({f"c{c+1}"}, stream=["rd", "dma"]); b = barrier(stream=["rd", "dma"])
        rd = chunk_reads(c + 1, nq)
        extra = []
        if c in (0, 2): extra += xw_touch(c + 4)
        plan = {0: {5: [("K", 0, (0, 1, 2, 3)), ("V", 0, (0, 1, 2, 3)), ("K", 1, (0, 1))], 6: [("K", 1, (2, 3))]},
                1: {1: [("K", 0, (0, 1))], 2: [("K", 0, (2, 3))], 3: [("V", 0, (0, 1))], 4: [("V", 0, (2, 3))], 5: [("K", 1, (0, 1, 2, 3))], 6: [("K", 2, (0, 1, 2, 3)), ("V", 1, (0, 1, 2, 3))]},
                2: {2: [("K", 0, (0, 1, 2, 3))], 3: [("V", 0, (0, 1, 2, 3))], 4: [("K", 1, (0, 1, 2, 3))], 6: [("K", 2, (0, 1, 2, 3)), ("V", 1, (0, 1, 2, 3))]},
                3: {2: [("K", 0, (0, 1, 2, 3)), ("V", 0, (0, 1, 2, 3)), ("K", 1, (0, 1, 2, 3))], 6: [("K", 2, (0, 1, 2, 3)), ("V", 1, (0, 1, 2, 3))]},
                4: {4: [("K", 0, (0, 1, 2, 3))], 5: [("V", 0, (0, 1, 2, 3)), ("K", 1, (0, 1, 2, 3))], 6: [("K", 2, (0, 1, 2, 3)), ("V", 1, (0, 1, 2, 3))]},
                6: {1: [("K", 0, (0, 1))], 2: [("K", 0, (2, 3))], 3: [("V", 0, (0, 1))], 4: [("V", 0, (2, 3)), ("K", 1, (0,))], 5: [("K", 1, (1, 2, 3))], 6: [("K", 2, (0, 1, 2, 3))]},
                7: {2: [("K", 0, (0, 1, 2))], 3: [("K", 0, (3,)), ("V", 0, (0, 1))], 4: [("V", 0, (2, 3)), ("K", 1, (0,))], 5: [("K", 1, (1, 2, 3))], 6: [("K", 2, (0, 1, 2, 3))]},
                8: {3: [("K", 0, (0, 1, 2, 3))], 4: [("V", 0, (0, 1, 2, 3))], 5: [("K", 1, (0, 1, 2, 3))], 6: [("K", 2, (0, 1, 2, 3))]},
                9: {4: [("K", 0, (0, 1, 2, 3))], 5: [("V", 0, (0, 1, 2, 3))], 6: [("K", 1, (0, 1, 2, 3))]},
                -1: {1: [("K", 0, (0, 1, 2))], 2: [("K", 0, (3,)), ("V", 0, (0, 1))], 3: [("V", 0, (2, 3)), ("K", 1, (0,))], 4: [("K", 1, (1, 2, 3))], 6: [("K", 2, (0, 1, 2, 3)), ("V", 1, (0, 1, 2, 3))]},
                -2: {0: [("K", 0, (0, 1))], 1: [("K", 0, (2, 3))], 2: [("V", 0, (0, 1))], 3: [("V", 0, (2, 3))], 4: [("K", 1, (0, 1))], 5: [("K", 1, (2, 3))], 6: [("K", 2, (0, 1, 2, 3)), ("V", 1, (0, 1, 2, 3))]},
                -3: {3: [("V", 0, (0, 1))], 4: [("V", 0, (2, 3))], 5: [("K", 1, (0, 1, 2, 3))], 6: [("K", 2, (0, 1, 2, 3)), ("V", 1, (0, 1, 2, 3))]},
                -4: {4: [("V", 0, (2, 3))], 5: [("K", 1, (0, 1, 2, 3))], 6: [("K", 2, (0, 1, 2, 3)), ("V", 1, (0, 1, 2, 3))]},
                -5: {5: [("K", 1, (0, 1, 2, 3))], 6: [("K", 2, (0, 1, 2, 3)), ("V", 1, (0, 1, 2, 3))]},
                -6: {2: [("K", 0, (2, 3))], 3: [("V", 0, (0, 1))], 4: [("V", 0, (2, 3))], 5: [("K", 1, (0, 1, 2, 3))], 6: [("K", 2, (0, 1, 2, 3)), ("V", 1, (0, 1, 2, 3))]},
                -7: {4: [("K", 0, (0, 1, 2, 3)), ("V", 0, (0, 1, 2, 3))], 5: [("K", 1, (0, 1, 2, 3))], 6: [("K", 2, (0, 1, 2, 3)), ("V", 1, (0, 1, 2, 3))]},
                -8: {"e": [("K", 0, (0, 1))], 2: [("K", 0, (2, 3))], 3: [("V", 0, (0, 1))], 4: [("V", 0, (2, 3))], 5: [("K", 1, (0, 1, 2, 3))], 6: [("K", 2, (0, 1, 2, 3)), ("V", 1, (0, 1, 2, 3))]},
                -9: {"e": [("K", 0, (0, 1, 2, 3))], 3: [("V", 0, (0, 1))], 4: [("V", 0, (2, 3))], 5: [("K", 1, (0, 1, 2, 3))], 6: [("K", 2, (0, 1, 2, 3)), ("V", 1, (0, 1, 2, 3))]},
                -10: {"e": [("K", 0, (0, 1, 2, 3))], 4: [("V", 0, (0, 1, 2, 3))], 5: [("K", 1, (0, 1, 2, 3))], 6: [("K", 2, (0, 1, 2, 3)), ("V", 1, (0, 1, 2, 3))]},
                -11: {"e": [("K", 0, (0, 1, 2, 3)), ("V", 0, (0, 1))], 4: [("V", 0, (2, 3))], 5: [("K", 1, (0, 1, 2, 3))], 6: [("K", 2, (0, 1, 2, 3)), ("V", 1, (0, 1, 2, 3))]},
                -12: {"e": [("K", 0, (0, 1, 2, 3))], 5: [("V", 0, (0, 1, 2, 3)), ("K", 1, (0, 1, 2, 3))], 6: [("K", 2, (0, 1, 2, 3)), ("V", 1, (0, 1, 2, 3))]},
                5: {5: [("K", 0, (0, 1, 2, 3)), ("V", 0, (0, 1, 2, 3)), ("K", 1, (0, 1, 2, 3))], 6: [("K", 2, (0, 1, 2, 3)), ("V", 1, (0, 1, 2, 3))]}}[cfg.kve]
        kv = [x for wh, tl, ms in plan.get(c, []) for x in kv_dma_static(wh, tl, ms=ms)]
        if cfg.tlbw == c + 1 and nq == 3: kv = tlb_warm() + kv
        if c <= 4: extra += kv
        if c == 0:
            g = 14
            kve_ = [x for wh, tl, ms in plan.get("e", []) for x in kv_dma_static(wh, tl, ms=ms)]
            if kve_: place(kve_, g - 1 - sum(1 for x in kve_ if x.k == "vmem"), g - 2)
            o = place(r0[nx + 8:], -1, g - 3) + kve_ + [waitlg(0, tgt=g - 1, stream="rd"), w, b] + m
            w.tgt = g - 1; b.tgt = g
            o += place(weave(rd[:14], extra + x_dma(2) + w_dma(2)) + rd[14:], g + 1, n - 3) + [waitlg(0, tgt=n - 1, stream="rd")]
        elif c <= 4:
            w.tgt = 0; b.tgt = 1
            early = extra + (x_dma(3) + w_dma(3) if c == 1 else [])
            if cfg.p1w1 and c > 1: early = w_dma(c + 2) + early
            ne = sum(1 for x in early if x.k == "vmem")
            k0 = max(nx + 4, min(len(rd) - 8, ne))
            seq = weave(rd[:k0], early) + [waitlg(k0 - nx, stream=["rd", "dma"])] + weave(rd[k0:], x_dma(c + 3))
            if cfg.p1w1: o = [w, b] + m + place(seq, 2, n - 4) + [waitlg(0, tgt=n - 1, stream="rd")]
            else:
                o = [w, b] + m + place(seq, 2, n - 8)
                o += [waitlg(0, tgt=n - 6, stream="rd"), barrier(tgt=n - 5, stream=["rd", "dma"])] + place(w_dma(c + 3), n - 4, n - 1)
        else:
            w.tgt = 0; b.tgt = 1
            if cfg.p1w1 and c == 5: kv = w_dma(7) + kv
            if not kv: seq = rd
            elif c == 6 and cfg.kve == 0: seq = rd[:30] + weave(rd[30:], kv)
            else: seq = weave(rd, kv)
            o = [w, b] + m + place(seq, 2, n - 6) + [waitlg(0, tgt=n - 1, stream="rd")]
        if c <= 2:
            bars = [x for x in o if x.k == "bar"]
            base = {0: 2, 1: 4, 2: 7}[c]
            for k_, x in enumerate(bars[:2 if c == 1 else 1]): o += stampf(base + k_, "p0", x, x.tgt)
            if c < 2: o += stampf(base + len(bars), "p0", m[-1], n - 1)
        V.finish(o, strict=True, lds_lat=3)
        if c == 1 and nq == 3: V.finish([wvm({"clr"})] + register(), sched=False)
        V.finish(stamp(c + 2, "p1") if c < 6 else [], sched=False)
    c7 = chunk_mfma(7, nq, amajor=True)
    g0 = wvm({"K0"}, tgt=cfg.g7, stream=["dma", "rd"]); g1 = barrier(tgt=cfg.g7 + 1, stream=["dma", "rd"])
    if cfg.kve == 0: o = [g0, g1] + c7 + kv_dma_static("K", 2, cfg.g7 + 3, 3) + k_reads(0, cfg.g7 + 4, 1) + group_load(cfg.g7 + 14) + kv_dma_static("V", 1, n - 12, 3)
    elif cfg.kve == 9: o = [g0, g1] + c7 + k_reads(0, cfg.g7 + 4, 1) + group_load(cfg.g7 + 14) + kv_dma_static("K", 2, cfg.g7 + 3, n // 8) + kv_dma_static("V", 1, n - 8, n // 8)
    elif cfg.kve >= 6: o = [g0, g1] + c7 + k_reads(0, cfg.g7 + 4, 1) + group_load(cfg.g7 + 14) + kv_dma_static("V", 1, cfg.g7 + 3, n // 5)
    else: o = [g0, g1] + c7 + kv_dma_static("K", 3, cfg.g7 + 3, 3) + k_reads(0, cfg.g7 + 4, 1) + group_load(cfg.g7 + 14)
    for a in range(nq): o += q_convert(a, 16 * (a + 1) + 3, cfg.qdt)
    o += stampf(2, "main", c7[-1], n - 1)
    V.st_trans = gap_stats(V.finish(o + first_tile(nq, n), budget=cfg.mbudget, lag=cfg.mlag, look=cfg.mlook))
    V.finish([label(f"L_{name}_join")] + stamp(3), sched=False)
    ge = group_eval() + p3_srd_w() + (touch_setup3() if cfg.wtouch else []) + (touch_setup4() if cfg.otm else touch_setup2() if nq == 3 and cfg.touch else [])
    for k, x in enumerate(ge): x.tgt = 3 + 2 * k; x.stream = "ge"
    V.finish(sched_iter(0, nq, first=True, extra=ge), sched=False)
    seqs = [V.resolve_vm(sched_iter(T, nq)) for T in range(1, 12)]
    for k, c in enumerate(seqs[0]):
        if c.k == "wait" and c.meta[0] == "vm":
            n_ = min(q[k].meta[1] for q in seqs)
            for q in seqs: q[k] = waitvm(n_, need=q[k].need)
    _, p1 = insert_lgkm(seqs[0], V.pend)
    body, p2 = insert_lgkm(seqs[0], p1)
    body = fix_hazards(body + [nop(15)] * cfg.slow + [raw(f"s_cbranch_scc1 L_{name}_loop", "branch", rd=["scc"])], body)
    if len(V.pend) > len(p1): V.static.append(waitlg(len(p1))); V.trace.append(V.static[-1])
    V.static.append(label(f"L_{name}_loop"))
    V.static += body; V.pend = p2; V.loop_stats = gap_stats(body)
    for cur in seqs:
        new = []; k = 0
        for c in body:
            if k < len(cur) and cur[k].t == c.t: new.append(cur[k]); k += 1
            else: new.append(c)
        assert k == len(cur), ("loop body differs", cur[k].t)
        V.trace += new
    for T in (12, 13, 14): V.finish(sched_iter(T, nq, peeled=True), sched=False)
    V.finish(stamp(4), sched=False)
    if cfg.its:
        V.finish([raw("s_lshl_b32 s4, s2, 10"), raw(f"s_lshl_b32 s5, s{sW}, 8"), raw("s_add_u32 s4, s4, s5"), raw(f"s_add_u32 s4, s4, {STAMP_OFF + 0x100000}"),
                  raw(f"s_add_u32 s4, s{sWS}, s4"), raw(f"s_addc_u32 s5, s{sWS+1}, 0"), raw(f"v_lshlrev_b32 v126, 2, v{vLane}"), raw("global_store_dword v126, v127, s[4:5]"), raw("s_nop 1")], sched=False)
    h2 = 16
    o = v_reads(1, -1, 0.5)
    inv = TMP
    A = o.append
    if cfg.fallback:
        A(salu("s_lshl_b32", s(sT2), s(sW), "2", tgt=12)); A(salu("s_add_u32", s(sT2), s(sT2), str(VOTE), tgt=13))
        A(valu("v_mov_b32", v(TMP + 13), s(sT2), tgt=14)); A(valu("v_mov_b32", v(TMP + 14), str(VOTE), tgt=14))
        A(salu("s_mov_b32", s(sT0), hex(LIMIT), tgt=14)); A(raw("s_mov_b64 s[54:55], 0", "salu", wr=["s54", "s55"], tgt=15))
    smx = sm(1, nq, 0, 1.0)
    def smt(a, t0, t1):
        x = [y for y in smx if (y.rd | y.wr) & set(R("v", S_[1] + 8 * a, 8))]
        for k, y in enumerate(x): y.tgt = int(t0 + (t1 - t0) * k / len(x))
        return x
    k = 0; t = 0
    for a in range(nq):
        o += smt(a, max(-1, t - cfg.tsm), t + 2 if a else 6)
        p0 = [mfma("a", oacc(a, tt), "a", KF + 4 * tt, "v", P_[0] + 4 * a) for tt in range(8)]
        p1 = [mfma("a", oacc(a, tt), "a", VF + 4 * tt, "v", P_[1] + 4 * a) for tt in range(8)]
        if a in mtiles(nq):
            if a == 0: p0.append(lsum_mfma(0, a)); p1.insert(0, lsum_mfma(1, a))
            else: p0.insert(0, lsum_mfma(0, a)); p1.insert(0, lsum_mfma(1, a))
        o += (p0 + p1) if a == 0 else [y for pr in zip(p0, p1) for y in pr]
        if a not in mtiles(nq): o += xreduce("v_add_f32", LSUM + a, TMP + 8 + a, t + 8, 1)
        A(valu("v_rcp_f32", v(inv + a), v(lsreg(a, nq)), tgt=t + 14))
        if cfg.fallback:
            A(valu("v_cmp_nge_f32", "vcc", s(sT0), v(lsreg(a, nq)), tgt=t + 14))
            A(raw("s_or_b64 s[54:55], s[54:55], vcc", "salu", rd=["vcc", "s54", "s55"], wr=["s54", "s55", "scc"], tgt=t + 15))
        if a < nq - 1: t += len(p0) + len(p1)
        if a == nq - 1:
            tv = t + 15
            if cfg.fallback:
                A(salu("s_cselect_b32", s(sT0), "1", "0", tgt=tv)); A(valu("v_mov_b32", v(TMP + 12), s(sT0), tgt=tv))
                A(I(f"ds_write_b32 v{TMP+13}, v{TMP+12}", "ldsw", rd=[v(TMP + 12), v(TMP + 13)], tgt=tv, stream="rd"))
    epi = []
    for a in range(nq):
        for sg in range(4):
            tb = 16 * (k % 4) if a else 104 + 12 * (k % 2)
            if a == 1: tb = 16 * (k % 2)
            t0 = h2 * (a + 1) + 2 * min(a + 1, len(mtiles(nq))) + 3 + cfg.tepi * sg
            blk = [salu("s_mov_b32", s(sT1), str(8192 * sg), stream="st")]
            blk += [valu("v_accvgpr_read_b32", v(tb + r), f"a{oacc(a, 2*sg) + r}") for r in range(8)]
            blk += [valu("v_mul_f32", v(tb + r), v(inv + a), v(tb + r)) for r in range(8)]
            blk += [valu("v_cvt_pk_bf16_f32", v(tb + 8 + r), v(tb + 2 * r), v(tb + 2 * r + 1)) for r in range(4)]
            blk += [bstore("v", tb + 8, v(vOst), SO, s(sT1), 1024 * a, cfg.oflags, stream="st", grp="O")]
            for y in blk: y.tgt = t0
            k += 1
            if a < nq - 1: o += blk
            else: epi += blk
    V.st_tail = gap_stats(V.finish(o, budget=cfg.tbudget, lag=cfg.tlag, look=cfg.tlook))
    o = epi[:22] + [waitlg(0), barrier()]
    if cfg.fallback: o.append(ds_b128("v", TMP + 4, v(TMP + 14), 0))
    o += epi[22:]
    V.finish(o, sched=False)
    V.finish(stamp(5), sched=False)
    V.npre = len(V.vm)
    if cfg.fallback:
        o = []; A = o.append
        A(valu("v_or3_b32", v(TMP + 12), v(TMP + 4), v(TMP + 5), v(TMP + 6))); A(valu("v_or_b32", v(TMP + 12), v(TMP + 12), v(TMP + 7)))
        A(valu("v_readfirstlane_b32", s(sT0), v(TMP + 12)))
        A(salu("s_andn2_b32", s(sT0), s(sT0), s(sPASS))); A(raw(f"s_cbranch_scc0 L_{name}_end", "branch", rd=["scc"]))
        A(waitvm(0)); A(barrier())
        A(valu("v_mov_b32", v(vKrd), v(vKrd0))); A(salu("s_mov_b32", s(sKo), "0")); A(salu("s_mov_b32", "m0", s(sG)))
        A(label(f"L_{name}_mx"))
        for m in range(4): A(dma(v(vKV + m), SK, s(sKo), m * PIECE, cfg.kvflags))
        A(waitvm(0)); A(barrier())
        for j in range(2):
            o += k_reads(j) + [waitlg(0)] + qk(0, nq, first=True) + [nop(7)]
            for a in range(nq):
                for r in range(4): A(valu("v_max3_f32", v(MTRUE + a), v(S_[0] + 8 * a + 2 * r), v(S_[0] + 8 * a + 2 * r + 1), v(MTRUE + a)))
        A(barrier())
        A(salu("s_add_u32", s(sKo), s(sKo), "16384")); A(salu("s_cmp_lt_u32", None, s(sKo), "262144")); A(raw(f"s_cbranch_scc1 L_{name}_mx", "branch", rd=["scc"]))
        A(salu("s_mov_b32", s(sPASS), "1"))
        for wh, tl in (("K", 0), ("V", 0), ("K", 1), ("K", 2), ("V", 1)): o += kv_dma_static(wh, tl)
        o += group_load() + [waitvm(0), barrier()] + k_reads(0) + [waitlg(0)]
        V.finish(o, sched=False)
        V.finish(first_tile(nq, 0, redo=True))
        V.finish([waitlg(0), raw(f"s_branch L_{name}_join", "branch")], sched=False)
    if cfg.fused:
        V.finish([label(f"L_{name}_end"), raw("s_branch L_p3", "branch")], sched=False)
    else:
        V.finish([label(f"L_{name}_end")] + stamp(6) + dump_stamps(10, sWS, STAMP_OFF, v(vLane), "L_k1_done") + [raw("s_endpgm")], sched=False)
    return V

XOFF = 0x1000000; FOFF = 0x3000000
S3O, S3W, S3X, S3Out = 8, 12, 16, 40
s3HG, s3RP, s3CQ, s3T, s3U, s3ROT, sUNI, sF1, sF2 = 36, 37, 38, 92, 93, 94, 39, 31, 30
v3Wd = 252; vG = 224
v3Or, v3Rr, v3St, v3L16, v3Wr = 104, 106, 107, 108, 109
NW_ = 9
class _WU:
    def __getitem__(self, k): return ((8, 0, 2, 1, 4, 3, 6, 5, 7) if cfg.dV == 3 else (0, 2, 3, 4, 5, 6, 7, 8, 1))[k]
WU = _WU()
def oset(u, sg, a): return 128 + (u % 8) * 16 + (sg * 2 + a) * 4
def wset3(p, sg, tau): return p * 64 + (sg * 8 + tau) * 4
def one_lane(ins): return [raw("s_mov_b64 exec, 1", "salu"), ins, raw("s_mov_b64 exec, -1", "salu")]
def flag_addrs(t0=None):
    o = []; A = o.append
    A(salu("s_lshr_b32", s(s3HG), s(sH), "3")); A(salu("s_bfe_u32", s(s3RP), s(sH), "0x10002", scc_w=True)); A(salu("s_and_b32", s(s3CQ), s(sH), "3"))
    A(salu("s_lshl_b32", s(sF1), s(sB), "2")); A(salu("s_add_u32", s(sF1), s(sF1), s(s3HG))); A(salu("s_lshl_b32", s(sF1), s(sF1), "7")); A(salu("s_add_u32", s(sF1), s(sF1), hex(FOFF)))
    A(salu("s_lshl_b32", s(sF2), s(sB), "3")); A(salu("s_and_b32", s(s3T), s(sH), "7")); A(salu("s_add_u32", s(sF2), s(sF2), s(s3T))); A(salu("s_lshl_b32", s(sF2), s(sF2), "9")); A(salu("s_add_u32", s(sF2), s(sF2), hex(FOFF + 4096)))
    if t0 is not None:
        for k, x in enumerate(o): x.tgt = t0 + k; x.stream = "p3s"
    return o
def clear_flags():
    o = []; A = o.append
    A(salu("s_lshr_b32", s(54), s(sH), "3")); A(salu("s_and_b32", s(55), s(sH), "7"))
    A(salu("s_lshl_b32", s(sT0), s(sB), "2")); A(salu("s_add_u32", s(sT0), s(sT0), s(54))); A(salu("s_lshl_b32", s(sT0), s(sT0), "5")); A(salu("s_add_u32", s(sT0), s(sT0), s(55)))
    A(salu("s_lshl_b32", s(sT0), s(sT0), "2")); A(salu("s_add_u32", s(sT0), s(sT0), hex(FOFF)))
    A(salu("s_lshl_b32", s(sT1), s(sB), "3")); A(salu("s_add_u32", s(sT1), s(sT1), s(55))); A(salu("s_lshl_b32", s(sT1), s(sT1), "7")); A(salu("s_add_u32", s(sT1), s(sT1), s(54)))
    A(salu("s_lshl_b32", s(sT1), s(sT1), "2")); A(salu("s_add_u32", s(sT1), s(sT1), hex(FOFF + 4096)))
    A(valu("v_mov_b32", "v8", s(sT0))); A(valu("v_lshlrev_b32", "v9", "7", v(vLane))); A(valu("v_add_u32", "v9", s(sT1), "v9")); A(valu("v_mov_b32", "v10", "0"))
    A(raw("s_mov_b64 exec, 1", "salu"))
    A(I(f"global_store_dword v8, v10, s[{sWS}:{sWS+1}] sc1", "vmem", rd=["v8", "v10"], meta="store", grp="clr"))
    A(raw("s_mov_b64 exec, 15", "salu"))
    A(I(f"global_store_dword v9, v10, s[{sWS}:{sWS+1}] sc1", "vmem", rd=["v9", "v10"], meta="store", grp="clr"))
    A(raw("s_mov_b64 exec, -1", "salu"))
    return o
def page_warm():
    o = []; A = o.append; L = v(vLane)
    A(valu("v_and_b32", "v8", "31", L)); A(valu("v_lshlrev_b32", "v8", "20", "v8"))
    A(valu("v_and_b32", "v9", "3", L)); A(valu("v_lshlrev_b32", "v10", "20", "v9")); A(valu("v_mul_u32_u24", "v9", "0x78000", "v9"))
    for a, b in (("v8", f"s[{sWS}:{sWS+1}]"), ("v10", "s[56:57]"), ("v9", "s[58:59]")):
        A(I(f"global_load_dword v231, {a}, {b}", "vmem", rd=[a], meta="load", grp="pw"))
    return o
def tlb_warm():
    o = [valu("v_and_b32", "v228", "15", v(vLane)), valu("v_lshlrev_b32", "v228", "14", "v228"), valu("v_add_u32", "v228", "128", "v228")]
    for sr in (SK, SV):
        x = bload("v", 231, "v228", sr, "0", 0, "nt", n=1, grp="touch", stream="dma"); x.wr = set(); o.append(x)
    if cfg.tlbx:
        A = o.append; L = v(vLane)
        gl = lambda a, b: I(f"global_load_dword v231, {a}, {b} nt", "vmem", rd=[a], meta="load", grp="touch", stream="dma")
        A(salu("s_lshr_b32", s(54), s(sH), "3")); A(salu("s_lshl_b32", s(54), s(54), "20")); A(valu("v_lshlrev_b32", "v228", "14", L)); A(valu("v_add_u32", "v228", s(54), "v228")); A(gl("v228", "s[56:57]"))
        A(salu("s_lshl_b32", s(54), s(sB), "3")); A(salu("s_and_b32", s(55), s(sH), "7")); A(salu("s_add_u32", s(54), s(54), s(55))); A(salu("s_lshl_b32", s(54), s(54), "18")); A(salu("s_add_u32", s(54), s(54), hex(XOFF + 8192)))
        A(valu("v_and_b32", "v228", "15", L)); A(valu("v_lshlrev_b32", "v228", "14", "v228")); A(valu("v_add_u32", "v228", s(54), "v228"))
        A(salu("s_lshl_b32", s(54), s(sB), "21")); A(salu("s_lshl_b32", s(55), s(sH), "15")); A(salu("s_add_u32", s(54), s(54), s(55)))
        A(valu("v_and_b32", "v229", "1", L)); A(valu("v_lshlrev_b32", "v229", "14", "v229")); A(valu("v_bfe_u32", "v230", L, "1", "1")); A(valu("v_lshl_add_u32", "v229", "v230", "20", "v229")); A(valu("v_add_u32", "v229", s(54), "v229"))
        A(valu("v_cmp_gt_u32", "vcc", "16", L)); A(valu("v_cndmask_b32", "v228", "v229", "v228", "vcc")); A(gl("v228", f"s[{sWS}:{sWS+1}]"))
        A(salu("s_mul_i32", s(54), s(sB), "245760")); A(valu("v_min_u32", "v228", "14", L)); A(valu("v_lshlrev_b32", "v228", "14", "v228")); A(valu("v_add_u32", "v228", s(54), "v228")); A(gl("v228", "s[58:59]"))
    for x in o: x.stream = "dma"
    return o
def xcc_word(dst, tmp):
    o = [raw(f"s_getreg_b32 s{tmp}, hwreg(HW_REG_XCC_ID, 0, 4)", "salu", wr=[s(tmp)])]
    if cfg.forcemix: o.append(salu("s_and_b32", s(tmp), s(sH), "1"))
    o += [salu("s_mul_i32", s(dst), s(tmp), s(tmp)), salu("s_lshl_b32", s(dst), s(dst), "8"), salu("s_add_u32", s(dst), s(dst), s(tmp)),
          salu("s_lshl_b32", s(dst), s(dst), "8"), salu("s_add_u32", s(dst), s(dst), "1")]
    return o
def register():
    o = xcc_word(sT0, sT1); A = o.append
    A(salu("s_lshr_b32", s(sT1), s(sH), "3")); A(salu("s_lshl_b32", s(sT2), s(sB), "2")); A(salu("s_add_u32", s(sT1), s(sT1), s(sT2))); A(salu("s_lshl_b32", s(sT1), s(sT1), "2"))
    A(valu("v_mov_b32", "v228", s(sT1))); A(valu("v_mov_b32", "v229", s(sT0)))
    o += one_lane(I(f"global_atomic_add v228, v229, s[100:101]{GOFF()} sc1", "vmem", rd=["v228", "v229"], meta="store"))
    return o
sRDY = 97
def group_load(t0=None):
    o = [salu("s_lshl_b32", s(sT2), s(sB), "4"), valu("v_mov_b32", v(vG + 4), s(sT2)),
         I(f"global_load_dwordx4 v[{vG}:{vG+3}], v{vG+4}, s[100:101]{GOFF()} sc1", "vmem", rd=[v(vG + 4)], wr=R("v", vG, 4), meta="load", grp="G", stream="dma"),
         salu("s_lshr_b32", s(sRDY), s(sH), "3"), salu("s_lshl_b32", s(sRDY), s(sRDY), "2"), salu("s_add_u32", s(sT2), s(sT2), s(sRDY)), valu("v_mov_b32", v(vG + 4), s(sT2)),
         I(f"global_load_dword v{vG+5}, v{vG+4}, s[100:101]{GOFF()} sc1", "vmem", rd=[v(vG + 4)], wr=[v(vG + 5)], meta="load", grp="G", stream="dma")]
    if t0 is not None:
        for k, x in enumerate(o): x.tgt = t0 + k
    return o
def group_eval():
    o = []; A = o.append
    A(valu("v_and_b32", v(vG), v(vG), v(vG + 1))); A(valu("v_and_b32", v(vG + 2), v(vG + 2), v(vG + 3))); A(valu("v_and_b32", v(vG), v(vG), v(vG + 2)))
    A(valu("v_readfirstlane_b32", s(sRDY), v(vG))); A(valu("v_readfirstlane_b32", s(sUNI), v(vG + 5)))
    A(salu("s_and_b32", s(sRDY), s(sRDY), "8"))
    o += xcc_word(54, 55)
    A(salu("s_lshl_b32", s(54), s(54), "3")); A(salu("s_cmp_eq_u32", None, s(sUNI), s(54))); A(salu("s_cselect_b32", s(sUNI), "1", "0"))
    return o
def p3_srd_w():
    o = flag_addrs(); A = o.append
    A(salu("s_lshl_b32", s(s3ROT), s(s3T), "1"))
    A(salu("s_lshl_b32", s(s3T), s(s3HG), "20")); A(salu("s_lshl_b32", s(s3U), s(s3CQ), "6" if cfg.wil else "8")); A(salu("s_add_u32", s(s3T), s(s3T), s(s3U)))
    A(salu("s_sub_u32", s(s3U), str(1048576 + 128), s(s3U)))
    o += srd(S3W, 56, 57, s3T, 128, s(s3U))
    return o
STC = 92; sTs = 96; STC2 = 4
def touch_setup1a():
    o = []; A = o.append; L = v(vLane)
    A(salu("s_and_b32", s(sT0), s(sW), "1")); A(salu("s_mul_i32", s(sTs), s(sT0), str(524288 - 128))); A(salu("s_add_u32", s(sTs), s(sTs), "128"))
    A(salu("s_cmp_eq_u32", None, s(sT0), "1")); A(raw("s_cselect_b64 vcc, -1, 0", "salu", rd=["scc"], wr=["vcc"]))
    A(valu("v_and_b32", "v8", "31", L)); A(valu("v_min_u32", "v9", "29", "v8"))
    A(salu("s_and_b32", s(sT0), s(sH), "7")); A(salu("s_mul_i32", s(sT0), s(sT0), "30")); A(valu("v_add_u32", "v9", s(sT0), "v9")); A(valu("v_lshlrev_b32", "v9", "10", "v9")); A(valu("v_add_u32", "v9", "128", "v9"))
    A(salu("s_and_b32", s(sT0), s(sB), "3")); A(salu("s_lshl_b32", s(sT0), s(sT0), "5")); A(valu("v_add_u32", "v8", s(sT0), "v8"))
    A(valu("v_lshrrev_b32", "v10", "1", "v8")); A(valu("v_lshlrev_b32", "v10", "13", "v10")); A(valu("v_and_b32", "v8", "1", "v8")); A(valu("v_lshl_add_u32", "v8", "v8", "7", "v10"))
    A(valu("v_cndmask_b32", "v8", "v9", "v8", "vcc"))
    if cfg.c3: A(valu("v_mov_b32", v(vT + 2), "v8")); return o
    A(valu("v_lshrrev_b32", "v9", "5", L)); A(valu("v_mul_lo_u32", "v9", s(sTs), "v9")); A(valu("v_add_u32", v(vT + 2), "v8", "v9"))
    A(salu("s_lshr_b32", s(sT0), "s2", "3")); A(salu("s_lshl_b32", s(sT0), s(sT0), "15")); A(salu("s_lshr_b32", s(sT1), s(sH), "3")); A(salu("s_lshl_b32", s(sT1), s(sT1), "20"))
    A(salu("s_add_u32", s(sT0), s(sT0), s(sT1))); A(valu("v_lshlrev_b32", v(vT + 3), "7", L)); A(valu("v_add_u32", v(vT + 3), s(sT0), v(vT + 3)))
    return o
def touch_setup1b():
    o = []; A = o.append
    A(salu("s_bitcmp1_b32", None, s(sW), "0", scc_w=True))
    for k in range(3): A(salu("s_cselect_b32", s(STC + k), s(SWQ + k), s(SX + k)))
    A(salu("s_mov_b32", s(STC + 3), "0x20000"))
    A(salu("s_cmp_ge_u32", None, s(sW), "2")); A(salu("s_cselect_b32", s(STC + 2), "0", s(STC + 2)))
    return o
def touch_setup3():
    o = []; A = o.append
    A(salu("s_lshr_b32", s(54), "s2", "3")); A(salu("s_lshl_b32", s(54), s(54), "2")); A(salu("s_add_u32", s(54), s(54), s(sW))); A(salu("s_lshl_b32", s(54), s(54), "13"))
    A(salu("s_lshl_b32", s(55), s(s3HG), "20")); A(salu("s_add_u32", s(54), s(54), s(55)))
    A(valu("v_lshlrev_b32", "v230", "7", v(vLane))); A(valu("v_add_u32", "v230", s(54), "v230"))
    return o
def touch_setup4():
    return [valu("v_lshrrev_b32", "v230", "5", v(vLane)), valu("v_lshlrev_b32", "v230", "13", "v230"), valu("v_and_b32", "v229", "31", v(vLane)), valu("v_lshl_add_u32", "v230", "v229", "7", "v230")]
def touch_setup2():
    o = []; A = o.append
    A(salu("s_lshl_b32", s(54), s(sB), "21")); A(salu("s_lshl_b32", s(55), s(sH), "15")); A(salu("s_add_u32", s(54), s(54), s(55)))
    o += srd(SX, sWS, sWS + 1, 54, 0, str(1048576 + 32768))
    if cfg.wroll:
        assert cfg.dV == 3
        A(salu("s_lshr_b32", s(54), "s2", "3")); A(salu("s_lshl_b32", s(54), s(54), "15")); A(salu("s_lshl_b32", s(55), s(s3HG), "20")); A(salu("s_add_u32", s(54), s(54), s(55)))
        o += srd(STC2, 56, 57, 54, 0, "32768")
    A(salu("s_lshl_b32", s(54), s(s3RP), "20")); A(valu("v_lshlrev_b32", v(vT + 1), "7", v(vLane))); A(valu("v_add_u32", v(vT + 1), s(54), v(vT + 1)))
    A(valu("v_xor_b32", v(vT), "0x100000", v(vT + 1)))
    A(valu("v_add_u32", v(vT + 2), "0x2000", v(vT))); A(valu("v_add_u32", v(vT + 3), "0x2000", v(vT + 1)))
    if cfg.prew: A(valu("v_mov_b32", v(vPW), v(vOst))); A(valu("v_add_u32", v(vPW + 1), "0x100000", v(vOst)))
    return o
def p3_wdma(u):
    st = "dma"
    o = [salu("s_add_u32", s(s3U), s(s3ROT), str(u), stream=st), salu("s_and_b32", s(s3U), s(s3U), "15", stream=st), salu("s_lshl_b32", s(s3U), s(s3U), "16", stream=st),
         salu("s_add_u32", "m0", s(sG), str(WU[u % NW_] * UNIT), stream=st)]
    for m in range(4): o.append(dma(v(v3Wd + m), S3W, "0" if cfg.now else s(s3U), m * PIECE, cfg.k2_wflags, grp=f"w{u}", stream=st))
    return o
sXo3 = 48; sXs = 49
OWN = 0
def p3_oload(u, nq):
    st = "dma"
    o = [salu("s_add_u32", s(s3T), s(s3ROT), str(u), stream=st), salu("s_and_b32", s(s3T), s(s3T), "15", stream=st), salu("s_lshl_b32", s(s3T), s(s3T), "14", stream=st)]
    for sg in range(2):
        for a in range(nq): o.append(bload("a", oset(u, sg, a), v(v3Or + sg), S3O, "0" if cfg.noo else s(s3T), a * 1024, cfg.o3flags, grp=f"o{u}", stream=st))
    return o
def p3_reads(u):
    p = u & 1; o = []; sl = WU[u % NW_]
    for tau in range(8):
        for sg in range(2):
            for z in range(2):
                o.append(ds_tr("a", wset3(p, sg, tau) + 2 * z, v(v3Wr + sl // 3), (sl % 3) * UNIT + z * 8 * PIECE + sg * 512 + 32 * tau, stream="rd"))
    return o
def p3_setup2(L):
    o = []; A = o.append
    A(salu("s_lshl_b32", s(sT0), s(sB), "1")); A(salu("s_add_u32", s(sT0), s(sT0), s(s3RP)))
    A(salu("s_lshl_b32", s(sT1), s(sT0), "20")); A(salu("s_lshl_b32", s(sT2), s(s3HG), "18")); A(salu("s_add_u32", s(sT1), s(sT1), s(sT2))); o += srd(S3O, sWS, sWS + 1, sT1, 0, "262144")
    A(salu("s_lshl_b32", s(sT1), s(sT0), "2")); A(salu("s_add_u32", s(sT1), s(sT1), s(s3CQ))); A(salu("s_lshl_b32", s(sT1), s(sT1), "18")); A(salu("s_add_u32", s(sT1), s(sT1), hex(XOFF)))
    o += srd(S3X, sWS, sWS + 1, sT1, 0, "262144")
    A(salu("s_lshl_b32", s(sT1), s(s3RP), "2")); A(salu("s_add_u32", s(sT1), s(sT1), s(s3HG))); A(salu("s_lshl_b32", s(sT1), s(sT1), "15"))
    A(salu("s_lshl_b32", s(sT2), s(s3CQ), "6" if cfg.wil else "8")); A(salu("s_add_u32", s(sT1), s(sT1), s(sT2)))
    A(salu("s_mul_i32", s(sT0), s(sB), "245760")); A(salu("s_add_u32", s(sT0), s(sT0), s(sT1))); A(salu("s_sub_u32", s(sT1), "245760", s(sT1)))
    o += srd(S3Out, 58, 59, sT0, 0, s(sT1))
    A(salu("s_lshl_b32", s(sXo3), s(sW), "12"))
    A(valu("v_lshlrev_b32", v(v3L16), "4", L))
    A(salu("s_lshl_b32", s(sT0), s(sW), "11")); A(valu("v_add_u32", v(v3Or), s(sT0), v(v3L16))); A(valu("v_add_u32", v(v3Or + 1), "0x2000", v(v3Or)))
    A(valu("v_subrev_u32", v(v3Wr), str(UNIT), v(vVrd0))); A(valu("v_add_u32", v(v3Wr + 1), str(3 * UNIT), v(v3Wr))); A(valu("v_add_u32", v(v3Wr + 2), str(6 * UNIT), v(v3Wr)))
    A(valu("v_and_b32", "v97", "15", L)); A(valu("v_lshrrev_b32", "v98", "4", L))
    if cfg.xbf:
        A(valu("v_add_u32", v(v3Rr), s(sXo3), v(v3L16))); A(salu("s_lshl_b32", s(sT0), s(sW), "11")); A(valu("v_add_u32", v(v3Rr + 9), s(sT0), v(v3L16)))
    else:
        A(valu("v_lshlrev_b32", "v101", "9", "v98")); A(valu("v_lshl_add_u32", "v101", "v97", "4", "v101")); A(valu("v_add_u32", v(v3Rr), s(sXo3), "v101"))
        A(valu("v_add_u32", v(v3L16 + 8), "0x2000", v(v3L16)))
    for k in range(1, 4):
        A(salu("s_add_u32", s(sT0), s(s3HG), str(k))); A(salu("s_and_b32", s(sT0), s(sT0), "3")); A(salu("s_lshl_b32", s(sT1), s(s3HG), "2")); A(salu("s_add_u32", s(sT0), s(sT0), s(sT1)))
        A(salu("s_lshl_b32", s(sXs + k - 1), s(sT0), "14"))
    A(valu("v_and_b32", "v101", "3", L)); A(valu("v_max_u32", "v101", "1", "v101")); A(valu("v_add_u32", "v101", s(s3HG), "v101")); A(valu("v_and_b32", "v101", "3", "v101"))
    A(salu("s_lshl_b32", s(sT0), s(s3HG), "7")); A(salu("s_add_u32", s(sT0), s(sT0), s(sF2))); A(valu("v_lshlrev_b32", "v101", "2", "v101")); A(valu("v_add_u32", v(vPl + 2), s(sT0), "v101"))
    A(salu("s_lshr_b32", s(sT0), s(sW), "1")); A(salu("s_lshl_b32", s(sT0), s(sT0), "14")); A(salu("s_and_b32", s(sT1), s(sW), "1")); A(salu("s_lshl_b32", s(sT1), s(sT1), "9" if cfg.wil else "7")); A(salu("s_add_u32", s(sT0), s(sT0), s(sT1)))
    A(valu("v_lshlrev_b32", "v101", "10", "v97")); A(valu("v_lshl_add_u32", "v101", "v98", "3" if cfg.xbf else "4", "v101")); A(valu("v_add_u32", v(v3St), s(sT0), "v101"))
    return o
def poll(lab, base, n):
    o = []; A = o.append
    A(valu("v_lshlrev_b32", "v96", "2", v(vLane))); A(valu("v_add_u32", "v96", s(base), "v96")); A(salu("s_mov_b32", s(sT1), "0"))
    A(raw(f"s_mov_b64 exec, {(1 << n) - 1}", "salu"))
    A(label(lab))
    A(raw(f"global_load_dword v97, v96, s[{sWS}:{sWS+1}] sc1")); A(raw("s_waitcnt vmcnt(0)")); A(raw("v_cmp_ne_u32 vcc, 1, v97"))
    A(raw(f"s_add_u32 s{sT1}, s{sT1}, 1")); A(raw(f"s_cbranch_vccz {lab}_ok"))
    A(raw("s_sleep 1")); A(raw(f"s_cmp_lt_u32 s{sT1}, 0x200000")); A(raw(f"s_cbranch_scc1 {lab}"))
    A(label(f"{lab}_ok")); A(raw("s_mov_b64 exec, -1", "salu"))
    return o
def publish(nm, nlate):
    o = []; A = o.append
    A(waitvm(nlate)); A(barrier()); o += stamp(6)
    A(salu("s_cmp_lg_u32", None, s(sW), "0")); A(raw(f"s_cbranch_scc1 L_{nm}_a", "branch", rd=["scc"]))
    A(salu("s_cmp_eq_u32", None, s(sUNI), "1")); A(raw(f"s_cbranch_scc1 L_{nm}_u", "branch", rd=["scc"]))
    A(raw("buffer_wbl2 sc1")); A(raw("s_waitcnt vmcnt(0)"))
    o += one_lane(raw(f"global_store_dword v96, v97, s[{sWS}:{sWS+1}] sc1"))
    A(raw(f"s_branch L_{nm}_a", "branch"))
    A(label(f"L_{nm}_u"))
    o += one_lane(raw(f"global_store_dword v96, v97, s[{sWS}:{sWS+1}]"))
    A(label(f"L_{nm}_a"))
    return o
def p3_front(V):
    L = v(vLane); o = []; A = o.append
    A(label("L_p3")); o += p3_setup2(L)
    A(salu("s_mov_b32", s(sTo), "0"))
    A(label("L_p3_r")); A(salu("s_cmp_lg_u32", None, s(sRDY), "0")); A(raw("s_cbranch_scc1 L_p3_rok", "branch", rd=["scc"]))
    A(salu("s_add_u32", s(sTo), s(sTo), "1")); A(salu("s_cmp_gt_u32", None, s(sTo), "0x100000")); A(raw("s_cbranch_scc1 L_p3_rok", "branch", rd=["scc"]))
    for x in group_load(): x.grp = None; x.k = "other" if x.k == "vmem" else x.k; A(x)
    A(raw("s_waitcnt vmcnt(0)")); o += group_eval(); A(raw("s_sleep 8")); A(raw("s_branch L_p3_r", "branch"))
    A(label("L_p3_rok"))
    A(salu("s_and_b32", s(sT0), s(sH), "7")); A(salu("s_lshl_b32", s(sT0), s(sT0), "2")); A(salu("s_add_u32", s(sT0), s(sT0), s(sF1)))
    A(valu("v_mov_b32", "v96", s(sT0))); A(valu("v_mov_b32", "v97", "1"))
    A(valu("v_and_b32", v(vPl), "7", L)); A(valu("v_lshlrev_b32", v(vPl), "2", v(vPl))); A(valu("v_add_u32", v(vPl), s(sF1), v(vPl)))
    if not cfg.p3early: o += publish("p3", 0)
    A(salu("s_lshl_b32", s(sT0), s(s3RP), "2")); A(salu("s_add_u32", s(sT0), s(sT0), s(sW)))
    A(salu("s_cmp_eq_u32", None, s(sT0), "7")); A(raw("s_cbranch_scc1 L_g1", "branch", rd=["scc"]))
    V.finish(o, sched=False)
vPl = 112
def p3_gemm(nq, name, V0):
    V = Variant(nq, name); V.vm = list(V0.vm); V.trace = list(V0.trace); V.pend = list(V0.pend)
    pollld = lambda: I(f"global_load_dword v{vPl+1}, v{vPl}, s[{sWS}:{sWS+1}] sc1", "vmem", rd=[v(vPl)], wr=[v(vPl + 1)], meta="load", grp="poll", stream="dma")
    r0 = p3_reads(0)
    if cfg.p3early:
        o0 = p3_oload(0, nq)
        V.finish([label(f"L_{name}")] + r0 + p3_reads(1) + o0[:3] + publish(name, 0) + o0[3:] + p3_oload(1, nq) + stamp(7) + stamp(1, "g"), sched=False)
        r0 = r0[:16]
    else: V.finish([label(f"L_{name}")] + p3_oload(0, nq) + r0[:16] + p3_oload(1, nq) + stamp(7) + stamp(1, "g"), sched=False)
    n = 16 * nq
    no = 2; nw = NW_
    o = r0[16:]
    for k, x in enumerate(o): x.tgt = -1 + k // 2
    prev = None; G = 0; wq = []
    for c in range(16):
        p = c & 1
        m = [mfma("v", a * 32 + 4 * tau, "a", wset3(p, sg, tau), "a", oset(c, sg, a), "0" if (c == 0 and sg == 0) else None) for tau in range(8) for a in range(nq) for sg in range(2)]
        w = wvm({f"o{c}", f"w{c+1}"} | ({f"w{c+2}"} if cfg.gbar2 and c % 2 == 0 and c >= 6 else set()), tgt=G - 1, stream=["bar", "dma"])
        if prev: w.after = [prev[-2]]
        m[0].after = [w]
        o += [w]
        b = None
        if 0 < c < 15 and (c % 2 == 0 or not cfg.gbar2):
            b = barrier(tgt=G, stream=["bar", "dma"])
            if prev: b.after = [prev[-1]]
            o += [b]
        o += m
        if c < 15:
            d = []
            if c == 0: d += ([pollld()] + p3_wdma(7) + p3_wdma(8)) if cfg.pollfirst else p3_wdma(7) + [pollld()] + p3_wdma(8)
            else:
                for rep in range(3 if c == 1 else 2):
                    if no < 16 and no <= c + cfg.odepth: d += p3_oload(no, nq); no += 1
                k = 0
                while c >= 2 and k < cfg.wrate and (wq or (nw < 16 and nw <= (c & ~1 if cfg.gbar2 else c) + NW_ - 1)):
                    if not wq: wq = p3_wdma(nw); nw += 1
                    elif k == 0: d.append(salu("s_add_u32", "m0", s(sG), str(WU[(nw - 1) % NW_] * UNIT), stream="dma"))
                    while wq[0].k != "vmem": d.append(wq.pop(0))
                    d.append(wq.pop(0)); k += 1
            rd = [] if (c == 0 and cfg.p3early) else p3_reads(c + 1)
            if b: rd[0].after = [b]
            vm = [x for x in d if x.k == "vmem"]
            vg = [int((k + 0.5) * n / len(vm)) for k in range(len(vm))] if vm else []
            if c == 1: vg = [1 + k * (n - 2) // len(vm) for k in range(len(vm))]
            for k, x in enumerate(vm): x.tgt = G + vg[k]
            lo = 8 * nq // 2 if c == 0 else 1
            free = [g for g in range(lo, n) if g not in vg] if (len(vg) < n - 4 and not cfg.gdl) else list(range(lo, n))
            for k, x in enumerate(rd): x.tgt = G + free[k * len(free) // 32]
            nxt = G + n
            for x in reversed(d):
                if x.k == "vmem": nxt = x.tgt
                else: nxt = x.tgt = max(G, nxt - 1)
            o += rd + d
        if c in (0, 1, 3, 7, 11): o += stampf(2 + (0, 1, 3, 7, 11).index(c), "g", m[-1], G + n - 1)
        prev = m; G += n
        if c == 0:
            V.finish(o, strict=True)
            q = [wvm({"poll"}), label(f"L_{name}_pl"), valu("v_cmp_ne_u32", "vcc", "1", v(vPl + 1)), salu("s_mov_b32", s(sT1), "0"), raw(f"s_cbranch_vccz L_{name}_pok", "branch"),
                 label(f"L_{name}_pl2"), raw("s_sleep 1"), raw(pollld().t), raw("s_waitcnt vmcnt(0)"), raw(f"v_cmp_ne_u32 vcc, 1, v{vPl+1}"), raw(f"s_add_u32 s{sT1}, s{sT1}, 1"),
                 raw(f"s_cbranch_vccz L_{name}_pok"), raw(f"s_cmp_lt_u32 s{sT1}, 0x200000"), raw(f"s_cbranch_scc1 L_{name}_pl2"),
                 label(f"L_{name}_pok"), salu("s_cmp_eq_u32", None, s(sUNI), "1"), raw(f"s_cbranch_scc1 L_{name}_pgo", "branch"),
                 raw("buffer_inv sc1"), raw("s_waitcnt vmcnt(0)"), label(f"L_{name}_pgo")]
            V.finish(q, sched=False)
            o = []; prev = None; G = 0
        if c == 14:
            V.finish(o, strict=True)
            o = []; prev = None; G = 0
    last = o
    V.finish([salu("s_lshl_b32", s(sT0), s(sW), "2"), salu("s_add_u32", s(sT0), s(sT0), s(s3HG)), salu("s_lshl_b32", s(sT0), s(sT0), "14"), salu("s_add_u32", s(sT2), s(sT0), "4096"),
              salu("s_cmp_eq_u32", None, s(sW), s(s3HG)), raw(f"s_cbranch_scc1 L_{name}_own", "branch", rd=["scc"])], sched=False)
    save = (list(V.vm), list(V.trace), list(V.pend))
    import copy
    def clone(seq):
        mp = {x.uid: I(x.t, x.k, x.rd, x.wr, x.crd, x.tgt, x.grp, x.need, x.stream, x.meta) for x in seq}
        for x in seq: mp[x.uid].after = [mp[a_.uid] for a_ in x.after]
        return [mp[x.uid] for x in seq]
    o = clone(last)
    for tau in range(8):
        for a in range(nq):
            t = 2 * nq * tau + 2 * a + 6; r = a * 32 + 4 * tau
            if cfg.xbf:
                d = 64 + a * 16 + 2 * tau
                o += [valu("v_cvt_pk_bf16_f32", v(d), v(r), v(r + 1), tgt=t), valu("v_cvt_pk_bf16_f32", v(d + 1), v(r + 2), v(r + 3), tgt=t)]
                if tau & 1: o.append(bstore("v", d - 2, v(v3L16), S3X, s(sT2 if a else sT0), 1024 * (tau >> 1), cfg.xsc, tgt=t + 1, stream="st"))
            else:
                o.append(bstore("v", r, v(v3L16 + (8 if a else 0)), S3X, s(sT2 if tau >> 2 else sT0), 1024 * (tau & 3), cfg.xsc, tgt=t, stream="st"))
    V.finish(o, strict=True)
    V.finish(stamp(8) + stamp(7, "g") + [barrier(), raw("s_branch L_fin_s", "branch"), label(f"L_{name}_own")], sched=False)
    V.vm, tr, V.pend = list(save[0]), V.trace, list(save[2]); V.trace = list(save[1])
    o = clone(last)
    for tau in range(8):
        for a in range(nq): o.append(ds_w128(v(v3L16), "v", a * 32 + 4 * tau, OWN + (a * 8 + tau) * 1024, tgt=2 * nq * tau + 2 * a + 6, stream="rd"))
    V.finish(o, strict=True)
    V.finish(stamp(8) + stamp(7, "g") + [waitlg(0), barrier(), raw("s_branch L_fin", "branch")], sched=False)
    V.trace2 = tr
    return V
def p3_final():
    V = Variant(4, "fin"); o = []; A = o.append
    A(label("L_fin_s"))
    A(salu("s_lshl_b32", s(sT0), s(sW), "5")); A(salu("s_add_u32", s(sT0), s(sT0), s(s3HG))); A(salu("s_lshl_b32", s(sT0), s(sT0), "2")); A(salu("s_add_u32", s(sT0), s(sT0), s(sF2)))
    A(valu("v_mov_b32", "v96", s(sT0))); A(valu("v_mov_b32", "v97", "1")); A(raw("s_waitcnt vmcnt(0)"))
    o += one_lane(raw(f"global_store_dword v96, v97, s[{sWS}:{sWS+1}] sc1"))
    A(label("L_fin")); o += stamp(8, "g")
    for q in range(4): A(ds_b128("v", 4 * q, v(v3Rr), OWN + (q * 1024 if cfg.xbf else (q >> 1) * 2048 + (q & 1) * 256)))
    A(salu("s_mov_b32", s(sT1), "0"))
    if cfg.ppoll:
        P = cfg.ppoll; ld = lambda k: raw(f"global_load_dword v{98+k}, v{vPl+2}, s[{sWS}:{sWS+1}] sc1")
        for k in range(P - 1): A(ld(k)); A(raw(f"s_sleep {cfg.psleep}"))
        A(label("L_fin_p"))
        for k in range(P):
            A(ld((k + P - 1) % P)); A(raw(f"s_waitcnt vmcnt({P-1})")); A(raw(f"v_cmp_ne_u32 vcc, 1, v{98+k}"))
            A(raw(f"s_add_u32 s{sT1}, s{sT1}, 1")); A(raw("s_cbranch_vccz L_fin_ok")); A(raw(f"s_sleep {cfg.psleep}"))
        A(raw(f"s_cmp_lt_u32 s{sT1}, 0x400000")); A(raw("s_cbranch_scc1 L_fin_p"))
    else:
        A(label("L_fin_p"))
        A(raw(f"global_load_dword v97, v{vPl+2}, s[{sWS}:{sWS+1}] sc1")); A(raw("s_waitcnt vmcnt(0)")); A(raw("v_cmp_ne_u32 vcc, 1, v97"))
        A(raw(f"s_add_u32 s{sT1}, s{sT1}, 1")); A(raw("s_cbranch_vccz L_fin_ok")); A(raw("s_sleep 1")); A(raw(f"s_cmp_lt_u32 s{sT1}, 0x200000")); A(raw("s_cbranch_scc1 L_fin_p"))
    A(label("L_fin_ok"))
    for k in range(1, 4):
        if cfg.xbf:
            for q in range(2): A(bload("v", 16 + 8 * k + 4 * q, v(v3Rr + 9), S3X, s(sXs + k - 1), q * 1024, "sc1", grp=f"x{k}"))
        else:
            for q in range(4): A(bload("v", 16 * k + 4 * q, v(v3Rr), S3X, s(sXs + k - 1), (q >> 1) * 2048 + (q & 1) * 256, "sc1", grp=f"x{k}"))
    for k in range(1, 4):
        A(wvm({f"x{k}"}))
        if cfg.xbf:
            for r in range(8):
                A(valu("v_lshlrev_b32", v(64 + r), "16", v(16 + 8 * k + r))); A(valu("v_and_b32", v(72 + r), "0xffff0000", v(16 + 8 * k + r)))
            for r in range(8):
                A(valu("v_add_f32", v(2 * r), v(2 * r), v(64 + r))); A(valu("v_add_f32", v(2 * r + 1), v(2 * r + 1), v(72 + r)))
        else:
            for r in range(16): A(valu("v_add_f32", v(r), v(r), v(16 * k + r)))
    for r in range(8): A(valu("v_cvt_pk_bf16_f32", v(16 + r), v(2 * r), v(2 * r + 1)))
    if cfg.xbf:
        for q in range(4): A(bstore("v", 16 + 2 * q, v(v3St), S3Out, "0", (256 * (q >> 1) + 32 * (q & 1)) if cfg.wil else 32 * q, cfg.outflags, n=2))
    else:
        for sg in range(2): A(bstore("v", 16 + 4 * sg, v(v3St), S3Out, "0", (256 if cfg.wil else 64) * sg, cfg.outflags))
    o += stamp(9) + stamp(9, "g") + dump_stamps(10, sWS, STAMP_OFF, v(vLane), "L_k1_done") + [raw("s_endpgm")]
    V.finish(o, sched=False)
    return V

HEAD = """; standalone__mha_block_cached__near_ridge: out = softmax((x wq) K^T / sqrt(128)) V wo     (gfx950, bf16 MFMA 16x16x32)
;
;  2. attention over 16 key tiles of 64 (K ring of 4, V ring of 5 LDS slots, non-temporal LDS-DMA), scores transposed
"""
def kd(name, vg, acc_off):
    return f""".amdhsa_kernel {name}
  .amdhsa_next_free_vgpr {vg}
  .amdhsa_next_free_sgpr 102
  .amdhsa_accum_offset {acc_off}
  .amdhsa_group_segment_fixed_size 0
  .amdhsa_kernarg_size 64
  .amdhsa_user_sgpr_count 2
  .amdhsa_user_sgpr_kernarg_segment_ptr 1
  .amdhsa_system_sgpr_workgroup_id_x 1
.end_amdhsa_kernel
"""
def check(pre, V):
    tr = pre + V.trace
    for nm, f in (("hazard", check_hazards), ("lgkm", check_lgkm), ("vm", check_vm)):
        bad = f(tr)
        if bad:
            print(V.name, nm, len(bad), bad[:6], file=sys.stderr); raise SystemExit(1)
def build():
    KN = "standalone__mha_block_cached__near_ridge_kernel"
    out = HEAD
    out += f"; @launch grid=(256,1,1) block=(256,1,1) lds={LDS1 + 64 + (GRP if cfg.stretch else 0)}\n"
    out += '.amdgcn_target "amdgcn-amd-amdhsa--gfx950"\n.text\n'
    out += f".globl {KN}\n.p2align 8\n.type {KN},@function\n{KN}:\n"
    pre = fix_hazards(k1_setup() + [salu("s_cmp_eq_u32", None, s(sW), "3"), raw("s_cbranch_scc1 L_w3", "branch")])
    import core
    def text(seq, _t=core.text):
        if not cfg.align: return _t(seq)
        r = ""; blk = []
        for c in seq + [None]:
            if c is None or (c.k == "label" and blk):
                a, _, miss = align8(blk, pad=cfg.align > 1); r += _t(a); blk = []
                if c is not None: r += "  .p2align 3, , 4\n" if False else "  .p2alignl 3, 0xbf800000\n"
            if c is not None: blk.append(c)
        return r
    out += text(pre)
    for nq, name in ((4, "w012"), (3, "w3")):
        V = k1_variant(nq, name, pre); check(pre, V)
        print(name, "loop (mfma, est cycles):", V.loop_stats, "total est", gap_stats(V.trace), "trans", V.st_trans, "tail", V.st_tail, file=sys.stderr)
        out += text(V.static)
    F = Variant(4, "p3"); F.vm = [x for x in V.vm[:V.npre] if x.grp and x.grp[0] == "w"]
    p3_front(F); check([], F)
    out += text(F.static)
    for nq, name in ((2, "g2"), (1, "g1")):
        W = p3_gemm(nq, name, F); check([], W); W.trace = W.trace2; check([], W)
        print(name, "total est", gap_stats(W.static), file=sys.stderr)
        out += text(W.static)
    W = p3_final(); check([], W); out += text(W.static)
    out += "L_k1_done:\n  s_endpgm\n"

    out += '.section .rodata,"a"\n.p2align 6\n' + kd(KN, 512, 256)
    return out
if __name__ == "__main__":
    path = sys.argv[1]
    for kv in sys.argv[2:]:
        k, val = kv.split("=")
        cur = getattr(cfg, k)
        setattr(cfg, k, (val == "1") if isinstance(cur, bool) else tuple(int(z) for z in val.split(",")) if isinstance(cur, tuple) else int(val, 0) if isinstance(cur, int) else type(cur)(val.replace("+", " ")))
    EAGER[0] = cfg.eager
    txt = build()
    if cfg.cpf:
        import subprocess
        open("_p1.s", "w").write(txt.replace("CODE_SHARE", "0x1000").replace("CODE_LAST", "0x10000"))
        subprocess.check_call(["clang", "-x", "assembler", "-target", "amdgcn-amd-amdhsa", "-mcpu=gfx950", "-c", "_p1.s", "-o", "_p1.o"])
        sym = {l.split()[7]: int(l.split()[1], 16) for l in subprocess.check_output(["llvm-readelf", "-s", "_p1.o"], text=True).splitlines() if len(l.split()) == 8 and l.split()[7].startswith("L_")}
        last = sym["L_k1_done"] - sym["L_pc"]; share = ((last - 4096) // 32 + 127) & ~127
        assert share <= 4096
        txt = txt.replace("CODE_SHARE", hex(share)).replace("CODE_LAST", hex(last))
    open(path, "w").write(txt)
```
